```python
import torch

def _softmax(x, axis=-1):
    return torch.softmax(x, dim=axis)
def _gelu(x):
    return torch.nn.functional.gelu(x, approximate="tanh")
def _silu(x):
    return torch.nn.functional.silu(x)
def _sigmoid(x):
    return torch.sigmoid(x)
def _layernorm(x, axis=-1, eps=1e-5):
    m = x.mean(dim=axis, keepdim=True)
    v = x.var(dim=axis, keepdim=True, unbiased=False)
    return (x - m) / torch.sqrt(v + eps)
def _scatter_add(tgt, idx, src, axis=0):
    return tgt.clone().index_add_(axis, idx, src)
def _segment_sum(src, seg, n):
    out = torch.zeros((n,) + src.shape[1:], dtype=src.dtype)
    return out.index_add_(0, seg, src)
def _pad(x, pw):
    flat = tuple(v for pair in reversed(pw) for v in pair)
    return torch.nn.functional.pad(x, flat)

kernel_name = 'gated_mix__grouped_kv_mqa__glu_gated_geglu__prompt'

def setup_inputs():

    _w = (lambda a: (lambda t: t.to(torch.bfloat16) if t.is_floating_point() else t)(torch.as_tensor(a)))
    def _A_setup():
        B, S, D, H = 1, 2048, 576, 32
        Dh = D // H
        return {
            "x": _w((lambda *s: torch.randn(*s, dtype=torch.bfloat16) * 0.05)(B, S, D)),
            "wq": _w((lambda *s: torch.randn(*s, dtype=torch.bfloat16) * 0.8)(D, H * Dh)),
            "wk": _w((lambda *s: torch.randn(*s, dtype=torch.bfloat16) * 0.8)(D, Dh)),
            "wv": _w((lambda *s: torch.randn(*s, dtype=torch.bfloat16) * 0.05)(D, Dh)),
            "wo": _w((lambda *s: torch.randn(*s, dtype=torch.bfloat16) * 0.05)(H * Dh, D)),
        }
    _A_in = _A_setup()

    def _B_setup():
        B, S, Dm, Df = 1, 2048, 576, 4608
        return {
            "x": _w((lambda *s: torch.randn(*s, dtype=torch.bfloat16) * 0.05)(B, S, Dm)),
            "w_gate": _w((lambda *s: torch.randn(*s, dtype=torch.bfloat16) * 0.8)(Dm, Df) * (Dm ** -0.5)),
            "w_up": _w((lambda *s: torch.randn(*s, dtype=torch.bfloat16) * 0.8)(Dm, Df) * (Dm ** -0.5)),
            "w_down": _w((lambda *s: torch.randn(*s, dtype=torch.bfloat16) * 0.8)(Df, Dm) * (Df ** -0.5)),
        }
    _B_in = _B_setup()

    return {
        "A_x": _A_in["x"],
        "A_wq": _A_in["wq"],
        "A_wk": _A_in["wk"],
        "A_wv": _A_in["wv"],
        "A_wo": _A_in["wo"],
        "B_x": _B_in["x"],
        "B_w_gate": _B_in["w_gate"],
        "B_w_up": _B_in["w_up"],
        "B_w_down": _B_in["w_down"],
        "gate_w": _w((lambda *s: torch.randn(*s, dtype=torch.bfloat16) * 0.05)(576) * 16.0),
    }

def reference(A_x, A_wq, A_wk, A_wv, A_wo, B_x, B_w_gate, B_w_up, B_w_down, gate_w):
    def _A_ref(x, wq, wk, wv, wo):
        B, S, D = x.shape
        H = 32
        Dh = D // H
        q = (lambda x, *d: x.permute(*d))((x @ wq).reshape(B, S, H, Dh), 0, 2, 1, 3)
        k = x @ wk
        v = x @ wv
        scores = torch.einsum("bhqd,bkd->bhqk", q, k) * (Dh ** -0.5)
        p = _softmax(scores, axis=-1)
        o = torch.einsum("bhqk,bkd->bhqd", p, v)
        return (lambda x, *d: x.permute(*d))(o, 0, 2, 1, 3).reshape(B, S, H * Dh) @ wo

    def _B_ref(x, w_gate, w_up, w_down):
        g = torch.einsum("bsd,df->bsf", x, w_gate)
        u = torch.einsum("bsd,df->bsf", x, w_up)
        h = _gelu(g) * u
        return torch.einsum("bsf,fd->bsd", h, w_down)

    x = A_x
    g = _sigmoid((x * gate_w).sum(-1, keepdims=True))
    a = _A_ref(x, A_wq, A_wk, A_wv, A_wo)
    b = _B_ref(x, B_w_gate, B_w_up, B_w_down)
    return g * a + (1 - g) * b
```

```python
import re

REG_RE = re.compile(r'^(-|\|)?(?:abs\()?([vsa])(?:(\d+)|\[(\d+):(\d+)\])\)?\|?$')
TRANS = ('v_exp_f32', 'v_log_f32', 'v_rcp_f32', 'v_rsq_f32', 'v_sqrt_f32', 'v_sin_f32', 'v_cos_f32', 'v_rcp_iflag_f32')

def regs_of(tok):
    tok = tok.strip()
    if tok == 'vcc': return {('s', 106), ('s', 107)}
    if tok == 'vcc_lo': return {('s', 106)}
    if tok == 'vcc_hi': return {('s', 107)}
    if tok == 'm0': return {('s', 124)}
    if tok == 'exec': return {('s', 126), ('s', 127)}
    if tok == 'exec_lo': return {('s', 126)}
    if tok == 'exec_hi': return {('s', 127)}
    m = REG_RE.match(tok)
    if not m: return set()
    f = m.group(2)
    if m.group(3) is not None:
        return {(f, int(m.group(3)))}
    return {(f, i) for i in range(int(m.group(4)), int(m.group(5)) + 1)}

def split_ops(s):
    ops = []; depth = 0; cur = ''
    for ch in s:
        if ch in '[(': depth += 1
        if ch in '])': depth -= 1
        if ch == ',' and depth == 0:
            ops.append(cur.strip()); cur = ''
        else:
            cur += ch
    if cur.strip(): ops.append(cur.strip())
    return ops

class Ins:
    __slots__ = ('text', 'mn', 'ops', 'mods', 'dst', 'src', 'kind', 'tag', 'optional', 'passes', 'A', 'B', 'C', 'label')
    def __init__(self, text, tag=None, optional=False):
        self.text = text; self.tag = tag; self.optional = optional
        self.label = None; self.passes = 0
        self.A = self.B = self.C = set()
        t = text.split(';')[0].strip()
        if t.endswith(':') or t.startswith('.') or not t:
            self.mn = ''; self.kind = 'label' if t.endswith(':') else 'dir'
            self.label = t[:-1] if t.endswith(':') else None
            self.dst = set(); self.src = set(); self.ops = []; self.mods = []
            return
        parts = t.split(None, 1)
        self.mn = mn = parts[0]
        rest = parts[1] if len(parts) > 1 else ''
        ops = split_ops(rest)
        mods = []
        if ops:
            last = ops[-1]
            toks = re.findall(r'(?:[^\s\[\(]|\[[^\]]*\]|\([^\)]*\))+', last)
            ops[-1] = toks[0]; mods = toks[1:]
        self.ops = ops; self.mods = mods
        R = [regs_of(o) for o in ops]
        allr = set().union(*R) if R else set()
        dst = set(); src = set()
        if mn.startswith('v_mfma'):
            self.kind = 'mfma'
            dst = R[0]; self.A, self.B, self.C = R[1], R[2], R[3]; src = R[1] | R[2] | R[3]
            self.passes = 8 if '32x32' in mn else 4
        elif mn.startswith('ds_'):
            self.kind = 'ds'
            if mn.startswith('ds_read') or mn.startswith('ds_bpermute') or mn.startswith('ds_permute') or mn.startswith('ds_swizzle') or '_rtn' in mn:
                dst = R[0]; src = set().union(*R[1:]) if len(R) > 1 else set()
            else:
                src = allr
        elif mn.startswith('buffer_') or mn.startswith('global_'):
            self.kind = 'vmem'
            if mn in ('buffer_wbl2', 'buffer_inv'):
                pass
            elif 'lds' in mods or '_lds_' in mn:
                src = allr | {('s', 124)}; self.kind = 'dma'
            elif '_load' in mn:
                dst = R[0]; src = set().union(*R[1:])
            elif '_atomic' in mn and 'sc0' in mods:
                if mn.startswith('global_'):
                    dst = R[0]; src = set().union(*R[1:])
                else:
                    dst = R[0]; src = allr
            else:
                src = allr
        elif mn.startswith('s_'):
            self.kind = 'salu'
            if mn.startswith('s_load') or mn.startswith('s_memtime') or mn.startswith('s_memrealtime') or mn.startswith('s_buffer_load'):
                self.kind = 'smem'; dst = R[0]; src = set().union(*R[1:]) if len(R) > 1 else set()
            elif mn.startswith('s_cmp') or mn.startswith('s_bitcmp'):
                src = allr
            elif mn in ('s_waitcnt', 's_barrier', 's_nop', 's_setprio', 's_endpgm', 's_sleep', 's_branch') or mn.startswith('s_cbranch'):
                self.kind = 'ctl'
            elif 'saveexec' in mn:
                dst = R[0] | regs_of('exec'); src = R[1] | regs_of('exec')
            else:
                dst = R[0]; src = set().union(*R[1:]) if len(R) > 1 else set()
                if mn in ('s_addk_i32', 's_mulk_i32', 's_cmov_b32'): src |= R[0]
        elif mn.startswith('v_'):
            self.kind = 'valu'
            base = mn.replace('_e32', '').replace('_e64', '').replace('_dpp', '').replace('_sdwa', '')
            if base.startswith('v_cmp'):
                dst = R[0]; src = set().union(*R[1:])
            elif base.startswith('v_permlane') and 'swap' in base:
                dst = allr; src = allr
            elif base in ('v_add_co_u32', 'v_sub_co_u32', 'v_addc_co_u32', 'v_subb_co_u32', 'v_mad_u64_u32', 'v_subrev_co_u32'):
                dst = R[0] | R[1]; src = set().union(*R[2:])
            elif base in ('v_fmac_f32', 'v_dot2c_f32_bf16', 'v_writelane_b32'):
                dst = R[0]; src = allr
            else:
                dst = R[0]; src = set().union(*R[1:]) if len(R) > 1 else set()
                if base == 'v_cndmask_b32' and len(ops) == 3: src |= regs_of('vcc')
                if is_dpp(self): src |= R[0]
        else:
            raise ValueError('unknown instr: ' + text)
        self.dst = dst; self.src = src
    def states(self):
        if self.kind in ('label', 'dir'): return 0
        if self.mn == 's_nop': return int(self.ops[0], 0) + 1
        return 1

def is_dpp(i):
    return i.mn.endswith('_dpp') or any(m.startswith(('row_', 'quad_perm', 'wave_')) for m in i.mods)
def vset(s): return {r for r in s if r[0] in 'va'}
def sset(s): return {r for r in s if r[0] == 's'}

def required(p, c):
    need = 0
    base = lambda i: i.mn.replace('_e32', '').replace('_e64', '')
    if p.kind == 'valu':
        vd = vset(p.dst); sd = sset(p.dst)
        isdot = p.mn.startswith('v_dot')
        if c.kind == 'mfma' and vd & c.src: need = max(need, 3 if isdot else 2)
        if c.kind == 'valu':
            if base(p) in TRANS and base(c) not in TRANS and vd & c.src: need = max(need, 1)
            if c.mn.startswith('v_permlane') and vd & c.src: need = max(need, 2)
            if c.mn.startswith(('v_readfirstlane', 'v_readlane')) and vd & c.src: need = max(need, 1)
            if is_dpp(c) and vd & c.src: need = max(need, 2)
            if sd & c.src:
                need = max(need, 4 if c.mn.startswith(('v_readlane', 'v_writelane')) else 2)
            if isdot and vd & (c.src | c.dst):
                if base(c) == base(p):
                    ab = regs_of(c.ops[1]) | regs_of(c.ops[2])
                    if vd & ab: need = max(need, 3)
                else: need = max(need, 3)
        if isdot and c.kind in ('vmem', 'ds', 'dma') and vd & c.src: need = max(need, 3)
        if c.kind in ('vmem', 'dma') and sd & c.src: need = max(need, 5)
        if c.kind in ('salu',) and sd & c.src: need = max(need, 1)
    if p.kind == 'mfma':
        big = 12 if p.passes == 8 else 8
        if c.kind == 'valu' and p.dst & (c.src | c.dst): need = max(need, big)
        if c.kind in ('vmem', 'ds', 'dma') and p.dst & (c.src | c.dst): need = max(need, big)
        if c.kind == 'mfma':
            if p.dst & (c.A | c.B): need = max(need, big)
            if p.dst & c.C:
                if not (p.dst == c.C and p.passes == c.passes): need = max(need, 10 if p.passes == 8 else 6)
            elif p.dst & c.dst and p.passes != c.passes: need = max(need, big)
        if c.kind == 'valu' and p.C & c.dst: need = max(need, 7 if p.passes == 8 else 3)
    if p.kind == 'salu' and ('s', 124) in p.dst and c.kind == 'dma': need = max(need, 1)
    if p.kind == 'vmem' and ('store' in p.mn) and (p.mn.endswith('x4') or p.mn.endswith('x3')):
        data = regs_of(p.ops[0]) if p.mn.startswith('buffer') else regs_of(p.ops[1])
        if data & c.dst: need = max(need, 2 if c.kind in ('valu', 'mfma') else 1)
    return need

class Prog:
    def __init__(self):
        self.ins = []
        self.lg = []
        self.vm = []
        self.auto = True
        self.nops_added = 0
    def raw(self, text, **kw):
        i = Ins(text, **kw); self.ins.append(i); return i
    def label(self, l): self.raw(l + ':')
    def c(self, text): self.raw('; ' + text)
    def _wait(self, vm=None, lg=None):
        parts = []
        if vm is not None: parts.append(f'vmcnt({min(vm, 63)})')
        if lg is not None: parts.append(f'lgkmcnt({min(lg, 15)})')
        self.e('s_waitcnt ' + ' '.join(parts))
    def _younger(self, lst, idx):
        return sum(1 for j in lst[idx + 1:] if not j.optional)
    def e(self, text, tag=None, optional=False):
        i = Ins(text, tag=tag, optional=optional)
        if i.mn == 's_waitcnt':
            m = re.search(r'vmcnt\((\d+)\)', text)
            if m: self._retire(self.vm, int(m.group(1)))
            m = re.search(r'lgkmcnt\((\d+)\)', text)
            if m: self._retire(self.lg, int(m.group(1)))
            self.ins.append(i); return i
        if self.auto:
            touch = i.src | i.dst
            lgn = vmn = None
            for k in range(len(self.lg) - 1, -1, -1):
                if self.lg[k].dst & touch:
                    lgn = 0 if any(j.kind == 'smem' for j in self.lg) else self._younger(self.lg, k); break
            for k in range(len(self.vm) - 1, -1, -1):
                if self.vm[k].dst & touch:
                    vmn = self._younger(self.vm, k); break
            if lgn is not None or vmn is not None: self._wait(vmn, lgn)
        self.ins.append(i)
        if i.kind in ('ds', 'smem'): self.lg.append(i)
        if i.kind in ('vmem', 'dma'): self.vm.append(i)
        return i
    def _retire(self, lst, n):
        keep = []; cnt = 0
        for j in reversed(lst):
            if cnt >= n: break
            keep.append(j)
            if not j.optional: cnt += 1
        lst[:] = list(reversed(keep))
    def vm_need(self, tags):
        for k in range(len(self.vm) - 1, -1, -1):
            if self.vm[k].tag in tags: return self._younger(self.vm, k)
        return None
    def wait(self, vmtags=(), lg0=False):
        vmn = self.vm_need(set(vmtags))
        lgn = 0 if (lg0 and self.lg) else None
        if vmn is not None or lgn is not None: self._wait(vmn, lgn)
    def reset_tracking(self): self.lg = []; self.vm = []
    def fix_hazards(self, verbose=False):
        out = []
        for i in self.ins:
            if i.kind not in ('label', 'dir'):
                need = self._need(out, i)
                if need > 0:
                    if verbose: print(f'nop {need} before: {i.text}')
                    self.nops_added += need
                    while need > 0:
                        n = min(need, 16); out.append(Ins(f's_nop {n - 1}')); need -= n
            out.append(i)
        self.ins = out
        self._check_branches()
    @staticmethod
    def _need(prev, c):
        dist = 0; need = 0
        for p in reversed(prev):
            if p.kind in ('label', 'dir'): continue
            if p.mn in ('s_branch', 's_endpgm'): break
            r = required(p, c)
            if r > dist: need = max(need, r - dist)
            dist += p.states()
            if dist >= 20: break
        return need
    def _check_branches(self):
        pos = {i.label: k for k, i in enumerate(self.ins) if i.kind == 'label'}
        for k, i in enumerate(self.ins):
            if i.mn == 's_branch' or i.mn.startswith('s_cbranch'):
                tgt = pos[i.ops[0]]
                seq = [x for x in self.ins[max(0, k - 40):k] if x.kind not in ('label', 'dir')]
                for q in range(len(seq) - 1, -1, -1):
                    if seq[q].mn in ('s_branch', 's_endpgm'): seq = seq[q + 1:]; break
                seq.append(Ins('s_nop 0'))
                n = 0
                for c in self.ins[tgt:tgt + 40]:
                    if c.kind in ('label', 'dir'): continue
                    need = self._need(seq, c)
                    if need > 0: raise RuntimeError(f'hazard across branch {i.text}: {c.text} needs {need} more')
                    if c.mn in ('s_branch', 's_endpgm'): break
                    seq.append(c); n += c.states()
                    if n >= 20: break
    def text(self):
        return '\n'.join((i.text if i.kind in ('label', 'dir') and not i.text.startswith(';') else '  ' + i.text) for i in self.ins) + '\n'

def v(a, n=1): return f'v{a}' if n == 1 else f'v[{a}:{a + n - 1}]'
def s(a, n=1): return f's{a}' if n == 1 else f's[{a}:{a + n - 1}]'
import struct
def f2u(x): return '0x%08x' % struct.unpack('<I', struct.pack('<f', x))[0]
```

```python
from asmlib import *
import math
NAME = 'gated_mix__grouped_kv_mqa__glu_gated_geglu__prompt'
WS_P   = 0
WS_KV  = 0x2400000
KVBLK  = 2368
WS_QM  = WS_KV + 0x40000
WS_QX  = WS_QM + 0x200000
WS_WO  = WS_QX + 0x40000
WS_O   = WS_WO + 0xC0000
WS_FL  = WS_O + 0x240000
WS_END = WS_FL + 0x10000
OOB = 0x40000000
QSCALE = math.log2(math.e) / math.sqrt(18.0)
GC0 = -2.0 * math.log2(math.e) * math.sqrt(2.0 / math.pi)
GC1 = GC0 * 0.044715

P_X, P_WQ, P_WK, P_WV, P_WO, P_BX, P_WG, P_WU = 16, 18, 20, 22, 24, 26, 28, 30
P_WD, P_GW, P_OUT, P_DBG, P_WS = 32, 34, 36, 38, 40

def load_ptrs(p):
    p.e('s_load_dwordx16 s[16:31], s[0:1], 0')
    p.e('s_load_dwordx8 s[32:39], s[0:1], 64')
    p.e('s_load_dwordx2 s[40:41], s[0:1], 96')

def srd(p, d, ptr, nbytes):
    p.e(f's_mov_b32 s{d}, s{ptr}')
    p.e(f's_and_b32 s{d+1}, s{ptr+1}, 0xffff')
    p.e(f's_mov_b32 s{d+2}, {nbytes}')
    p.e(f's_mov_b32 s{d+3}, 0x20000')

def kernel_header(p, name):
    p.raw('.p2align 8')
    p.raw(f'.globl {name}')
    p.raw(f'.type {name},@function')
    p.label(name)

def descriptor(name, vgpr=256, sgpr=102):
    return f'''.p2align 6
.amdhsa_kernel {name}
  .amdhsa_next_free_vgpr {vgpr}
  .amdhsa_next_free_sgpr {sgpr}
  .amdhsa_accum_offset {((vgpr + 3) // 4) * 4}
  .amdhsa_group_segment_fixed_size 0
  .amdhsa_kernarg_size 104
  .amdhsa_user_sgpr_count 2
  .amdhsa_user_sgpr_kernarg_segment_ptr 1
  .amdhsa_system_sgpr_workgroup_id_x 1
.end_amdhsa_kernel
'''
```

```python
from common import *

sW, sM_, sS = 3, 4, 5
sA, sA4, sX, sMb = 6, 7, 8, 9
sT0, sT1, sT2 = 10, 11, 12
sDo, sR = 13, 14
sHd = 15
SRD_X, SRD_WG, SRD_WU, SRD_W4, SRD_WD, SRD_WS, SRD_WO = 44, 48, 52, 56, 60, 64, 68
sHF = 72
sP, sQm, sQx, sKV = 74, 75, 76, 77
sWoJ = 78
sWoD = 86
sK16 = 87
sso = 88
sD0, sD1, sD2 = 90, 91, 92
vL = 0
vOffW, vOffD, vOffX0, vOffX1 = 1, 2, 3, 4
vRdA, vRdB = 5, 8
vH, vC1, vP = 11, 12, 13
vT = 14
AB = 16
accG, accU, GP = 32, 48, 64
HP = 80
GT = 88
XR = 96
OUTR = XR + 72
vB1, vB2, vSt1, vSt2, vAd = 240, 242, 244, 245, 246
vSel = 250
vXa = 240
NPL = 10

def gen_k1(p, cfg):
    order = cfg.get('order', ['R', 'S', 'R', 'R', 'R'])
    DMAX = cfg.get('dmax', 7)
    stf = cfg.get('stflags', '')
    defer_stores = cfg.get('defer_stores', False)
    kS = order.index('S')
    rho = {}
    c = 0
    for k, t in enumerate(order):
        if t == 'R': rho[k] = c; c += 1
    e = p.e
    load_ptrs(p)
    e('v_lshrrev_b32 v1, 6, v0')
    e('v_and_b32 v0, 63, v0')
    e(f'v_readfirstlane_b32 s{sW}, v1')
    e(f's_and_b32 s{sT0}, s2, 7')
    e(f's_lshr_b32 s{sT1}, s2, 3')
    mx = cfg.get('xcd_m', 2)
    lm = int(math.log2(mx)); mper = 16 // mx; lmp = int(math.log2(mper)); sper = 32 // mper
    e(f's_and_b32 s{sM_}, s{sT0}, {mx - 1}')
    e(f's_mul_i32 s{sM_}, s{sM_}, {mper}')
    e(f's_and_b32 s{sT2}, s{sT1}, {mper - 1}')
    e(f's_add_u32 s{sM_}, s{sM_}, s{sT2}')
    e(f's_lshr_b32 s{sS}, s{sT0}, {lm}')
    e(f's_mul_i32 s{sS}, s{sS}, {sper}')
    e(f's_lshr_b32 s{sT2}, s{sT1}, {lmp}')
    e(f's_add_u32 s{sS}, s{sS}, s{sT2}')
    e(f'v_lshrrev_b32 v{vT}, 3, v0')
    e(f'v_lshrrev_b32 v{vT+1}, 4, v0')
    e(f'v_and_b32 v{GT}, 7, v0')
    e(f'v_xor_b32 v{GT+1}, v{GT}, v{vT+1}')
    e(f'v_lshlrev_b32 v{GT+1}, 4, v{GT+1}')
    e(f'v_mul_u32_u24 v{GT+2}, 1152, v{vT}')
    e(f'v_add_u32 v{vOffX0}, v{GT+1}, v{GT+2}')
    e(f'v_xor_b32 v{vOffX1}, 64, v{GT+1}')
    e(f'v_add_u32 v{vOffX1}, v{vOffX1}, v{GT+2}')
    e(f'v_add_u32 v{vOffX1}, {8*1152}, v{vOffX1}')
    e(f'v_and_b32 v{GT+3}, 1, v{vT+1}')
    e(f'v_lshlrev_b32 v{GT+3}, 2, v{GT+3}')
    e(f'v_xor_b32 v{GT+3}, v{GT}, v{GT+3}')
    e(f'v_lshlrev_b32 v{GT+4}, 4, v{GT+3}')
    e(f'v_add_u32 v{vOffD}, v{GT+4}, v{GT+2}')
    e(f'v_mul_u32_u24 v{vOffW}, 9216, v{vT}')
    e(f'v_add_u32 v{vOffW}, v{vOffW}, v{GT+4}')
    e(f's_lshl_b32 s{sMb}, s{sW}, 11')
    e(f's_lshl_b32 s{sK16}, s{sW}, 4')
    e(f's_lshl_b32 s{sX}, s{sM_}, 7')
    e(f's_add_u32 s{sX}, s{sX}, s{sK16}')
    e(f's_mul_i32 s{sX}, s{sX}, 1152')
    e(f's_mul_i32 s{sT2}, s{sS}, 576')
    e(f's_bitcmp1_b32 s{sS}, 0')
    e(f's_cselect_b32 s{sT0}, 64, 0')
    e(f's_cselect_b32 s{sT1}, 0, 512')
    e(f's_cselect_b32 s{sR}, 0, 16')
    e(f's_add_u32 s{sT0}, s{sT0}, s{sT2}')
    e(f's_add_u32 s{sT1}, s{sT1}, s{sT2}')
    e(f's_mul_i32 s{sA}, s{sW}, 147456')
    e(f's_add_u32 s{sA}, s{sA}, s{sT0}')
    e('s_waitcnt lgkmcnt(0)')
    srd(p, SRD_X, P_X, 2048 * 1152)
    srd(p, SRD_WG, P_WG, 576 * 9216)

    NU = 66
    items = []
    for U in range(NU):
        if U < 5:
            for cx in ([2 * U, 2 * U + 1] if U < 4 else [8]): items.append(('X', cx, U))
        items.append(('W', U, U))
    resv = {pl: [] for pl in range(NPL)}
    for k in rho:
        last = (k == 4)
        resv[rho[k]].append((9 * (k + 1), 47 if last else 46))
    assert order[4] == 'R'
    resv[2].append((9 * kS + 5, 9 * kS + 7)); resv[3].append((9 * kS + 5, 9 * kS + 7))
    resv[4].append((9 * kS + 6, 46))
    for pl in (2, 3):
        for (a, b) in resv[pl][:-1]: assert a >= 9 * kS + 7
    busy_until = {pl: -1 for pl in range(NPL)}
    place = {}
    issue_at = {}
    nxt = 0
    for b in range(-1, NU):
        lst = []
        while nxt < len(items):
            kind, idx, need = items[nxt]
            free_b = need + 1
            if b >= 0 and need - b > DMAX: break
            cand = [pl for pl in range(NPL) if busy_until[pl] <= b and all(free_b <= rs or b >= re for rs, re in resv[pl])]
            if not cand: break
            cand.sort(key=lambda pl: min([rs for rs, re in resv[pl] if rs >= free_b] + [999]))
            pl = cand[0]
            assert need > b, (kind, idx, b)
            place[(kind, idx)] = pl; busy_until[pl] = free_b
            lst.append(items[nxt]); nxt += 1
        issue_at[b] = lst
    assert nxt == len(items)
    if cfg.get('verbose'):
        for b in range(-1, NU): print(b, [(k, i, place[(k, i)]) for k, i, n in issue_at[b]])

    def dma_instrs(kind, idx):
        pl = place[(kind, idx)]; tag = (kind, idx); out = []
        m0a = f's_add_u32 m0, s{sMb}, {pl * 16384}'
        m0b = f's_add_u32 m0, s{sMb}, {pl * 16384 + 1024}'
        if kind == 'X':
            out.append([(m0a, None), (f's_add_u32 s{sso}, s{sX}, {128 * idx}', None),
                        (f'buffer_load_dwordx4 v{vOffX0}, s[{SRD_X}:{SRD_X+3}], s{sso} offen lds', tag)])
            out.append([(m0b, None), ('s_nop 0', None),
                        (f'buffer_load_dwordx4 v{vOffX1}, s[{SRD_X}:{SRD_X+3}], s{sso} offen lds', tag)])
            return out
        U = idx
        if U < 45:
            k, u = divmod(U, 9)
            if order[k] == 'R':
                col = 128 * rho[k]
                if u < 4: sr, base, off = SRD_WG, sA, 8 * u * 147456 + col
                elif u == 4: sr, base, off = SRD_W4, sA4, col
                else: sr, base, off = SRD_WU, sA, (8 * u - 36) * 147456 + col
                out.append([(m0a, None), (f's_add_u32 s{sso}, s{base}, {off}', None),
                            (f'buffer_load_dwordx4 v{vOffW}, s[{sr}:{sr+3}], s{sso} offen lds', tag)])
                out.append([(m0b, None), (f's_add_u32 s{sso+1}, s{base}, {off + 73728}', None),
                            (f'buffer_load_dwordx4 v{vOffW}, s[{sr}:{sr+3}], s{sso+1} offen lds', tag)])
            else:
                pre = []
                if u < 4: b_, st, kr = vB1, vSt1, 128 * u
                elif u > 4: b_, st, kr = vB2, vSt2, 128 * u - 576
                else:
                    b_, st, kr = vSel, vSel + 2, None
                    pre = [(f'v_cndmask_b32 v{vSel}, v{vB1}, v{vB2}, s[{sHF}:{sHF+1}]', None),
                           (f'v_cndmask_b32 v{vSel+1}, v{vB1+1}, v{vB2+1}, s[{sHF}:{sHF+1}]', None),
                           (f'v_cndmask_b32 v{vSel+2}, v{vSt1}, v{vSt2}, s[{sHF}:{sHF+1}]', None),
                           (f's_mov_b32 s{sD0}, 512', None), (f's_cmp_ge_u32 s{sW}, 4', None),
                           (f's_cselect_b32 s{sso}, -64, s{sD0}', None),
                           (f's_add_u32 s{sso}, s{sso}, s{sK16}', None)]
                if kr is not None: pre = [(f's_add_u32 s{sso}, s{sK16}, {kr}', None)]
                out.append(pre + [(f'v_mad_u64_u32 v[{vAd}:{vAd+1}], vcc, v{st}, s{sso}, v[{b_}:{b_+1}]', None), (m0a, None),
                                  (f's_add_u32 s{sso+1}, s{sso}, 8', None),
                                  (f'global_load_lds_dwordx4 v[{vAd}:{vAd+1}], off', tag)])
                out.append([(f'v_mad_u64_u32 v[{vAd+2}:{vAd+3}], vcc, v{st}, s{sso+1}, v[{b_}:{b_+1}]', None), (m0b, None), ('s_nop 0', None),
                            (f'global_load_lds_dwordx4 v[{vAd+2}:{vAd+3}], off', tag)])
            return out
        u = U - 45
        j0 = (8 * u) // 18; w0 = 18 * (j0 + 1) - 8 * u
        g = []
        if w0 < 8:
            g += [(f's_cmp_ge_u32 s{sW}, {w0}', None), (f's_cselect_b32 s{sso}, {128 * (j0 + 1)}, s{sD2}', None)]
            g = [(f's_mov_b32 s{sD2}, {128 * j0}', None)] + g + [(f's_add_u32 s{sso}, s{sso}, s{sDo}', None)]
        else:
            g += [(f's_add_u32 s{sso}, s{sDo}, {128 * j0}', None)]
        out.append(g + [(m0a, None), (f's_add_u32 s{sso+1}, s{sso}, {8 * 1152}', None),
                        (f'buffer_load_dwordx4 v{vOffD}, s[{SRD_WD}:{SRD_WD+3}], s{sso} offen lds', tag)])
        out.append([(m0b, None), (f's_add_u32 s{sR}, s{sR}, 8', None),
                    (f'buffer_load_dwordx4 v{vOffD}, s[{SRD_WD}:{SRD_WD+3}], s{sso+1} offen lds', tag),
                    (f's_cmp_ge_u32 s{sR}, 18', None), (f's_cselect_b32 s{sD0}, 18, 0', None),
                    (f's_cselect_b32 s{sD1}, {331776}, 0', None),
                    (f's_sub_u32 s{sR}, s{sR}, s{sD0}', None), (f's_add_u32 s{sDo}, s{sDo}, 147456', None),
                    (f's_sub_u32 s{sDo}, s{sDo}, s{sD1}', None)])
        return out

    for kind, idx, need in issue_at[-1]:
        assert kind == 'X' or idx < 4
        for g in dma_instrs(kind, idx):
            for t, tag in g: e(t, tag=tag)

    srd(p, SRD_WU, P_WU, 576 * 9216)
    srd(p, SRD_WD, P_WD, 4608 * 1152)
    srd(p, SRD_WS, P_WS, WS_END)
    srd(p, SRD_WO, P_WO, 576 * 1152)
    e(f's_cmp_ge_u32 s{sW}, 4')
    e(f's_cselect_b64 s[{sHF}:{sHF+1}], -1, 0')
    e(f's_cselect_b32 s{SRD_W4}, s{SRD_WU}, s{SRD_WG}')
    e(f's_cselect_b32 s{SRD_W4+1}, s{SRD_WU+1}, s{SRD_WG+1}')
    e(f's_mov_b32 s{sT2}, {32 * 147456}')
    e(f's_cselect_b32 s{sA4}, {-4 * 147456}, s{sT2}')
    e(f's_cselect_b32 s{sHd}, 1, 0')
    e(f's_mov_b32 s{SRD_W4+2}, {576 * 9216}')
    e(f's_mov_b32 s{SRD_W4+3}, 0x20000')
    e(f's_add_u32 s{sA4}, s{sA4}, s{sA}')
    g16, row = GT + 3, vT
    e(f'v_mov_b32 v{vSt1}, 9216')
    e(f'v_cmp_gt_u32 vcc, 4, v{g16}')
    e(f'v_mov_b32 v{GT}, s{P_WU}')
    e(f'v_mov_b32 v{GT+1}, s{P_WG}')
    e(f'v_cndmask_b32 v{vB1}, v{GT}, v{GT+1}, vcc')
    e(f'v_mov_b32 v{GT}, s{P_WU+1}')
    e(f'v_mov_b32 v{GT+1}, s{P_WG+1}')
    e(f'v_cndmask_b32 v{vB1+1}, v{GT}, v{GT+1}, vcc')
    e(f'v_and_b32 v{GT+5}, 3, v{g16}')
    e(f'v_lshlrev_b32 v{GT}, 4, v{GT+5}')
    e(f'v_add_u32 v{GT}, s{sT1}, v{GT}')
    e(f'v_mad_u32_u24 v{GT}, v{row}, v{vSt1}, v{GT}')
    e(f'v_add_co_u32 v{vB1}, vcc, v{vB1}, v{GT}')
    e(f'v_addc_co_u32 v{vB1+1}, vcc, 0, v{vB1+1}, vcc')
    z = GT + 6
    e(f'v_lshrrev_b32 v{z}, 2, v{g16}')
    e(f's_lshl_b32 s{sT0}, s{sS}, 1')
    e(f'v_add_u32 v{z}, s{sT0}, v{z}')
    e(f's_add_u32 s{sHd}, s{sHd}, s{sT0}')
    e(f'v_lshlrev_b32 v{GT}, 4, v{GT+5}')
    e(f'v_min_u32 v{GT}, 20, v{GT}')
    e(f'v_mad_u32_u24 v{GT}, v{z}, 36, v{GT}')
    e(f'v_cmp_gt_u32 vcc, 3, v{z}')
    e(f'v_subrev_u32 v{GT+1}, 3, v{z}')
    e(f'v_mov_b32 v{GT+2}, s{P_WV}')
    e(f'v_mov_b32 v{GT+4}, s{P_WK}')
    e(f'v_cndmask_b32 v{GT+1}, v{GT+1}, v{z}, vcc')
    e(f'v_cndmask_b32 v{vB2}, v{GT+2}, v{GT+4}, vcc')
    e(f'v_mov_b32 v{GT+2}, s{P_WV+1}')
    e(f'v_mov_b32 v{GT+4}, s{P_WK+1}')
    e(f'v_cndmask_b32 v{vB2+1}, v{GT+2}, v{GT+4}, vcc')
    e(f'v_lshlrev_b32 v{GT+1}, 4, v{GT+1}')
    e(f'v_min_u32 v{GT+1}, 20, v{GT+1}')
    e(f'v_cmp_gt_u32 vcc, 6, v{z}')
    e(f'v_cmp_eq_u32 s[{sso}:{sso+1}], 3, v{GT+5}')
    e(f's_and_b64 vcc, vcc, s[{sso}:{sso+1}]')
    e(f'v_mov_b32 v{GT+2}, s{P_WQ}')
    e(f'v_mov_b32 v{GT+4}, s{P_WQ+1}')
    e(f'v_mov_b32 v{GT+7}, 1152')
    e(f'v_cndmask_b32 v{vB2}, v{GT+2}, v{vB2}, vcc')
    e(f'v_cndmask_b32 v{vB2+1}, v{GT+4}, v{vB2+1}, vcc')
    e(f'v_cndmask_b32 v{GT}, v{GT}, v{GT+1}, vcc')
    e(f'v_cndmask_b32_e64 v{vSt2}, v{GT+7}, 36, vcc')
    e(f'v_mad_u32_u24 v{GT}, v{row}, v{vSt2}, v{GT}')
    e(f'v_add_co_u32 v{vB2}, vcc, v{vB2}, v{GT}')
    e(f'v_addc_co_u32 v{vB2+1}, vcc, 0, v{vB2+1}, vcc')
    e(f'v_bfe_u32 v{GT}, v0, 2, 2')
    e(f'v_lshrrev_b32 v{GT+1}, 5, v0')
    e(f'v_bfe_u32 v{GT+2}, v0, 4, 1')
    e(f'v_and_b32 v{GT+4}, 3, v0')
    e(f'v_lshlrev_b32 v{GT+2}, 5, v{GT+2}')
    e(f'v_lshl_add_u32 v{GT+2}, v{GT+4}, 3, v{GT+2}')
    e(f's_and_b32 s{sT0}, s{sHF}, 64')
    e(f'v_add_u32 v{GT+2}, s{sT0}, v{GT+2}')
    e(f'v_bfe_u32 v{GT+4}, v0, 3, 1')
    e(f'v_lshlrev_b32 v{GT+4}, 6, v{GT+4}')
    e(f'v_xor_b32 v{GT+2}, v{GT+2}, v{GT+4}')
    e(f'v_lshl_add_u32 v{GT+2}, v{GT}, 7, v{GT+2}')
    e(f'v_lshl_add_u32 v{vRdA}, v{GT+1}, 10, v{GT+2}')
    e(f'v_lshl_add_u32 v{vRdB}, v{GT+1}, 9, v{GT+2}')
    for wdw in (1, 2):
        e(f'v_add_u32 v{vRdA+wdw}, {65536 * wdw}, v{vRdA}')
        e(f'v_add_u32 v{vRdB+wdw}, {65536 * wdw}, v{vRdB}')
    XA = GP
    e(f's_and_b32 s{sT0}, s{sW}, 3')
    e(f'v_and_b32 v{GT}, 31, v0')
    e(f'v_bfe_u32 v{GT+2}, v0, 1, 3')
    e(f'v_xor_b32 v{GT+2}, v{GT+2}, v{GT+1}')
    e(f'v_lshlrev_b32 v{GT+2}, 4, v{GT+2}')
    e(f'v_lshl_add_u32 v{GT+2}, v{GT}, 7, v{GT+2}')
    e(f's_lshl_b32 s{sT1}, s{sT0}, 12')
    e(f'v_add_u32 v{XA}, s{sT1}, v{GT+2}')
    for q in (1, 2, 3): e(f'v_xor_b32 v{XA+q}, {32 * q}, v{XA}')
    e(f's_lshl_b32 s{sT1}, s{sT0}, 10')
    e(f'v_lshlrev_b32 v{vH}, 4, v0')
    e(f'v_add_u32 v{vH}, s{sT1}, v{vH}')
    e(f'v_mov_b32 v{vC1}, {f2u(GC1)}')
    e(f'v_bfe_u32 v{GT+2}, v0, 4, 1')
    e(f'v_and_b32 v{GT+4}, 15, v0')
    e(f'v_lshlrev_b32 v{GT+4}, 4, v{GT+4}')
    e(f'v_lshl_add_u32 v{GT+4}, v{GT+2}, 10, v{GT+4}')
    e(f'v_lshl_add_u32 v{vP}, v{GT+1}, 8, v{GT+4}')
    e(f's_lshl_b32 s{sP}, s{sM_}, 4')
    e(f's_add_u32 s{sP}, s{sP}, s{sS}')
    e(f's_mul_i32 s{sP}, s{sP}, 147456')
    e(f's_lshl_b32 s{sT1}, s{sT0}, 11')
    e(f's_add_u32 s{sP}, s{sP}, s{sT1}')
    e(f's_and_b32 s{sT1}, s{sHF}, 8192')
    e(f's_add_u32 s{sP}, s{sP}, s{sT1}')
    if WS_P: e(f's_add_u32 s{sP}, s{sP}, {WS_P}')
    e(f's_lshl_b32 s{sT1}, s{sM_}, 2')
    e(f's_add_u32 s{sT1}, s{sT1}, s{sT0}')
    e(f's_mul_i32 s{sKV}, s{sT1}, {KVBLK}')
    e(f's_add_u32 s{sKV}, s{sKV}, {WS_KV}')
    e(f's_lshl_b32 s{sT2}, s{sHd}, 6')
    e(f's_add_u32 s{sT1}, s{sT1}, s{sT2}')
    e(f's_lshl_b32 s{sQm}, s{sT1}, 10')
    e(f's_add_u32 s{sQm}, s{sQm}, {WS_QM}')
    e(f's_lshl_b32 s{sQx}, s{sT1}, 7')
    e(f's_add_u32 s{sQx}, s{sQx}, {WS_QX}')
    e(f's_add_u32 s{sR}, s{sR}, s{sW}')
    e(f's_cmp_ge_u32 s{sR}, 18')
    e(f's_cselect_b32 s{sT1}, 18, 0')
    e(f's_sub_u32 s{sR}, s{sR}, s{sT1}')
    e(f's_mul_i32 s{sDo}, s{sS}, 331776')
    e(f's_mul_i32 s{sT1}, s{sR}, 18432')
    e(f's_add_u32 s{sDo}, s{sDo}, s{sT1}')
    WG_ = HP
    e(f's_mul_i32 s{sT0}, s2, 3')
    e(f's_add_u32 s{sT0}, s{sT0}, s{sW}')
    e(f's_mul_hi_u32 s{sT1}, s{sT0}, {(2**32 + 17) // 18}')
    e(f's_mul_i32 s{sT2}, s{sT1}, 18')
    e(f's_sub_u32 s{sT2}, s{sT0}, s{sT2}')
    e(f's_lshl_b32 s{sWoD}, s{sT0}, 10')
    e(f's_add_u32 s{sWoD}, s{sWoD}, {WS_WO}')
    e(f's_lshr_b32 s{sso}, s{sT1}, 1')
    e(f's_lshl_b32 s{sso}, s{sso}, 6')
    e(f's_and_b32 s{sT1}, s{sT1}, 1')
    e(f's_lshl_b32 s{sT1}, s{sT1}, 3')
    e(f's_add_u32 s{sso}, s{sso}, s{sT1}')
    e(f'v_bfe_u32 v{GT}, v0, 2, 2')
    e(f'v_and_b32 v{GT+2}, 3, v0')
    e(f'v_lshlrev_b32 v{GT+2}, 1, v{GT+2}')
    e(f'v_lshl_add_u32 v{GT}, v{GT}, 4, v{GT+2}')
    e(f'v_add_u32 v{GT}, s{sso}, v{GT}')
    e(f'v_bfe_u32 v{GT+2}, v0, 4, 1')
    e(f'v_mul_u32_u24 v{GT+2}, 18, v{GT+2}')
    e(f'v_lshl_add_u32 v{GT+2}, v{GT+1}, 2, v{GT+2}')
    e(f'v_lshrrev_b32 v{GT+4}, 4, v0')
    e(f'v_mul_u32_u24 v{GT+4}, 72, v{GT+4}')
    e(f's_mul_i32 s{sT1}, s{sT2}, 36')
    e(f's_mul_i32 s{sso}, s{sT2}, 288')
    e(f's_sub_u32 s{sso}, s{sso}, {288 * 16 - 16}')
    e(f's_cmp_ge_u32 s{sT2}, 16')
    e(f's_cselect_b64 vcc, -1, 0')
    e(f's_cselect_b32 s{sT1}, s{sso}, s{sT1}')
    for j in range(8):
        e(f's_cselect_b32 s{sWoJ+j}, {18 * (j >> 1) + (j & 1)}, {8 * (j >> 2) + (j & 3)}')
    for j in range(8):
        e(f's_mul_i32 s{sWoJ+j}, s{sWoJ+j}, 1152')
    e(f'v_cndmask_b32 v{GT+2}, v{GT+2}, v{GT+4}, vcc')
    e(f'v_add_u32 v{GT+2}, s{sT1}, v{GT+2}')
    e(f'v_mul_u32_u24 v{GT+2}, 1152, v{GT+2}')
    e(f'v_add_u32 v{GP+4}, v{GT}, v{GT+2}')
    e(f'v_lshlrev_b32 v{GP+5}, 4, v0')
    e(f's_cmp_lt_u32 s{sW}, 3')
    e(f's_cselect_b32 s{sT1}, 648, 0')
    e(f's_cmp_lt_u32 s{sT0}, s{sT1}')
    e(f's_cselect_b32 s{sT1}, 0, {OOB}')
    e(f'v_add_u32 v{GP+4}, s{sT1}, v{GP+4}')
    e(f'v_add_u32 v{GP+5}, s{sT1}, v{GP+5}')

    NM = 522
    fill = {g: [] for g in range(-1, NM + 1)}
    pre = {g: [] for g in range(-1, NM + 1)}
    def spread(instrs, start, per, avoid_lds=True, end=None):
        g = start; cnt = 0
        for t in instrs:
            cost = 2 if t.split()[0] in TRANS else 1
            if cnt + cost > per and cnt > 0: g += 1; cnt = 0
            if avoid_lds and t.startswith('ds_'):
                while g % 8 == 4: g += 1; cnt = 0
            fill[g].append(t); cnt += cost
        if end is not None: assert g < end, (g, end)
        return g
    def gelu(src, dst, n):
        out = []
        for b in range(0, n, 4):
            ids = range(b, b + 4); tt = lambda i: GT + (i % 8)
            out += [f'v_mul_f32 v{tt(i)}, v{src+i}, v{src+i}' for i in ids]
            out += [f'v_fmaak_f32 v{tt(i)}, v{tt(i)}, v{vC1}, {f2u(GC0)}' for i in ids]
            out += [f'v_mul_f32 v{tt(i)}, v{tt(i)}, v{src+i}' for i in ids]
            out += [f'v_exp_f32 v{tt(i)}, v{tt(i)}' for i in ids]
            out += [f'v_add_f32 v{tt(i)}, 1.0, v{tt(i)}' for i in ids]
            out += [f'v_rcp_f32 v{tt(i)}, v{tt(i)}' for i in ids]
            out += [f'v_mul_f32 v{dst+i}, v{tt(i)}, v{src+i}' for i in ids]
        return out
    def hmul(a, b, n, pk):
        out = []
        for i in range(0, n, 2):
            out += [f'v_mul_f32 v{a+i}, v{a+i}, v{b+i}', f'v_mul_f32 v{a+i+1}, v{a+i+1}, v{b+i+1}']
            if i >= 2: out.append(f'v_cvt_pk_bf16_f32 v{pk + i // 2 - 1}, v{a+i-2}, v{a+i-1}')
        out.append(f'v_cvt_pk_bf16_f32 v{pk + n // 2 - 1}, v{a+n-2}, v{a+n-1}')
        return out
    for j in range(8):
        fill[8 + j].append(f'buffer_load_ushort v{WG_+j}, v{GP+4}, s[{SRD_WO}:{SRD_WO+3}], s{sWoJ+j} offen')
    wo_pack = [f'v_lshl_or_b32 v{WG_+j}, v{WG_+2*j+1}, 16, v{WG_+2*j}' for j in range(4)]
    wo_pack.append(f'buffer_store_dwordx4 v[{WG_}:{WG_+3}], v{GP+5}, s[{SRD_WS}:{SRD_WS+3}], s{sWoD} offen {stf}')
    fill[35] += wo_pack
    for k, t in enumerate(order):
        n0 = 72 * k
        if t == 'R':
            spread(gelu(accG, GP, 16), n0 + 38, 5, end=n0 + 71)
            h = hmul(GP, accU, 16, HP)
            hw = [f's_and_b32 s{sT0}, s{sHF}, 8192', f'v_add_u32 v{vT}, s{sT0}, v{vH}']
            wr = [f'ds_write_b128 v{vT}, v[{HP}:{HP+3}] offset:{16384 * rho[k]}',
                  f'ds_write_b128 v{vT}, v[{HP+4}:{HP+7}] offset:{16384 * rho[k] + 4096}']
            if k < 4:
                spread(hw + h + wr, n0 + 74, 4, end=n0 + 72 + 35)
            else:
                fill[n0 + 72] += hw
                g = spread(h, n0 + 73, 7, end=n0 + 77)
                pre[n0 + 77] += wr
        else:
            xw = [f's_and_b32 s{sT0}, s{sHF}, 16384', f's_and_b32 s{sT1}, s{sW}, 3', f's_mul_i32 s{sT1}, s{sT1}, 3072',
                  f's_add_u32 s{sT0}, s{sT0}, s{sT1}', f'v_add_u32 v{vT}, s{sT0}, v{vH}',
                  f's_and_b32 s{sT0}, s{sHF}, 2048', f's_add_u32 s{sT0}, s{sT0}, s{sT1}', f'v_add_u32 v{vT+1}, s{sT0}, v{vH}']
            fill[n0 + 36] += xw
            spread([f'ds_write_b128 v{vT}, v[{accG+4*q}:{accG+4*q+3}] offset:{32768 + 1024 * q}' for q in range(4)], n0 + 38, 1, end=n0 + 44)
            rd = [f'ds_read_b128 v[{GP}:{GP+3}], v{vT+1} offset:{32768}', f'ds_read_b128 v[{GP+4}:{GP+7}], v{vT+1} offset:{32768 + 1024}',
                  f'ds_read_b128 v[{GP+8}:{GP+11}], v{vT+1} offset:{49152}', f'ds_read_b128 v[{GP+12}:{GP+15}], v{vT+1} offset:{49152 + 1024}']
            spread(rd, n0 + 46, 2, end=n0 + 52)
            g = spread(gelu(GP, GP, 8) + hmul(GP, GP + 8, 8, HP), n0 + 49, 4, end=n0 + 71)
            hw = [f's_and_b32 s{sT0}, s{sHF}, 4096', f's_add_u32 s{sT0}, s{sT0}, 65536', f'v_add_u32 v{vT}, s{sT0}, v{vH}',
                  f'ds_write_b128 v{vT}, v[{HP}:{HP+3}]']
            spread(hw, g + 1, 4, end=n0 + 74)
            U = accU
            q = [f's_mov_b32 s{sT2}, {f2u(QSCALE)}']
            q += [f'v_mul_f32 v{U+i}, s{sT2}, v{U+i}' for i in (0, 1, 2, 3, 4, 5, 6, 7, 10, 11)]
            q += [f'v_cvt_pk_bf16_f32 v{GT+i}, v{U+2*i}, v{U+2*i+1}' for i in range(4)]
            q += [f'v_cvt_pk_bf16_f32 v{GT+4}, v{U+10}, v{U+11}',
                  f'v_cvt_pk_bf16_f32 v{GT+6}, v{U+12}, v{U+13}', f'v_cvt_pk_bf16_f32 v{GT+7}, v{U+14}, v{U+15}',
                  f'v_and_b32 v{vAd}, 31, v0', f'v_lshrrev_b32 v{vAd+1}, 5, v0',
                  f'v_lshlrev_b32 v{vAd+2}, 4, v{vAd+1}', f'v_lshl_add_u32 v{vAd+2}, v{vAd}, 5, v{vAd+2}',
                  f'buffer_store_dwordx4 v[{GT}:{GT+3}], v{vAd+2}, s[{SRD_WS}:{SRD_WS+3}], s{sQm} offen {stf}',
                  f'v_cmp_gt_u32 vcc, 32, v0', f'v_lshlrev_b32 v{vAd+2}, 2, v{vAd}', f'v_mov_b32 v{vAd+3}, {OOB}',
                  f'v_cndmask_b32 v{vAd+2}, v{vAd+2}, v{vAd+3}, vcc',
                  f'buffer_store_dword v{GT+4}, v{vAd+2}, s[{SRD_WS}:{SRD_WS+3}], s{sQx} offen {stf}']
            g = spread(q, n0 + 76, 4, end=n0 + 72 + 30)
            fill[g + 1].append('@KV')
    def hread(t):
        if t < 2: return f'ds_read_b128 v[{XR+4*t}:{XR+4*t+3}], v{vT+1} offset:{4096 * t}'
        return f'ds_read_b128 v[{XR+4*t}:{XR+4*t+3}], v{vH} offset:{4096 * (t - 2)}'
    fill[330].append(f'v_add_u32 v{vT+1}, 65536, v{vH}')
    g = 334
    for t in range(14):
        while g % 8 == 4: g += 1
        assert g > 324 + t
        fill[g].append(hread(t)); g += 1
    assert g <= 357
    fill[365] += [hread(14), hread(15)]; fill[366] += [hread(16), hread(17)]
    stores = []
    for j in range(9):
        acc = accG if j % 2 == 0 else accU
        o = OUTR + 8 * j
        cv = [f'v_cvt_pk_bf16_f32 v{o+i}, v{acc+2*i}, v{acc+2*i+1}' for i in range(8)]
        st = [f's_add_u32 s{sT2}, s{sP}, {16384 * j}',
              f'buffer_store_dwordx4 v[{o}:{o+3}], v{vP}, s[{SRD_WS}:{SRD_WS+3}], s{sT2} offen {stf}',
              f'buffer_store_dwordx4 v[{o+4}:{o+7}], v{vP}, s[{SRD_WS}:{SRD_WS+3}], s{sT2} offen offset:512 {stf}']
        n1 = 360 + 18 * (j + 1)
        if j < 8:
            g = spread(cv, n1 + 2, 3, end=n1 + 12)
            if defer_stores: stores += st
            else: fill[g + 1] += st
        else:
            fill[NM] += cv + stores + st

    def kv_block():
        L = 'K1_kv'
        o = lambda t: p.e(t, optional=True)
        c32, hh = vAd, vAd + 1
        WSr = f's[{SRD_WS}:{SRD_WS+3}]'
        e(f's_cmp_ge_u32 s{sHd}, 6'); e(f's_cbranch_scc1 {L}_end')
        e(f's_cmp_ge_u32 s{sHd}, 3'); e(f's_cbranch_scc1 {L}_v')
        e(f's_cmp_eq_u32 s{sHd}, 2'); e(f's_cbranch_scc1 {L}_kx')
        e(f's_lshl_b32 s{sT0}, s{sHd}, 3'); e(f's_add_u32 s{sT0}, s{sT0}, s{sKV}')
        e(f'v_lshlrev_b32 v{vAd+3}, 4, v0')
        o(f'buffer_store_dwordx2 v[{GT+6}:{GT+7}], v{vAd+3}, {WSr}, s{sT0} offen {stf}')
        e(f's_branch {L}_end')
        p.label(f'{L}_kx')
        o(f'buffer_store_dword v{GT+7}, v{vAd+2}, {WSr}, s{sKV} offen offset:1024 {stf}')
        e(f's_branch {L}_end')
        p.label(f'{L}_v')
        e(f'v_bfe_u32 v{vSel}, v0, 4, 1'); e(f'v_mul_u32_u24 v{vSel}, 608, v{vSel}')
        e(f'v_bfe_u32 v{vSel+1}, v0, 2, 1'); e(f'v_mul_u32_u24 v{vSel+1}, 304, v{vSel+1}')
        e(f'v_add_u32 v{vSel}, v{vSel}, v{vSel+1}')
        e(f'v_and_b32 v{vSel+1}, 8, v0'); e(f'v_add_u32 v{vSel}, v{vSel}, v{vSel+1}')
        e(f'v_and_b32 v{vSel+1}, 3, v0'); e(f'v_lshl_add_u32 v{vSel}, v{vSel+1}, 1, v{vSel}')
        e(f's_cmp_eq_u32 s{sHd}, 5'); e(f's_cbranch_scc1 {L}_vx')
        e(f'v_lshl_add_u32 v{vSel}, v{hh}, 6, v{vSel}')
        e(f's_sub_u32 s{sT0}, s{sHd}, 3'); e(f's_lshl_b32 s{sT0}, s{sT0}, 7'); e(f's_add_u32 s{sT0}, s{sT0}, s{sKV}')
        o(f'buffer_store_short v{GT+6}, v{vSel}, {WSr}, s{sT0} offen offset:1152 {stf}')
        o(f'buffer_store_short_d16_hi v{GT+6}, v{vSel}, {WSr}, s{sT0} offen offset:1168 {stf}')
        o(f'buffer_store_short v{GT+7}, v{vSel}, {WSr}, s{sT0} offen offset:1184 {stf}')
        o(f'buffer_store_short_d16_hi v{GT+7}, v{vSel}, {WSr}, s{sT0} offen offset:1200 {stf}')
        e(f's_branch {L}_end')
        p.label(f'{L}_vx')
        e(f'v_cmp_gt_u32 vcc, 32, v0')
        e(f'v_mov_b32 v{vSel+1}, 0x3f803f80')
        e(f'v_add_u32 v{vSel+2}, 32, v{vSel}')
        e(f'v_cndmask_b32 v{GT+7}, v{GT+7}, v{vSel+1}, vcc')
        e(f'v_cndmask_b32 v{vSel+1}, v{vSel}, v{vSel+2}, vcc')
        e(f'v_add_u32 v{vSel+2}, 16, v{vSel}')
        e(f'v_cndmask_b32 v{vSel}, v{vSel}, v{vSel+2}, vcc')
        o(f'buffer_store_short v{GT+7}, v{vSel+1}, {WSr}, s{sKV} offen offset:{1152 + 256} {stf}')
        o(f'buffer_store_short_d16_hi v{GT+7}, v{vSel}, {WSr}, s{sKV} offen offset:{1152 + 272} {stf}')
        p.label(f'{L}_end')

    def emit_fill(lst):
        for t in lst:
            if t == '@KV': kv_block()
            else: e(t)
    def wread(n):
        U, i = divmod(n, 8); pl = place[('W', U)]
        base = (vRdA if n < 360 else vRdB) + pl // 4
        off = (pl % 4) * 16384 + i * 2048
        a = AB + 4 * (n % 4)
        e(f'ds_read_b64_tr_b16 v[{a}:{a+1}], v{base} offset:{off}')
        e(f'ds_read_b64_tr_b16 v[{a+2}:{a+3}], v{base} offset:{off + (512 if n < 360 else 1024)}')
    def xreads(cx):
        pl = place[('X', cx)]; out = []
        for q in range(4):
            kk = 4 * cx + q
            if pl >= 4:
                out.append(f'v_add_u32 v{GP+8+q}, {(pl // 4) * 65536}, v{XA+q}')
                a = GP + 8 + q
            else: a = XA + q
            out.append(f'ds_read_b128 v[{XR+4*kk}:{XR+4*kk+3}], v{a} offset:{(pl % 4) * 16384}')
        return out
    def barrier(b):
        tags = [(k, i) for k, i, need in items if need == b]
        p.wait(vmtags=tags, lg0=True)
        e('s_barrier')
    barrier(0)
    xr = xreads(0)
    wread(0)
    for t in xr: e(t)
    wread(1); wread(2); wread(3)
    for t in xreads(1): e(t)
    dq = []
    for n in range(NM):
        if n < 360:
            k, pos = divmod(n, 72); ps, kk = divmod(pos, 36); D = accG if ps == 0 else accU
        else:
            j, kk = divmod(n - 360, 18); D = accG if j % 2 == 0 else accU
        a = AB + 4 * (n % 4); Bq = XR + 4 * kk
        C = '0' if kk == 0 else f'v[{D}:{D+15}]'
        e(f'v_mfma_f32_32x32x16_bf16 v[{D}:{D+15}], v[{a}:{a+3}], v[{Bq}:{Bq+3}], {C}')
        emit_fill(pre[n])
        extra = []
        if n % 8 == 5 and n // 8 + 1 < NU:
            b = n // 8 + 1
            assert not dq
            barrier(b)
            wread(8 * b)
            xs = [i for k_, i, need in items if k_ == 'X' and need == b]
            if xs:
                for t in xreads(xs[0]): e(t)
            if 8 * b + 1 < NM: wread(8 * b + 1)
            if len(xs) > 1: fill[n + 1] = xreads(xs[1]) + fill[n + 1]
            for kind, idx, need in issue_at[b]: dq += dma_instrs(kind, idx)
        elif n % 8 != 4 and n + 4 < NM:
            wread(n + 4)
        left = (5 - n % 8 - 1) % 8 + 1 if n % 8 != 5 else 8
        if dq and n % 8 != 4:
            cnt = -(-len(dq) // max(1, left - 1))
            for _ in range(cnt):
                for t, tag in dq.pop(0): e(t, tag=tag)
        emit_fill(fill[n])
    emit_fill(fill[NM])
```

```python
from common import *

sW, sRG, sHH = 3, 4, 5
sT0, sT1, sT2 = 10, 11, 12
SRD_WS, SRD_X, SRD_GW, SRD_OUT = 64, 44, 48, 52
sCnt = 13
vAK, vAX, vAV = 1, 2, 3
QM, QX = 4, 8
KX, KM = 10, 12
V0, V1 = 16, 20
PP = 24
S0, S1, OA = 32, 48, 64
CN = 80
vT = 96

def ids(p):
    e = p.e
    e('v_lshrrev_b32 v1, 6, v0')
    e('v_and_b32 v0, 63, v0')
    e(f'v_readfirstlane_b32 s{sW}, v1')
    e(f's_lshr_b32 s{sRG}, s2, 4')
    e(f's_lshl_b32 s{sRG}, s{sRG}, 3')
    e(f's_and_b32 s{sT0}, s2, 7')
    e(f's_add_u32 s{sRG}, s{sRG}, s{sT0}')
    e(f's_bfe_u32 s{sHH}, s2, 0x10003')

def mf32(D, A, B, C): return f'v_mfma_f32_32x32x16_bf16 v[{D}:{D+15}], v[{A}:{A+3}], v[{B}:{B+3}], {C}'
def mf8(D, A, B, C): return f'v_mfma_f32_32x32x8_bf16 v[{D}:{D+15}], v[{A}:{A+1}], v[{B}:{B+1}], {C}'
def vr(a): return f'v[{a}:{a+15}]'

def attn_addrs(p):
    e = p.e
    e(f'v_lshlrev_b32 v{vAK}, 4, v0')
    e(f'v_and_b32 v{vT}, 31, v0')
    e(f'v_lshlrev_b32 v{vAX}, 2, v{vT}')
    e(f'v_subrev_u32 v{vT+1}, 16, v{vT}')
    e(f'v_cmp_lt_u32 vcc, 18, v{vT}')
    e(f'v_lshrrev_b32 v{vT+2}, 5, v0')
    e(f'v_mul_u32_u24 v{vT+2}, 304, v{vT+2}')
    e(f'v_cndmask_b32 v{vT}, v{vT}, v{vT+1}, vcc')
    e(f'v_lshl_add_u32 v{vAV}, v{vT}, 4, v{vT+2}')

def rdKX(o): return f'ds_read_b32 v{KX}, v{vAX} offset:{o + 1024}'
def rdKM(o): return f'ds_read_b128 v[{KM}:{KM+3}], v{vAK} offset:{o}'
def rdV0(o): return f'ds_read_b128 v[{V0}:{V0+3}], v{vAV} offset:{o + 1152}'
def rdV1(o): return f'ds_read_b128 v[{V1}:{V1+3}], v{vAV} offset:{o + 1152 + 608}'

def attn_tile(p, par, o):
    e = p.e
    cur, nxt = (S0, S1) if par == 0 else (S1, S0)
    E = lambda i: e(f'v_exp_f32 v{cur+i}, v{cur+i}')
    C = lambda i: e(f'v_cvt_pk_bf16_f32 v{PP+i}, v{cur+2*i}, v{cur+2*i+1}')
    E(0); E(1)
    e('s_waitcnt lgkmcnt(2)')
    e(mf32(OA, V1, PP + 4, vr(OA)))
    e(rdV1(o))
    E(2); E(3); C(0); C(1); E(4); E(5)
    e(mf8(nxt, KX, QX, '0'))
    e(rdKX(o + 2 * KVBLK))
    E(6); E(7); C(2); C(3); E(8); E(9)
    e('s_waitcnt lgkmcnt(2)')
    e(mf32(nxt, KM, QM, vr(nxt)))
    e(rdKM(o + 2 * KVBLK))
    E(10); E(11); C(4); C(5); E(12); E(13)
    e(mf32(OA, V0, PP, vr(OA)))
    e(rdV0(o + KVBLK))
    E(14); E(15); C(6); C(7)

def attn_main(p, L, unroll=4):
    e = p.e
    p.auto = False
    e(rdKX(0)); e(rdKM(0))
    for i in range(16): e(f'v_mov_b32 v{OA+i}, 0')
    for i in range(4): e(f'v_mov_b32 v{PP+4+i}, 0'); e(f'v_mov_b32 v{V1+i}, 0')
    e(f'v_mov_b32 v{KX+1}, 0')
    e('s_waitcnt lgkmcnt(0)')
    e(mf8(S0, KX, QX, '0'))
    e(mf32(S0, KM, QM, vr(S0)))
    e(rdKX(KVBLK)); e(rdKM(KVBLK)); e(rdV0(0))
    e(f's_mov_b32 s{sCnt}, {64 // unroll}')
    e('s_nop 7')
    p.raw('.p2align 6')
    p.label(f'{L}_loop')
    for t in range(unroll): attn_tile(p, t % 2, t * KVBLK)
    for a in (vAK, vAX, vAV): e(f'v_add_u32 v{a}, {unroll * KVBLK}, v{a}')
    e(f's_sub_u32 s{sCnt}, s{sCnt}, 1')
    e(f's_cmp_lg_u32 s{sCnt}, 0')
    e(f's_cbranch_scc1 {L}_loop')
    e('s_waitcnt lgkmcnt(0)')
    e(mf32(OA, V1, PP + 4, vr(OA)))
    p.auto = True
    p.lg = []

def attn_check_and_fallback(p, L):
    e = p.e
    def getl():
        e(f'v_mov_b32 v{vT}, v{OA+10}')
        e(f'v_mov_b32 v{vT+1}, v{OA+10}')
        e(f'v_permlane32_swap_b32 v{vT}, v{vT+1}')
    getl()
    e(f'v_cmp_nle_f32 vcc, {f2u(2.0 ** -30)}, v{vT}')
    e(f's_mov_b64 s[{sT0}:{sT0+1}], vcc')
    e(f'v_cmp_nge_f32 vcc, {f2u(2.0 ** 40)}, v{vT}')
    e(f's_or_b64 vcc, vcc, s[{sT0}:{sT0+1}]')
    e(f's_cbranch_scc0 {L}_ok')
    attn_addrs(p)
    mx = vT + 4
    e(f'v_mov_b32 v{mx}, 0xff800000')
    e(f's_mov_b32 s{sCnt}, 64')
    p.label(f'{L}_fb1')
    e(rdKX(0)); e(rdKM(0))
    e('s_waitcnt lgkmcnt(0)')
    e(mf8(S0, KX, QX, '0')); e(mf32(S0, KM, QM, vr(S0)))
    e(f'v_add_u32 v{vAK}, {KVBLK}, v{vAK}'); e(f'v_add_u32 v{vAX}, {KVBLK}, v{vAX}')
    for i in range(0, 16, 2): e(f'v_max3_f32 v{mx}, v{S0+i}, v{S0+i+1}, v{mx}')
    e(f's_sub_u32 s{sCnt}, s{sCnt}, 1'); e(f's_cmp_lg_u32 s{sCnt}, 0'); e(f's_cbranch_scc1 {L}_fb1')
    e(f'v_mov_b32 v{mx+1}, v{mx}')
    e(f'v_permlane32_swap_b32 v{mx}, v{mx+1}')
    e(f'v_max_f32 v{mx}, v{mx}, v{mx+1}')
    attn_addrs(p)
    for i in range(16): e(f'v_sub_f32 v{CN+i}, 0, v{mx}'); e(f'v_mov_b32 v{OA+i}, 0')
    e(f's_mov_b32 s{sCnt}, 64')
    p.label(f'{L}_fb2')
    e(rdKX(0)); e(rdKM(0)); e(rdV0(0)); e(rdV1(0))
    e('s_waitcnt lgkmcnt(0)')
    e(mf8(S0, KX, QX, vr(CN))); e(mf32(S0, KM, QM, vr(S0)))
    for a in (vAK, vAX, vAV): e(f'v_add_u32 v{a}, {KVBLK}, v{a}')
    for i in range(16): e(f'v_exp_f32 v{S0+i}, v{S0+i}')
    for i in range(8): e(f'v_cvt_pk_bf16_f32 v{PP+i}, v{S0+2*i}, v{S0+2*i+1}')
    e(mf32(OA, V0, PP, vr(OA))); e(mf32(OA, V1, PP + 4, vr(OA)))
    e(f's_sub_u32 s{sCnt}, s{sCnt}, 1'); e(f's_cmp_lg_u32 s{sCnt}, 0')
    e('s_nop 7')
    e(f's_cbranch_scc1 {L}_fb2')
    getl()
    p.label(f'{L}_ok')

def gen_k2(p, cfg):
    e = p.e
    load_ptrs(p); ids(p)
    e('s_waitcnt lgkmcnt(0)')
    srd(p, SRD_WS, P_WS, WS_END)
    WSr = f's[{SRD_WS}:{SRD_WS+3}]'
    e(f'v_lshlrev_b32 v{vAK}, 4, v0')
    e(f's_lshl_b32 s{sT0}, s{sW}, 10')
    for i in range(19):
        e(f's_add_u32 m0, s{sT0}, {8192 * i}')
        e(f's_add_u32 s{sT1}, s{sT0}, {WS_KV + 8192 * i}')
        e(f'buffer_load_dwordx4 v{vAK}, {WSr}, s{sT1} offen lds')
    e(f's_lshl_b32 s{sT0}, s{sHH}, 4')
    e(f's_lshl_b32 s{sT1}, s{sW}, 1')
    e(f's_add_u32 s{sT0}, s{sT0}, s{sT1}')
    e(f's_lshl_b32 s{sT0}, s{sT0}, 11')
    e(f's_lshl_b32 s{sT1}, s{sRG}, 4')
    e(f's_add_u32 s{sT0}, s{sT0}, s{sT1}')
    e(f'v_bfe_u32 v{vT}, v0, 4, 1')
    e(f'v_and_b32 v{vT+1}, 15, v0')
    e(f'v_lshl_add_u32 v{vT}, v{vT}, 11, v{vT+1}')
    e(f'v_lshrrev_b32 v{vT+1}, 5, v0')
    e(f'v_lshlrev_b32 v{vT+2}, 5, v{vT}')
    e(f'v_lshl_add_u32 v{vT+2}, v{vT+1}, 4, v{vT+2}')
    e(f's_lshl_b32 s{sT1}, s{sT0}, 5')
    e(f's_add_u32 s{sT1}, s{sT1}, {WS_QM}')
    e(f'buffer_load_dwordx4 v[{QM}:{QM+3}], v{vT+2}, {WSr}, s{sT1} offen')
    e(f'v_lshlrev_b32 v{vT}, 2, v{vT}')
    e(f'v_lshl_add_u32 v{vT}, v{vT+1}, 30, v{vT}')
    e(f's_lshl_b32 s{sT1}, s{sT0}, 2')
    e(f's_add_u32 s{sT1}, s{sT1}, {WS_QX}')
    e(f'buffer_load_dword v{QX}, v{vT}, {WSr}, s{sT1} offen')
    e(f'v_mov_b32 v{QX+1}, 0')
    attn_addrs(p)
    e('s_waitcnt vmcnt(0)')
    e('s_barrier')
    attn_main(p, 'K2')
    attn_check_and_fallback(p, 'K2')
    e(f'v_rcp_f32 v{vT}, v{vT}')
    for i in range(10): e(f'v_mul_f32 v{OA+i}, v{OA+i}, v{vT}')
    for i in range(5): e(f'v_cvt_pk_bf16_f32 v{PP+i}, v{OA+2*i}, v{OA+2*i+1}')
    e(f's_lshl_b32 s{sT0}, s{sRG}, 1')
    e(f's_add_u32 s{sT0}, s{sT0}, s{sHH}')
    e(f's_mul_i32 s{sT0}, s{sT0}, 9216')
    e(f's_add_u32 s{sT0}, s{sT0}, {WS_O}')
    e(f's_lshl_b32 s{sT1}, s{sW}, 10')
    e(f's_add_u32 s{sT1}, s{sT1}, s{sT0}')
    e(f'v_lshlrev_b32 v{vT}, 4, v0')
    e(f'buffer_store_dwordx4 v[{PP}:{PP+3}], v{vT}, {WSr}, s{sT1} offen')
    e(f's_lshr_b32 s{sT1}, s{sW}, 1'); e(f's_lshl_b32 s{sT1}, s{sT1}, 8')
    e(f's_and_b32 s{sT2}, s{sW}, 1'); e(f's_lshl_b32 s{sT2}, s{sT2}, 3')
    e(f's_add_u32 s{sT1}, s{sT1}, s{sT2}'); e(f's_add_u32 s{sT1}, s{sT1}, s{sT0}'); e(f's_add_u32 s{sT1}, s{sT1}, 8192')
    e(f'v_and_b32 v{vT}, 15, v0'); e(f'v_lshlrev_b32 v{vT}, 4, v{vT}')
    e(f'v_bfe_u32 v{vT+1}, v0, 4, 1'); e(f'v_lshl_add_u32 v{vT}, v{vT+1}, 2, v{vT}')
    e(f'v_lshrrev_b32 v{vT+1}, 5, v0'); e(f'v_lshl_add_u32 v{vT}, v{vT+1}, 30, v{vT}')
    e(f'buffer_store_dword v{PP+4}, v{vT}, {WSr}, s{sT1} offen')

def mf16(D, A, B, C): return f'v_mfma_f32_16x16x32_bf16 v[{D}:{D+3}], v[{A}:{A+3}], v[{B}:{B+3}], {C}'

def sel_frags(p, SEL, tmp):
    e = p.e
    e(f'v_and_b32 v{tmp}, 1, v0')
    e(f'v_lshlrev_b32 v{tmp}, 4, v{tmp}')
    e(f'v_mov_b32 v{tmp+1}, 0x3f80')
    e(f'v_lshlrev_b32 v{tmp}, v{tmp}, v{tmp+1}')
    e(f'v_bfe_u32 v{tmp+1}, v0, 3, 1')
    e(f'v_lshrrev_b32 v{tmp+2}, 5, v0')
    e(f'v_cmp_eq_u32 vcc, v{tmp+1}, v{tmp+2}')
    e(f'v_cndmask_b32 v{tmp}, 0, v{tmp}, vcc')
    e(f'v_bfe_u32 v{tmp+1}, v0, 1, 2')
    e(f'v_bfe_u32 v{tmp+2}, v0, 4, 1')
    e(f'v_lshl_add_u32 v{tmp+1}, v{tmp+2}, 2, v{tmp+1}')
    for i in range(8):
        e(f'v_cmp_eq_u32 vcc, {i}, v{tmp+1}')
        e(f'v_cndmask_b32 v{SEL+i}, 0, v{tmp}, vcc')

def gate_calc(p, T, ldsoff):
    e = p.e
    X, G = T + 4, T + 16
    e(f'v_and_b32 v{T}, 31, v0')
    e(f'v_lshlrev_b32 v{T}, 4, v{T}')
    e(f'v_lshrrev_b32 v{T+1}, 5, v0')
    e(f'v_mul_u32_u24 v{T+2}, 1152, v{T+1}')
    e(f'v_add_u32 v{T+2}, v{T+2}, v{T}')
    e(f's_lshl_b32 s{sT0}, s{sRG}, 4'); e(f's_lshl_b32 s{sT1}, s{sW}, 1'); e(f's_add_u32 s{sT0}, s{sT0}, s{sT1}')
    e(f's_mul_i32 s{sT0}, s{sT0}, 1152')
    e(f'v_cmp_gt_u32 vcc, 128, v{T}')
    e(f'v_mov_b32 v{T+3}, {OOB}')
    e(f'v_cndmask_b32 v{T+3}, v{T+3}, v{T+2}, vcc')
    for i in range(3):
        a = T + 2 if i < 2 else T + 3
        e(f'buffer_load_dwordx4 v[{X+4*i}:{X+4*i+3}], v{a}, s[{SRD_X}:{SRD_X+3}], s{sT0} offen offset:{512 * i}')
        e(f'buffer_load_dwordx4 v[{G+4*i}:{G+4*i+3}], v{T}, s[{SRD_GW}:{SRD_GW+3}], 0 offen offset:{512 * i}')
    return X, G

def gate_finish(p, T, X, G, ldsoff):
    e = p.e
    e(f'v_mov_b32 v{T}, 0')
    for i in range(12): e(f'v_dot2c_f32_bf16 v{T}, v{X+i}, v{G+i}')
    for m in ('quad_perm:[1,0,3,2]', 'quad_perm:[2,3,0,1]', 'row_half_mirror', 'row_mirror'):
        e(f'v_add_f32_dpp v{T}, v{T}, v{T} {m} row_mask:0xf bank_mask:0xf')
    e(f'v_mov_b32 v{T+2}, v{T}')
    e(f'v_permlane16_swap_b32 v{T}, v{T+2}')
    e(f'v_add_f32 v{T}, v{T}, v{T+2}')
    e(f'v_mul_f32 v{T}, {f2u(-math.log2(math.e))}, v{T}')
    e(f'v_exp_f32 v{T}, v{T}')
    e(f'v_add_f32 v{T}, 1.0, v{T}')
    e(f'v_rcp_f32 v{T}, v{T}')
    e(f's_lshl_b32 s{sT0}, s{sW}, 3')
    e(f'v_lshrrev_b32 v{T+1}, 5, v0')
    e(f'v_lshlrev_b32 v{T+1}, 2, v{T+1}')
    e(f'v_add_u32 v{T+1}, s{sT0}, v{T+1}')
    e(f'ds_write_b32 v{T+1}, v{T} offset:{ldsoff}')

def gen_k3(p, cfg):
    e = p.e
    load_ptrs(p); ids(p)
    e('s_waitcnt lgkmcnt(0)')
    srd(p, SRD_WS, P_WS, WS_END)
    srd(p, SRD_X, P_X, 2048 * 1152)
    srd(p, SRD_GW, P_GW, 1152)
    srd(p, SRD_OUT, P_OUT, 2048 * 1152)
    WSr = f's[{SRD_WS}:{SRD_WS+3}]'
    OB, SEL, AA, BB, T, vL16, BUF = 8, 80, 88, 96, 104, 1, 136
    vG = 2
    X, G = gate_calc(p, T, 0)
    e(f'v_lshlrev_b32 v{vL16}, 4, v0')
    e(f's_mul_i32 s{sT0}, s{sRG}, 18432'); e(f's_add_u32 s{sT0}, s{sT0}, {WS_O}')
    for ks in range(18):
        off = (ks // 8) * 9216 + (ks % 8) * 1024 if ks < 16 else (ks - 16) * 9216 + 8192
        e(f's_add_u32 s{sT1}, s{sT0}, {off}')
        e(f'buffer_load_dwordx4 v[{OB+4*ks}:{OB+4*ks+3}], v{vL16}, {WSr}, s{sT1} offen')
    sel_frags(p, SEL, 4)
    gate_finish(p, T, X, G, 0)
    e('s_waitcnt lgkmcnt(0)')
    e('s_barrier')
    e(f'v_and_b32 v{vG}, 15, v0'); e(f'v_lshlrev_b32 v{vG}, 2, v{vG}')
    e(f'ds_read_b32 v{vG}, v{vG}')
    sNT, sPo, sWo = 14, 15, 6
    def tile(Ts, sel_of):
        e(f's_lshr_b32 s{sPo}, s{sRG}, 3'); e(f's_mul_i32 s{sPo}, s{sPo}, {16 * 147456}')
        e(f's_lshl_b32 s{sT0}, s{sNT}, 13'); e(f's_add_u32 s{sPo}, s{sPo}, s{sT0}')
        e(f's_and_b32 s{sT0}, s{sRG}, 7'); e(f's_lshl_b32 s{sT0}, s{sT0}, 10'); e(f's_add_u32 s{sPo}, s{sPo}, s{sT0}')
        for sl in range(16):
            e(f's_add_u32 s{sT1}, s{sPo}, {WS_P + sl * 147456}')
            e(f'buffer_load_dwordx4 v[{BUF+4*sl}:{BUF+4*sl+3}], v{vL16}, {WSr}, s{sT1} offen')
        for sl in range(16):
            for ti in range(Ts):
                e(mf16(BB + 4 * ti, sel_of(ti), BUF + 4 * sl, '0' if sl == 0 else f'v[{BB+4*ti}:{BB+4*ti+3}]'))
        for ti in range(Ts):
            for ks in range(18):
                e(f's_add_u32 s{sT1}, s{sWo}, {(ti * 18 + ks) * 1024}')
                e(f'buffer_load_dwordx4 v[{BUF+4*ks}:{BUF+4*ks+3}], v{vL16}, {WSr}, s{sT1} offen')
            for ks in range(18):
                e(mf16(AA + 4 * ti, BUF + 4 * ks, OB + 4 * ks, '0' if ks == 0 else f'v[{AA+4*ti}:{AA+4*ti+3}]'))
        for i in range(4 * Ts):
            e(f'v_sub_f32 v{AA+i}, v{AA+i}, v{BB+i}')
            e(f'v_fma_f32 v{AA+i}, v{vG}, v{AA+i}, v{BB+i}')
        for i in range(2 * Ts): e(f'v_cvt_pk_bf16_f32 v{T+i}, v{AA+2*i}, v{AA+2*i+1}')
    e(f'v_and_b32 v3, 15, v0'); e(f'v_mul_u32_u24 v3, 1152, v3')
    e(f'v_and_b32 v4, 48, v0'); e(f'v_add_u32 v3, v3, v4')
    e(f's_mul_i32 s{sNT}, s{sHH}, 9'); e(f's_add_u32 s{sNT}, s{sNT}, s{sW}')
    e(f's_mul_i32 s{sWo}, s{sNT}, 36864'); e(f's_add_u32 s{sWo}, s{sWo}, {WS_WO}')
    tile(2, lambda ti: SEL + 4 * ti)
    e(f's_mul_i32 s{sT0}, s{sRG}, 18432'); e(f's_lshl_b32 s{sT1}, s{sNT}, 6'); e(f's_add_u32 s{sT0}, s{sT0}, s{sT1}')
    e(f'buffer_store_dwordx4 v[{T}:{T+3}], v3, s[{SRD_OUT}:{SRD_OUT+3}], s{sT0} offen')
    e(f's_cmp_lt_u32 s{sW}, 6'); e('s_cbranch_scc1 K3_end')
    e(f's_mul_i32 s{sNT}, s{sHH}, 9'); e(f's_add_u32 s{sNT}, s{sNT}, 8')
    e(f's_sub_u32 s{sT2}, s{sW}, 6')
    e(f's_mul_i32 s{sWo}, s{sNT}, 36864'); e(f's_mul_i32 s{sT0}, s{sT2}, 18432'); e(f's_add_u32 s{sWo}, s{sWo}, s{sT0}')
    e(f's_add_u32 s{sWo}, s{sWo}, {WS_WO}')
    e(f's_cmp_eq_u32 s{sT2}, 1'); e('s_cselect_b64 vcc, -1, 0')
    for i in range(4): e(f'v_cndmask_b32 v{SEL+i}, v{SEL+i}, v{SEL+4+i}, vcc')
    tile(1, lambda ti: SEL)
    e(f's_mul_i32 s{sT0}, s{sRG}, 18432'); e(f's_lshl_b32 s{sT1}, s{sNT}, 6'); e(f's_add_u32 s{sT0}, s{sT0}, s{sT1}')
    e(f's_lshl_b32 s{sT1}, s{sT2}, 3'); e(f's_add_u32 s{sT0}, s{sT0}, s{sT1}')
    e(f'buffer_store_dwordx2 v[{T}:{T+1}], v3, s[{SRD_OUT}:{SRD_OUT+3}], s{sT0} offen')
    p.label('K3_end')
```

```python
import sys
from common import *
import k1, k23
def build(cfg, path):
    txt = []
    kernels = [('ffn_kernel', k1.gen_k1, 163840), ('att_kernel', k23.gen_k2, 163840), ('fin_kernel', k23.gen_k3, 1024)]
    for name, g, lds in kernels:
        txt.append(f'; @launch kernel={name} grid=(256,1,1) block=(512,1,1) lds={lds}')
    txt.append('.amdgcn_target "amdgcn-amd-amdhsa--gfx950"')
    txt.append('.text')
    for name, g, lds in kernels:
        p = Prog()
        kernel_header(p, name)
        p.e('s_cmp_ge_u32 s2, 256')
        p.e(f's_cbranch_scc1 {name}_exit')
        g(p, cfg)
        p.label(f'{name}_exit')
        p.e('s_endpgm')
        p.fix_hazards(verbose=cfg.get('verbose', False))
        print(name, 'instrs', len(p.ins), 'nops added', p.nops_added)
        txt.append(p.text())
    txt.append('.section .rodata,"a"')
    for name, g, lds in kernels: txt.append(descriptor(name))
    open(path, 'w').write('\n'.join(txt))
if __name__ == '__main__':
    build({'verbose': len(sys.argv) > 2}, sys.argv[1])
```

```python
import re

REG_RE = re.compile(r'^(-|\|)?(?:abs\()?([vsa])(?:(\d+)|\[(\d+):(\d+)\])\)?\|?$')
TRANS = ('v_exp_f32', 'v_log_f32', 'v_rcp_f32', 'v_rsq_f32', 'v_sqrt_f32', 'v_sin_f32', 'v_cos_f32', 'v_rcp_iflag_f32')

def regs_of(tok):
    tok = tok.strip()
    if tok == 'vcc': return {('s', 106), ('s', 107)}
    if tok == 'vcc_lo': return {('s', 106)}
    if tok == 'vcc_hi': return {('s', 107)}
    if tok == 'm0': return {('s', 124)}
    if tok == 'exec': return {('s', 126), ('s', 127)}
    if tok == 'exec_lo': return {('s', 126)}
    if tok == 'exec_hi': return {('s', 127)}
    m = REG_RE.match(tok)
    if not m: return set()
    f = m.group(2)
    if m.group(3) is not None:
        return {(f, int(m.group(3)))}
    return {(f, i) for i in range(int(m.group(4)), int(m.group(5)) + 1)}

def split_ops(s):
    ops = []; depth = 0; cur = ''
    for ch in s:
        if ch in '[(': depth += 1
        if ch in '])': depth -= 1
        if ch == ',' and depth == 0:
            ops.append(cur.strip()); cur = ''
        else:
            cur += ch
    if cur.strip(): ops.append(cur.strip())
    return ops

class Ins:
    __slots__ = ('text', 'mn', 'ops', 'mods', 'dst', 'src', 'kind', 'tag', 'optional', 'passes', 'A', 'B', 'C', 'label')
    def __init__(self, text, tag=None, optional=False):
        self.text = text; self.tag = tag; self.optional = optional
        self.label = None; self.passes = 0
        self.A = self.B = self.C = set()
        t = text.split(';')[0].strip()
        if t.endswith(':') or t.startswith('.') or not t:
            self.mn = ''; self.kind = 'label' if t.endswith(':') else 'dir'
            self.label = t[:-1] if t.endswith(':') else None
            self.dst = set(); self.src = set(); self.ops = []; self.mods = []
            return
        parts = t.split(None, 1)
        self.mn = mn = parts[0]
        rest = parts[1] if len(parts) > 1 else ''
        ops = split_ops(rest)
        mods = []
        if ops:
            last = ops[-1]
            toks = re.findall(r'(?:[^\s\[\(]|\[[^\]]*\]|\([^\)]*\))+', last)
            ops[-1] = toks[0]; mods = toks[1:]
        self.ops = ops; self.mods = mods
        R = [regs_of(o) for o in ops]
        allr = set().union(*R) if R else set()
        dst = set(); src = set()
        if mn.startswith('v_mfma'):
            self.kind = 'mfma'
            dst = R[0]; self.A, self.B, self.C = R[1], R[2], R[3]; src = R[1] | R[2] | R[3]
            self.passes = 8 if '32x32' in mn else 4
        elif mn.startswith('ds_'):
            self.kind = 'ds'
            if mn.startswith('ds_read') or mn.startswith('ds_bpermute') or mn.startswith('ds_permute') or mn.startswith('ds_swizzle') or '_rtn' in mn:
                dst = R[0]; src = set().union(*R[1:]) if len(R) > 1 else set()
            else:
                src = allr
        elif mn.startswith('buffer_') or mn.startswith('global_'):
            self.kind = 'vmem'
            if mn in ('buffer_wbl2', 'buffer_inv'):
                pass
            elif 'lds' in mods or '_lds_' in mn:
                src = allr | {('s', 124)}; self.kind = 'dma'
            elif '_load' in mn:
                dst = R[0]; src = set().union(*R[1:])
            elif '_atomic' in mn and 'sc0' in mods:
                if mn.startswith('global_'):
                    dst = R[0]; src = set().union(*R[1:])
                else:
                    dst = R[0]; src = allr
            else:
                src = allr
        elif mn.startswith('s_'):
            self.kind = 'salu'
            if mn.startswith('s_load') or mn.startswith('s_memtime') or mn.startswith('s_memrealtime') or mn.startswith('s_buffer_load'):
                self.kind = 'smem'; dst = R[0]; src = set().union(*R[1:]) if len(R) > 1 else set()
            elif mn.startswith('s_cmp') or mn.startswith('s_bitcmp'):
                src = allr
            elif mn in ('s_waitcnt', 's_barrier', 's_nop', 's_setprio', 's_endpgm', 's_sleep', 's_branch') or mn.startswith('s_cbranch'):
                self.kind = 'ctl'
            elif 'saveexec' in mn:
                dst = R[0] | regs_of('exec'); src = R[1] | regs_of('exec')
            else:
                dst = R[0]; src = set().union(*R[1:]) if len(R) > 1 else set()
                if mn in ('s_addk_i32', 's_mulk_i32', 's_cmov_b32'): src |= R[0]
        elif mn.startswith('v_'):
            self.kind = 'valu'
            base = mn.replace('_e32', '').replace('_e64', '').replace('_dpp', '').replace('_sdwa', '')
            if base.startswith('v_cmp'):
                dst = R[0]; src = set().union(*R[1:])
            elif base.startswith('v_permlane') and 'swap' in base:
                dst = allr; src = allr
            elif base in ('v_add_co_u32', 'v_sub_co_u32', 'v_addc_co_u32', 'v_subb_co_u32', 'v_mad_u64_u32', 'v_subrev_co_u32'):
                dst = R[0] | R[1]; src = set().union(*R[2:])
            elif base in ('v_fmac_f32', 'v_dot2c_f32_bf16', 'v_writelane_b32'):
                dst = R[0]; src = allr
            else:
                dst = R[0]; src = set().union(*R[1:]) if len(R) > 1 else set()
                if base == 'v_cndmask_b32' and len(ops) == 3: src |= regs_of('vcc')
                if is_dpp(self): src |= R[0]
        else:
            raise ValueError('unknown instr: ' + text)
        self.dst = dst; self.src = src
    def states(self):
        if self.kind in ('label', 'dir'): return 0
        if self.mn == 's_nop': return int(self.ops[0], 0) + 1
        return 1

def is_dpp(i):
    return i.mn.endswith('_dpp') or any(m.startswith(('row_', 'quad_perm', 'wave_')) for m in i.mods)
def vset(s): return {r for r in s if r[0] in 'va'}
def sset(s): return {r for r in s if r[0] == 's'}

def required(p, c):
    need = 0
    base = lambda i: i.mn.replace('_e32', '').replace('_e64', '')
    if p.kind == 'valu':
        vd = vset(p.dst); sd = sset(p.dst)
        isdot = p.mn.startswith('v_dot')
        if c.kind == 'mfma' and vd & c.src: need = max(need, 3 if isdot else 2)
        if c.kind == 'valu':
            if base(p) in TRANS and base(c) not in TRANS and vd & c.src: need = max(need, 1)
            if c.mn.startswith('v_permlane') and vd & c.src: need = max(need, 2)
            if c.mn.startswith(('v_readfirstlane', 'v_readlane')) and vd & c.src: need = max(need, 1)
            if is_dpp(c) and vd & c.src: need = max(need, 2)
            if sd & c.src:
                need = max(need, 4 if c.mn.startswith(('v_readlane', 'v_writelane')) else 2)
            if isdot and vd & (c.src | c.dst):
                if base(c) == base(p):
                    ab = regs_of(c.ops[1]) | regs_of(c.ops[2])
                    if vd & ab: need = max(need, 3)
                else: need = max(need, 3)
        if isdot and c.kind in ('vmem', 'ds', 'dma') and vd & c.src: need = max(need, 3)
        if c.kind in ('vmem', 'dma') and sd & c.src: need = max(need, 5)
        if c.kind in ('salu',) and sd & c.src: need = max(need, 1)
    if p.kind == 'mfma':
        big = 12 if p.passes == 8 else 8
        if c.kind == 'valu' and p.dst & (c.src | c.dst): need = max(need, big)
        if c.kind in ('vmem', 'ds', 'dma') and p.dst & (c.src | c.dst): need = max(need, big)
        if c.kind == 'mfma':
            if p.dst & (c.A | c.B): need = max(need, big)
            if p.dst & c.C:
                if not (p.dst == c.C and p.passes == c.passes): need = max(need, 10 if p.passes == 8 else 6)
            elif p.dst & c.dst and p.passes != c.passes: need = max(need, big)
        if c.kind == 'valu' and p.C & c.dst: need = max(need, 7 if p.passes == 8 else 3)
    if p.kind == 'salu' and ('s', 124) in p.dst and c.kind == 'dma': need = max(need, 1)
    if p.kind == 'vmem' and ('store' in p.mn) and (p.mn.endswith('x4') or p.mn.endswith('x3')):
        data = regs_of(p.ops[0]) if p.mn.startswith('buffer') else regs_of(p.ops[1])
        if data & c.dst: need = max(need, 2 if c.kind in ('valu', 'mfma') else 1)
    return need

class Prog:
    def __init__(self):
        self.ins = []
        self.lg = []
        self.vm = []
        self.auto = True
        self.nops_added = 0
    def raw(self, text, **kw):
        i = Ins(text, **kw); self.ins.append(i); return i
    def label(self, l): self.raw(l + ':')
    def c(self, text): self.raw('; ' + text)
    def _wait(self, vm=None, lg=None):
        parts = []
        if vm is not None: parts.append(f'vmcnt({min(vm, 63)})')
        if lg is not None: parts.append(f'lgkmcnt({min(lg, 15)})')
        self.e('s_waitcnt ' + ' '.join(parts))
    def _younger(self, lst, idx):
        return sum(1 for j in lst[idx + 1:] if not j.optional)
    def e(self, text, tag=None, optional=False):
        i = Ins(text, tag=tag, optional=optional)
        if i.mn == 's_waitcnt':
            m = re.search(r'vmcnt\((\d+)\)', text)
            if m: self._retire(self.vm, int(m.group(1)))
            m = re.search(r'lgkmcnt\((\d+)\)', text)
            if m: self._retire(self.lg, int(m.group(1)))
            self.ins.append(i); return i
        if self.auto:
            touch = i.src | i.dst
            lgn = vmn = None
            for k in range(len(self.lg) - 1, -1, -1):
                if self.lg[k].dst & touch:
                    lgn = 0 if any(j.kind == 'smem' for j in self.lg) else self._younger(self.lg, k); break
            for k in range(len(self.vm) - 1, -1, -1):
                if self.vm[k].dst & touch:
                    vmn = self._younger(self.vm, k); break
            if lgn is not None or vmn is not None: self._wait(vmn, lgn)
        self.ins.append(i)
        if i.kind in ('ds', 'smem'): self.lg.append(i)
        if i.kind in ('vmem', 'dma'): self.vm.append(i)
        return i
    def _retire(self, lst, n):
        keep = []; cnt = 0
        for j in reversed(lst):
            if cnt >= n: break
            keep.append(j)
            if not j.optional: cnt += 1
        lst[:] = list(reversed(keep))
    def vm_need(self, tags):
        for k in range(len(self.vm) - 1, -1, -1):
            if self.vm[k].tag in tags: return self._younger(self.vm, k)
        return None
    def wait_lg(self, tags):
        for k in range(len(self.lg) - 1, -1, -1):
            if self.lg[k].tag in tags:
                n = 0 if any(j.kind == 'smem' for j in self.lg) else self._younger(self.lg, k)
                self._wait(None, n); return True
        return False
    def wait(self, vmtags=(), lg0=False):
        vmn = self.vm_need(set(vmtags))
        lgn = 0 if (lg0 and self.lg) else None
        if vmn is not None or lgn is not None: self._wait(vmn, lgn)
    def reset_tracking(self): self.lg = []; self.vm = []
    def fix_hazards(self, verbose=False):
        out = []
        for i in self.ins:
            if i.kind not in ('label', 'dir'):
                need = self._need(out, i)
                if need > 0:
                    if verbose: print(f'nop {need} before: {i.text}')
                    self.nops_added += need
                    while need > 0:
                        n = min(need, 16); out.append(Ins(f's_nop {n - 1}')); need -= n
            out.append(i)
        self.ins = out
        self._check_branches()
    @staticmethod
    def _need(prev, c):
        dist = 0; need = 0
        for p in reversed(prev):
            if p.kind in ('label', 'dir'): continue
            if p.mn in ('s_branch', 's_endpgm'): break
            r = required(p, c)
            if r > dist: need = max(need, r - dist)
            dist += p.states()
            if dist >= 20: break
        return need
    def _check_branches(self):
        pos = {i.label: k for k, i in enumerate(self.ins) if i.kind == 'label'}
        for k, i in enumerate(self.ins):
            if i.mn == 's_branch' or i.mn.startswith('s_cbranch'):
                tgt = pos[i.ops[0]]
                seq = [x for x in self.ins[max(0, k - 40):k] if x.kind not in ('label', 'dir')]
                for q in range(len(seq) - 1, -1, -1):
                    if seq[q].mn in ('s_branch', 's_endpgm'): seq = seq[q + 1:]; break
                seq.append(Ins('s_nop 0'))
                n = 0
                for c in self.ins[tgt:tgt + 40]:
                    if c.kind in ('label', 'dir'): continue
                    need = self._need(seq, c)
                    if need > 0: raise RuntimeError(f'hazard across branch {i.text}: {c.text} needs {need} more')
                    if c.mn in ('s_branch', 's_endpgm'): break
                    seq.append(c); n += c.states()
                    if n >= 20: break
    def text(self):
        return '\n'.join((i.text if i.kind in ('label', 'dir') and not i.text.startswith(';') else '  ' + i.text) for i in self.ins) + '\n'

def v(a, n=1): return f'v{a}' if n == 1 else f'v[{a}:{a + n - 1}]'
def s(a, n=1): return f's{a}' if n == 1 else f's[{a}:{a + n - 1}]'
import struct
def f2u(x): return '0x%08x' % struct.unpack('<I', struct.pack('<f', x))[0]
```

```python
from common import *
from ffn import KVG, KVB, sW, sT0, sT1, sT2, SRD_WS, SRD_X

sRG, sHH, sCnt = 4, 5, 13
SRD_GW, SRD_OUT = 48, 52
vAK, vAV, vT = 1, 2, 4
QM = 12
QX = 20
PP = 36
SA, SB, OA, OB = 48, 64, 80, 96
KM, VV, KX = 112, 120, 136
CN = 144

def mf32(D, A, B, C): return f'v_mfma_f32_32x32x16_bf16 v[{D}:{D+15}], v[{A}:{A+3}], v[{B}:{B+3}], {C}'
def mf8(D, A, B, C): return f'v_mfma_f32_32x32x8_bf16 v[{D}:{D+15}], v[{A}:{A+1}], v[{B}:{B+1}], {C}'
def mf16(D, A, B, C): return f'v_mfma_f32_16x16x32_bf16 v[{D}:{D+3}], {A}, {B}, {C}'
def vr(a): return f'v[{a}:{a+15}]'

def att_ids(p):
    e = p.e
    e(f's_lshr_b32 s{sRG}, s2, 4'); e(f's_lshl_b32 s{sRG}, s{sRG}, 3')
    e(f's_and_b32 s{sT0}, s2, 7'); e(f's_add_u32 s{sRG}, s{sRG}, s{sT0}')
    e(f's_bfe_u32 s{sHH}, s2, 0x10003')

def att_addrs(p, cfg):
    e = p.e
    e(f'v_lshlrev_b32 v{vAK}, 4, v0')
    e(f'v_and_b32 v{vT}, 31, v0')
    if cfg.get('vzero', 1): e(f'v_mov_b32 v{vT+1}, 0x10000')
    else: e(f'v_subrev_u32 v{vT+1}, 16, v{vT}')
    e(f'v_cmp_lt_u32 vcc, 18, v{vT}')
    e(f'v_lshrrev_b32 v{vT+2}, 5, v0')
    e(f'v_mul_u32_u24 v{vT+2}, 304, v{vT+2}')
    e(f'v_cndmask_b32 v{vT}, v{vT}, v{vT+1}, vcc')
    e(f'v_lshl_add_u32 v{vAV}, v{vT}, 4, v{vT+2}')

def q_loads(p, fl=''):
    e = p.e; WSr = f's[{SRD_WS}:{SRD_WS+3}]'
    e(f's_lshl_b32 s{sT0}, s{sHH}, 4'); e(f's_lshl_b32 s{sT1}, s{sW}, 2'); e(f's_add_u32 s{sT0}, s{sT0}, s{sT1}')
    e(f's_lshl_b32 s{sT0}, s{sT0}, 11'); e(f's_lshl_b32 s{sT1}, s{sRG}, 4'); e(f's_add_u32 s{sT0}, s{sT0}, s{sT1}')
    e(f'v_bfe_u32 v{vT+3}, v0, 4, 1'); e(f'v_and_b32 v{vT+4}, 15, v0'); e(f'v_lshl_add_u32 v{vT+3}, v{vT+3}, 11, v{vT+4}')
    e(f'v_lshrrev_b32 v{vT+4}, 5, v0'); e(f'v_lshlrev_b32 v{vT+5}, 5, v{vT+3}'); e(f'v_lshl_add_u32 v{vT+5}, v{vT+4}, 4, v{vT+5}')
    e(f'v_lshlrev_b32 v{vT+3}, 2, v{vT+3}')
    e(f's_lshl_b32 s{sT1}, s{sT0}, 5'); e(f's_add_u32 s{sT1}, s{sT1}, {WS_QM}'); e(f's_add_u32 s{sT2}, s{sT1}, {2 * 65536}')
    e(f'buffer_load_dwordx4 v[{QM}:{QM+3}], v{vT+5}, {WSr}, s{sT1} offen {fl}')
    e(f'buffer_load_dwordx4 v[{QM+4}:{QM+7}], v{vT+5}, {WSr}, s{sT2} offen {fl}')
    e(f's_lshl_b32 s{sT1}, s{sT0}, 2'); e(f's_add_u32 s{sT1}, s{sT1}, {WS_QX}'); e(f's_add_u32 s{sT2}, s{sT1}, {2 * 8192}')
    e(f'buffer_load_dword v{vT+6}, v{vT+3}, {WSr}, s{sT1} offen {fl}')
    e(f'buffer_load_dword v{vT+7}, v{vT+3}, {WSr}, s{sT2} offen {fl}')

def q_variants(p):
    e = p.e
    e('v_cmp_gt_u32 vcc, 32, v0')
    for t in range(2):
        b = QX + 8 * t
        for r in (1, 2, 5, 6): e(f'v_mov_b32 v{b+r}, 0')
        e(f'v_cndmask_b32 v{b}, 0, v{vT+6+t}, vcc'); e(f'v_cndmask_b32 v{b+3}, 0, v{vT+6+t}, vcc')
        e(f'v_cndmask_b32_e64 v{b+4}, v{vT+6+t}, 0, vcc'); e(f'v_cndmask_b32_e64 v{b+7}, v{vT+6+t}, 0, vcc')

def boff(b): return (b >> 3) * KVG + 1024 + (b & 7) * KVB
def rdKM(b, base=0): return f'ds_read_b128 v[{KM+4*(b&1)}:{KM+4*(b&1)+3}], v{vAK} offset:{boff(b) - base}'
def rdV(b, i, base=0): return f'ds_read_b128 v[{VV+8*(b&1)+4*i}:{VV+8*(b&1)+4*i+3}], v{vAV} offset:{boff(b) + 1024 + 608 * i - base}'
def rdKX(g, base=0): return f'ds_read_b128 v[{KX+4*(g&1)}:{KX+4*(g&1)+3}], v{vAK} offset:{g * KVG - base}'
def qkx(b, t, D, C='0'):
    return mf8(D, KX + 4 * ((b >> 3) & 1) + 2 * ((b >> 1) & 1), QX + 8 * t + 4 * ((b >> 2) & 1) + 2 * (b & 1), C)

def half_step(p, b, t, base, cfg, extra=None, line=False):
    e = p.e
    cur, nxt = (SA, SB) if t == 0 else (SB, SA)
    Oc, Op_ = (OA, OB) if t == 0 else (OB, OA)
    nb, nt = (b, 1) if t == 0 else (b + 1, 0)
    pb = b - 1 if t == 0 else b
    pat = cfg.get('apat', 'E0 E1 PB r0 E2 E3 C0 C1 E4 w QX x0 E5 E6 E7 y0 C2 C3 E8 QM r1 E9 E10 E11 y1 C4 C5 E12 PA x1 E13 E14 E15 C6 C7')
    for tk in pat.split():
        if tk[0] == 'E': i = int(tk[1:]); e(f'v_exp_f32 v{cur+i}, v{cur+i}')
        elif tk[0] == 'C': i = int(tk[1:]); e(f'v_cvt_pk_bf16_f32 v{PP+i}, v{cur+2*i}, v{cur+2*i+1}')
        elif tk == 'PB':
            if not (line and pb < 0): e(mf32(Op_, VV + 8 * (pb & 1) + 4, PP + 4, vr(Op_)))
        elif tk == 'PA': e(mf32(Oc, VV + 8 * (b & 1), PP, '0' if (line and b == 0) else vr(Oc)))
        elif line and nb > 63 and tk in ('QX', 'QM', 'w'): pass
        elif line and b == 63 and tk in ('r0', 'r1'): pass
        elif tk == 'QX': e(qkx(nb, nt, nxt))
        elif tk == 'QM': e(mf32(nxt, KM + 4 * (nb & 1), QM + 4 * nt, vr(nxt)))
        elif tk == 'w':
            if t == 1: e('s_waitcnt lgkmcnt(0)')
        elif tk == 'r0':
            if t == 0: e(rdKM(b + 1, base)); e(rdV(b + 1, 0, base))
        elif tk == 'r1':
            if t == 0:
                e(rdV(b + 1, 1, base))
                if b % 8 == 3 and not (line and b > 56): e(rdKX((b >> 3) + 1, base))
        elif tk[0] in 'xy':
            if extra: extra(2 * b + t, tk)
        else: raise ValueError(tk)

def att_pre(p):
    e = p.e
    e(rdKX(0)); e(rdKM(0)); e(rdV(0, 0)); e(rdV(0, 1))
    for i in range(16): e(f'v_mov_b32 v{OA+i}, 0'); e(f'v_mov_b32 v{OB+i}, 0')
    for i in range(4): e(f'v_mov_b32 v{PP+4+i}, 0'); e(f'v_mov_b32 v{VV+12+i}, 0')
    e('s_waitcnt lgkmcnt(0)')
    e(qkx(0, 0, SA)); e(mf32(SA, KM, QM, vr(SA)))

def att_loop(p, L, cfg):
    e = p.e
    att_pre(p)
    e(f's_mov_b32 s{sCnt}, 4')
    e('s_nop 9')
    p.raw('.p2align 6'); p.label(f'{L}_loop')
    for b in range(16):
        for t in range(2): half_step(p, b, t, 0, cfg)
    for a in (vAK, vAV): e(f'v_add_u32 v{a}, {2 * KVG}, v{a}')
    e(f's_sub_u32 s{sCnt}, s{sCnt}, 1'); e(f's_cmp_lg_u32 s{sCnt}, 0'); e(f's_cbranch_scc1 {L}_loop')
    e(mf32(OB, VV + 12, PP + 4, vr(OB)))

def att_check(p, L, cfg, part=None):
    e = p.e
    def getl():
        for t, O in ((0, OA), (1, OB)):
            e(f'v_mov_b32 v{vT+2*t}, v{O+10}'); e(f'v_mov_b32 v{vT+2*t+1}, v{O+10}')
        for t in range(2): e(f'v_permlane32_swap_b32 v{vT+2*t}, v{vT+2*t+1}')
    M = 96
    if part == 'fallback':
        p.label(f'{L}_fb'); fallback(p, L, cfg); getl(); e(f's_branch {L}_ok'); return
    getl()
    e(f'v_cmp_nle_f32 vcc, {f2u(2.0 ** -30)}, v{vT}'); e(f's_mov_b64 s[{M}:{M+1}], vcc')
    e(f'v_cmp_nge_f32 vcc, {f2u(2.0 ** 40)}, v{vT}'); e(f's_or_b64 s[{M}:{M+1}], vcc, s[{M}:{M+1}]')
    e(f'v_cmp_nle_f32 vcc, {f2u(2.0 ** -30)}, v{vT+2}'); e(f's_or_b64 s[{M}:{M+1}], vcc, s[{M}:{M+1}]')
    e(f'v_cmp_nge_f32 vcc, {f2u(2.0 ** 40)}, v{vT+2}'); e(f's_or_b64 s[{M}:{M+1}], vcc, s[{M}:{M+1}]')
    if part == 'test':
        e(f's_cbranch_scc1 {L}_fb'); p.label(f'{L}_ok'); return
    e(f's_cbranch_scc0 {L}_ok')
    fallback(p, L, cfg)
    getl()
    p.label(f'{L}_ok')

def fallback(p, L, cfg):
    e = p.e
    mx = vT + 4
    for t, O in ((0, OA), (1, OB)):
        att_addrs(p, cfg)
        e(f'v_mov_b32 v{mx}, 0xff800000'); e(f's_mov_b32 s{sCnt}, 8')
        p.label(f'{L}_f1{t}')
        e(rdKX(0))
        for b in range(8):
            e(rdKM(b)); e('s_waitcnt lgkmcnt(0)')
            e(qkx(b, t, SA)); e(mf32(SA, KM + 4 * (b & 1), QM + 4 * t, vr(SA)))
            for i in range(0, 16, 2): e(f'v_max3_f32 v{mx}, v{SA+i}, v{SA+i+1}, v{mx}')
        e(f'v_add_u32 v{vAK}, {KVG}, v{vAK}')
        e(f's_sub_u32 s{sCnt}, s{sCnt}, 1'); e(f's_cmp_lg_u32 s{sCnt}, 0'); e(f's_cbranch_scc1 {L}_f1{t}')
        e(f'v_mov_b32 v{mx+1}, v{mx}'); e(f'v_permlane32_swap_b32 v{mx}, v{mx+1}'); e(f'v_max_f32 v{mx}, v{mx}, v{mx+1}')
        att_addrs(p, cfg)
        for i in range(16): e(f'v_sub_f32 v{SB+i}, 0, v{mx}'); e(f'v_mov_b32 v{O+i}, 0')
        e(f's_mov_b32 s{sCnt}, 8')
        p.label(f'{L}_f2{t}')
        e(rdKX(0))
        for b in range(8):
            e(rdKM(b)); e(rdV(b, 0)); e(rdV(b, 1)); e('s_waitcnt lgkmcnt(0)')
            e(qkx(b, t, SA, vr(SB))); e(mf32(SA, KM + 4 * (b & 1), QM + 4 * t, vr(SA)))
            for i in range(16): e(f'v_exp_f32 v{SA+i}, v{SA+i}')
            for i in range(8): e(f'v_cvt_pk_bf16_f32 v{PP+i}, v{SA+2*i}, v{SA+2*i+1}')
            e(mf32(O, VV + 8 * (b & 1), PP, vr(O))); e(mf32(O, VV + 8 * (b & 1) + 4, PP + 4, vr(O)))
        for a in (vAK, vAV): e(f'v_add_u32 v{a}, {KVG}, v{a}')
        e(f's_sub_u32 s{sCnt}, s{sCnt}, 1'); e(f's_cmp_lg_u32 s{sCnt}, 0'); e(f's_cbranch_scc1 {L}_f2{t}')

def o_pack(p):
    e = p.e
    e(f'v_rcp_f32 v{vT}, v{vT}'); e(f'v_rcp_f32 v{vT+2}, v{vT+2}')
    for t, O in ((0, OA), (1, OB)):
        for i in range(10): e(f'v_mul_f32 v{O+i}, v{O+i}, v{vT+2*t}')
        for i in range(5): e(f'v_cvt_pk_bf16_f32 v{O+i}, v{O+2*i}, v{O+2*i+1}')

def gen_k2(p, cfg, pf):
    e = p.e
    load_ptrs(p)
    e('v_lshrrev_b32 v1, 6, v0'); e('v_and_b32 v0, 63, v0'); e(f'v_readfirstlane_b32 s{sW}, v1')
    att_ids(p)
    e('s_waitcnt lgkmcnt(0)')
    srd(p, SRD_WS, P_WS, WS_END)
    WSr = f's[{SRD_WS}:{SRD_WS+3}]'
    e(f'v_lshlrev_b32 v{vAK}, 4, v0')
    e(f's_lshl_b32 s{sT0}, s{sW}, 12')
    for i in range(10):
        e(f's_add_u32 m0, s{sT0}, {16384 * i}')
        e(f's_add_u32 s{sT1}, s{sT0}, {WS_KV + 16384 * i}')
        for q in range(4): e(f'buffer_load_dwordx4 v{vAK}, {WSr}, s{sT1} offen offset:{1024 * q} lds')
    q_loads(p); q_variants(p); att_addrs(p, cfg)
    e('s_waitcnt vmcnt(0)'); e('s_barrier')
    pf.stamp(0)
    p.auto = False
    att_loop(p, 'K2', cfg)
    p.auto = True; p.lg = []
    pf.stamp(1)
    att_check(p, 'K2', cfg)
    o_pack(p)
    e(f's_lshl_b32 s{sT0}, s{sRG}, 1'); e(f's_add_u32 s{sT0}, s{sT0}, s{sHH}'); e(f's_mul_i32 s{sT0}, s{sT0}, 9216'); e(f's_add_u32 s{sT0}, s{sT0}, {WS_O}')
    e(f's_lshl_b32 s{sT1}, s{sW}, 11'); e(f's_add_u32 s{sT1}, s{sT1}, s{sT0}')
    e(f'v_lshlrev_b32 v{vT}, 4, v0')
    e(f'buffer_store_dwordx4 v[{OA}:{OA+3}], v{vT}, {WSr}, s{sT1} offen')
    e(f'buffer_store_dwordx4 v[{OB}:{OB+3}], v{vT}, {WSr}, s{sT1} offen offset:1024')
    e(f's_lshl_b32 s{sT1}, s{sW}, 8'); e(f's_add_u32 s{sT1}, s{sT1}, s{sT0}'); e(f's_add_u32 s{sT1}, s{sT1}, 8192')
    e(f'v_and_b32 v{vT}, 15, v0'); e(f'v_lshlrev_b32 v{vT}, 4, v{vT}')
    e(f'v_bfe_u32 v{vT+1}, v0, 4, 1'); e(f'v_lshl_add_u32 v{vT}, v{vT+1}, 2, v{vT}')
    e(f'v_lshrrev_b32 v{vT+1}, 5, v0'); e(f'v_lshl_add_u32 v{vT}, v{vT+1}, 30, v{vT}')
    e(f'buffer_store_dword v{OA+4}, v{vT}, {WSr}, s{sT1} offen')
    e(f'buffer_store_dword v{OB+4}, v{vT}, {WSr}, s{sT1} offen offset:8')
```

```python
from asmlib import *
import math
NAME = 'gated_mix__grouped_kv_mqa__glu_gated_geglu__prompt'
WS_P   = 0
WS_KV  = 0x2400000
KVBLK  = 2368
WS_QM  = WS_KV + 0x40000
WS_QX  = WS_QM + 0x200000
WS_WO  = WS_QX + 0x40000
WS_O   = WS_WO + 0xC0000
WS_FL  = WS_O + 0x240000
WS_PROF = WS_FL + 0x10000
WS_END = WS_PROF + 0x100000
OOB = 0x40000000
QSCALE = math.log2(math.e) / math.sqrt(18.0)
GC0 = -2.0 * math.log2(math.e) * math.sqrt(2.0 / math.pi)
GC1 = GC0 * 0.044715

P_X, P_WQ, P_WK, P_WV, P_WO, P_BX, P_WG, P_WU = 16, 18, 20, 22, 24, 26, 28, 30
P_WD, P_GW, P_OUT, P_DBG, P_WS = 32, 34, 36, 38, 40

def load_ptrs(p):
    p.e('s_load_dwordx16 s[16:31], s[0:1], 0')
    p.e('s_load_dwordx8 s[32:39], s[0:1], 64')
    p.e('s_load_dwordx2 s[40:41], s[0:1], 96')

def srd(p, d, ptr, nbytes):
    p.e(f's_mov_b32 s{d}, s{ptr}')
    p.e(f's_and_b32 s{d+1}, s{ptr+1}, 0xffff')
    p.e(f's_mov_b32 s{d+2}, {nbytes}')
    p.e(f's_mov_b32 s{d+3}, 0x20000')

def kernel_header(p, name):
    p.raw('.p2align 8')
    p.raw(f'.globl {name}')
    p.raw(f'.type {name},@function')
    p.label(name)

def descriptor(name, vgpr=256, sgpr=102, acc=None):
    return f'''.p2align 6
.amdhsa_kernel {name}
  .amdhsa_next_free_vgpr {vgpr}
  .amdhsa_next_free_sgpr {sgpr}
  .amdhsa_accum_offset {acc or ((vgpr + 3) // 4) * 4}
  .amdhsa_group_segment_fixed_size 0
  .amdhsa_kernarg_size 104
  .amdhsa_user_sgpr_count 2
  .amdhsa_user_sgpr_kernarg_segment_ptr 1
  .amdhsa_system_sgpr_workgroup_id_x 1
.end_amdhsa_kernel
'''

class Prof:
    def __init__(self, p, on, va=254, sa=94):
        self.p, self.on, self.va, self.sa = p, on, va, sa
        self.names = {}
    def start(self, real=False):
        if self.on: self.p.e(f"s_mem{'real' if real else ''}time s[{self.sa}:{self.sa+1}]")
    def save(self, idx, name=None):
        if self.on:
            self.p.e(f'v_writelane_b32 v{self.va + idx // 64}, s{self.sa}, {idx % 64}')
            self.names[idx] = name
    def stamp(self, idx, name=None, real=False):
        self.start(real); self.save(idx, name)
    def dump(self, srd, sw, slot=0):
        if not self.on: return
        e = self.p.e; a = self.sa
        e(f's_lshl_b32 s{a}, s2, 3'); e(f's_add_u32 s{a}, s{a}, s{sw}'); e(f's_lshl_b32 s{a}, s{a}, 9')
        e(f's_add_u32 s{a}, s{a}, {WS_PROF}')
        e(f'v_lshlrev_b32 v1, 2, v0')
        e(f'buffer_store_dword v{self.va}, v1, s[{srd}:{srd+3}], s{a} offen')
        e(f'buffer_store_dword v{self.va+1}, v1, s[{srd}:{srd+3}], s{a} offen offset:256')

class Op:
    def __init__(self, text, cost=None, deps=(), start=0, end=10**9, tag=None, same=None, res=None, rel=None, lds=False, prio=None):
        self.text = text; self.deps = list(deps); self.start = start; self.end = end; self.tag = tag
        self.gap = None; self.res = res; self.rel = rel; self.same = list(same or [])
        if cost is None: cost = 2 if (isinstance(text, str) and text.split()[0] in TRANS) else 1
        self.cost = cost; self.lds = lds; self.prio = end if prio is None else prio

class Sched:
    def __init__(self, ngaps, cap):
        self.n = ngaps; self.cap = cap
        self.fixed = [[] for _ in range(ngaps + 1)]
        self.ops = []; self.temps = []
        self.nolds = lambda g: False
    def fix(self, g, item, cost=1, tag=None): self.fixed[g].append((cost, item, tag))
    def free(self, g): return max(0, self.cap - sum(c for c, _, _ in self.fixed[g]))
    def add(self, op): self.ops.append(op); return op
    def chain(self, texts, start, end, deps=(), tight=True):
        prev = None; out = []
        for t in texts:
            op = Op(t, start=start, end=end, lds=isinstance(t, str) and t.startswith('ds_'))
            if prev is None: op.deps = list(deps)
            elif tight: op.same = [prev]
            else: op.deps = [prev]
            self.add(op); out.append(op); prev = op
        return out
    def run(self):
        n = self.n
        fr = [self.free(g) for g in range(n + 1)]
        pre = [0] * (n + 2)
        for g in range(n + 1): pre[g + 1] = pre[g] + fr[g]
        placed = [[] for _ in range(n + 1)]
        pend = sorted(self.ops, key=lambda o: (o.end, o.start))
        over = 0
        for g in range(n + 1):
            if not pend: break
            cap = fr[g]
            excl = any(c >= 99 for c, _, _ in self.fixed[g])
            if excl: continue
            need = 0; behind = 0
            horizon = max([o.end for o in pend if o.start <= g] + [g])
            horizon = max([o.end for o in pend if o.start < horizon and o.end <= horizon + 40] + [horizon])
            for i, o in enumerate(pend):
                if o.end > horizon: break
                need += o.cost
                if i + 1 == len(pend) or pend[i + 1].end != o.end:
                    d = min(o.end, n + 1)
                    avail = (pre[max(d - 2, g)] - pre[g]) * 0.99
                    if need > avail: behind = max(behind, 1 + int((need - avail) / max(1, d - 2 - g)))
            if g == n: behind = 10**6
            cap += behind
            used = 0
            while True:
                best = None
                for o in pend:
                    if o.start > g: continue
                    if o.cost > cap - used and o.end - g > 3: continue
                    if o.lds and self.nolds(g): continue
                    if any(d.gap is None or (d.gap >= g and g != n) for d in o.deps): continue
                    if any(d.gap is None for d in o.same): continue
                    if o.res is not None and not self.temps: continue
                    urgent = o.end - g < 6
                    key = (0 if urgent else 1, -o.cost, o.prio)
                    if best is None or key < best[0]: best = (key, o)
                if best is None: break
                o = best[1]
                if o.res is not None: o.res.append(self.temps.pop(0))
                o.gap = g; used += o.cost; pend.remove(o); placed[g].append(o)
                assert g < o.end or g == n, ('deadline missed', g, o.end, o.text if isinstance(o.text, str) else o.text())
                if o.rel is not None: self.temps.append(o.rel[0])
            over += max(0, used - fr[g]) if g < n else 0
        assert not pend, [o.text for o in pend[:5]]
        self.placed = placed; self.over = over
        return placed
```

```python
from common import *

KVG, KVB = 18944, 2240
sW, sM_, sS = 3, 4, 5
sA, sA4, sX, sMb = 6, 7, 8, 9
sT0, sT1, sT2 = 10, 11, 12
sFs, sHd, sK32 = 13, 14, 15
SRD_X, SRD_WG, SRD_WU, SRD_W4, SRD_WD, SRD_WS, SRD_WO = 44, 48, 52, 56, 60, 64, 68
sHF = 72
sP, sQm, sQx, sKV, sKX = 74, 75, 76, 77, 78
sWoD = 79
sWoJ = 80
sso, sso2, sK4, sPo, sQs = 88, 89, 90, 91, 92
vOffW, vOffD, vOffX = 1, 5, 9
vRd = 13
vH, vC1, vL16, vT = 19, 20, 21, 22
XA, XAT = 24, 28
AB = 32
G0, G1, UU = 64, 96, 128
GT = 160; NGT = 12
XV = 172
vB1, vB2, vSel, vSt1, vSt2, vAd = 204, 206, 208, 211, 212, 214
vDo, vTa, vTx, vHw, vH2, vXw, vXr = 22, 23, 222, 223, 224, 225, 226
vPW, vPQ, vPD, vDum = 250, 251, 252, 253
sFp, sPC = 93, 98
vWo = 228
NPL = 10
NQ = 2088

def xf(k, rt, n=4, o=0):
    i = (k * 4 + rt) * 4 + o
    if k < 16: return f'a[{i}:{i+n-1}]'
    i = XV + i - 256
    return f'v[{i}:{i+n-1}]'

def gen_ffn(p, cfg, pf):
    DMAX = cfg.get('dmax', 7)
    stf = cfg.get('stflags', '')
    e = p.e
    A = GT
    load_ptrs(p)
    e('v_lshrrev_b32 v1, 6, v0')
    e('v_and_b32 v0, 63, v0')
    e(f'v_readfirstlane_b32 s{sW}, v1')
    if cfg.get('codepf'):
        e(f's_getpc_b64 s[{sPC}:{sPC+1}]')
        e(f's_lshr_b32 s{sT1}, s2, 3'); e(f's_lshl_b32 s{sT1}, s{sT1}, 2'); e(f's_add_u32 s{sT1}, s{sT1}, s{sW}')
        e(f'v_lshlrev_b32 v{A+6}, 7, v0'); e(f'v_add_u32 v{A+6}, s{sT1}, v{A+6}')
        e(f'v_lshlrev_b32 v{A+6}, 7, v{A+6}'); e(f'v_min_u32 v{A+6}, {cfg["codepf"]}, v{A+6}')
        e(f'global_load_dword v{vDum}, v{A+6}, s[{sPC}:{sPC+1}]').dst = set()
    e(f's_and_b32 s{sT0}, s2, 7')
    e(f's_lshr_b32 s{sT1}, s2, 3')
    mx = cfg.get('xcd_m', 2)
    lm = int(math.log2(mx)); mper = 16 // mx; lmp = int(math.log2(mper)); sper = 32 // mper
    e(f's_and_b32 s{sM_}, s{sT0}, {mx - 1}')
    e(f's_mul_i32 s{sM_}, s{sM_}, {mper}')
    e(f's_and_b32 s{sT2}, s{sT1}, {mper - 1}')
    e(f's_add_u32 s{sM_}, s{sM_}, s{sT2}')
    e(f's_lshr_b32 s{sS}, s{sT0}, {lm}')
    e(f's_mul_i32 s{sS}, s{sS}, {sper}')
    e(f's_lshr_b32 s{sT2}, s{sT1}, {lmp}')
    e(f's_add_u32 s{sS}, s{sS}, s{sT2}')
    row, l4, g16 = A, A + 1, A + 2
    e(f'v_lshrrev_b32 v{row}, 3, v0')
    e(f'v_lshrrev_b32 v{l4}, 4, v0')
    e(f'v_and_b32 v{A+3}, 7, v0')
    e(f'v_xor_b32 v{A+4}, v{A+3}, v{l4}')
    e(f'v_lshlrev_b32 v{A+4}, 4, v{A+4}')
    e(f'v_mul_u32_u24 v{A+5}, 1152, v{row}')
    e(f'v_add_u32 v{vOffX}, v{A+4}, v{A+5}')
    e(f'v_xor_b32 v{vOffX+1}, 64, v{vOffX}')
    e(f'v_add_u32 v{vOffX+1}, {8192}, v{vOffX+1}')
    e(f'v_add_u32 v{vOffX+2}, {2 * 8192}, v{vOffX}')
    e(f'v_add_u32 v{vOffX+3}, {2 * 8192}, v{vOffX+1}')
    e(f's_lshl_b32 s{sMb}, s{sW}, 12')
    e(f's_lshl_b32 s{sK32}, s{sW}, 5')
    e(f's_lshl_b32 s{sX}, s{sM_}, 7')
    e(f's_add_u32 s{sX}, s{sX}, s{sK32}')
    e(f's_mul_i32 s{sX}, s{sX}, 1152')
    e(f'v_lshlrev_b32 v{g16}, 1, v{l4}')
    e(f'v_xor_b32 v{g16}, v{A+3}, v{g16}')
    e(f'v_lshlrev_b32 v{A+4}, 4, v{g16}')
    e(f'v_mul_u32_u24 v{vOffW}, 9216, v{row}')
    e(f'v_add_u32 v{vOffW}, v{vOffW}, v{A+4}')
    for q in (1, 2, 3): e(f'v_add_u32 v{vOffW+q}, {q * (73728 - 1024)}, v{vOffW}')
    e(f's_mul_i32 s{sT2}, s{sS}, 576')
    e(f's_bitcmp1_b32 s{sS}, 0')
    e(f's_cselect_b32 s{sT0}, 64, 0')
    e(f's_cselect_b32 s{sFs}, 0, 512')
    e(f's_add_u32 s{sFp}, s{sT0}, s{sT2}')
    e(f's_add_u32 s{sFs}, s{sFs}, s{sT2}')
    rot = cfg.get('rot', 8)
    if rot == 8:
        xs_ = 8 // sper if sper <= 8 else 1; ms_ = 8 // mper if mper <= 8 else 1
        e(f's_mul_i32 s{sA}, s{sS}, {xs_}'); e(f's_mul_i32 s{sT2}, s{sM_}, {ms_}'); e(f's_add_u32 s{sA}, s{sA}, s{sT2}'); e(f's_and_b32 s{sA}, s{sA}, 7')
    elif rot == 4:
        e(f's_add_u32 s{sA}, s{sS}, s{sM_}'); e(f's_and_b32 s{sA}, s{sA}, 3'); e(f's_mul_i32 s{sA}, s{sA}, 9'); e(f's_lshr_b32 s{sA}, s{sA}, 2')
    else: e(f's_mov_b32 s{sA}, 0')
    e(f'v_add_u32 v{A+6}, s{sA}, v0'); e(f'v_subrev_u32 v{A+7}, 9, v{A+6}'); e(f'v_min_u32 v{A+6}, v{A+6}, v{A+7}')
    e(f'v_lshlrev_b32 v{A+6}, 7, v{A+6}'); e(f'v_add_u32 v{vTx}, s{sX}, v{A+6}')
    e(f'v_mul_u32_u24 v{A+6}, 7282, v0'); e(f'v_lshrrev_b32 v{A+6}, 16, v{A+6}')
    e(f'v_mul_u32_u24 v{A+7}, 9, v{A+6}'); e(f'v_sub_u32 v{A+7}, v0, v{A+7}')
    e(f'v_lshlrev_b32 v{A+7}, 2, v{A+7}'); e(f'v_add_u32 v{A+7}, s{sW}, v{A+7}')
    e(f'v_subrev_u32 v{A+8}, 18, v{A+7}'); e(f'v_min_u32 v{A+7}, v{A+7}, v{A+8}')
    e(f's_lshl_b32 s{sT2}, s{sA}, 1'); e(f'v_add_u32 v{A+7}, s{sT2}, v{A+7}')
    e(f'v_subrev_u32 v{A+8}, 18, v{A+7}'); e(f'v_min_u32 v{A+7}, v{A+7}, v{A+8}')
    e(f'v_mul_u32_u24 v{A+8}, 294912, v{A+7}'); e(f'v_lshl_add_u32 v{A+8}, v{A+6}, 7, v{A+8}'); e(f'v_add_u32 v{A+8}, s{sFp}, v{A+8}')
    e(f'v_cmp_gt_u32 vcc, 36, v0'); e(f'v_lshlrev_b32 v{A+7}, 5, v{A+7}'); e('s_nop 0')
    e(f'v_cndmask_b32 v{vTa}, v{A+7}, v{A+8}, vcc')
    e('s_waitcnt lgkmcnt(0)')
    srd(p, SRD_X, P_X, 2048 * 1152)
    srd(p, SRD_WG, P_WG, 576 * 9216)

    NU = 66
    HWD = cfg.get('hwd', 2)
    items = []
    for U in range(NU):
        if U < 5:
            for cx in ([2 * U, 2 * U + 1] if U < 4 else [8]): items.append(('X', cx, U))
        items.append(('W', U, U))
    resv = {pl: [] for pl in range(NPL)}
    for k in range(4): resv[k].append((9 * (k + 1) + HWD, 46))
    resv[4].append((41, 48))
    if cfg.get('kvb0'):
        for k in range(5): resv[k].append((cfg['kvb0'], 999))
    busy = {pl: -1 for pl in range(NPL)}
    place = {}; issue_at = {}; nxt = 0
    for b in range(-1, NU):
        lst = []
        while nxt < len(items):
            kind, idx, need = items[nxt]; fb = need + 1
            r0, r1, r2_ = cfg.get('ramp', (2, 4, 2))
            if b >= 0 and (need - b > max(r0, min(DMAX, r0 + (b - r1) // r2_)) or len(lst) >= cfg.get('maxissue', 3)): break
            if b < 0 and len(lst) >= cfg.get('pro_units', 6): break
            cand = [pl for pl in range(NPL) if busy[pl] <= b and all(fb <= rs or b >= re for rs, re in resv[pl])]
            if not cand: break
            cand.sort(key=lambda pl: min([rs for rs, re in resv[pl] if rs >= fb] + [999]))
            pl = cand[0]; assert need > b
            place[(kind, idx)] = pl; busy[pl] = fb
            lst.append(items[nxt]); nxt += 1
        issue_at[b] = lst
    assert nxt == len(items)
    if cfg.get('verbose'):
        for b in range(-1, NU): print(b, [(k, i, place[(k, i)]) for k, i, n in issue_at[b]])

    def dma_instrs(kind, idx):
        pl = place[(kind, idx)]; tag = (kind, idx)
        m0 = (f's_add_u32 m0, s{sMb}, {pl * 16384}', None)
        def four(vo, sr): return [(f'buffer_load_dwordx4 v{vo+q}, s[{sr}:{sr+3}], s{sso} offen' + (f' offset:{1024*q}' if q else '') + ' lds', tag) for q in range(4)]
        if kind == 'X':
            return [(f'v_readlane_b32 s{sso}, v{vTx}, {idx}', None), m0] + four(vOffX, SRD_X)
        U = idx
        if U < 36:
            u = U % 9
            sr = SRD_WG if u < 4 else (SRD_W4 if u == 4 else SRD_WU)
            return [(f'v_readlane_b32 s{sso}, v{vTa}, {U}', None), m0] + four(vOffW, sr)
        if U < 45:
            u = U - 36
            b_, st = (vB1, vSt1) if u < 4 else ((vB2, vSt2) if u > 4 else (vSel, vSel + 2))
            out = []
            for q in range(4):
                out += [(f'v_readlane_b32 s{sso}, v{vTa}, {U}' if q == 0 else f's_add_u32 s{sso}, s{sso}, 8', None),
                        (f'v_mad_u64_u32 v[{vAd+2*q}:{vAd+2*q+1}], vcc, v{st}, s{sso}, v[{b_}:{b_+1}]', None),
                        (f's_add_u32 m0, s{sMb}, {pl * 16384 + 1024 * q}', None),
                        (f'global_load_lds_dwordx4 v[{vAd+2*q}:{vAd+2*q+1}], off', tag)]
            return out
        return [(f'v_readlane_b32 s{sso}, v{vDo}, {U - 45}', None), m0] + four(vOffD, SRD_WD)

    PF = cfg.get('prefetch', 4)
    if PF & 1:
        nrow = 128 // (4 * sper)
        e(f's_and_b32 s{sT1}, s{sS}, {sper - 1}'); e(f's_lshl_b32 s{sT1}, s{sT1}, 2'); e(f's_add_u32 s{sT1}, s{sT1}, s{sW}')
        e(f's_mul_i32 s{sT1}, s{sT1}, {nrow * 1152}'); e(f's_mul_i32 s{sT2}, s{sM_}, {128 * 1152}'); e(f's_add_u32 s{sT1}, s{sT1}, s{sT2}')
        e(f'v_lshl_add_u32 v{A+6}, v{A+3}, 7, v{A+5}')
        if nrow < 8:
            e(f'v_cmp_gt_u32 vcc, {8 * nrow}, v0'); e(f'v_mov_b32 v{A+7}, {OOB}'); e(f'v_cndmask_b32 v{A+6}, v{A+7}, v{A+6}, vcc')
        for i in range(max(1, nrow // 8)):
            e(f'buffer_load_dword v{vDum}, v{A+6}, s[{SRD_X}:{SRD_X+3}], s{sT1} offen offset:128').dst = set()
            if i + 1 < nrow // 8: e(f's_add_u32 s{sT1}, s{sT1}, 9216')
    pro = []
    for kind, idx, need in issue_at[-1]:
        assert kind == 'X' or idx < 4
        pro += dma_instrs(kind, idx)
    srd(p, SRD_WU, P_WU, 576 * 9216)
    e(f's_cmp_ge_u32 s{sW}, 2')
    e(f's_cselect_b32 s{SRD_W4}, s{SRD_WU}, s{SRD_WG}')
    e(f's_cselect_b32 s{SRD_W4+1}, s{SRD_WU+1}, s{SRD_WG+1}')
    e(f's_mov_b32 s{SRD_W4+2}, {576 * 9216}')
    e(f's_mov_b32 s{SRD_W4+3}, 0x20000')
    wrows = 576 // (2 * mper)
    def wtouch(col):
        return [f'buffer_load_dword v{vDum}, v{vPW}, s[{SRD_W4}:{SRD_W4+3}], {col} offen' + (f' offset:0' if 0 else '')]
    if PF & 3:
        assert wrows <= 64 or wrows == 72
        e(f's_and_b32 s{sT1}, s{sM_}, {mper - 1}'); e(f's_lshl_b32 s{sT1}, s{sT1}, 1'); e(f's_and_b32 s{sT2}, s{sW}, 1'); e(f's_add_u32 s{sT1}, s{sT1}, s{sT2}')
        e(f's_mul_i32 s{sT1}, s{sT1}, {wrows}')
        e(f'v_min_u32 v{A+6}, {min(wrows, 64) - 1}, v0'); e(f'v_add_u32 v{A+6}, s{sT1}, v{A+6}'); e(f'v_mul_u32_u24 v{vPW}, 9216, v{A+6}')
        if PF & 1: e(wtouch(f's{sFp}')[0]).dst = set()
    npre = cfg.get('pro_first', 18)
    for t, tag in pro[:npre]: e(t, tag=tag)
    pro = pro[npre:]
    e0 = e; cnt_ = [0]
    def e(t, **kw):
        r = e0(t, **kw); cnt_[0] += 1
        if pro and cnt_[0] % cfg.get('pro_every', 8) == 0 and not t.startswith(('s_cmp', 's_cselect', 's_bitcmp')):
            while pro:
                t2, tag = pro.pop(0); e0(t2, tag=tag)
                if tag: break
        return r

    e(f'v_add_u32 v{vOffD}, v{A+4}, v{A+5}')
    for q in (1, 2, 3): e(f'v_add_u32 v{vOffD+q}, {q * 8192}, v{vOffD}')
    srd(p, SRD_WD, P_WD, 4608 * 1152)
    srd(p, SRD_WS, P_WS, WS_END)
    srd(p, SRD_WO, P_WO, 576 * 1152)
    e(f's_cmp_ge_u32 s{sW}, 2')
    e(f's_cselect_b64 s[{sHF}:{sHF+1}], -1, 0')
    e(f's_cselect_b32 s{sHd}, 1, 0')
    e(f'v_lshrrev_b32 v{A+3}, 2, v0')
    e(f'v_bfe_u32 v{A+6}, v0, 3, 2')
    e(f's_and_b32 s{sT0}, s{sHF}, 2')
    e(f'v_xor_b32 v{A+6}, s{sT0}, v{A+6}')
    e(f'v_lshlrev_b32 v{A+6}, 5, v{A+6}')
    e(f'v_lshl_add_u32 v{A+6}, v{A+3}, 7, v{A+6}')
    e(f'v_and_b32 v{A+3}, 3, v0')
    e(f'v_lshl_add_u32 v{vRd}, v{A+3}, 3, v{A+6}')
    e(f'v_xor_b32 v{vRd+3}, 32, v{vRd}')
    for wd in (1, 2):
        e(f'v_add_u32 v{vRd+wd}, {65536 * wd}, v{vRd}')
        e(f'v_add_u32 v{vRd+3+wd}, {65536 * wd}, v{vRd+3}')
    e(f's_and_b32 s{sT0}, s{sW}, 1')
    e(f'v_lshrrev_b32 v{A+3}, 5, v0')
    e(f'v_bfe_u32 v{A+6}, v0, 1, 3')
    e(f'v_xor_b32 v{A+6}, v{A+6}, v{A+3}')
    e(f'v_lshlrev_b32 v{A+6}, 4, v{A+6}')
    e(f'v_and_b32 v{A+3}, 15, v0')
    e(f'v_lshl_add_u32 v{A+6}, v{A+3}, 7, v{A+6}')
    e(f'v_bfe_u32 v{A+3}, v0, 4, 1')
    e(f'v_lshl_add_u32 v{A+6}, v{A+3}, 3, v{A+6}')
    e(f's_lshl_b32 s{sT1}, s{sT0}, 13')
    e(f'v_add_u32 v{XA}, s{sT1}, v{A+6}')
    for q in (1, 2, 3): e(f'v_xor_b32 v{XA+q}, {32 * q}, v{XA}')
    e(f'v_lshlrev_b32 v{vL16}, 4, v0')
    e(f's_lshl_b32 s{sT1}, s{sT0}, 12')
    e(f'v_add_u32 v{vH}, s{sT1}, v{vL16}')
    e(f'v_mov_b32 v{vC1}, {f2u(GC1)}')
    late = []
    L = late.append
    B = vWo
    B = 238
    L(f's_and_b32 s{sT2}, s{sHF}, 8192'); L(f'v_add_u32 v{vHw}, s{sT2}, v{vH}')
    L(f'v_add_u32 v{vH2}, 65536, v{vH}')
    L(f's_add_u32 s{sT2}, s{sMb}, 65536'); L(f'v_add_u32 v{vXw}, s{sT2}, v{vL16}')
    L(f'v_xor_b32 v{vXr}, 8192, v{vXw}')
    L(f's_and_b32 s{sT0}, s{sW}, 1')
    L(f's_lshl_b32 s{sP}, s{sM_}, 4'); L(f's_add_u32 s{sP}, s{sP}, s{sS}'); L(f's_mul_i32 s{sP}, s{sP}, 147456')
    L(f's_lshl_b32 s{sT1}, s{sT0}, 12'); L(f's_add_u32 s{sP}, s{sP}, s{sT1}')
    L(f's_and_b32 s{sT1}, s{sHF}, 8192'); L(f's_add_u32 s{sP}, s{sP}, s{sT1}')
    assert WS_P == 0
    L(f's_lshl_b32 s{sT1}, s{sS}, 1'); L(f's_add_u32 s{sHd}, s{sHd}, s{sT1}')
    L(f's_lshl_b32 s{sT1}, s{sM_}, 1'); L(f's_add_u32 s{sT1}, s{sT1}, s{sT0}')
    L(f's_lshr_b32 s{sT2}, s{sT1}, 2'); L(f's_mul_i32 s{sKX}, s{sT2}, {KVG}'); L(f's_add_u32 s{sKX}, s{sKX}, {WS_KV}')
    L(f's_and_b32 s{sT2}, s{sT1}, 3'); L(f's_mul_i32 s{sKV}, s{sT2}, {2 * KVB}'); L(f's_add_u32 s{sKV}, s{sKV}, s{sKX}')
    L(f's_add_u32 s{sKV}, s{sKV}, 1024')
    L(f's_and_b32 s{sT2}, s{sM_}, 1'); L(f's_lshl_b32 s{sT2}, s{sT2}, 9'); L(f's_add_u32 s{sKX}, s{sKX}, s{sT2}')
    L(f's_lshl_b32 s{sT2}, s{sT0}, 3'); L(f's_add_u32 s{sKX}, s{sKX}, s{sT2}')
    L(f's_lshl_b32 s{sT2}, s{sHd}, 5'); L(f's_add_u32 s{sT1}, s{sT1}, s{sT2}')
    L(f's_lshl_b32 s{sQm}, s{sT1}, 11'); L(f's_add_u32 s{sQm}, s{sQm}, {WS_QM}')
    L(f's_lshl_b32 s{sQx}, s{sT1}, 8'); L(f's_add_u32 s{sQx}, s{sQx}, {WS_QX}')
    L(f's_mov_b32 s{sQs}, {f2u(QSCALE)}')
    L(f'v_lshlrev_b32 v{B}, 2, v0'); L(f'v_add_u32 v{B}, s{sW}, v{B}')
    L(f'v_mul_u32_u24 v{B+1}, 7282, v{B}'); L(f'v_lshrrev_b32 v{B+1}, 16, v{B+1}')
    L(f'v_mul_u32_u24 v{B+2}, 9, v{B+1}'); L(f'v_sub_u32 v{B}, v{B}, v{B+2}')
    L(f's_and_b32 s{sT2}, s{sS}, 1'); L(f'v_add_u32 v{B}, s{sT2}, v{B}')
    L(f'v_cmp_eq_u32 vcc, 9, v{B}'); L(f's_mul_i32 s{sT2}, s{sS}, 331776'); L(f'v_lshlrev_b32 v{B+1}, 7, v{B+1}')
    L(f'v_cndmask_b32_e64 v{B}, v{B}, 0, vcc')
    L(f'v_mul_u32_u24 v{B}, 36864, v{B}'); L(f'v_add3_u32 v{vDo}, v{B}, v{B+1}, s{sT2}')
    rw, gg, ch, z = B, B + 1, B + 2, B + 3
    L(f'v_lshrrev_b32 v{rw}, 3, v0'); L(f'v_bfe_u32 v{gg}, v{vOffD}, 4, 3')
    L(f'v_mov_b32 v{vSt1}, 9216')
    L(f'v_cmp_gt_u32 vcc, 4, v{gg}')
    L(f'v_mov_b32 v{B+4}, s{P_WU}'); L(f'v_mov_b32 v{B+5}, s{P_WG}'); L(f'v_cndmask_b32 v{vB1}, v{B+4}, v{B+5}, vcc')
    L(f'v_mov_b32 v{B+4}, s{P_WU+1}'); L(f'v_mov_b32 v{B+5}, s{P_WG+1}'); L(f'v_cndmask_b32 v{vB1+1}, v{B+4}, v{B+5}, vcc')
    L(f'v_and_b32 v{ch}, 3, v{gg}'); L(f'v_lshlrev_b32 v{B+4}, 4, v{ch}'); L(f'v_add_u32 v{B+5}, s{sFs}, v{B+4}')
    L(f'v_mad_u32_u24 v{B+5}, v{rw}, v{vSt1}, v{B+5}')
    L(f'v_add_co_u32 v{vB1}, vcc, v{vB1}, v{B+5}')
    L(f'v_lshrrev_b32 v{z}, 2, v{gg}'); L(f's_lshl_b32 s{sT0}, s{sS}, 1')
    L(f'v_addc_co_u32 v{vB1+1}, vcc, 0, v{vB1+1}, vcc')
    L(f'v_add_u32 v{z}, s{sT0}, v{z}')
    L(f'v_min_u32 v{B+4}, 20, v{B+4}'); L(f'v_mad_u32_u24 v{B+4}, v{z}, 36, v{B+4}')
    L(f'v_cmp_gt_u32 vcc, 3, v{z}'); L(f'v_subrev_u32 v{B+5}, 3, v{z}')
    L(f'v_mov_b32 v{B+6}, s{P_WV}'); L(f'v_mov_b32 v{B+7}, s{P_WK}')
    L(f'v_cndmask_b32 v{B+5}, v{B+5}, v{z}, vcc'); L(f'v_cndmask_b32 v{vB2}, v{B+6}, v{B+7}, vcc')
    L(f'v_mov_b32 v{B+6}, s{P_WV+1}'); L(f'v_mov_b32 v{B+7}, s{P_WK+1}'); L(f'v_cndmask_b32 v{vB2+1}, v{B+6}, v{B+7}, vcc')
    L(f'v_lshlrev_b32 v{B+5}, 4, v{B+5}'); L(f'v_min_u32 v{B+5}, 20, v{B+5}')
    L(f'v_sub_u32 v{B+6}, 3, v{ch}'); L(f'v_lshl_add_u32 v{B+6}, v{B+6}, 6, v{z}')
    L(f'v_cmp_gt_u32 vcc, 6, v{B+6}')
    L(f'v_mov_b32 v{B+6}, s{P_WQ}'); L(f'v_mov_b32 v{B+7}, s{P_WQ+1}'); L(f'v_mov_b32 v{B+8}, 1152')
    L(f'v_cndmask_b32 v{vB2}, v{B+6}, v{vB2}, vcc'); L(f'v_cndmask_b32 v{vB2+1}, v{B+7}, v{vB2+1}, vcc')
    L(f'v_cndmask_b32 v{B+4}, v{B+4}, v{B+5}, vcc'); L(f'v_cndmask_b32_e64 v{vSt2}, v{B+8}, 36, vcc')
    L(f'v_mad_u32_u24 v{B+4}, v{rw}, v{vSt2}, v{B+4}')
    L(f'v_add_co_u32 v{vB2}, vcc, v{vB2}, v{B+4}')
    L(f'v_cndmask_b32 v{vSel}, v{vB1}, v{vB2}, s[{sHF}:{sHF+1}]'); L(f'v_cndmask_b32 v{vSel+2}, v{vSt1}, v{vSt2}, s[{sHF}:{sHF+1}]')
    L(f'v_addc_co_u32 v{vB2+1}, vcc, 0, v{vB2+1}, vcc')
    L(f'v_cndmask_b32 v{vSel+1}, v{vB1+1}, v{vB2+1}, s[{sHF}:{sHF+1}]')
    if PF:
        npair = 4 * mper
        L(f's_and_b32 s{sT1}, s{sM_}, {mper - 1}'); L(f's_lshl_b32 s{sT1}, s{sT1}, 2'); L(f's_add_u32 s{sT1}, s{sT1}, s{sW}')
        L(f's_mul_i32 s{sT2}, s{sT1}, {331776 // npair}'); L(f's_mul_i32 s{sT0}, s{sS}, 331776'); L(f's_add_u32 s{sT2}, s{sT2}, s{sT0}')
        DL = cfg.get('pfdl', 21)
        L(f'v_min_u32 v{vPD}, {DL - 1}, v0'); L(f'v_lshlrev_b32 v{vPD}, 7, v{vPD}'); L(f'v_add_u32 v{vPD}, s{sT2}, v{vPD}')
        qrows = 576 // npair
        L(f's_mul_i32 s{sT1}, s{sT1}, {qrows * 1152}'); L(f's_mul_i32 s{sT0}, s{sS}, 72'); L(f's_add_u32 s{sT1}, s{sT1}, s{sT0}')
        L(f'v_lshrrev_b32 v{B}, 1, v0'); L(f'v_min_u32 v{B}, {min(qrows, 32) - 1}, v{B}'); L(f'v_mul_u32_u24 v{B}, 1152, v{B}')
        L(f'v_and_b32 v{B+1}, 1, v0'); L(f'v_mul_u32_u24 v{B+1}, 68, v{B+1}'); L(f'v_add3_u32 v{vPQ}, v{B}, v{B+1}, s{sT1}')
    for t in late: e(t)
    e(f's_mul_i32 s{sT0}, s2, 3'); e(f's_add_u32 s{sT0}, s{sT0}, s{sW}')
    e(f's_mul_hi_u32 s{sT1}, s{sT0}, {(2**32 + 17) // 18}')
    e(f's_mul_i32 s{sT2}, s{sT1}, 18'); e(f's_sub_u32 s{sT2}, s{sT0}, s{sT2}')
    e(f's_lshl_b32 s{sWoD}, s{sT0}, 10'); e(f's_add_u32 s{sWoD}, s{sWoD}, {WS_WO}')
    e(f's_lshr_b32 s{sso2}, s{sT1}, 1'); e(f's_lshl_b32 s{sso2}, s{sso2}, 6')
    e(f's_and_b32 s{sT1}, s{sT1}, 1'); e(f's_lshl_b32 s{sT1}, s{sT1}, 3'); e(f's_add_u32 s{sso2}, s{sso2}, s{sT1}')
    e(f'v_bfe_u32 v{A}, v0, 2, 2'); e(f'v_and_b32 v{A+2}, 3, v0'); e(f'v_lshlrev_b32 v{A+2}, 1, v{A+2}')
    e(f'v_lshl_add_u32 v{A}, v{A}, 4, v{A+2}'); e(f'v_add_u32 v{A}, s{sso2}, v{A}')
    e(f'v_bfe_u32 v{A+2}, v0, 4, 1'); e(f'v_mul_u32_u24 v{A+2}, 18, v{A+2}')
    e(f'v_lshrrev_b32 v{A+1}, 5, v0'); e(f'v_lshl_add_u32 v{A+2}, v{A+1}, 2, v{A+2}')
    e(f'v_lshrrev_b32 v{A+4}, 4, v0'); e(f'v_mul_u32_u24 v{A+4}, 72, v{A+4}')
    e(f's_cmp_ge_u32 s{sT2}, 9'); e(f's_cselect_b32 s{sso2}, 1, 0')
    e(f's_sub_u32 s{sT1}, s{sT2}, s{sso2}'); e(f's_mul_i32 s{sT1}, s{sT1}, 36')
    e(f's_mul_i32 s{sWoJ}, s{sso2}, 9'); e(f's_sub_u32 s{sT2}, s{sT2}, s{sWoJ}')
    e(f's_mul_i32 s{sso2}, s{sso2}, 288'); e(f's_add_u32 s{sso2}, s{sso2}, 16')
    e(f's_cmp_eq_u32 s{sT2}, 8'); e(f's_cselect_b64 vcc, -1, 0'); e(f's_cselect_b32 s{sT1}, s{sso2}, s{sT1}')
    for j in range(8): e(f's_cselect_b32 s{sWoJ+j}, {18 * (j >> 1) + (j & 1)}, {8 * (j >> 2) + (j & 3)}')
    for j in range(8): e(f's_mul_i32 s{sWoJ+j}, s{sWoJ+j}, 1152')
    e(f'v_cndmask_b32 v{A+2}, v{A+2}, v{A+4}, vcc'); e(f'v_add_u32 v{A+2}, s{sT1}, v{A+2}')
    e(f'v_mul_u32_u24 v{A+2}, 1152, v{A+2}'); e(f'v_add_u32 v{vWo+8}, v{A}, v{A+2}')
    e(f's_cmp_lt_u32 s{sW}, 3'); e(f's_cselect_b32 s{sT1}, 648, 0'); e(f's_cmp_lt_u32 s{sT0}, s{sT1}')
    e(f's_cselect_b32 s{sT1}, 0, {OOB}')
    e(f'v_add_u32 v{vWo+8}, s{sT1}, v{vWo+8}'); e(f'v_add_u32 v{vWo+9}, s{sT1}, v{vL16}')

    if cfg.get('setup_extra'): cfg['setup_extra'](p)
    for t2, tag in pro: e0(t2, tag=tag)
    e = e0
    S = Sched(NQ, 2)
    S.temps = list(range(GT, GT + NGT))
    S.nolds = lambda g: 11 <= g % 32 <= 15
    qb = lambda b: 32 * (b - 1) + 15
    WSr = f's[{SRD_WS}:{SRD_WS+3}]'
    NF = NQ // 4
    def tread(n, h):
        U, i = divmod(n, 8); pl = place[('W', U)]
        a = AB + 4 * i + 2 * h
        return f'ds_read_b64_tr_b16 v[{a}:{a+1}], v{vRd + 3 * (i & 1) + pl // 4} offset:{(pl % 4) * 16384 + (i >> 1) * 4096 + 2048 * h}'
    TP = cfg.get('tpos', [16, 17, 18, 20, 21, 23, 24, 26, 28, 29, 30, 32, 34, 36, 38, 40])
    def barrier(b):
        st_ = (b % cfg.get('stampevery', 1) == 0)
        if st_: pf.start()
        p.wait(vmtags=[(k, i) for k, i, need in items if need == b] + cfg.get('bar_tags', {}).get(b, []), lg0=True)
        e('s_barrier')
        if st_: pf.save(b // cfg.get('stampevery', 1))
    for b in range(1, NU):
        S.fix(qb(b), (lambda b=b: barrier(b)), cost=99)
        for i in range(16):
            n = 8 * b + i // 2
            if n < NF: S.fix(32 * (b - 1) + TP[i], tread(n, i & 1), tag=('T', b, i // 8))
        S.fix(32 * b - 1, (lambda b=b: p.wait_lg({('T', b, 0)})))
    for b in range(0, NU):
        ins = []
        for kind, idx, need in issue_at[b]: ins += dma_instrs(kind, idx)
        if cfg.get('nodma') or not ins: continue
        if b == 0: pos = [32 + (i * 14) // len(ins) for i in range(len(ins))]
        elif len(ins) <= 6: pos = cfg.get('dpos', [16, 17, 21, 26, 32, 38])
        elif len(ins) <= 16: pos = [TP[(i * 16) // len(ins)] for i in range(len(ins))]
        else: pos = [16 + (i * 29) // len(ins) for i in range(len(ins))]
        for (t, tag), g_ in zip(ins, pos): S.fix(32 * (b - 1) + g_, t, tag=tag)
    def xreads(cx):
        pl = place[('X', cx)]; out = []; base = XA
        if pl >= 4:
            out += [f'v_add_u32 v{XAT+q}, {(pl // 4) * 65536}, v{XA+q}' for q in range(4)]; base = XAT
        for kk in range(2):
            for rt in range(4):
                for jh in range(2):
                    out.append(f'ds_read_b64 {xf(2 * cx + kk, rt, 2, 2 * jh)}, v{base + 2 * kk + jh} offset:{(pl % 4) * 16384 + 2048 * rt}')
        return out
    prevx = []
    for b in range(1, 5):
        xs = [i for k_, i, need in items if k_ == 'X' and need == b]
        for n_, cx in enumerate(xs):
            ch_ = S.chain(xreads(cx), qb(b) + 1, qb(b) + (14 if n_ == 0 else 27))
            ch_[0].same = prevx; prevx = [ch_[-1]]
    if PF:
        lead = cfg.get('pflead', 330)
        def touch(t, g):
            def f(): p.e(t).dst = set()
            o_ = S.add(Op(f, 2, start=g, end=g + 30)); o_.call = True
        if PF & 2:
            for k in (1, 2, 3):
                g_ = max(60, 288 * k - lead)
                S.add(Op(f's_add_u32 s{sFp}, s{sFp}, 128', start=g_ - 10, end=g_)); touch(wtouch(f's{sFp}')[0], g_)
            touch(wtouch(f's{sFs}')[0], 1152 - lead)
            touch(f'global_load_dword v{vDum}, v{vPQ}, s[{P_WQ}:{P_WQ+1}]', 1296 - lead)
        if PF & 4:
            nl = -(-2592 // (4 * mper)); nb_ = -(-nl // DL); g0 = cfg.get('pfd0', 700); dg = cfg.get('pfdg', 100)
            for i in range(nb_):
                if i: S.add(Op(f'v_add_u32 v{vPD}, {128 * DL}, v{vPD}', start=g0 + dg * i - 9, end=g0 + dg * i))
                touch(f'buffer_load_dword v{vDum}, v{vPD}, s[{SRD_WD}:{SRD_WD+3}], 0 offen', g0 + dg * i)
    ld = [S.add(Op(f'buffer_load_ushort v{vWo+j}, v{vWo+8}, s[{SRD_WO}:{SRD_WO+3}], s{sWoJ+j} offen', start=150 + 4 * j, end=250)) for j in range(8)]
    S.chain([f'v_lshl_or_b32 v{vWo+j}, v{vWo+2*j+1}, 16, v{vWo+2*j}' for j in range(4)] +
            [f'buffer_store_dwordx4 v[{vWo}:{vWo+3}], v{vWo+9}, {WSr}, s{sWoD} offen {stf}'], 400, 426, deps=ld)[-1].tag = 'QKV'
    def gelu_h(g, u, n, s1, e1, s2, e2, wr, sw, deps=()):
        last = []
        for i in range(n):
            t = []
            d1 = e1 - (n - 1 - i) * (e1 - s1 - 24) // n
            a = S.add(Op(lambda i=i, t=t: f'v_mul_f32 v{t[0]}, v{g+i}, v{g+i}', 1, deps, s1, e1 - 12, res=t, prio=d1 - 12))
            a = S.add(Op(lambda t=t: f'v_fmaak_f32 v{t[0]}, v{t[0]}, v{vC1}, {f2u(GC0)}', 1, [a], s1, e1 - 10, prio=d1 - 12))
            a = S.add(Op(lambda i=i, t=t: f'v_mul_f32 v{t[0]}, v{t[0]}, v{g+i}', 1, [a], s1, e1 - 8, prio=d1 - 12))
            a = S.add(Op(lambda t=t: f'v_exp_f32 v{t[0]}, v{t[0]}', 2, [a], s1, e1 - 6, prio=d1 - 12))
            a = S.add(Op(lambda t=t: f'v_add_f32 v{t[0]}, 1.0, v{t[0]}', 1, [a], s1, e1 - 4, prio=d1 - 12))
            a = S.add(Op(lambda t=t: f'v_rcp_f32 v{t[0]}, v{t[0]}', 2, [a], s1, e1 - 2, prio=d1 - 12))
            a = S.add(Op(lambda i=i, t=t: f'v_mul_f32 v{g+i}, v{t[0]}, v{g+i}', 1, [a], s1, e1, rel=t, prio=d1 - 12))
            a = S.add(Op(f'v_mul_f32 v{g+i}, v{g+i}, v{u+i}', 1, [a], s2, e2 - 8, prio=d1))
            last.append(a)
        wrs = []
        for gi in range(n // 8):
            prev = []
            for c in range(4):
                o = S.add(Op(f'v_cvt_pk_bf16_f32 v{g+8*gi+c}, v{g+8*gi+2*c}, v{g+8*gi+2*c+1}', 1, last[8*gi+2*c:8*gi+2*c+2], s2, e2 - 4, same=prev, prio=0))
                prev = [o]
            wrs.append(S.add(Op(wr(gi), 2, prev, sw + 12 * gi, e2, lds=True, prio=0)))
        return wrs
    for k in range(4):
        g = (G0, G1)[k % 2]; q0 = 288 * k
        gelu_h(g, UU, 32, q0 + 147, q0 + 288 + 126, q0 + 291, q0 + 288 + 139,
               lambda i, g=g, k=k: f'ds_write_b128 v{vHw}, v[{g+8*i}:{g+8*i+3}] offset:{16384 * k + 1024 * i}', qb(9 * (k + 1) + HWD) + 1)
    def xch(write):
        Lb = 'F_xw' if write else 'F_xr'
        def arm(base, em):
            for q in range(4):
                r = f'v[{base+4*q}:{base+4*q+3}]'
                em(f'ds_write_b128 v{vXw}, {r} offset:{1024*q}' if write else f'ds_read_b128 {r}, v{vXr} offset:{1024*q}')
        e(f's_cmp_ge_u32 s{sW}, 2'); e(f's_cbranch_scc1 {Lb}1')
        arm(G0 + 16, p.raw); e(f's_branch {Lb}2'); p.label(f'{Lb}1')
        def em(t):
            i = e(t)
            if not write: i.dst = i.dst | {('v', r[1] + 16) for r in i.dst}
        arm(G0, em); p.label(f'{Lb}2')
    S.fix(1301, lambda: xch(True), cost=7)
    S.fix(qb(42) + 4, lambda: xch(False), cost=7)
    hs = S.chain([f's_and_b32 s{sT2}, s{sHF}, 2048', f'v_add_u32 v{vHw}, s{sT2}, v{vH2}'], 1300, 1350)
    gelu_h(G0, G0 + 16, 16, qb(42) + 10, qb(47) - 24, qb(42) + 10, qb(47) - 5,
           lambda i: f'ds_write_b128 v{vHw}, v[{G0+8*i}:{G0+8*i+3}] offset:{1024 * i}', qb(43) + 1)
    for t in range(8):
        for rt in range(4):
            S.add(Op(f'ds_read_b128 {xf(t, rt)}, v{vH} offset:{8192 * t + 1024 * rt}', start=1296 + 8 * (t + 1), end=min(1430 + 4 * t, qb(46) - 4), lds=True))
    for rt in range(4): S.add(Op(f'ds_read_b128 {xf(8, rt)}, v{vH2} offset:{1024 * rt}', start=qb(47) + 1, end=qb(47) + 8, lds=True))
    qa, qx, tq = vAd, vAd + 1, vAd + 2
    q = [f'v_and_b32 v{tq}, 15, v0', f'v_lshrrev_b32 v{tq+1}, 4, v0', f'v_lshlrev_b32 v{qa}, 3, v{tq+1}', f'v_lshl_add_u32 v{qa}, v{tq}, 5, v{qa}',
         f'v_xor_b32 v{tq+1}, 1, v{tq+1}', f'v_lshlrev_b32 v{tq+1}, 28, v{tq+1}', f'v_lshl_add_u32 v{qx}, v{tq}, 2, v{tq+1}']
    for rt in range(4):
        u = UU + 8 * rt
        q += [f'v_mul_f32 v{u+i}, s{sQs}, v{u+i}' for i in range(4)]
        q += [f'v_mul_f32 v{tq}, s{sQs}, v{u+6}', f'v_mul_f32 v{tq+1}, s{sQs}, v{u+7}',
              f'v_cvt_pk_bf16_f32 v{u}, v{u}, v{u+1}', f'v_cvt_pk_bf16_f32 v{u+1}, v{u+2}, v{u+3}', f'v_cvt_pk_bf16_f32 v{u+2}, v{tq}, v{tq+1}',
              f'buffer_store_dwordx2 v[{u}:{u+1}], v{qa}, {WSr}, s{sQm} offen offset:{512 * rt} {stf}',
              f'buffer_store_dword v{u+2}, v{qx}, {WSr}, s{sQx} offen offset:{64 * rt} {stf}']
    qc = S.chain(q, 1445, 1560)
    def kv_block():
        L = 'F_kv'; o = lambda t: p.e(t, optional=True, tag='QKV')
        a, b2 = tq, tq + 1
        e(f's_cmp_ge_u32 s{sHd}, 6'); e(f's_cbranch_scc1 {L}_end')
        for rt in range(4):
            u = UU + 8 * rt
            e(f'v_cvt_pk_bf16_f32 v{u+4}, v{u+4}, v{u+5}'); e(f'v_cvt_pk_bf16_f32 v{u+5}, v{u+6}, v{u+7}')
        e(f'v_and_b32 v{a}, 15, v0'); e(f'v_lshrrev_b32 v{b2}, 4, v0')
        e(f's_cmp_ge_u32 s{sHd}, 3'); e(f's_cbranch_scc1 {L}_v')
        e(f'v_lshlrev_b32 v{a}, 4, v{a}')
        e(f's_cmp_eq_u32 s{sHd}, 2'); e(f's_cbranch_scc1 {L}_kx')
        e(f'v_subrev_u32 v{b2}, 2, v{b2}'); e(f'v_and_b32 v{b2}, 0x04000001, v{b2}'); e(f'v_lshl_add_u32 v{a}, v{b2}, 3, v{a}')
        e(f's_lshl_b32 s{sT0}, s{sHd}, 9'); e(f's_add_u32 s{sT0}, s{sT0}, s{sKV}')
        for rt in range(4): o(f'buffer_store_dwordx2 v[{UU+8*rt+4}:{UU+8*rt+5}], v{a}, {WSr}, s{sT0} offen offset:{(rt >> 1) * KVB + 256 * (rt & 1)} {stf}')
        e(f's_branch {L}_end')
        p.label(f'{L}_kx')
        e(f'v_xor_b32 v{b2}, 3, v{b2}'); e(f'v_lshl_add_u32 v{a}, v{b2}, 28, v{a}')
        for rt in range(4): o(f'buffer_store_dword v{UU+8*rt+5}, v{a}, {WSr}, s{sKX} offen offset:{4 * (rt >> 1) + 256 * (rt & 1)} {stf}')
        e(f's_branch {L}_end')
        p.label(f'{L}_v')
        c = tq + 2
        e(f'v_bfe_u32 v{c}, v0, 2, 1'); e(f'v_mul_u32_u24 v{c}, 304, v{c}')
        e(f'v_and_b32 v{a}, 8, v0'); e(f'v_add_u32 v{c}, v{c}, v{a}')
        e(f'v_and_b32 v{a}, 3, v0'); e(f'v_lshl_add_u32 v{a}, v{a}, 1, v{c}')
        e(f's_add_u32 s{sT1}, s{sKV}, 1024')
        e(f's_cmp_eq_u32 s{sHd}, 5'); e(f's_cbranch_scc1 {L}_vx')
        e(f'v_subrev_u32 v{b2}, 2, v{b2}'); e(f'v_and_b32 v{b2}, 0x00800001, v{b2}'); e(f'v_lshl_add_u32 v{a}, v{b2}, 6, v{a}')
        e(f's_sub_u32 s{sT0}, s{sHd}, 3'); e(f's_lshl_b32 s{sT0}, s{sT0}, 7'); e(f's_add_u32 s{sT0}, s{sT0}, s{sT1}')
        for rt in range(4):
            for ee in range(4):
                o(f'buffer_store_short{"_d16_hi" if ee & 1 else ""} v{UU+8*rt+4+(ee>>1)}, v{a}, {WSr}, s{sT0} offen offset:{(rt >> 1) * KVB + 608 * (rt & 1) + 16 * ee} {stf}')
        e(f's_branch {L}_end')
        p.label(f'{L}_vx')
        e(f'v_xor_b32 v{b2}, 3, v{b2}'); e(f'v_lshl_add_u32 v{a}, v{b2}, 28, v{a}')
        e(f'v_mov_b32 v{c}, 0x3f80')
        for rt in range(4):
            of = (rt >> 1) * KVB + 608 * (rt & 1) + 256
            o(f'buffer_store_short v{UU+8*rt+5}, v{a}, {WSr}, s{sT1} offen offset:{of} {stf}')
            o(f'buffer_store_short_d16_hi v{UU+8*rt+5}, v{a}, {WSr}, s{sT1} offen offset:{of + 16} {stf}')
            o(f'buffer_store_short v{c}, v{a}, {WSr}, s{sT1} offen offset:{of + 32} {stf}')
        p.label(f'{L}_end')
    for o_ in qc:
        if 'store' in o_.text: o_.tag = 'QKV'
    kvop = S.add(Op(kv_block, 2, [qc[-1]], 1445, 1570)); kvop.call = True
    for j in range(9):
        acc = (G1, G0)[j % 2]; q1 = 1440 + 72 * (j + 1)
        so = S.add(Op(f's_add_u32 s{sPo}, s{sP}, {16384 * j}', start=min(q1, NQ - 2), end=q1 + 20))
        for rt in range(4):
            a = acc + 8 * rt
            cv = S.chain([f'v_cvt_pk_bf16_f32 v{a+c}, v{a+2*c}, v{a+2*c+1}' for c in range(4)], min(q1 + 3, NQ), q1 + 40 + 4 * rt)
            S.add(Op(f'buffer_store_dwordx4 v[{a}:{a+3}], v{vL16}, {WSr}, s{sPo} offen offset:{1024 * rt} {stf}', 1, [cv[-1], so], min(q1 + 8 + 12 * rt, NQ), q1 + 64, tag='PART'))
    if cfg.get('sched_extra'): cfg['sched_extra'](S, p)
    if cfg.get('nofill'): S.ops = [o for o in S.ops if isinstance(o.text, str) and ('lds' in o.text or 'm0' in o.text or f's{sso},' in o.text)]
    placed = S.run()
    print('ffn schedule: overflow slots', S.over)

    def emit(item, tag):
        if callable(item): item()
        else: e(item, tag=tag)
    barrier(0)
    for i in range(4): e(tread(i // 2, i & 1))
    x01 = xreads(0) + xreads(1)
    for t in x01[:len(x01) // 4]: e(t)
    for i in range(4, 16): e(tread(i // 2, i & 1))
    for t in x01[len(x01) // 4:]: e(t)
    snake = cfg.get('snake', 1)
    for q in range(NQ + 1):
        if q < NQ:
            n, rt = divmod(q, 4); ft = n & 1
            if snake and ft: rt = 3 - rt
            if q < 1440:
                ps, kk = divmod(n // 2, 18); D = UU if ps & 1 else (G0, G1)[(ps // 2) % 2]
            else:
                j, kk = divmod(n // 2 - 180, 9); D = (G1, G0)[j % 2]
            d = D + (rt * 2 + ft) * 4; a = AB + 4 * (n % 8)
            C = '0' if kk == 0 else f'v[{d}:{d+3}]'
            e(f'v_mfma_f32_16x16x32_bf16 v[{d}:{d+3}], v[{a}:{a+3}], {xf(kk, rt)}, {C}')
        if q == NQ and cfg.get('pre_tail'): cfg['pre_tail'](p)
        fx = S.fixed[q]
        lastw = [f for f in fx if callable(f[1]) and q % 32 == 31]
        for c, item, tag in fx:
            if (c, item, tag) not in lastw: emit(item, tag)
        for o in placed[q]:
            if getattr(o, 'call', False): o.text()
            else: e(o.text() if callable(o.text) else o.text, tag=o.tag)
        for c, item, tag in lastw: emit(item, tag)
```

```python
from common import *

sW, sRG, sHH = 3, 4, 5
sT0, sT1, sT2 = 10, 11, 12
SRD_WS, SRD_X, SRD_GW, SRD_OUT = 64, 44, 48, 52
sCnt = 13
vAK, vAX, vAV = 1, 2, 3
QM, QX = 4, 8
KX, KM = 10, 12
V0, V1 = 16, 20
PP = 24
S0, S1, OA = 32, 48, 64
CN = 80
vT = 96

def ids(p):
    e = p.e
    e('v_lshrrev_b32 v1, 6, v0')
    e('v_and_b32 v0, 63, v0')
    e(f'v_readfirstlane_b32 s{sW}, v1')
    e(f's_lshr_b32 s{sRG}, s2, 4')
    e(f's_lshl_b32 s{sRG}, s{sRG}, 3')
    e(f's_and_b32 s{sT0}, s2, 7')
    e(f's_add_u32 s{sRG}, s{sRG}, s{sT0}')
    e(f's_bfe_u32 s{sHH}, s2, 0x10003')

def mf32(D, A, B, C): return f'v_mfma_f32_32x32x16_bf16 v[{D}:{D+15}], v[{A}:{A+3}], v[{B}:{B+3}], {C}'
def mf8(D, A, B, C): return f'v_mfma_f32_32x32x8_bf16 v[{D}:{D+15}], v[{A}:{A+1}], v[{B}:{B+1}], {C}'
def vr(a): return f'v[{a}:{a+15}]'

def attn_addrs(p):
    e = p.e
    e(f'v_lshlrev_b32 v{vAK}, 4, v0')
    e(f'v_and_b32 v{vT}, 31, v0')
    e(f'v_lshlrev_b32 v{vAX}, 2, v{vT}')
    e(f'v_subrev_u32 v{vT+1}, 16, v{vT}')
    e(f'v_cmp_lt_u32 vcc, 18, v{vT}')
    e(f'v_lshrrev_b32 v{vT+2}, 5, v0')
    e(f'v_mul_u32_u24 v{vT+2}, 304, v{vT+2}')
    e(f'v_cndmask_b32 v{vT}, v{vT}, v{vT+1}, vcc')
    e(f'v_lshl_add_u32 v{vAV}, v{vT}, 4, v{vT+2}')

def rdKX(o): return f'ds_read_b32 v{KX}, v{vAX} offset:{o + 1024}'
def rdKM(o): return f'ds_read_b128 v[{KM}:{KM+3}], v{vAK} offset:{o}'
def rdV0(o): return f'ds_read_b128 v[{V0}:{V0+3}], v{vAV} offset:{o + 1152}'
def rdV1(o): return f'ds_read_b128 v[{V1}:{V1+3}], v{vAV} offset:{o + 1152 + 608}'

def attn_tile(p, par, o, cfg):
    e = p.e
    cur, nxt = (S0, S1) if par == 0 else (S1, S0)
    e64 = '_e64' if cfg.get('exp64') else ''
    E = lambda i: e(f'v_exp_f32{e64} v{cur+i}, v{cur+i}')
    C = lambda i: e(f'v_cvt_pk_bf16_f32 v{PP+i}, v{cur+2*i}, v{cur+2*i+1}')
    pr = cfg.get('aprio', 0)
    vm = cfg.get('vmask')
    def rdv(t):
        if vm: e(f's_mov_b64 exec, s[{sVM}:{sVM+1}]')
        for x in t: e(x)
        if vm: e('s_mov_b64 exec, -1')
    if pr == 1: e(f's_setprio {par}')
    if pr == 2: e(f's_setprio 1')
    pat = cfg.get('apat', 'E0 E1 w2 PB rB E2 E3 C0 C1 E4 E5 QX rX E6 E7 C2 C3 E8 E9 w2 QM rM E10 E11 C4 C5 E12 E13 PA rA E14 E15 C6 C7')
    for tk in pat.split():
        if tk[0] == 'E': E(int(tk[1:]))
        elif tk[0] == 'C': C(int(tk[1:]))
        elif tk[0] == 'D':
            i = int(tk[1:]); e(f'v_cvt_pk_bf16_f32 v{PP+i}, v{nxt+2*i}, v{nxt+2*i+1}')
        elif tk[0] == 'w': e(f's_waitcnt lgkmcnt({tk[1:]})')
        elif tk[0] == 'p': e(f's_setprio {tk[1:]}')
        elif tk == 'PB': e(mf32(OA, V1, PP + 4, vr(OA)))
        elif tk == 'PA': e(mf32(OA, V0, PP, vr(OA)))
        elif tk == 'QX': e(mf8(nxt, KX, QX, '0'))
        elif tk == 'QM': e(mf32(nxt, KM, QM, vr(nxt)))
        elif tk == 'rB': rdv([rdV1(o)])
        elif tk == 'rA': rdv([rdV0(o + KVBLK)])
        elif tk == 'rAB': rdv([rdV1(o), rdV0(o + KVBLK)])
        elif tk == 'rX': e(rdKX(o + 2 * KVBLK))
        elif tk == 'rM': e(rdKM(o + 2 * KVBLK))
        else: raise ValueError(tk)

sVM = 56
def attn_main(p, L, cfg):
    e = p.e
    unroll = cfg.get('aunroll', 4)
    if cfg.get('vmask'):
        e(f's_mov_b32 s{sVM}, 0x7ffff'); e(f's_mov_b32 s{sVM+1}, 0x7ffff')
        for i in range(4): e(f'v_mov_b32 v{V0+i}, 0')
    if cfg.get('aprio') == 3:
        e(f's_cmp_lt_u32 s{sW}, 4'); e(f's_cbranch_scc1 {L}_np'); e('s_setprio 1'); p.label(f'{L}_np')
    p.auto = False
    e(rdKX(0)); e(rdKM(0))
    for i in range(16): e(f'v_mov_b32 v{OA+i}, 0')
    for i in range(4): e(f'v_mov_b32 v{PP+4+i}, 0'); e(f'v_mov_b32 v{V1+i}, 0')
    e(f'v_mov_b32 v{KX+1}, 0')
    dl = [int(t[1:]) for t in cfg.get('apat', '').split() if t[0] == 'D']
    for i in dl: e(f'v_mov_b32 v{S1+2*i}, 0'); e(f'v_mov_b32 v{S1+2*i+1}, 0')
    e('s_waitcnt lgkmcnt(0)')
    e(mf8(S0, KX, QX, '0'))
    e(mf32(S0, KM, QM, vr(S0)))
    e(rdKX(KVBLK)); e(rdKM(KVBLK))
    if cfg.get('vmask'): e(f's_mov_b64 exec, s[{sVM}:{sVM+1}]')
    e(rdV0(0))
    if cfg.get('vmask'): e('s_mov_b64 exec, -1')
    e(f's_mov_b32 s{sCnt}, {64 // unroll}')
    e('s_nop 7')
    p.raw('.p2align 6')
    p.label(f'{L}_loop')
    for t in range(unroll): attn_tile(p, t % 2, t * KVBLK, cfg)
    if cfg.get('abar'): e('s_barrier')
    for a in (vAK, vAX, vAV): e(f'v_add_u32 v{a}, {unroll * KVBLK}, v{a}')
    e(f's_sub_u32 s{sCnt}, s{sCnt}, 1')
    e(f's_cmp_lg_u32 s{sCnt}, 0')
    e(f's_cbranch_scc1 {L}_loop')
    for i in dl: e(f'v_cvt_pk_bf16_f32 v{PP+i}, v{S1+2*i}, v{S1+2*i+1}')
    e('s_waitcnt lgkmcnt(0)')
    e(mf32(OA, V1, PP + 4, vr(OA)))
    p.auto = True
    p.lg = []

def attn_check_and_fallback(p, L):
    e = p.e
    def getl():
        e(f'v_mov_b32 v{vT}, v{OA+10}')
        e(f'v_mov_b32 v{vT+1}, v{OA+10}')
        e(f'v_permlane32_swap_b32 v{vT}, v{vT+1}')
    getl()
    e(f'v_cmp_nle_f32 vcc, {f2u(2.0 ** -30)}, v{vT}')
    e(f's_mov_b64 s[{sT0}:{sT0+1}], vcc')
    e(f'v_cmp_nge_f32 vcc, {f2u(2.0 ** 40)}, v{vT}')
    e(f's_or_b64 vcc, vcc, s[{sT0}:{sT0+1}]')
    e(f's_cbranch_scc0 {L}_ok')
    attn_addrs(p)
    mx = vT + 4
    e(f'v_mov_b32 v{mx}, 0xff800000')
    e(f's_mov_b32 s{sCnt}, 64')
    p.label(f'{L}_fb1')
    e(rdKX(0)); e(rdKM(0))
    e('s_waitcnt lgkmcnt(0)')
    e(mf8(S0, KX, QX, '0')); e(mf32(S0, KM, QM, vr(S0)))
    e(f'v_add_u32 v{vAK}, {KVBLK}, v{vAK}'); e(f'v_add_u32 v{vAX}, {KVBLK}, v{vAX}')
    for i in range(0, 16, 2): e(f'v_max3_f32 v{mx}, v{S0+i}, v{S0+i+1}, v{mx}')
    e(f's_sub_u32 s{sCnt}, s{sCnt}, 1'); e(f's_cmp_lg_u32 s{sCnt}, 0'); e(f's_cbranch_scc1 {L}_fb1')
    e(f'v_mov_b32 v{mx+1}, v{mx}')
    e(f'v_permlane32_swap_b32 v{mx}, v{mx+1}')
    e(f'v_max_f32 v{mx}, v{mx}, v{mx+1}')
    attn_addrs(p)
    for i in range(16): e(f'v_sub_f32 v{CN+i}, 0, v{mx}'); e(f'v_mov_b32 v{OA+i}, 0')
    e(f's_mov_b32 s{sCnt}, 64')
    p.label(f'{L}_fb2')
    e(rdKX(0)); e(rdKM(0)); e(rdV0(0)); e(rdV1(0))
    e('s_waitcnt lgkmcnt(0)')
    e(mf8(S0, KX, QX, vr(CN))); e(mf32(S0, KM, QM, vr(S0)))
    for a in (vAK, vAX, vAV): e(f'v_add_u32 v{a}, {KVBLK}, v{a}')
    for i in range(16): e(f'v_exp_f32 v{S0+i}, v{S0+i}')
    for i in range(8): e(f'v_cvt_pk_bf16_f32 v{PP+i}, v{S0+2*i}, v{S0+2*i+1}')
    e(mf32(OA, V0, PP, vr(OA))); e(mf32(OA, V1, PP + 4, vr(OA)))
    e(f's_sub_u32 s{sCnt}, s{sCnt}, 1'); e(f's_cmp_lg_u32 s{sCnt}, 0')
    e('s_nop 7')
    e(f's_cbranch_scc1 {L}_fb2')
    getl()
    p.label(f'{L}_ok')

def gen_k2(p, cfg):
    e = p.e
    pf = Prof(p, cfg.get('prof') == 2)
    pf.stamp(100, 'real0', real=True); pf.stamp(101, 'start')
    load_ptrs(p); ids(p)
    e('s_waitcnt lgkmcnt(0)')
    srd(p, SRD_WS, P_WS, WS_END)
    WSr = f's[{SRD_WS}:{SRD_WS+3}]'
    e(f'v_lshlrev_b32 v{vAK}, 4, v0')
    e(f's_lshl_b32 s{sT0}, s{sW}, 10')
    for i in range(19):
        e(f's_add_u32 m0, s{sT0}, {8192 * i}')
        e(f's_add_u32 s{sT1}, s{sT0}, {WS_KV + 8192 * i}')
        e(f'buffer_load_dwordx4 v{vAK}, {WSr}, s{sT1} offen lds')
    e(f's_lshl_b32 s{sT0}, s{sHH}, 4')
    e(f's_lshl_b32 s{sT1}, s{sW}, 1')
    e(f's_add_u32 s{sT0}, s{sT0}, s{sT1}')
    e(f's_lshl_b32 s{sT0}, s{sT0}, 11')
    e(f's_lshl_b32 s{sT1}, s{sRG}, 4')
    e(f's_add_u32 s{sT0}, s{sT0}, s{sT1}')
    e(f'v_bfe_u32 v{vT}, v0, 4, 1')
    e(f'v_and_b32 v{vT+1}, 15, v0')
    e(f'v_lshl_add_u32 v{vT}, v{vT}, 11, v{vT+1}')
    e(f'v_lshrrev_b32 v{vT+1}, 5, v0')
    e(f'v_lshlrev_b32 v{vT+2}, 5, v{vT}')
    e(f'v_lshl_add_u32 v{vT+2}, v{vT+1}, 4, v{vT+2}')
    e(f's_lshl_b32 s{sT1}, s{sT0}, 5')
    e(f's_add_u32 s{sT1}, s{sT1}, {WS_QM}')
    e(f'buffer_load_dwordx4 v[{QM}:{QM+3}], v{vT+2}, {WSr}, s{sT1} offen')
    e(f'v_lshlrev_b32 v{vT}, 2, v{vT}')
    e(f'v_lshl_add_u32 v{vT}, v{vT+1}, 30, v{vT}')
    e(f's_lshl_b32 s{sT1}, s{sT0}, 2')
    e(f's_add_u32 s{sT1}, s{sT1}, {WS_QX}')
    e(f'buffer_load_dword v{QX}, v{vT}, {WSr}, s{sT1} offen')
    e(f'v_mov_b32 v{QX+1}, 0')
    attn_addrs(p)
    e('s_waitcnt vmcnt(0)')
    e('s_barrier')
    pf.stamp(0)
    attn_main(p, 'K2', cfg)
    pf.stamp(1)
    attn_check_and_fallback(p, 'K2')
    e(f'v_rcp_f32 v{vT}, v{vT}')
    for i in range(10): e(f'v_mul_f32 v{OA+i}, v{OA+i}, v{vT}')
    for i in range(5): e(f'v_cvt_pk_bf16_f32 v{PP+i}, v{OA+2*i}, v{OA+2*i+1}')
    e(f's_lshl_b32 s{sT0}, s{sRG}, 1')
    e(f's_add_u32 s{sT0}, s{sT0}, s{sHH}')
    e(f's_mul_i32 s{sT0}, s{sT0}, 9216')
    e(f's_add_u32 s{sT0}, s{sT0}, {WS_O}')
    e(f's_lshl_b32 s{sT1}, s{sW}, 10')
    e(f's_add_u32 s{sT1}, s{sT1}, s{sT0}')
    e(f'v_lshlrev_b32 v{vT}, 4, v0')
    e(f'buffer_store_dwordx4 v[{PP}:{PP+3}], v{vT}, {WSr}, s{sT1} offen')
    e(f's_lshr_b32 s{sT1}, s{sW}, 1'); e(f's_lshl_b32 s{sT1}, s{sT1}, 8')
    e(f's_and_b32 s{sT2}, s{sW}, 1'); e(f's_lshl_b32 s{sT2}, s{sT2}, 3')
    e(f's_add_u32 s{sT1}, s{sT1}, s{sT2}'); e(f's_add_u32 s{sT1}, s{sT1}, s{sT0}'); e(f's_add_u32 s{sT1}, s{sT1}, 8192')
    e(f'v_and_b32 v{vT}, 15, v0'); e(f'v_lshlrev_b32 v{vT}, 4, v{vT}')
    e(f'v_bfe_u32 v{vT+1}, v0, 4, 1'); e(f'v_lshl_add_u32 v{vT}, v{vT+1}, 2, v{vT}')
    e(f'v_lshrrev_b32 v{vT+1}, 5, v0'); e(f'v_lshl_add_u32 v{vT}, v{vT+1}, 30, v{vT}')
    e(f'buffer_store_dword v{PP+4}, v{vT}, {WSr}, s{sT1} offen')
    pf.stamp(102)
    if pf.on: e('s_waitcnt vmcnt(0)')
    pf.stamp(103, 'end'); pf.stamp(104, 'real1', real=True)
    pf.dump(SRD_WS, sW)

def mf16(D, A, B, C): return f'v_mfma_f32_16x16x32_bf16 v[{D}:{D+3}], v[{A}:{A+3}], v[{B}:{B+3}], {C}'

def sel_frags(p, SEL, tmp, new=False):
    e = p.e
    e(f'v_and_b32 v{tmp}, 1, v0')
    e(f'v_lshlrev_b32 v{tmp}, 4, v{tmp}')
    e(f'v_mov_b32 v{tmp+1}, 0x3f80')
    e(f'v_lshlrev_b32 v{tmp}, v{tmp}, v{tmp+1}')
    e(f'v_bfe_u32 v{tmp+1}, v0, {2 if new else 3}, 1')
    e(f'v_lshrrev_b32 v{tmp+2}, 5, v0')
    e(f'v_cmp_eq_u32 vcc, v{tmp+1}, v{tmp+2}')
    e(f'v_cndmask_b32 v{tmp}, 0, v{tmp}, vcc')
    if new:
        e(f'v_bfe_u32 v{tmp+1}, v0, 1, 1'); e(f'v_bfe_u32 v{tmp+2}, v0, 3, 1'); e(f'v_lshl_add_u32 v{tmp+1}, v{tmp+2}, 1, v{tmp+1}')
    else: e(f'v_bfe_u32 v{tmp+1}, v0, 1, 2')
    e(f'v_bfe_u32 v{tmp+2}, v0, 4, 1')
    e(f'v_lshl_add_u32 v{tmp+1}, v{tmp+2}, 2, v{tmp+1}')
    for i in range(8):
        e(f'v_cmp_eq_u32 vcc, {i}, v{tmp+1}')
        e(f'v_cndmask_b32 v{SEL+i}, 0, v{tmp}, vcc')

def gate_calc(p, T, ldsoff):
    e = p.e
    X, G = T + 4, T + 16
    e(f'v_and_b32 v{T}, 31, v0')
    e(f'v_lshlrev_b32 v{T}, 4, v{T}')
    e(f'v_lshrrev_b32 v{T+1}, 5, v0')
    e(f'v_mul_u32_u24 v{T+2}, 1152, v{T+1}')
    e(f'v_add_u32 v{T+2}, v{T+2}, v{T}')
    e(f's_lshl_b32 s{sT0}, s{sRG}, 4'); e(f's_lshl_b32 s{sT1}, s{sW}, 1'); e(f's_add_u32 s{sT0}, s{sT0}, s{sT1}')
    e(f's_mul_i32 s{sT0}, s{sT0}, 1152')
    e(f'v_cmp_gt_u32 vcc, 128, v{T}')
    e(f'v_mov_b32 v{T+3}, {OOB}')
    e(f'v_cndmask_b32 v{T+3}, v{T+3}, v{T+2}, vcc')
    for i in range(3):
        a = T + 2 if i < 2 else T + 3
        e(f'buffer_load_dwordx4 v[{X+4*i}:{X+4*i+3}], v{a}, s[{SRD_X}:{SRD_X+3}], s{sT0} offen offset:{512 * i}')
        e(f'buffer_load_dwordx4 v[{G+4*i}:{G+4*i+3}], v{T}, s[{SRD_GW}:{SRD_GW+3}], 0 offen offset:{512 * i}')
    return X, G

def gate_finish(p, T, X, G, ldsoff):
    e = p.e
    e(f'v_mov_b32 v{T}, 0')
    for i in range(12): e(f'v_dot2c_f32_bf16 v{T}, v{X+i}, v{G+i}')
    for m in ('quad_perm:[1,0,3,2]', 'quad_perm:[2,3,0,1]', 'row_half_mirror', 'row_mirror'):
        e(f'v_add_f32_dpp v{T}, v{T}, v{T} {m} row_mask:0xf bank_mask:0xf')
    e(f'v_mov_b32 v{T+2}, v{T}')
    e(f'v_permlane16_swap_b32 v{T}, v{T+2}')
    e(f'v_add_f32 v{T}, v{T}, v{T+2}')
    e(f'v_mul_f32 v{T}, {f2u(-math.log2(math.e))}, v{T}')
    e(f'v_exp_f32 v{T}, v{T}')
    e(f'v_add_f32 v{T}, 1.0, v{T}')
    e(f'v_rcp_f32 v{T}, v{T}')
    e(f's_lshl_b32 s{sT0}, s{sW}, 3')
    e(f'v_lshrrev_b32 v{T+1}, 5, v0')
    e(f'v_lshlrev_b32 v{T+1}, 2, v{T+1}')
    e(f'v_add_u32 v{T+1}, s{sT0}, v{T+1}')
    e(f'ds_write_b32 v{T+1}, v{T} offset:{ldsoff}')

def gen_k3(p, cfg):
    e = p.e
    pf = Prof(p, cfg.get('prof') == 3)
    pf.stamp(100, 'real0', real=True); pf.stamp(101, 'start')
    load_ptrs(p); ids(p)
    e('s_waitcnt lgkmcnt(0)')
    srd(p, SRD_WS, P_WS, WS_END)
    srd(p, SRD_X, P_X, 2048 * 1152)
    srd(p, SRD_GW, P_GW, 1152)
    srd(p, SRD_OUT, P_OUT, 2048 * 1152)
    WSr = f's[{SRD_WS}:{SRD_WS+3}]'
    OB, SEL, AA, BB, T, vL16, BUF = 8, 80, 88, 96, 104, 1, 136
    vG = 2
    X, G = gate_calc(p, T, 0)
    e(f'v_lshlrev_b32 v{vL16}, 4, v0')
    e(f's_mul_i32 s{sT0}, s{sRG}, 18432'); e(f's_add_u32 s{sT0}, s{sT0}, {WS_O}')
    for ks in range(18):
        off = ks * 1024 if cfg.get('newsel') else ((ks // 8) * 9216 + (ks % 8) * 1024 if ks < 16 else (ks - 16) * 9216 + 8192)
        e(f's_add_u32 s{sT1}, s{sT0}, {off}')
        e(f'buffer_load_dwordx4 v[{OB+4*ks}:{OB+4*ks+3}], v{vL16}, {WSr}, s{sT1} offen')
    sel_frags(p, SEL, 4, cfg.get('newsel', False))
    gate_finish(p, T, X, G, 0)
    e('s_waitcnt lgkmcnt(0)')
    e('s_barrier')
    e(f'v_and_b32 v{vG}, 15, v0'); e(f'v_lshlrev_b32 v{vG}, 2, v{vG}')
    e(f'ds_read_b32 v{vG}, v{vG}')
    sNT, sPo, sWo = 14, 15, 6
    def tile(Ts, sel_of):
        e(f's_lshr_b32 s{sPo}, s{sRG}, 3'); e(f's_mul_i32 s{sPo}, s{sPo}, {16 * 147456}')
        e(f's_lshl_b32 s{sT0}, s{sNT}, 13'); e(f's_add_u32 s{sPo}, s{sPo}, s{sT0}')
        e(f's_and_b32 s{sT0}, s{sRG}, 7'); e(f's_lshl_b32 s{sT0}, s{sT0}, 10'); e(f's_add_u32 s{sPo}, s{sPo}, s{sT0}')
        for sl in range(16):
            e(f's_add_u32 s{sT1}, s{sPo}, {WS_P + sl * 147456}')
            e(f'buffer_load_dwordx4 v[{BUF+4*sl}:{BUF+4*sl+3}], v{vL16}, {WSr}, s{sT1} offen')
        for sl in range(16):
            for ti in range(Ts):
                e(mf16(BB + 4 * ti, sel_of(ti), BUF + 4 * sl, '0' if sl == 0 else f'v[{BB+4*ti}:{BB+4*ti+3}]'))
        for ti in range(Ts):
            for ks in range(18):
                e(f's_add_u32 s{sT1}, s{sWo}, {(ti * 18 + ks) * 1024}')
                e(f'buffer_load_dwordx4 v[{BUF+4*ks}:{BUF+4*ks+3}], v{vL16}, {WSr}, s{sT1} offen')
            for ks in range(18):
                e(mf16(AA + 4 * ti, BUF + 4 * ks, OB + 4 * ks, '0' if ks == 0 else f'v[{AA+4*ti}:{AA+4*ti+3}]'))
        for i in range(4 * Ts):
            e(f'v_sub_f32 v{AA+i}, v{AA+i}, v{BB+i}')
            e(f'v_fma_f32 v{AA+i}, v{vG}, v{AA+i}, v{BB+i}')
        for i in range(2 * Ts): e(f'v_cvt_pk_bf16_f32 v{T+i}, v{AA+2*i}, v{AA+2*i+1}')
    e(f'v_and_b32 v3, 15, v0'); e(f'v_mul_u32_u24 v3, 1152, v3')
    e(f'v_and_b32 v4, 48, v0'); e(f'v_add_u32 v3, v3, v4')
    e(f's_mul_i32 s{sNT}, s{sHH}, 9'); e(f's_add_u32 s{sNT}, s{sNT}, s{sW}')
    e(f's_mul_i32 s{sWo}, s{sNT}, 36864'); e(f's_add_u32 s{sWo}, s{sWo}, {WS_WO}')
    tile(2, lambda ti: SEL + 4 * ti)
    e(f's_mul_i32 s{sT0}, s{sRG}, 18432'); e(f's_lshl_b32 s{sT1}, s{sNT}, 6'); e(f's_add_u32 s{sT0}, s{sT0}, s{sT1}')
    e(f'buffer_store_dwordx4 v[{T}:{T+3}], v3, s[{SRD_OUT}:{SRD_OUT+3}], s{sT0} offen')
    e(f's_cmp_lt_u32 s{sW}, 6'); e('s_cbranch_scc1 K3_end')
    e(f's_mul_i32 s{sNT}, s{sHH}, 9'); e(f's_add_u32 s{sNT}, s{sNT}, 8')
    e(f's_sub_u32 s{sT2}, s{sW}, 6')
    e(f's_mul_i32 s{sWo}, s{sNT}, 36864'); e(f's_mul_i32 s{sT0}, s{sT2}, 18432'); e(f's_add_u32 s{sWo}, s{sWo}, s{sT0}')
    e(f's_add_u32 s{sWo}, s{sWo}, {WS_WO}')
    e(f's_cmp_eq_u32 s{sT2}, 1'); e('s_cselect_b64 vcc, -1, 0')
    for i in range(4): e(f'v_cndmask_b32 v{SEL+i}, v{SEL+i}, v{SEL+4+i}, vcc')
    tile(1, lambda ti: SEL)
    e(f's_mul_i32 s{sT0}, s{sRG}, 18432'); e(f's_lshl_b32 s{sT1}, s{sNT}, 6'); e(f's_add_u32 s{sT0}, s{sT0}, s{sT1}')
    e(f's_lshl_b32 s{sT1}, s{sT2}, 3'); e(f's_add_u32 s{sT0}, s{sT0}, s{sT1}')
    e(f'buffer_store_dwordx2 v[{T}:{T+1}], v3, s[{SRD_OUT}:{SRD_OUT+3}], s{sT0} offen')
    p.label('K3_end')
    p.reset_tracking()
    pf.stamp(102)
    if pf.on: e('s_waitcnt vmcnt(0)')
    pf.stamp(103, 'end'); pf.stamp(104, 'real1', real=True)
    pf.dump(SRD_WS, sW)
```

```python
import sys
from common import *
import ffn, att, k23
from ffn import sW, sT0, sT1, sT2, SRD_WS, SRD_X, vL16, KVG, KVB, sMb, sso, NQ

att.sRG, att.sHH = 6, 7
att.PP, att.KM, att.VV, att.KX = 24, 32, 40, 56
att.SA, att.SB, att.OA, att.OB = 64, 80, 96, 112
att.QM, att.QX = 128, 136
SEL, SELX = 152, 160
att.vAK, att.vAV = 164, 165
vG, vPoll = 166, 167
att.vT = 168
BACC = 176
PBUF, NPB = 196, 12
vFP, vFO = 244, 245
vL2, vLX, vLO, vPa = 246, 247, 248, 249
vL4 = 250
sRG, sHH = att.sRG, att.sHH
SRD_GW, SRD_OUT, SRD_DBG = 48, 52, 56
sPb, sWo, sWx, sOo, sOp, sSpin = 74, 75, 76, 77, 78, 79
sPb = 80; sWo = 81; sWx = 82; sOo = 83; sOp = 84; sSpin = 85; sKVs = 86; sLd = 87
LDS_O, LDS_G = 154560, 163776
FLO = 4096
WSr = f's[{SRD_WS}:{SRD_WS+3}]'
mf16 = att.mf16

class Rec:
    def __init__(self): self.l = []
    def e(self, t, **kw): self.l.append(t)

def poll(p, L, srdr, want, mask, first_issued):
    e = p.e
    ld = f'buffer_load_dword v{vPoll}, v{vPa}, {srdr}, 0 offen sc1'
    if not first_issued: e(ld)
    e(f'v_cmp_eq_u32 vcc, {want}, v{vPoll}')
    e(f's_cmp_eq_u32 vcc_lo, {mask}')
    e(f's_cbranch_scc0 {L}_spin')
    p.label(f'{L}_go')
    def out(q):
        r = q.raw
        q.label(f'{L}_spin'); r(f's_mov_b32 s{sSpin}, 0')
        q.label(f'{L}_sp2'); r('s_sleep 1'); r(ld); r(f's_add_u32 s{sSpin}, s{sSpin}, 1'); r('s_waitcnt vmcnt(0)')
        r(f'v_cmp_eq_u32 vcc, {want}, v{vPoll}')
        r(f's_cmp_gt_u32 s{sSpin}, 0x80000'); r(f's_cbranch_scc1 {L}_go')
        r(f's_cmp_eq_u32 vcc_lo, {mask}'); r(f's_cbranch_scc0 {L}_sp2'); r(f's_branch {L}_go')
    return out

def gen(p, cfg, pf):
    cfg = dict(cfg); cfg.setdefault('stflags', 'sc1')
    BS, BP = cfg.get('bsig', 54), cfg.get('bpoll', 61)
    cfg['kvb0'] = BP; cfg['bar_tags'] = {BS: ['QKV']}
    e = p.e; ool = []
    qb = lambda b: 32 * (b - 1) + 15
    vT = att.vT

    def setup_extra(p):
        e = p.e
        e(f'v_cmp_eq_u32 vcc, 0, v0'); e(f'v_mov_b32 v{vFO}, {OOB}'); e(f'v_mov_b32 v{vPoll}, 0')
        e(f'v_cndmask_b32_e64 v{vFO}, v{vFO}, 0, vcc')
        e(f's_lshl_b32 s{sT0}, s{ffn.sM_}, 6'); e(f's_lshl_b32 s{sT1}, s{ffn.sS}, 2'); e(f's_add_u32 s{sT0}, s{sT0}, s{sT1}')
        e(f's_add_u32 s{sT0}, s{sT0}, {WS_FL}'); e(f's_lshl_b32 s{sT1}, s{sW}, 28'); e(f's_add_u32 s{sT0}, s{sT0}, s{sT1}')
        e(f'v_add_u32 v{vFP}, s{sT0}, v{vFO}')
        e(f's_lshl_b32 s{sT0}, s2, 6'); e(f's_lshl_b32 s{sT1}, s{sW}, 2'); e(f's_add_u32 s{sT0}, s{sT0}, s{sT1}'); e(f's_add_u32 s{sT0}, s{sT0}, {WS_FL + FLO}')
        e(f'v_add_u32 v{vFO}, s{sT0}, v{vFO}')
        e(f'buffer_store_dword v{vPoll}, v{vFP}, {WSr}, 0 offen sc1', tag='QKV')
        e(f'buffer_store_dword v{vPoll}, v{vFO}, {WSr}, 0 offen sc1', tag='QKV')
    cfg['setup_extra'] = setup_extra

    def kv_unit(i, n=4):
        if n == 4:
            return [(f's_add_u32 m0, s{sMb}, {16384 * i}', None), (f's_add_u32 s{sso}, s{sKVs}, {16384 * i}', None)] + \
               [(f'buffer_load_dwordx4 v{vL16}, {WSr}, s{sso} offen' + (f' offset:{1024 * q}' if q else '') + ' lds', 'KV') for q in range(4)]
        return [(f's_lshr_b32 s{sso}, s{sMb}, 2', None), (f's_add_u32 m0, s{sso}, {16384 * i}', None), (f's_add_u32 s{sso}, s{sso}, {WS_KV + 16384 * i}', None),
                (f'buffer_load_dwordx4 v{vL16}, {WSr}, s{sso} offen lds', 'KV')]

    GT_ = 176
    def sched_extra(S, p):
        r = Rec(); e = r.e
        att.att_ids(r)
        srd(r, SRD_DBG, P_DBG, 256)
        e(f's_and_b32 s{sT0}, s2, 3'); e(f's_lshl_b32 s{sT0}, s{sT0}, 6'); e(f's_lshl_b32 s{sT1}, s{sW}, 12'); e(f's_add_u32 s{sT0}, s{sT0}, s{sT1}')
        e(f'v_lshlrev_b32 v{vPa}, 6, v0'); e(f'v_lshlrev_b32 v{vT}, 8, v0'); e(f'v_add_u32 v{vT}, s{sT0}, v{vT}'); e(f'v_mov_b32 v{vT+1}, 1')
        nA = len(r.l)
        srd(r, SRD_GW, P_GW, 1152); srd(r, SRD_OUT, P_OUT, 2048 * 1152)
        T = GT_; X, G = T + 4, T + 24
        e(f'v_and_b32 v{T}, 15, v0'); e(f'v_lshlrev_b32 v{T}, 4, v{T}'); e(f'v_lshrrev_b32 v{T+1}, 4, v0')
        e(f'v_mul_u32_u24 v{T+2}, 1152, v{T+1}'); e(f'v_add_u32 v{T+2}, v{T+2}, v{T}')
        e(f's_lshl_b32 s{sT0}, s{sRG}, 2'); e(f's_add_u32 s{sT0}, s{sT0}, s{sW}'); e(f's_mul_i32 s{sT0}, s{sT0}, 4608')
        e(f'v_and_b32 v{T+3}, 8, v0'); e(f'v_lshl_add_u32 v{T+3}, v{T+3}, 26, v{T+2}')
        for i in range(5):
            e(f'buffer_load_dwordx4 v[{X+4*i}:{X+4*i+3}], v{T+2 if i < 4 else T+3}, s[{SRD_X}:{SRD_X+3}], s{sT0} offen offset:{256 * i}')
            e(f'buffer_load_dwordx4 v[{G+4*i}:{G+4*i+3}], v{T}, s[{SRD_GW}:{SRD_GW+3}], 0 offen offset:{256 * i}')
        nB = len(r.l)
        k23.sel_frags(r, SEL, vT + 2, True)
        e(f's_cmp_eq_u32 s{sW}, 3 | s_cselect_b64 vcc, -1, 0')
        for i in range(4): e(f'v_cndmask_b32 v{SELX+i}, v{SEL+i}, v{SEL+4+i}, vcc')
        e(f's_add_u32 s{sKVs}, s{sMb}, {WS_KV}')
        e(f's_mul_i32 s{sT0}, s{sHH}, 9'); e(f's_lshl_b32 s{sT1}, s{sW}, 1'); e(f's_add_u32 s{sT1}, s{sT1}, s{sT0}')
        e(f's_lshr_b32 s{sPb}, s{sRG}, 3'); e(f's_mul_i32 s{sPb}, s{sPb}, {16 * 147456}')
        e(f's_lshl_b32 s{sT2}, s{sT1}, 13'); e(f's_add_u32 s{sPb}, s{sPb}, s{sT2}')
        e(f's_and_b32 s{sT2}, s{sRG}, 7'); e(f's_lshl_b32 s{sT2}, s{sT2}, 10'); e(f's_add_u32 s{sPb}, s{sPb}, s{sT2}')
        e(f's_mul_i32 s{sWo}, s{sT1}, 36864'); e(f's_add_u32 s{sWo}, s{sWo}, {WS_WO}')
        e(f's_add_u32 s{sT0}, s{sT0}, 8'); e(f's_mul_i32 s{sWx}, s{sT0}, 36864'); e(f's_and_b32 s{sT2}, s{sW}, 1'); e(f's_mul_i32 s{sT2}, s{sT2}, 18432')
        e(f's_add_u32 s{sWx}, s{sWx}, s{sT2}'); e(f's_add_u32 s{sWx}, s{sWx}, {WS_WO}')
        e(f's_andn2_b32 s{sT2}, {OOB}, s{ffn.sHF}'); e(f'v_add_u32 v{vLO}, s{sT2}, v{vL16}')
        e(f's_sub_u32 s{sT0}, s{sT0}, s{sT1}'); e(f's_lshl_b32 s{sT0}, s{sT0}, 13'); e(f'v_add_u32 v{vLX}, s{sT0}, v{vLO}')
        e(f'v_add_u32 v{vL2}, 8192, v{vL16}'); e(f'v_add_u32 v{vL4}, 4096, v{vL16}')
        e(f's_lshl_b32 s{sT0}, s{sRG}, 1'); e(f's_add_u32 s{sT0}, s{sT0}, s{sHH}'); e(f's_mul_i32 s{sOo}, s{sT0}, 9216'); e(f's_add_u32 s{sOo}, s{sOo}, {WS_O}')
        e(f's_xor_b32 s{sT0}, s{sT0}, 1'); e(f's_mul_i32 s{sOp}, s{sT0}, 9216'); e(f's_add_u32 s{sOp}, s{sOp}, {WS_O}')
        nC = len(r.l)
        e(f'v_mov_b32 v{vG}, 0')
        for i in range(20): e(f'v_dot2c_f32_bf16 v{vG}, v{X+i}, v{G+i}')
        e('s_nop 1')
        for m in ('quad_perm:[1,0,3,2]', 'quad_perm:[2,3,0,1]', 'row_half_mirror', 'row_mirror'):
            e(f'v_add_f32_dpp v{vG}, v{vG}, v{vG} {m} row_mask:0xf bank_mask:0xf'); e('s_nop 0')
        e(f'v_mul_f32 v{vG}, {f2u(-math.log2(math.e))}, v{vG}'); e(f'v_exp_f32 v{vG}, v{vG}'); e(f'v_add_f32 v{vG}, 1.0, v{vG}'); e(f'v_rcp_f32 v{vG}, v{vG}')
        nD = len(r.l)
        kv = [o for o in S.ops if getattr(o, 'call', False) and o.end == 1570]
        def mk(t):
            if ' | ' not in t: return t
            def f():
                for x in t.split(' | '): p.e(x)
            return f
        ch = S.chain([mk(t) for t in r.l], 1572, qb(BP) - 8, deps=kv, tight=False)
        for o in ch:
            if callable(o.text): o.call = True; o.cost = 2
        for o in ch[:nA]: o.end = o.prio = qb(BS) - 2
        for o in ch[nC:]: o.start = cfg.get('gate_q', 1800)
        S.fix(qb(BS) + 4, f'buffer_atomic_add v{vT+1}, v{vT}, s[{SRD_DBG}:{SRD_DBG+3}], 0 offen sc1')
        DB = f's[{SRD_DBG}:{SRD_DBG+3}]'
        S.fix(qb(BP) - cfg.get('poll_lead', 44), f'buffer_load_dword v{vPoll}, v{vPa}, {DB}, 0 offen sc1')
        S.fix(qb(BP) - 2, lambda: ool.append(poll(p, 'PK', DB, 64, 15, True)), cost=4)
        r2 = Rec(); att.q_loads(r2, 'sc1'); att.att_addrs(r2, cfg)
        S.chain(r2.l, qb(BP) + 1, qb(BP) + 70, tight=False)
        ins = sum([kv_unit(i) for i in range(5)], [])
        g0 = qb(BP) + 2; k = 0
        for t, tag in ins:
            while g0 % 32 in (15, 31): g0 += 1
            S.fix(g0, t, tag=tag); g0 += cfg.get('kvstep', 4) if tag else 1
        assert g0 < NQ
        r3 = Rec(); att.q_variants(r3)
        S.chain(r3.l, NQ - 30, NQ - 2, tight=False)
    cfg['sched_extra'] = sched_extra

    def pre_tail(p):
        pf.start()
        p.wait(vmtags=['KV'], lg0=True); p.e('s_barrier')
        pf.save(70)
        p.e(att.rdKX(0)); p.e(att.rdKM(0)); p.e(att.rdV(0, 0)); p.e(att.rdV(0, 1))
    cfg['pre_tail'] = pre_tail
    ffn.gen_ffn(p, cfg, pf)
    p.c('ATT')
    SA, SB, OA, OB = att.SA, att.SB, att.OA, att.OB
    e(att.qkx(0, 0, SA)); e(att.mf32(SA, att.KM, att.QM, att.vr(SA)))
    e(f's_lshl_b32 s{sT0}, s{sW}, 4'); e(f's_add_u32 s{sT0}, s{sT0}, {LDS_G}')
    e(f'v_lshrrev_b32 v{vT}, 4, v0'); e(f'v_lshlrev_b32 v{vT}, 2, v{vT}'); e(f'v_add_u32 v{vT}, s{sT0}, v{vT}')
    e(f'ds_write_b32 v{vT}, v{vG}')
    e(f's_lshr_b32 s{sT0}, s{sRG}, 3'); e(f's_lshl_b32 s{sT0}, s{sT0}, 6'); e(f's_add_u32 s{sT0}, s{sT0}, {WS_FL}')
    e(f'v_and_b32 v{vPa}, 48, v0'); e(f'v_lshlrev_b32 v{vPa}, 22, v{vPa}'); e(f'v_lshl_add_u32 v{vPa}, v0, 2, v{vPa}'); e(f'v_add_u32 v{vPa}, s{sT0}, v{vPa}')
    e(f'v_mov_b32 v{vG}, 1')

    X = {}
    def at(hs, tk, item, tag=None): X.setdefault((hs, tk), []).append((item, tag))
    hs = 0
    for i in range(5, 10):
        for t, tag in kv_unit(i, 4 if i < 9 else 1):
            at(hs, 'x0' if tag else ('x1' if hs else 'x0'), t, tag) if tag else at(max(hs - 1, 0), 'x1' if hs else 'x0', t)
            if tag: hs += 1
    quads = [f'a[{4*i}:{4*i+3}]' for i in range(64)] + [f'v[{r}:{r+3}]' for r in (4, 8, 12, 16)]
    nearly = len(quads)
    quads += [f'v[{PBUF+4*i}:{PBUF+4*i+3}]' for i in range(NPB)] + [f'v[{r}:{r+3}]' for r in (SEL, SEL + 4, SELX)]
    nmid = len(quads)
    quads += [f'v[{r}:{r+3}]' for r in (128, 132, 136, 140, 144, 148, 84)]
    assert len(quads) == 90
    sH0, sH1 = 8, 15
    def wo_load(f):
        half, r = divmod(f, 45); g, i = divmod(r, 9); out = []
        hreg = (sH0, sH1)[half]
        if g < 4:
            if i == 0: out.append(f's_add_u32 s{sLd}, s{sWo}, s{hreg}'); out += [f's_add_u32 s{sLd}, s{sLd}, {18432 * g}'] if g else []
            vo = (vL16, vL4, vL2)[i // 4]
        else:
            if i == 0: out.append(f's_add_u32 s{sLd}, s{sWx}, s{hreg}')
            elif i % 4 == 0: out.append(f's_add_u32 s{sLd}, s{sLd}, 4096')
            vo = vLO
        out.append(f'buffer_load_dwordx4 {quads[f]}, v{vo}, {WSr}, s{sLd} offen' + (f' offset:{1024 * (i % 4)}' if i % 4 else ''))
        return out
    e(f's_mul_i32 s{sH0}, s{sHH}, 9216'); e(f's_sub_u32 s{sH1}, 9216, s{sH0}')
    HBA, HPL, HPC, LAG = cfg.get('hba', 30), cfg.get('hpl', 46), cfg.get('hpc', 52), cfg.get('lag', 10)
    def bar_a():
        p.wait(vmtags=['KV', 'PART'], lg0=True); e('s_barrier')
        e(f'buffer_store_dword v{vG}, v{vFP}, {WSr}, 0 offen sc1')
    at(HBA, 'x1', bar_a)
    at(HPL, 'x1', f'buffer_load_dword v{vPoll}, v{vPa}, {WSr}, 0 offen sc1')
    at(HPC, 'x1', lambda: ool.append(poll(p, 'PP', WSr, 1, 0xffff, True)))
    f = 0; h = hs
    while f < nearly:
        tk = 'x0' if h <= HPC else 'x1'
        for t in wo_load(f): at(h, tk, t)
        f += 1; h += 1
    hwo = h
    h = HPC + 1
    for i in range(48):
        sl, j = divmod(i, 3); buf = PBUF + 4 * (i % NPB); B = f'v[{buf}:{buf+3}]'
        if j == 0 and sl: at(h, 'x0', f's_add_u32 s{sPb}, s{sPb}, 147456')
        at(h, 'x0', f'buffer_load_dwordx4 {B}, v{(vL16, vL2, vLX)[j]}, {WSr}, s{sPb} offen sc1')
        for ti in range(2 if j < 2 else 1):
            d = BACC + 8 * j + 4 * ti; A = SELX if j == 2 else SEL + 4 * ti
            at(h + LAG, f'y{ti}', mf16(d, f'v[{A}:{A+3}]', B, '0' if sl == 0 else f'v[{d}:{d+3}]'))
        h += 1
    assert LAG < NPB
    hend = h + LAG
    h = max(hwo, h + LAG - NPB + 1)
    while f < nmid:
        if f >= nearly + NPB: h = max(h, hend)
        if h > 127: break
        for t in wo_load(f): at(h, 'x1' if h < HPC + 49 else 'x0', t)
        f += 1; h += 1
    def extra(hs, tk):
        for item, tag in X.pop((hs, tk), []):
            if callable(item): item()
            else: e(item, tag=tag)
    base = 0
    for b in range(64):
        if b and b % 16 == 0:
            for a in (att.vAK, att.vAV): e(f'v_add_u32 v{a}, {2 * KVG}, v{a}')
            base += 2 * KVG
        for t in range(2): att.half_step(p, b, t, base, cfg, extra, line=True)
        if b % 16 == 15: pf.stamp(71 + b // 16)
    assert not X, X.keys()
    e(att.mf32(OB, att.VV + 12, att.PP + 4, att.vr(OB)))
    vO1, vO2, vO3, vOut = 1, 2, 3, 20
    e(f's_lshl_b32 s{sT0}, s{sW}, 11'); e(f'v_add_u32 v{vO1}, s{sT0}, v{vL16}')
    e(f'v_and_b32 v{vO2}, 15, v0'); e(f'v_lshlrev_b32 v{vO2}, 4, v{vO2}'); e(f'v_bfe_u32 v{vO3}, v0, 4, 1'); e(f'v_lshl_add_u32 v{vO2}, v{vO3}, 2, v{vO2}')
    e(f's_lshl_b32 s{sT0}, s{sW}, 8'); e(f's_add_u32 s{sT0}, s{sT0}, 8192'); e(f'v_add_u32 v{vO2}, s{sT0}, v{vO2}')
    e(f'v_lshrrev_b32 v{vO3}, 5, v0'); e(f'v_lshl_add_u32 v{vOut}, v{vO3}, 20, v{vO2}'); e(f'v_lshl_add_u32 v{vO2}, v{vO3}, 29, v{vO2}')
    att.att_check(p, 'A', cfg, 'test')
    att.o_pack(p)
    e(f'buffer_store_dwordx4 v[{OA}:{OA+3}], v{vO1}, {WSr}, s{sOo} offen sc1', tag='O')
    e(f'buffer_store_dwordx4 v[{OB}:{OB+3}], v{vO1}, {WSr}, s{sOo} offen offset:1024 sc1', tag='O')
    e(f'buffer_store_dword v{OA+4}, v{vO2}, {WSr}, s{sOo} offen sc1', tag='O')
    e(f'buffer_store_dword v{OB+4}, v{vO2}, {WSr}, s{sOo} offen offset:8 sc1', tag='O')
    e(f'v_add_u32 v{vO1}, {LDS_O}, v{vO1}'); e(f'v_add_u32 v{vO2}, {LDS_O}, v{vOut}'); e(f'v_add_u32 v{vO3}, {LDS_O}, v{vL16}')
    e(f'ds_write_b128 v{vO1}, v[{OA}:{OA+3}]'); e(f'ds_write_b128 v{vO1}, v[{OB}:{OB+3}] offset:1024')
    e(f'ds_write_b32 v{vO2}, v{OA+4}'); e(f'ds_write_b32 v{vO2}, v{OB+4} offset:8')
    while f < 90:
        for t in wo_load(f): e(t)
        f += 1
    e(f's_xor_b32 s{sT0}, s2, 8'); e(f's_lshl_b32 s{sT0}, s{sT0}, 6'); e(f's_add_u32 s{sT0}, s{sT0}, {WS_FL + FLO}')
    e(f'v_and_b32 v{vPa}, 60, v0'); e(f'v_lshlrev_b32 v{vPa}, 24, v{vPa}'); e(f'v_lshl_add_u32 v{vPa}, v0, 2, v{vPa}'); e(f'v_add_u32 v{vPa}, s{sT0}, v{vPa}')
    e(f'v_and_b32 v{vOut}, 15, v0'); e(f'v_lshlrev_b32 v{vO1}, 2, v{vOut}'); e(f'v_add_u32 v{vO1}, {LDS_G}, v{vO1}')
    e('s_waitcnt lgkmcnt(0)'); e('s_barrier')
    pf.stamp(75)
    OF, AACC, vGt = 24, 64, 2
    for i in range(9): e(f'ds_read_b128 v[{OF+4*i}:{OF+4*i+3}], v{vO3} offset:{1024 * i}')
    e(f'ds_read_b32 v{vGt}, v{vO1}')
    e(f'v_mul_u32_u24 v{vOut}, 1152, v{vOut}'); e(f'v_and_b32 v{vO3}, 48, v0'); e(f'v_add_u32 v{vOut}, v{vOut}, v{vO3}')
    FLAGAT = cfg.get('flagat', 20); n = 0
    for i in range(9):
        for g in range(5):
            if n == FLAGAT:
                p.wait(vmtags=['O']); e(f'buffer_store_dword v{vG}, v{vFO}, {WSr}, 0 offen sc1')
            d = AACC + 4 * g
            e(mf16(d, quads[g * 9 + i], f'v[{OF+4*i}:{OF+4*i+3}]', '0' if i == 0 else f'v[{d}:{d+3}]')); n += 1
    pf.stamp(76)
    ool.append(poll(p, 'PO', WSr, 1, 15, False))
    pf.stamp(77)
    OG = 88
    for i in range(9):
        e(f'buffer_load_dwordx4 v[{OG+4*i}:{OG+4*i+3}], v{(vL16, vL4, vL2)[i // 4]}, {WSr}, s{sOp} offen' + (f' offset:{1024 * (i % 4)}' if i % 4 else '') + ' sc1')
    e(f's_mul_i32 s{sT0}, s{sRG}, 18432'); e(f's_mul_i32 s{sT1}, s{sHH}, 576'); e(f's_add_u32 s{sT0}, s{sT0}, s{sT1}')
    e(f's_lshl_b32 s{sT1}, s{sW}, 7'); e(f's_add_u32 s{sT1}, s{sT1}, s{sT0}')
    e(f's_and_b32 s{sT2}, s{sW}, 1'); e(f's_lshl_b32 s{sT2}, s{sT2}, 3'); e(f's_add_u32 s{sT0}, s{sT0}, s{sT2}')
    e(f's_andn2_b32 s{sT2}, {OOB}, s{ffn.sHF}'); e(f'v_add_u32 v{vO3}, s{sT2}, v{vOut}')
    for i in range(9):
        for g in range(5):
            d = AACC + 4 * g
            e(mf16(d, quads[45 + g * 9 + i], f'v[{OG+4*i}:{OG+4*i+3}]', f'v[{d}:{d+3}]'))
    OUTr = f's[{SRD_OUT}:{SRD_OUT+3}]'
    for j in range(3):
        n = 8 if j < 2 else 4
        for i in range(n): e(f'v_sub_f32 v{AACC+8*j+i}, v{AACC+8*j+i}, v{BACC+8*j+i}')
        for i in range(n): e(f'v_fma_f32 v{AACC+8*j+i}, v{vGt}, v{AACC+8*j+i}, v{BACC+8*j+i}')
        for i in range(n // 2): e(f'v_cvt_pk_bf16_f32 v{AACC+8*j+i}, v{AACC+8*j+2*i}, v{AACC+8*j+2*i+1}')
        if j < 2: e(f'buffer_store_dwordx4 v[{AACC+8*j}:{AACC+8*j+3}], v{vOut}, {OUTr}, s{sT1} offen offset:{64 * j}')
        else: e(f'buffer_store_dwordx2 v[{AACC+16}:{AACC+17}], v{vO3}, {OUTr}, s{sT0} offen offset:512')
    return ool

def build(cfg, path):
    name = NAME + '_kernel'
    p = Prog()
    kernel_header(p, name)
    p.e('s_cmp_ge_u32 s2, 256'); p.e('s_cbranch_scc1 K_exit')
    cfg = dict(cfg); cfg.setdefault('codepf', 72000)
    pf = Prof(p, bool(cfg.get('prof')))
    pf.stamp(100, real=True); pf.stamp(101)
    ool = gen(p, cfg, pf)
    pf.stamp(102)
    if pf.on: p.e('s_waitcnt vmcnt(0)')
    pf.stamp(103); pf.stamp(104, real=True)
    pf.dump(SRD_WS, sW)
    p.label('K_exit'); p.e('s_endpgm')
    for f in ool: f(p)
    p.reset_tracking(); p.auto = False
    att.att_check(p, 'A', cfg, 'fallback')
    p.fix_hazards(verbose=cfg.get('verbose', False))
    print('instrs', len(p.ins), 'nops added', p.nops_added)
    txt = ['; @launch grid=(256,1,1) block=(256,1,1) lds=163840', '.amdgcn_target "amdgcn-amd-amdhsa--gfx950"', '.text', p.text(),
           '.section .rodata,"a"', descriptor(name, 512, acc=256)]
    open(path, 'w').write('\n'.join(txt))
if __name__ == '__main__':
    build(eval(sys.argv[2]) if len(sys.argv) > 2 else {}, sys.argv[1])
```

```python
import sys
from common import *
base = open(sys.argv[1]).read()
K = NAME + '_kernel'
main = f'; @launch kernel={K} grid=(256,1,1) block=(256,1,1) lds=163840'
def mk(name, idx, real=False):
    p = Prog()
    kernel_header(p, 'probe_kernel')
    p.e(f's_cmp_ge_u32 s2, 1'); p.e('s_cbranch_scc1 probe_exit')
    load_ptrs(p); p.e('s_waitcnt lgkmcnt(0)')
    srd(p, 44, P_WS, WS_END)
    wg = 37
    p.e(f'v_mov_b32 v1, {WS_PROF + wg * 4096}')
    p.e('buffer_load_dword v2, v1, s[44:47], 0 offen offset:400')
    p.e('buffer_load_dword v3, v1, s[44:47], 0 offen offset:404')
    p.e(f'buffer_load_dword v4, v1, s[44:47], 0 offen offset:{4 * (idx or 101)}')
    p.e('v_readfirstlane_b32 s4, v2'); p.e('v_readfirstlane_b32 s5, v3'); p.e('v_readfirstlane_b32 s6, v4')
    if real: p.e('s_sub_u32 s6, s6, s4')
    else:
        p.e('s_sub_u32 s6, s6, s5'); p.e(f's_mul_hi_u32 s6, s6, {2**32 // 10}')
    p.e('s_min_u32 s6, s6, 20000'); p.e('s_add_u32 s6, s6, 10000')
    p.e('s_mov_b32 s12, 0')
    p.label('PS'); p.e('s_memrealtime s[8:9]'); p.e('s_waitcnt lgkmcnt(0)')
    p.e('s_add_u32 s12, s12, 1'); p.e('s_cmp_gt_u32 s12, 100000'); p.e('s_cbranch_scc1 probe_exit')
    p.e('s_sub_u32 s8, s8, s4'); p.e('s_cmp_lt_u32 s8, s6'); p.e('s_cbranch_scc1 PS')
    p.label('probe_exit'); p.e('s_endpgm')
    p.fix_hazards()
    hdr = main + '\n; @launch kernel=probe_kernel grid=(1,1,1) block=(64,1,1) lds=0'
    t = base.replace('; @launch grid=(256,1,1) block=(256,1,1) lds=163840', hdr, 1)
    t = t.replace('.section .rodata,"a"', p.text() + '.section .rodata,"a"\n' + descriptor('probe_kernel'), 1)
    open(f'probe_{name}.s', 'w').write(t)
mk('s0', None)
mk('sreal', 104, real=True)
for i in map(int, sys.argv[2:]): mk(f's{i}', i)
```

```python
import re

REG_RE = re.compile(r'^(-|\|)?(?:abs\()?([vsa])(?:(\d+)|\[(\d+):(\d+)\])\)?\|?$')
TRANS = ('v_exp_f32', 'v_log_f32', 'v_rcp_f32', 'v_rsq_f32', 'v_sqrt_f32', 'v_sin_f32', 'v_cos_f32', 'v_rcp_iflag_f32')

def regs_of(tok):
    tok = tok.strip()
    if tok == 'vcc': return {('s', 106), ('s', 107)}
    if tok == 'vcc_lo': return {('s', 106)}
    if tok == 'vcc_hi': return {('s', 107)}
    if tok == 'm0': return {('s', 124)}
    if tok == 'exec': return {('s', 126), ('s', 127)}
    if tok == 'exec_lo': return {('s', 126)}
    if tok == 'exec_hi': return {('s', 127)}
    m = REG_RE.match(tok)
    if not m: return set()
    f = m.group(2)
    if m.group(3) is not None:
        return {(f, int(m.group(3)))}
    return {(f, i) for i in range(int(m.group(4)), int(m.group(5)) + 1)}

def split_ops(s):
    ops = []; depth = 0; cur = ''
    for ch in s:
        if ch in '[(': depth += 1
        if ch in '])': depth -= 1
        if ch == ',' and depth == 0:
            ops.append(cur.strip()); cur = ''
        else:
            cur += ch
    if cur.strip(): ops.append(cur.strip())
    return ops

class Ins:
    __slots__ = ('text', 'mn', 'ops', 'mods', 'dst', 'src', 'kind', 'tag', 'optional', 'passes', 'A', 'B', 'C', 'label')
    def __init__(self, text, tag=None, optional=False):
        self.text = text; self.tag = tag; self.optional = optional
        self.label = None; self.passes = 0
        self.A = self.B = self.C = set()
        t = text.split(';')[0].strip()
        if t.endswith(':') or t.startswith('.') or not t:
            self.mn = ''; self.kind = 'label' if t.endswith(':') else 'dir'
            self.label = t[:-1] if t.endswith(':') else None
            self.dst = set(); self.src = set(); self.ops = []; self.mods = []
            return
        parts = t.split(None, 1)
        self.mn = mn = parts[0]
        rest = parts[1] if len(parts) > 1 else ''
        ops = split_ops(rest)
        mods = []
        if ops:
            last = ops[-1]
            toks = re.findall(r'(?:[^\s\[\(]|\[[^\]]*\]|\([^\)]*\))+', last)
            ops[-1] = toks[0]; mods = toks[1:]
        self.ops = ops; self.mods = mods
        R = [regs_of(o) for o in ops]
        allr = set().union(*R) if R else set()
        dst = set(); src = set()
        if mn.startswith('v_mfma'):
            self.kind = 'mfma'
            dst = R[0]; self.A, self.B, self.C = R[1], R[2], R[3]; src = R[1] | R[2] | R[3]
            self.passes = 8 if '32x32' in mn else 4
        elif mn.startswith('ds_'):
            self.kind = 'ds'
            if mn.startswith('ds_read') or mn.startswith('ds_bpermute') or mn.startswith('ds_permute') or mn.startswith('ds_swizzle') or '_rtn' in mn:
                dst = R[0]; src = set().union(*R[1:]) if len(R) > 1 else set()
            else:
                src = allr
        elif mn.startswith('buffer_') or mn.startswith('global_'):
            self.kind = 'vmem'
            if mn in ('buffer_wbl2', 'buffer_inv'):
                pass
            elif 'lds' in mods or '_lds_' in mn:
                src = allr | {('s', 124)}; self.kind = 'dma'
            elif '_load' in mn:
                dst = R[0]; src = set().union(*R[1:])
            elif '_atomic' in mn and 'sc0' in mods:
                if mn.startswith('global_'):
                    dst = R[0]; src = set().union(*R[1:])
                else:
                    dst = R[0]; src = allr
            else:
                src = allr
        elif mn.startswith('s_'):
            self.kind = 'salu'
            if mn.startswith('s_load') or mn.startswith('s_memtime') or mn.startswith('s_memrealtime') or mn.startswith('s_buffer_load'):
                self.kind = 'smem'; dst = R[0]; src = set().union(*R[1:]) if len(R) > 1 else set()
            elif mn.startswith('s_cmp') or mn.startswith('s_bitcmp'):
                src = allr
            elif mn in ('s_waitcnt', 's_barrier', 's_nop', 's_setprio', 's_endpgm', 's_sleep', 's_branch') or mn.startswith('s_cbranch'):
                self.kind = 'ctl'
            elif 'saveexec' in mn:
                dst = R[0] | regs_of('exec'); src = R[1] | regs_of('exec')
            else:
                dst = R[0]; src = set().union(*R[1:]) if len(R) > 1 else set()
                if mn in ('s_addk_i32', 's_mulk_i32', 's_cmov_b32'): src |= R[0]
        elif mn.startswith('v_'):
            self.kind = 'valu'
            base = mn.replace('_e32', '').replace('_e64', '').replace('_dpp', '').replace('_sdwa', '')
            if base.startswith('v_cmp'):
                dst = R[0]; src = set().union(*R[1:])
            elif base.startswith('v_permlane') and 'swap' in base:
                dst = allr; src = allr
            elif base in ('v_add_co_u32', 'v_sub_co_u32', 'v_addc_co_u32', 'v_subb_co_u32', 'v_mad_u64_u32', 'v_subrev_co_u32', 'v_subbrev_co_u32'):
                dst = R[0] | R[1]; src = set().union(*R[2:])
            elif base in ('v_fmac_f32', 'v_dot2c_f32_bf16', 'v_writelane_b32'):
                dst = R[0]; src = allr
            else:
                dst = R[0]; src = set().union(*R[1:]) if len(R) > 1 else set()
                if base == 'v_cndmask_b32' and len(ops) == 3: src |= regs_of('vcc')
                if is_dpp(self): src |= R[0]
        else:
            raise ValueError('unknown instr: ' + text)
        self.dst = dst; self.src = src
    def states(self):
        if self.kind in ('label', 'dir'): return 0
        if self.mn == 's_nop': return int(self.ops[0], 0) + 1
        return 1

def is_dpp(i):
    return i.mn.endswith('_dpp') or any(m.startswith(('row_', 'quad_perm', 'wave_')) for m in i.mods)
def vset(s): return {r for r in s if r[0] in 'va'}
def sset(s): return {r for r in s if r[0] == 's'}

def required(p, c):
    need = 0
    base = lambda i: i.mn.replace('_e32', '').replace('_e64', '')
    if p.kind == 'valu':
        vd = vset(p.dst); sd = sset(p.dst)
        isdot = p.mn.startswith('v_dot')
        if c.kind == 'mfma' and vd & c.src: need = max(need, 3 if isdot else 2)
        if c.kind == 'valu':
            if base(p) in TRANS and base(c) not in TRANS and vd & c.src: need = max(need, 1)
            if c.mn.startswith('v_permlane') and vd & c.src: need = max(need, 2)
            if c.mn.startswith(('v_readfirstlane', 'v_readlane')) and vd & c.src: need = max(need, 1)
            if is_dpp(c) and vd & c.src: need = max(need, 2)
            if sd & c.src:
                need = max(need, 4 if c.mn.startswith(('v_readlane', 'v_writelane')) else 2)
            if isdot and vd & (c.src | c.dst):
                if base(c) == base(p):
                    ab = regs_of(c.ops[1]) | regs_of(c.ops[2])
                    if vd & ab: need = max(need, 3)
                else: need = max(need, 3)
        if isdot and c.kind in ('vmem', 'ds', 'dma') and vd & c.src: need = max(need, 3)
        if c.kind in ('vmem', 'dma') and sd & c.src: need = max(need, 5)
        if c.kind in ('salu',) and sd & c.src: need = max(need, 1)
    if p.kind == 'mfma':
        big = 12 if p.passes == 8 else 8
        if c.kind == 'valu' and p.dst & (c.src | c.dst): need = max(need, big)
        if c.kind in ('vmem', 'ds', 'dma') and p.dst & (c.src | c.dst): need = max(need, big)
        if c.kind == 'mfma':
            if p.dst & (c.A | c.B): need = max(need, big)
            if p.dst & c.C:
                if not (p.dst == c.C and p.passes == c.passes): need = max(need, 10 if p.passes == 8 else 6)
            elif p.dst & c.dst and p.passes != c.passes: need = max(need, big)
        if c.kind == 'valu' and p.C & c.dst: need = max(need, 7 if p.passes == 8 else 3)
    if p.kind == 'salu' and ('s', 124) in p.dst and c.kind == 'dma': need = max(need, 1)
    if p.kind == 'vmem' and ('store' in p.mn) and (p.mn.endswith('x4') or p.mn.endswith('x3')):
        data = regs_of(p.ops[0]) if p.mn.startswith('buffer') else regs_of(p.ops[1])
        if data & c.dst: need = max(need, 2 if c.kind in ('valu', 'mfma') else 1)
    return need

class Prog:
    def __init__(self):
        self.ins = []
        self.lg = []
        self.vm = []
        self.auto = True
        self.nops_added = 0
    def raw(self, text, **kw):
        i = Ins(text, **kw); self.ins.append(i); return i
    def label(self, l): self.raw(l + ':')
    def c(self, text): self.raw('; ' + text)
    def _wait(self, vm=None, lg=None):
        parts = []
        if vm is not None: parts.append(f'vmcnt({min(vm, 63)})')
        if lg is not None: parts.append(f'lgkmcnt({min(lg, 15)})')
        self.e('s_waitcnt ' + ' '.join(parts))
    def _younger(self, lst, idx):
        return sum(1 for j in lst[idx + 1:] if not j.optional)
    def e(self, text, tag=None, optional=False):
        i = Ins(text, tag=tag, optional=optional)
        if i.mn == 's_waitcnt':
            m = re.search(r'vmcnt\((\d+)\)', text)
            if m: self._retire(self.vm, int(m.group(1)))
            m = re.search(r'lgkmcnt\((\d+)\)', text)
            if m: self._retire(self.lg, int(m.group(1)))
            self.ins.append(i); return i
        if self.auto:
            touch = i.src | i.dst
            lgn = vmn = None
            for k in range(len(self.lg) - 1, -1, -1):
                if self.lg[k].dst & touch:
                    lgn = 0 if any(j.kind == 'smem' for j in self.lg) else self._younger(self.lg, k); break
            for k in range(len(self.vm) - 1, -1, -1):
                if self.vm[k].dst & touch:
                    vmn = self._younger(self.vm, k); break
            if lgn is not None or vmn is not None: self._wait(vmn, lgn)
        self.ins.append(i)
        if i.kind in ('ds', 'smem'): self.lg.append(i)
        if i.kind in ('vmem', 'dma'): self.vm.append(i)
        return i
    def _retire(self, lst, n):
        keep = []; cnt = 0
        for j in reversed(lst):
            if cnt >= n: break
            keep.append(j)
            if not j.optional: cnt += 1
        lst[:] = list(reversed(keep))
    def vm_need(self, tags):
        for k in range(len(self.vm) - 1, -1, -1):
            if self.vm[k].tag in tags: return self._younger(self.vm, k)
        return None
    def wait_lg(self, tags):
        for k in range(len(self.lg) - 1, -1, -1):
            if self.lg[k].tag in tags:
                n = 0 if any(j.kind == 'smem' for j in self.lg) else self._younger(self.lg, k)
                self._wait(None, n); return True
        return False
    def wait(self, vmtags=(), lg0=False):
        vmn = self.vm_need(set(vmtags))
        lgn = 0 if (lg0 and self.lg) else None
        if vmn is not None or lgn is not None: self._wait(vmn, lgn)
    def reset_tracking(self): self.lg = []; self.vm = []
    def fix_hazards(self, verbose=False):
        out = []
        for i in self.ins:
            if i.kind not in ('label', 'dir'):
                need = self._need(out, i)
                if need > 0:
                    if verbose: print(f'nop {need} before: {i.text}')
                    self.nops_added += need
                    while need > 0:
                        n = min(need, 16); out.append(Ins(f's_nop {n - 1}')); need -= n
            out.append(i)
        self.ins = out
        self._check_branches()
    @staticmethod
    def _need(prev, c):
        dist = 0; need = 0
        for p in reversed(prev):
            if p.kind in ('label', 'dir'): continue
            if p.mn in ('s_branch', 's_endpgm'): break
            r = required(p, c)
            if r > dist: need = max(need, r - dist)
            dist += p.states()
            if dist >= 20: break
        return need
    def _check_branches(self):
        pos = {i.label: k for k, i in enumerate(self.ins) if i.kind == 'label'}
        for k, i in enumerate(self.ins):
            if i.mn == 's_branch' or i.mn.startswith('s_cbranch'):
                tgt = pos[i.ops[0]]
                seq = [x for x in self.ins[max(0, k - 40):k] if x.kind not in ('label', 'dir')]
                for q in range(len(seq) - 1, -1, -1):
                    if seq[q].mn in ('s_branch', 's_endpgm'): seq = seq[q + 1:]; break
                seq.append(Ins('s_nop 0'))
                n = 0
                for c in self.ins[tgt:tgt + 40]:
                    if c.kind in ('label', 'dir'): continue
                    need = self._need(seq, c)
                    if need > 0: raise RuntimeError(f'hazard across branch {i.text}: {c.text} needs {need} more')
                    if c.mn in ('s_branch', 's_endpgm'): break
                    seq.append(c); n += c.states()
                    if n >= 20: break
    def text(self):
        return '\n'.join((i.text if i.kind in ('label', 'dir') and not i.text.startswith(';') else '  ' + i.text) for i in self.ins) + '\n'

def v(a, n=1): return f'v{a}' if n == 1 else f'v[{a}:{a + n - 1}]'
def s(a, n=1): return f's{a}' if n == 1 else f's[{a}:{a + n - 1}]'
import struct
def f2u(x): return '0x%08x' % struct.unpack('<I', struct.pack('<f', x))[0]

def sizes_of(ins):
    import subprocess, tempfile, os
    txt = '.amdgcn_target "amdgcn-amd-amdhsa--gfx950"\n.text\n' + '\n'.join(i.text for i in ins if i.kind != 'dir') + '\n'
    d = tempfile.mkdtemp(); s_ = os.path.join(d, 'a.s'); o_ = os.path.join(d, 'a.o')
    open(s_, 'w').write(txt)
    subprocess.run(['clang', '-x', 'assembler', '-target', 'amdgcn-amd-amdhsa', '-mcpu=gfx950', '-c', s_, '-o', o_], check=True)
    out = subprocess.run(['llvm-objdump', '-d', '--mcpu=gfx950', o_], capture_output=True, text=True).stdout
    sz = [4 * len(l.split('//')[1].split(':')[1].split()) for l in out.split('\n') if '//' in l and l.startswith('\t')]
    real = [i for i in ins if i.kind not in ('label', 'dir')]
    assert len(sz) == len(real), (len(sz), len(real))
    return dict(zip(map(id, real), sz))

NOPROMO = ('v_readfirstlane', 'v_permlane', 'v_dot2c', 'v_accvgpr', 'v_nop', 'v_fmaak', 'v_fmamk')
def align8(prog, maxspan=3):
    sz = sizes_of(prog.ins)
    real = [i for i in prog.ins if i.kind not in ('label', 'dir')]
    def promo(i): return i.kind == 'valu' and sz[id(i)] == 4 and not i.mn.startswith(NOPROMO) and not i.mn.endswith(('_e32', '_e64', '_dpp'))
    off = 0; k = 0; n = len(real); mis = 0; prom = 0; pads = set()
    while k < n:
        if sz[id(real[k])] != 4:
            if off % 8: mis += 1
            off += sz[id(real[k])]; k += 1; continue
        j = k
        while j < n and sz[id(real[j])] == 4: j += 1
        run = real[k:j]
        if (off + 4 * len(run)) % 8:
            c = [t for t, i in enumerate(run) if promo(i) and (off + 4 * t) % 8 == 0]
            if not c: c = [t for t, i in enumerate(run) if promo(i)]
            if c:
                i = run[c[-1]]; i.text = i.text.replace(i.mn, i.mn + '_e64', 1); off += 4; prom += 1
            else:
                m = j
                while m < n and sz[id(real[m])] != 4: m += 1
                if m - j > maxspan:
                    pads.add(id(run[0])); off += 4
        off += 4 * len(run); k = j
    out = []
    for i in prog.ins:
        if id(i) in pads: out.append(Ins('s_nop 0'))
        out.append(i)
    prog.ins = out
    return prom, mis, len(pads)

def insert_pads(prog, start_label, end_label, nchain, back):
    sz = sizes_of(prog.ins)
    out = []; off = None; pads = []; nxt = 0
    for i in prog.ins:
        if i.kind == 'label' and i.label == start_label: off = 0
        if i.kind == 'label' and i.label == end_label: off = None
        if off is not None and i.kind not in ('label', 'dir'):
            prevk = out[-1].mn if out else ''
            if off >= nxt and (off >= nxt + 40 or prevk.startswith('v_mfma') or nxt == 0):
                out.append(Ins(f'PAD{len(pads)}:')); b = Ins('s_cbranch_execz X'); out.append(b); pads.append(b); off += 4; nxt += 4096
            off += sz[id(i)]
        out.append(i)
    for n, b in enumerate(pads):
        t = f'PAD{n + nchain}' if n + nchain < len(pads) else back
        b.text = f's_cbranch_execz {t}'; b.ops = [t]
    prog.ins = out
    return len(pads)
```

```python
from common import *
from ffn import KVG, KVB, sW, sT0, sT1, sT2, SRD_WS, SRD_X

sRG, sHH, sCnt = 4, 5, 13
SRD_GW, SRD_OUT = 48, 52
vAK, vAV, vT = 1, 2, 4
QM = 12
QX = 20
PP = 36
SA, SB, OA, OB = 48, 64, 80, 96
KM, VV, KX = 112, 120, 136
CN = 144

def mf32(D, A, B, C): return f'v_mfma_f32_32x32x16_bf16 v[{D}:{D+15}], v[{A}:{A+3}], v[{B}:{B+3}], {C}'
def mf8(D, A, B, C): return f'v_mfma_f32_32x32x8_bf16 v[{D}:{D+15}], v[{A}:{A+1}], v[{B}:{B+1}], {C}'
def mf16(D, A, B, C): return f'v_mfma_f32_16x16x32_bf16 v[{D}:{D+3}], {A}, {B}, {C}'
def vr(a): return f'v[{a}:{a+15}]'

def att_ids(p):
    e = p.e
    e(f's_lshr_b32 s{sRG}, s2, 4'); e(f's_lshl_b32 s{sRG}, s{sRG}, 3')
    e(f's_and_b32 s{sT0}, s2, 7'); e(f's_add_u32 s{sRG}, s{sRG}, s{sT0}')
    e(f's_bfe_u32 s{sHH}, s2, 0x10003')

def att_addrs(p, cfg):
    e = p.e
    e(f'v_lshlrev_b32 v{vAK}, 4, v0')
    e(f'v_and_b32 v{vT}, 31, v0')
    if cfg.get('vzero', 1): e(f'v_mov_b32 v{vT+1}, 0x10000')
    else: e(f'v_subrev_u32 v{vT+1}, 16, v{vT}')
    e(f'v_cmp_lt_u32 vcc, 18, v{vT}')
    e(f'v_lshrrev_b32 v{vT+2}, 5, v0')
    e(f'v_mul_u32_u24 v{vT+2}, 304, v{vT+2}')
    e(f'v_cndmask_b32 v{vT}, v{vT}, v{vT+1}, vcc')
    e(f'v_lshl_add_u32 v{vAV}, v{vT}, 4, v{vT+2}')

def q_loads(p, fl=''):
    e = p.e; WSr = f's[{SRD_WS}:{SRD_WS+3}]'
    e(f's_lshl_b32 s{sT0}, s{sHH}, 4'); e(f's_lshl_b32 s{sT1}, s{sW}, 2'); e(f's_add_u32 s{sT0}, s{sT0}, s{sT1}')
    e(f's_lshl_b32 s{sT0}, s{sT0}, 11'); e(f's_lshl_b32 s{sT1}, s{sRG}, 4'); e(f's_add_u32 s{sT0}, s{sT0}, s{sT1}')
    e(f'v_bfe_u32 v{vT+3}, v0, 4, 1'); e(f'v_and_b32 v{vT+4}, 15, v0'); e(f'v_lshl_add_u32 v{vT+3}, v{vT+3}, 11, v{vT+4}')
    e(f'v_lshrrev_b32 v{vT+4}, 5, v0'); e(f'v_lshlrev_b32 v{vT+5}, 5, v{vT+3}'); e(f'v_lshl_add_u32 v{vT+5}, v{vT+4}, 4, v{vT+5}')
    e(f'v_lshlrev_b32 v{vT+3}, 2, v{vT+3}')
    e(f's_lshl_b32 s{sT1}, s{sT0}, 5'); e(f's_add_u32 s{sT1}, s{sT1}, {WS_QM}'); e(f's_add_u32 s{sT2}, s{sT1}, {2 * 65536}')
    e(f'buffer_load_dwordx4 v[{QM}:{QM+3}], v{vT+5}, {WSr}, s{sT1} offen {fl}')
    e(f'buffer_load_dwordx4 v[{QM+4}:{QM+7}], v{vT+5}, {WSr}, s{sT2} offen {fl}')
    e(f's_lshl_b32 s{sT1}, s{sT0}, 2'); e(f's_add_u32 s{sT1}, s{sT1}, {WS_QX}'); e(f's_add_u32 s{sT2}, s{sT1}, {2 * 8192}')
    e(f'buffer_load_dword v{vT+6}, v{vT+3}, {WSr}, s{sT1} offen {fl}')
    e(f'buffer_load_dword v{vT+7}, v{vT+3}, {WSr}, s{sT2} offen {fl}')

def q_variants(p):
    e = p.e
    e('v_cmp_gt_u32 vcc, 32, v0')
    for t in range(2):
        b = QX + 8 * t
        for r in (1, 2, 5, 6): e(f'v_mov_b32 v{b+r}, 0')
        e(f'v_cndmask_b32 v{b}, 0, v{vT+6+t}, vcc'); e(f'v_cndmask_b32 v{b+3}, 0, v{vT+6+t}, vcc')
        e(f'v_cndmask_b32_e64 v{b+4}, v{vT+6+t}, 0, vcc'); e(f'v_cndmask_b32_e64 v{b+7}, v{vT+6+t}, 0, vcc')

def boff(b): return (b >> 3) * KVG + 1024 + (b & 7) * KVB
def rdKM(b, base=0): return f'ds_read_b128 v[{KM+4*(b&1)}:{KM+4*(b&1)+3}], v{vAK} offset:{boff(b) - base}'
def rdV(b, i, base=0): return f'ds_read_b128 v[{VV+8*(b&1)+4*i}:{VV+8*(b&1)+4*i+3}], v{vAV} offset:{boff(b) + 1024 + 608 * i - base}'
def rdKX(g, base=0): return f'ds_read_b128 v[{KX+4*(g&1)}:{KX+4*(g&1)+3}], v{vAK} offset:{g * KVG - base}'
def qkx(b, t, D, C='0'):
    return mf8(D, KX + 4 * ((b >> 3) & 1) + 2 * ((b >> 1) & 1), QX + 8 * t + 4 * ((b >> 2) & 1) + 2 * (b & 1), C)

def half_step(p, b, t, base, cfg, extra=None, line=False):
    e = p.e
    cur, nxt = (SA, SB) if t == 0 else (SB, SA)
    Oc, Op_ = (OA, OB) if t == 0 else (OB, OA)
    nb, nt = (b, 1) if t == 0 else (b + 1, 0)
    pb = b - 1 if t == 0 else b
    pat = cfg.get('apat', 'E0 E1 PB r0 E2 E3 C0 C1 E4 w QX x0 E5 E6 E7 y0 C2 C3 E8 QM r1 E9 E10 E11 y1 C4 C5 E12 PA x1 E13 E14 E15 C6 C7')
    for tk in pat.split():
        if tk[0] == 'E': i = int(tk[1:]); e(f'v_exp_f32 v{cur+i}, v{cur+i}')
        elif tk[0] == 'C': i = int(tk[1:]); e(f'v_cvt_pk_bf16_f32 v{PP+i}, v{cur+2*i}, v{cur+2*i+1}')
        elif tk == 'PB':
            if not (line and pb < 0): e(mf32(Op_, VV + 8 * (pb & 1) + 4, PP + 4, vr(Op_)))
        elif tk == 'PA': e(mf32(Oc, VV + 8 * (b & 1), PP, '0' if (line and b == 0) else vr(Oc)))
        elif line and nb > 63 and tk in ('QX', 'QM', 'w'): pass
        elif line and b == 63 and tk[0] == 'r': pass
        elif tk == 'rK':
            if t == 0: e(rdKM(b + 1, base))
        elif tk == 'rA':
            if t == 0: e(rdV(b + 1, 0, base))
        elif tk == 'rB':
            if t == 0:
                e(rdV(b + 1, 1, base))
                if b % 8 == 3 and not (line and b > 56): e(rdKX((b >> 3) + 1, base))
        elif tk == 'QX': e(qkx(nb, nt, nxt))
        elif tk == 'QM': e(mf32(nxt, KM + 4 * (nb & 1), QM + 4 * nt, vr(nxt)))
        elif tk == 'w':
            if t == 1: e('s_waitcnt lgkmcnt(0)')
        elif tk == 'r0':
            if t == 0: e(rdKM(b + 1, base)); e(rdV(b + 1, 0, base))
        elif tk == 'r1':
            if t == 0:
                e(rdV(b + 1, 1, base))
                if b % 8 == 3 and not (line and b > 56): e(rdKX((b >> 3) + 1, base))
        elif tk[0] in 'xy':
            if extra: extra(2 * b + t, tk)
        else: raise ValueError(tk)

def att_pre(p):
    e = p.e
    e(rdKX(0)); e(rdKM(0)); e(rdV(0, 0)); e(rdV(0, 1))
    for i in range(16): e(f'v_mov_b32 v{OA+i}, 0'); e(f'v_mov_b32 v{OB+i}, 0')
    for i in range(4): e(f'v_mov_b32 v{PP+4+i}, 0'); e(f'v_mov_b32 v{VV+12+i}, 0')
    e('s_waitcnt lgkmcnt(0)')
    e(qkx(0, 0, SA)); e(mf32(SA, KM, QM, vr(SA)))

def att_loop(p, L, cfg):
    e = p.e
    att_pre(p)
    e(f's_mov_b32 s{sCnt}, 4')
    e('s_nop 9')
    p.raw('.p2align 6'); p.label(f'{L}_loop')
    for b in range(16):
        for t in range(2): half_step(p, b, t, 0, cfg)
    for a in (vAK, vAV): e(f'v_add_u32 v{a}, {2 * KVG}, v{a}')
    e(f's_sub_u32 s{sCnt}, s{sCnt}, 1'); e(f's_cmp_lg_u32 s{sCnt}, 0'); e(f's_cbranch_scc1 {L}_loop')
    e(mf32(OB, VV + 12, PP + 4, vr(OB)))

def att_check(p, L, cfg, part=None):
    e = p.e
    def getl():
        for t, O in ((0, OA), (1, OB)):
            e(f'v_mov_b32 v{vT+2*t}, v{O+10}'); e(f'v_mov_b32 v{vT+2*t+1}, v{O+10}')
        for t in range(2): e(f'v_permlane32_swap_b32 v{vT+2*t}, v{vT+2*t+1}')
    M = 96
    if part == 'fallback':
        p.label(f'{L}_fb'); fallback(p, L, cfg); getl(); e(f's_branch {L}_ok'); return
    getl()
    lo, hi = int(f2u(2.0 ** -30), 16), int(f2u(2.0 ** 40), 16)
    e(f'v_subrev_u32 v{vT+1}, {lo}, v{vT}'); e(f'v_subrev_u32 v{vT+3}, {lo}, v{vT+2}'); e(f'v_max_u32 v{vT+1}, v{vT+1}, v{vT+3}')
    e(f'v_cmp_lt_u32 vcc, {hi - lo}, v{vT+1}'); e('s_cmp_lg_u64 vcc, 0')
    if part == 'test':
        e(f's_cbranch_scc1 {L}_fb'); p.label(f'{L}_ok'); return
    e(f's_cbranch_scc0 {L}_ok')
    fallback(p, L, cfg)
    getl()
    p.label(f'{L}_ok')

def fallback(p, L, cfg):
    e = p.e
    mx = vT + 4
    for t, O in ((0, OA), (1, OB)):
        att_addrs(p, cfg)
        e(f'v_mov_b32 v{mx}, 0xff800000'); e(f's_mov_b32 s{sCnt}, 8')
        p.label(f'{L}_f1{t}')
        e(rdKX(0))
        for b in range(8):
            e(rdKM(b)); e('s_waitcnt lgkmcnt(0)')
            e(qkx(b, t, SA)); e(mf32(SA, KM + 4 * (b & 1), QM + 4 * t, vr(SA)))
            for i in range(0, 16, 2): e(f'v_max3_f32 v{mx}, v{SA+i}, v{SA+i+1}, v{mx}')
        e(f'v_add_u32 v{vAK}, {KVG}, v{vAK}')
        e(f's_sub_u32 s{sCnt}, s{sCnt}, 1'); e(f's_cmp_lg_u32 s{sCnt}, 0'); e(f's_cbranch_scc1 {L}_f1{t}')
        e(f'v_mov_b32 v{mx+1}, v{mx}'); e(f'v_permlane32_swap_b32 v{mx}, v{mx+1}'); e(f'v_max_f32 v{mx}, v{mx}, v{mx+1}')
        att_addrs(p, cfg)
        for i in range(16): e(f'v_sub_f32 v{SB+i}, 0, v{mx}'); e(f'v_mov_b32 v{O+i}, 0')
        e(f's_mov_b32 s{sCnt}, 8')
        p.label(f'{L}_f2{t}')
        e(rdKX(0))
        for b in range(8):
            e(rdKM(b)); e(rdV(b, 0)); e(rdV(b, 1)); e('s_waitcnt lgkmcnt(0)')
            e(qkx(b, t, SA, vr(SB))); e(mf32(SA, KM + 4 * (b & 1), QM + 4 * t, vr(SA)))
            for i in range(16): e(f'v_exp_f32 v{SA+i}, v{SA+i}')
            for i in range(8): e(f'v_cvt_pk_bf16_f32 v{PP+i}, v{SA+2*i}, v{SA+2*i+1}')
            e(mf32(O, VV + 8 * (b & 1), PP, vr(O))); e(mf32(O, VV + 8 * (b & 1) + 4, PP + 4, vr(O)))
        for a in (vAK, vAV): e(f'v_add_u32 v{a}, {KVG}, v{a}')
        e(f's_sub_u32 s{sCnt}, s{sCnt}, 1'); e(f's_cmp_lg_u32 s{sCnt}, 0'); e(f's_cbranch_scc1 {L}_f2{t}')

def o_pack(p):
    e = p.e
    e(f'v_rcp_f32 v{vT}, v{vT}'); e(f'v_rcp_f32 v{vT+2}, v{vT+2}')
    for t, O in ((0, OA), (1, OB)):
        for i in range(10): e(f'v_mul_f32 v{O+i}, v{O+i}, v{vT+2*t}')
        for i in range(5): e(f'v_cvt_pk_bf16_f32 v{O+i}, v{O+2*i}, v{O+2*i+1}')

def gen_k2(p, cfg, pf):
    e = p.e
    load_ptrs(p)
    e('v_lshrrev_b32 v1, 6, v0'); e('v_and_b32 v0, 63, v0'); e(f'v_readfirstlane_b32 s{sW}, v1')
    att_ids(p)
    e('s_waitcnt lgkmcnt(0)')
    srd(p, SRD_WS, P_WS, WS_END)
    WSr = f's[{SRD_WS}:{SRD_WS+3}]'
    e(f'v_lshlrev_b32 v{vAK}, 4, v0')
    e(f's_lshl_b32 s{sT0}, s{sW}, 12')
    for i in range(10):
        e(f's_add_u32 m0, s{sT0}, {16384 * i}')
        e(f's_add_u32 s{sT1}, s{sT0}, {WS_KV + 16384 * i}')
        for q in range(4): e(f'buffer_load_dwordx4 v{vAK}, {WSr}, s{sT1} offen offset:{1024 * q} lds')
    q_loads(p); q_variants(p); att_addrs(p, cfg)
    e('s_waitcnt vmcnt(0)'); e('s_barrier')
    pf.stamp(0)
    p.auto = False
    att_loop(p, 'K2', cfg)
    p.auto = True; p.lg = []
    pf.stamp(1)
    att_check(p, 'K2', cfg)
    o_pack(p)
    e(f's_lshl_b32 s{sT0}, s{sRG}, 1'); e(f's_add_u32 s{sT0}, s{sT0}, s{sHH}'); e(f's_mul_i32 s{sT0}, s{sT0}, 9216'); e(f's_add_u32 s{sT0}, s{sT0}, {WS_O}')
    e(f's_lshl_b32 s{sT1}, s{sW}, 11'); e(f's_add_u32 s{sT1}, s{sT1}, s{sT0}')
    e(f'v_lshlrev_b32 v{vT}, 4, v0')
    e(f'buffer_store_dwordx4 v[{OA}:{OA+3}], v{vT}, {WSr}, s{sT1} offen')
    e(f'buffer_store_dwordx4 v[{OB}:{OB+3}], v{vT}, {WSr}, s{sT1} offen offset:1024')
    e(f's_lshl_b32 s{sT1}, s{sW}, 8'); e(f's_add_u32 s{sT1}, s{sT1}, s{sT0}'); e(f's_add_u32 s{sT1}, s{sT1}, 8192')
    e(f'v_and_b32 v{vT}, 15, v0'); e(f'v_lshlrev_b32 v{vT}, 4, v{vT}')
    e(f'v_bfe_u32 v{vT+1}, v0, 4, 1'); e(f'v_lshl_add_u32 v{vT}, v{vT+1}, 2, v{vT}')
    e(f'v_lshrrev_b32 v{vT+1}, 5, v0'); e(f'v_lshl_add_u32 v{vT}, v{vT+1}, 30, v{vT}')
    e(f'buffer_store_dword v{OA+4}, v{vT}, {WSr}, s{sT1} offen')
    e(f'buffer_store_dword v{OB+4}, v{vT}, {WSr}, s{sT1} offen offset:8')
```

```python
from asmlib import *
import math
NAME = 'gated_mix__grouped_kv_mqa__glu_gated_geglu__prompt'
WS_P   = 0
WS_KV  = 0x2400000
KVBLK  = 2368
WS_WO  = WS_KV + 0x28000
WS_QM  = WS_KV + 0x100000
WS_QX  = WS_QM + 0x200000
WS_O   = WS_QX + 0x40000
OD = 0x240000
WS_FL  = WS_O + 2 * OD
WS_G = WS_FL + 0x8000
WS_PROF = WS_FL + 0x10000
WS_END = WS_PROF + 0x100000
OOB = 0x40000000
QSCALE = math.log2(math.e) / math.sqrt(18.0)
GC0 = -2.0 * math.log2(math.e) * math.sqrt(2.0 / math.pi)
GC1 = GC0 * 0.044715

P_X, P_WQ, P_WK, P_WV, P_WO, P_BX, P_WG, P_WU = 16, 18, 20, 22, 24, 26, 28, 30
P_WD, P_GW, P_OUT, P_DBG, P_WS = 32, 34, 36, 38, 40

def load_ptrs(p):
    p.e('s_load_dwordx16 s[16:31], s[0:1], 0')
    p.e('s_load_dwordx8 s[32:39], s[0:1], 64')
    p.e('s_load_dwordx2 s[40:41], s[0:1], 96')

def srd(p, d, ptr, nbytes):
    p.e(f's_mov_b32 s{d}, s{ptr}')
    p.e(f's_and_b32 s{d+1}, s{ptr+1}, 0xffff')
    p.e(f's_mov_b32 s{d+2}, {nbytes}')
    p.e(f's_mov_b32 s{d+3}, 0x20000')

def kernel_header(p, name):
    p.raw('.p2align 8')
    p.raw(f'.globl {name}')
    p.raw(f'.type {name},@function')
    p.label(name)

def descriptor(name, vgpr=256, sgpr=102, acc=None):
    return f'''.p2align 6
.amdhsa_kernel {name}
  .amdhsa_next_free_vgpr {vgpr}
  .amdhsa_next_free_sgpr {sgpr}
  .amdhsa_accum_offset {acc or ((vgpr + 3) // 4) * 4}
  .amdhsa_group_segment_fixed_size 0
  .amdhsa_kernarg_size 104
  .amdhsa_user_sgpr_count 2
  .amdhsa_user_sgpr_kernarg_segment_ptr 1
  .amdhsa_system_sgpr_workgroup_id_x 1
.end_amdhsa_kernel
'''

class Prof:
    def __init__(self, p, on, va=254, sa=94):
        self.p, self.on, self.va, self.sa = p, on, va, sa
        self.names = {}
    def start(self, real=False):
        if self.on: self.p.e(f"s_mem{'real' if real or self.on == 'real' else ''}time s[{self.sa}:{self.sa+1}]")
    def save(self, idx, name=None):
        if self.on:
            self.p.e(f'v_writelane_b32 v{self.va + idx // 64}, s{self.sa}, {idx % 64}')
            self.names[idx] = name
    def stamp(self, idx, name=None, real=False):
        self.start(real); self.save(idx, name)
    def dump(self, srd, sw, slot=0):
        if not self.on: return
        e = self.p.e; a = self.sa
        e(f's_lshl_b32 s{a}, s2, 3'); e(f's_add_u32 s{a}, s{a}, s{sw}'); e(f's_lshl_b32 s{a}, s{a}, 9')
        e(f's_add_u32 s{a}, s{a}, {WS_PROF}')
        e(f'v_lshlrev_b32 v1, 2, v0')
        e(f'buffer_store_dword v{self.va}, v1, s[{srd}:{srd+3}], s{a} offen')
        e(f'buffer_store_dword v{self.va+1}, v1, s[{srd}:{srd+3}], s{a} offen offset:256')

class Op:
    def __init__(self, text, cost=None, deps=(), start=0, end=10**9, tag=None, same=None, res=None, rel=None, lds=False, prio=None):
        self.text = text; self.deps = list(deps); self.start = start; self.end = end; self.tag = tag
        self.gap = None; self.res = res; self.rel = rel; self.same = list(same or [])
        if cost is None: cost = 2 if (isinstance(text, str) and text.split()[0] in TRANS) else 1
        self.cost = cost; self.lds = lds; self.prio = end if prio is None else prio

class Sched:
    def __init__(self, ngaps, cap):
        self.n = ngaps; self.cap = cap
        self.fixed = [[] for _ in range(ngaps + 1)]
        self.ops = []; self.temps = []
        self.nolds = lambda g: False
    def fix(self, g, item, cost=1, tag=None): self.fixed[g].append((cost, item, tag))
    capf = None
    def free(self, g): return max(0, (self.capf(g) if self.capf else self.cap) - sum(c for c, _, _ in self.fixed[g]))
    def add(self, op): self.ops.append(op); return op
    def chain(self, texts, start, end, deps=(), tight=True):
        prev = None; out = []
        for i_, t in enumerate(texts):
            left = len(texts) - 1 - i_
            en = end - (left // 3 if tight else (left * 17) // 16)
            op = Op(t, start=start, end=max(en, min(end, start + 1)), lds=isinstance(t, str) and t.startswith('ds_'))
            if prev is None: op.deps = list(deps)
            elif tight: op.same = [prev]
            else: op.deps = [prev]
            self.add(op); out.append(op); prev = op
        return out
    def run(self):
        n = self.n
        fr = [self.free(g) for g in range(n + 1)]
        pre = [0] * (n + 2)
        for g in range(n + 1): pre[g + 1] = pre[g] + fr[g]
        placed = [[] for _ in range(n + 1)]
        pend = sorted(self.ops, key=lambda o: (o.end, o.start))
        over = 0
        for g in range(n + 1):
            if not pend: break
            cap = fr[g]
            excl = any(c >= 99 for c, _, _ in self.fixed[g])
            if excl: continue
            need = 0; behind = 0
            horizon = max([o.end for o in pend if o.start <= g] + [g])
            horizon = max([o.end for o in pend if o.start < horizon and o.end <= horizon + 40] + [horizon])
            for i, o in enumerate(pend):
                if o.end > horizon: break
                need += o.cost
                if i + 1 == len(pend) or pend[i + 1].end != o.end:
                    d = min(o.end, n + 1)
                    avail = (pre[max(d - 2, g)] - pre[g]) * 0.99
                    if need > avail: behind = max(behind, 1 + int((need - avail) / max(1, d - 2 - g)))
            if g == n: behind = 10**6
            cap += behind
            used = 0
            while True:
                best = None
                for o in pend:
                    if o.start > g: continue
                    if o.cost > cap - used and o.end - g > 3: continue
                    if o.lds and self.nolds(g): continue
                    if getattr(o, 'after', None) and o.after[0].gap is not None and g < o.after[0].gap + o.after[1] and o.end - g > 2: continue
                    if getattr(o, 'okg', None) and g % 32 not in o.okg and o.end - g > 8: continue
                    if any(d.gap is None or (d.gap >= g and g != n) for d in o.deps): continue
                    if any(d.gap is None for d in o.same): continue
                    if o.res is not None and not self.temps: continue
                    urgent = o.end - g < 6
                    key = (0 if urgent else 1, -o.cost, o.prio)
                    if best is None or key < best[0]: best = (key, o)
                if best is None: break
                o = best[1]
                if o.res is not None: o.res.append(self.temps.pop(0))
                o.gap = g; used += o.cost; pend.remove(o); placed[g].append(o)
                assert g < o.end or g == n, ('deadline missed', g, o.end, o.text if isinstance(o.text, str) else o.text())
                if o.rel is not None: self.temps.append(o.rel[0])
            over += max(0, used - fr[g]) if g < n else 0
        assert not pend, [o.text for o in pend[:5]]
        self.placed = placed; self.over = over
        return placed
```

```python
from common import *

KVG, KVB = 18944, 2240
sW, sM_, sS = 3, 4, 5
sA, sA4, sX, sMb = 6, 7, 8, 9
sT0, sT1, sT2 = 10, 11, 12
sFs, sHd, sK32 = 13, 14, 15
SRD_X, SRD_WG, SRD_WU, SRD_W4, SRD_WD, SRD_WS, SRD_WO = 44, 48, 52, 56, 60, 64, 68
sHF = 72
sP, sQm, sQx, sKV, sKX = 74, 75, 76, 77, 78
sWoD = 79
sWoJ = 80
sso, sso2, sK4, sPo, sQs = 88, 89, 90, 91, 92
vOffW, vOffD, vOffX = 1, 5, 9
vRd = 13
vH, vC1, vL16, vT = 19, 20, 21, 22
XA, XAT = 24, 28
AB = 32
G0, G1, UU = 64, 96, 128
GT = 160; NGT = 12
XV = 172
vB1, vB2, vSel, vSt1, vSt2, vAd = 204, 206, 208, 211, 212, 214
vDo, vTa, vTx, vHs, vXw, vXr, vHw, vH2 = 22, 23, 222, 223, 224, 225, 236, 237
X3 = 204
vDl, sDl = 218, 100
vPW, vPQ, vPD, vDum = 250, 251, 252, 253
sFp, sPC, sTc = 93, 98, 90
vWo = 226
NPL = 10
NQ = 2088

def xf(k, rt, n=4, o=0):
    i = (k * 4 + rt) * 4 + o
    if k < 16: return f'a[{i}:{i+n-1}]'
    i = XV + i - 256
    return f'v[{i}:{i+n-1}]'

def gen_ffn(p, cfg, pf):
    DMAX = cfg.get('dmax', 7)
    stf = cfg.get('stflags', '')
    kS = cfg.get('kS', 2); ND = cfg.get('nd', 3)
    rho = {k: k - (k > kS) for k in range(5) if k != kS}
    seqB = [(j, c) for j in range(ND) for c in (0, 1, 2, 3, 4, 5, 8)] + [(j, c) for j in range(ND) for c in (6, 7)] + [(j, c) for j in range(ND, 9) for c in range(9)]
    accB = ([G1, XV, X3][:ND] + [G0, G1] * 5)[:9]
    accB = [accB[j] if j < ND else (G1, G0)[j % 2] for j in range(9)]
    bH = (1440 + 56 * ND - 10 - 15) // 32 + 1
    e = p.e
    A = GT
    load_ptrs(p)
    e('v_lshrrev_b32 v1, 6, v0')
    e('v_and_b32 v0, 63, v0')
    e(f'v_readfirstlane_b32 s{sW}, v1')
    if cfg.get('codepf'):
        e(f's_getpc_b64 s[{sPC}:{sPC+1}]')
        e(f's_lshr_b32 s{sT1}, s2, 3'); e(f's_lshl_b32 s{sT1}, s{sT1}, 2'); e(f's_add_u32 s{sT1}, s{sT1}, s{sW}')
        e(f'v_lshlrev_b32 v{A+6}, 7, v0'); e(f'v_add_u32 v{A+6}, s{sT1}, v{A+6}')
        e(f'v_lshlrev_b32 v{A+6}, 7, v{A+6}'); e(f'v_min_u32 v{A+6}, {cfg["codepf"]}, v{A+6}')
        e(f'global_load_dword v{vDum}, v{A+6}, s[{sPC}:{sPC+1}]').dst = set()
    e(f's_and_b32 s{sT0}, s2, 7')
    e(f's_lshr_b32 s{sT1}, s2, 3')
    mx = cfg.get('xcd_m', 2)
    lm = int(math.log2(mx)); mper = 16 // mx; lmp = int(math.log2(mper)); sper = 32 // mper
    e(f's_and_b32 s{sM_}, s{sT0}, {mx - 1}')
    e(f's_mul_i32 s{sM_}, s{sM_}, {mper}')
    e(f's_and_b32 s{sT2}, s{sT1}, {mper - 1}')
    e(f's_add_u32 s{sM_}, s{sM_}, s{sT2}')
    e(f's_lshr_b32 s{sS}, s{sT0}, {lm}')
    e(f's_mul_i32 s{sS}, s{sS}, {sper}')
    e(f's_lshr_b32 s{sT2}, s{sT1}, {lmp}')
    e(f's_add_u32 s{sS}, s{sS}, s{sT2}')
    row, l4, g16 = A, A + 1, A + 2
    e(f'v_lshrrev_b32 v{row}, 3, v0')
    e(f'v_lshrrev_b32 v{l4}, 4, v0')
    e(f'v_and_b32 v{A+3}, 7, v0')
    e(f'v_xor_b32 v{A+4}, v{A+3}, v{l4}')
    e(f'v_lshlrev_b32 v{A+4}, 4, v{A+4}')
    e(f'v_mul_u32_u24 v{A+5}, 1152, v{row}')
    e(f'v_add_u32 v{vOffX}, v{A+4}, v{A+5}')
    e(f'v_xor_b32 v{vOffX+1}, 64, v{vOffX}')
    e(f'v_add_u32 v{vOffX+1}, {8192}, v{vOffX+1}')
    e(f'v_add_u32 v{vOffX+2}, {2 * 8192}, v{vOffX}')
    e(f'v_add_u32 v{vOffX+3}, {2 * 8192}, v{vOffX+1}')
    e(f's_lshl_b32 s{sMb}, s{sW}, 12')
    e(f's_lshl_b32 s{sK32}, s{sW}, 5')
    e(f's_lshl_b32 s{sX}, s{sM_}, 7')
    e(f's_add_u32 s{sX}, s{sX}, s{sK32}')
    e(f's_mul_i32 s{sX}, s{sX}, 1152')
    e(f'v_lshlrev_b32 v{g16}, 1, v{l4}')
    e(f'v_xor_b32 v{g16}, v{A+3}, v{g16}')
    e(f'v_lshlrev_b32 v{A+4}, 4, v{g16}')
    e(f'v_mul_u32_u24 v{vOffW}, 9216, v{row}')
    e(f'v_add_u32 v{vOffW}, v{vOffW}, v{A+4}')
    for q in (1, 2, 3): e(f'v_add_u32 v{vOffW+q}, {q * (73728 - 1024)}, v{vOffW}')
    e(f's_mul_i32 s{sT2}, s{sS}, 576')
    e(f's_bitcmp1_b32 s{sS}, 0')
    e(f's_cselect_b32 s{sT0}, 64, 0')
    e(f's_cselect_b32 s{sFs}, 0, 512')
    e(f's_add_u32 s{sFp}, s{sT0}, s{sT2}')
    e(f's_add_u32 s{sFs}, s{sFs}, s{sT2}')
    rot = cfg.get('rot', 8)
    if rot == 8:
        xs_ = 8 // sper if sper <= 8 else 1; ms_ = 8 // mper if mper <= 8 else 1
        e(f's_mul_i32 s{sA}, s{sS}, {xs_}'); e(f's_mul_i32 s{sT2}, s{sM_}, {ms_}'); e(f's_add_u32 s{sA}, s{sA}, s{sT2}'); e(f's_and_b32 s{sA}, s{sA}, 7')
    elif rot == 4:
        e(f's_add_u32 s{sA}, s{sS}, s{sM_}'); e(f's_and_b32 s{sA}, s{sA}, 3'); e(f's_mul_i32 s{sA}, s{sA}, 9'); e(f's_lshr_b32 s{sA}, s{sA}, 2')
    else: e(f's_mov_b32 s{sA}, 0')
    e(f'v_add_u32 v{A+6}, s{sA}, v0'); e(f'v_subrev_u32 v{A+7}, 9, v{A+6}'); e(f'v_min_u32 v{A+6}, v{A+6}, v{A+7}')
    e(f'v_lshlrev_b32 v{A+6}, 7, v{A+6}'); e(f'v_add_u32 v{vTx}, s{sX}, v{A+6}')
    e(f'v_mul_u32_u24 v{A+6}, 7282, v0'); e(f'v_lshrrev_b32 v{A+6}, 16, v{A+6}')
    e(f'v_mul_u32_u24 v{A+7}, 9, v{A+6}'); e(f'v_sub_u32 v{A+7}, v0, v{A+7}')
    e(f'v_lshlrev_b32 v{A+7}, 2, v{A+7}'); e(f'v_add_u32 v{A+7}, s{sW}, v{A+7}')
    e(f'v_subrev_u32 v{A+8}, 18, v{A+7}'); e(f'v_min_u32 v{A+7}, v{A+7}, v{A+8}')
    e(f's_lshl_b32 s{sT2}, s{sA}, 1'); e(f'v_add_u32 v{A+7}, s{sT2}, v{A+7}')
    e(f'v_subrev_u32 v{A+8}, 18, v{A+7}'); e(f'v_min_u32 v{A+7}, v{A+7}, v{A+8}')
    e(f'v_cmp_lt_u32 vcc, {kS}, v{A+6}'); e(f'v_mul_u32_u24 v{A+8}, 294912, v{A+7}'); e(f'v_add_u32 v{A+8}, s{sFp}, v{A+8}')
    e(f'v_subbrev_co_u32 v{A+9}, vcc, 0, v{A+6}, vcc')
    e(f'v_cmp_ne_u32 vcc, {kS}, v{A+6}'); e(f'v_lshl_add_u32 v{A+8}, v{A+9}, 7, v{A+8}'); e(f'v_lshlrev_b32 v{A+7}, 5, v{A+7}')
    e(f'v_cndmask_b32 v{vTa}, v{A+7}, v{A+8}, vcc')
    e('s_waitcnt lgkmcnt(0)')
    srd(p, SRD_X, P_X, 2048 * 1152)
    srd(p, SRD_WG, P_WG, 576 * 9216)

    NU = 66
    HWD = cfg.get('hwd', 2)
    items = []
    for U in range(NU):
        if U < 5:
            for cx in ([2 * U, 2 * U + 1] if U < 4 else [8]): items.append(('X', cx, U))
        items.append(('W', U, U))
    resv = {pl: [] for pl in range(NPL)}
    for k in rho: resv[rho[k]].append((9 * (k + 1) + HWD, 46 if k < 4 else bH + 1))
    resv[4].append((9 * kS + 5, 46))
    if cfg.get('kvb0'):
        for k in range(5): resv[k].append((cfg['kvb0'] + cfg['kv_at'][k], 999))
    busy = {pl: -1 for pl in range(NPL)}
    place = {}; issue_at = {}; nxt = 0
    for b in range(-1, NU):
        lst = []
        while nxt < len(items):
            kind, idx, need = items[nxt]; fb = need + 1
            r0, r1, r2_ = cfg.get('ramp', (7, 0, 1))
            if b >= 0 and (need - b > max(r0, min(DMAX, r0 + (b - r1) // r2_)) or len(lst) >= cfg.get('maxissue', 3)): break
            if b < 0 and len(lst) >= cfg.get('pro_units', 6): break
            cand = [pl for pl in range(NPL) if busy[pl] <= b and all(fb <= rs or b >= re for rs, re in resv[pl])]
            if not cand: break
            cand.sort(key=lambda pl: min([rs for rs, re in resv[pl] if rs >= fb] + [999]))
            pl = cand[0]; assert need > b
            place[(kind, idx)] = pl; busy[pl] = fb
            lst.append(items[nxt]); nxt += 1
        issue_at[b] = lst
    assert nxt == len(items)
    if cfg.get('verbose'):
        for b in range(-1, NU): print(b, [(k, i, place[(k, i)]) for k, i, n in issue_at[b]])

    def dma_instrs(kind, idx):
        pl = place[(kind, idx)]; tag = (kind, idx)
        m0 = (f's_add_u32 m0, s{sMb}, {pl * 16384}', None)
        def four(vo, sr): return [(f'buffer_load_dwordx4 v{vo+q}, s[{sr}:{sr+3}], s{sso} offen' + (f' offset:{1024*q}' if q else '') + ' lds', tag) for q in range(4)]
        if kind == 'X':
            return [(f'v_readlane_b32 s{sso}, v{vTx}, {idx}', None), m0] + four(vOffX, SRD_X)
        U = idx
        if U < 45 and U // 9 != kS:
            u = U % 9
            sr = SRD_WG if u < 4 else (SRD_W4 if u == 4 else SRD_WU)
            return [(f'v_readlane_b32 s{sso}, v{vTa}, {U}', None), m0] + four(vOffW, sr)
        if U < 45:
            u = U % 9
            b_, st = (vB1, vSt1) if u < 4 else ((vB2, vSt2) if u > 4 else (vSel, vSel + 2))
            dl = f's[{sDl}:{sDl+1}]' if u < 4 else (f'v[{vDl}:{vDl+1}]' if u > 4 else f'v[{vDl+2}:{vDl+3}]')
            ad = lambda q: f'v[{vAd+2*(q&1)}:{vAd+2*(q&1)+1}]'
            out = [(f'v_readlane_b32 s{sso}, v{vTa}, {U}', None), m0, (f'v_mad_u64_u32 {ad(0)}, vcc, v{st}, s{sso}, v[{b_}:{b_+1}]', None)]
            for q in range(4):
                if q < 3: out.append((f'v_lshl_add_u64 {ad(q + 1)}, {ad(q)}, 0, {dl}', None))
                out.append((f'global_load_lds_dwordx4 {ad(q)}, off' + (f' offset:{1024 * q}' if q else ''), tag))
            return out
        return [(f'v_readlane_b32 s{sso}, v{vDo}, {U - 45}', None), m0] + four(vOffD, SRD_WD)

    PF = cfg.get('prefetch', 4)
    if PF & 1:
        nrow = 128 // (4 * sper)
        e(f's_and_b32 s{sT1}, s{sS}, {sper - 1}'); e(f's_lshl_b32 s{sT1}, s{sT1}, 2'); e(f's_add_u32 s{sT1}, s{sT1}, s{sW}')
        e(f's_mul_i32 s{sT1}, s{sT1}, {nrow * 1152}'); e(f's_mul_i32 s{sT2}, s{sM_}, {128 * 1152}'); e(f's_add_u32 s{sT1}, s{sT1}, s{sT2}')
        e(f'v_lshl_add_u32 v{A+6}, v{A+3}, 7, v{A+5}')
        if nrow < 8:
            e(f'v_cmp_gt_u32 vcc, {8 * nrow}, v0'); e(f'v_mov_b32 v{A+7}, {OOB}'); e(f'v_cndmask_b32 v{A+6}, v{A+7}, v{A+6}, vcc')
        for i in range(max(1, nrow // 8)):
            e(f'buffer_load_dword v{vDum}, v{A+6}, s[{SRD_X}:{SRD_X+3}], s{sT1} offen offset:128').dst = set()
            if i + 1 < nrow // 8: e(f's_add_u32 s{sT1}, s{sT1}, 9216')
    pro = []
    for kind, idx, need in issue_at[-1]:
        assert kind == 'X' or idx < 4
        pro += dma_instrs(kind, idx)
    srd(p, SRD_WU, P_WU, 576 * 9216)
    e(f's_cmp_ge_u32 s{sW}, 2')
    e(f's_cselect_b32 s{SRD_W4}, s{SRD_WU}, s{SRD_WG}')
    e(f's_cselect_b32 s{SRD_W4+1}, s{SRD_WU+1}, s{SRD_WG+1}')
    e(f's_mov_b32 s{SRD_W4+2}, {576 * 9216}')
    e(f's_mov_b32 s{SRD_W4+3}, 0x20000')
    wrows = 576 // (2 * mper)
    def wtouch(col):
        return [f'buffer_load_dword v{vDum}, v{vPW}, s[{SRD_W4}:{SRD_W4+3}], {col} offen' + (f' offset:0' if 0 else '')]
    if PF & 3:
        assert wrows <= 64 or wrows == 72
        e(f's_and_b32 s{sT1}, s{sM_}, {mper - 1}'); e(f's_lshl_b32 s{sT1}, s{sT1}, 1'); e(f's_and_b32 s{sT2}, s{sW}, 1'); e(f's_add_u32 s{sT1}, s{sT1}, s{sT2}')
        e(f's_mul_i32 s{sT1}, s{sT1}, {wrows}')
        WL = cfg.get('pfwl', 9)
        e(f'v_min_u32 v{A+6}, {WL - 1}, v0'); e(f'v_add_u32 v{A+6}, s{sT1}, v{A+6}'); e(f'v_mul_u32_u24 v{vPW}, 9216, v{A+6}')
        if PF & 1: e(wtouch(f's{sFp}')[0]).dst = set()
    npre = cfg.get('pro_first', 18)
    for t, tag in pro[:npre]: e(t, tag=tag)
    pro = pro[npre:]
    e0 = e; cnt_ = [0]
    def e(t, **kw):
        r = e0(t, **kw); cnt_[0] += 1
        if pro and cnt_[0] % cfg.get('pro_every', 1000) == 0 and not t.startswith(('s_cmp', 's_cselect', 's_bitcmp')):
            while pro:
                t2, tag = pro.pop(0); e0(t2, tag=tag)
                if tag: break
        return r

    e(f'v_add_u32 v{vOffD}, v{A+4}, v{A+5}')
    for q in (1, 2, 3): e(f'v_add_u32 v{vOffD+q}, {q * 8192}, v{vOffD}')
    srd(p, SRD_WD, P_WD, 4608 * 1152)
    srd(p, SRD_WS, P_WS, WS_END)
    srd(p, SRD_WO, P_WO, 576 * 1152)
    e(f's_cmp_ge_u32 s{sW}, 2')
    e(f's_cselect_b64 s[{sHF}:{sHF+1}], -1, 0')
    e(f's_cselect_b32 s{sHd}, 1, 0')
    e(f'v_lshrrev_b32 v{A+3}, 2, v0')
    e(f'v_bfe_u32 v{A+6}, v0, 3, 2')
    e(f's_and_b32 s{sT0}, s{sHF}, 2')
    e(f'v_xor_b32 v{A+6}, s{sT0}, v{A+6}')
    e(f'v_lshlrev_b32 v{A+6}, 5, v{A+6}')
    e(f'v_lshl_add_u32 v{A+6}, v{A+3}, 7, v{A+6}')
    e(f'v_and_b32 v{A+3}, 3, v0')
    e(f'v_lshl_add_u32 v{vRd}, v{A+3}, 3, v{A+6}')
    e(f'v_xor_b32 v{vRd+3}, 32, v{vRd}')
    for wd in (1, 2):
        e(f'v_add_u32 v{vRd+wd}, {65536 * wd}, v{vRd}')
        e(f'v_add_u32 v{vRd+3+wd}, {65536 * wd}, v{vRd+3}')
    e(f's_and_b32 s{sT0}, s{sW}, 1')
    e(f'v_lshrrev_b32 v{A+3}, 5, v0')
    e(f'v_bfe_u32 v{A+6}, v0, 1, 3')
    e(f'v_xor_b32 v{A+6}, v{A+6}, v{A+3}')
    e(f'v_lshlrev_b32 v{A+6}, 4, v{A+6}')
    e(f'v_and_b32 v{A+3}, 15, v0')
    e(f'v_lshl_add_u32 v{A+6}, v{A+3}, 7, v{A+6}')
    e(f'v_bfe_u32 v{A+3}, v0, 4, 1')
    e(f'v_lshl_add_u32 v{A+6}, v{A+3}, 3, v{A+6}')
    e(f's_lshl_b32 s{sT1}, s{sT0}, 13')
    e(f'v_add_u32 v{XA}, s{sT1}, v{A+6}')
    for q in (1, 2, 3): e(f'v_xor_b32 v{XA+q}, {32 * q}, v{XA}')
    e(f'v_lshlrev_b32 v{vL16}, 4, v0')
    e(f's_lshl_b32 s{sT1}, s{sT0}, 12')
    e(f'v_add_u32 v{vH}, s{sT1}, v{vL16}')
    e(f'v_mov_b32 v{vC1}, {f2u(GC1)}')
    late = []
    L = late.append
    B = vWo
    B = 238
    L(f's_and_b32 s{sT2}, s{sHF}, 8192'); L(f'v_add_u32 v{vHw}, s{sT2}, v{vH}')
    L(f'v_add_u32 v{vH2}, 65536, v{vH}'); L(f's_and_b32 s{sT2}, s{sHF}, 2048'); L(f'v_add_u32 v{vHs}, s{sT2}, v{vH2}')
    L(f's_add_u32 s{sT2}, s{sMb}, 65536'); L(f'v_add_u32 v{vXw}, s{sT2}, v{vL16}')
    L(f'v_xor_b32 v{vXr}, 8192, v{vXw}')
    L(f's_and_b32 s{sT0}, s{sW}, 1')
    L(f's_lshl_b32 s{sP}, s{sM_}, 4'); L(f's_add_u32 s{sP}, s{sP}, s{sS}'); L(f's_mul_i32 s{sP}, s{sP}, 147456')
    L(f's_lshl_b32 s{sT1}, s{sT0}, 12'); L(f's_add_u32 s{sP}, s{sP}, s{sT1}')
    L(f's_and_b32 s{sT1}, s{sHF}, 8192'); L(f's_add_u32 s{sP}, s{sP}, s{sT1}')
    assert WS_P == 0
    L(f's_lshl_b32 s{sT1}, s{sS}, 1'); L(f's_add_u32 s{sHd}, s{sHd}, s{sT1}')
    L(f's_lshl_b32 s{sT1}, s{sM_}, 1'); L(f's_add_u32 s{sT1}, s{sT1}, s{sT0}')
    L(f's_lshr_b32 s{sT2}, s{sT1}, 2'); L(f's_mul_i32 s{sKX}, s{sT2}, {KVG}'); L(f's_add_u32 s{sKX}, s{sKX}, {WS_KV}')
    L(f's_and_b32 s{sT2}, s{sT1}, 3'); L(f's_mul_i32 s{sKV}, s{sT2}, {2 * KVB}'); L(f's_add_u32 s{sKV}, s{sKV}, s{sKX}')
    L(f's_add_u32 s{sKV}, s{sKV}, 1024')
    L(f's_and_b32 s{sT2}, s{sM_}, 1'); L(f's_lshl_b32 s{sT2}, s{sT2}, 9'); L(f's_add_u32 s{sKX}, s{sKX}, s{sT2}')
    L(f's_lshl_b32 s{sT2}, s{sT0}, 3'); L(f's_add_u32 s{sKX}, s{sKX}, s{sT2}')
    L(f's_lshl_b32 s{sT2}, s{sHd}, 5'); L(f's_add_u32 s{sT1}, s{sT1}, s{sT2}')
    L(f's_lshl_b32 s{sQm}, s{sT1}, 11'); L(f's_add_u32 s{sQm}, s{sQm}, {WS_QM}')
    L(f's_lshl_b32 s{sQx}, s{sT1}, 8'); L(f's_add_u32 s{sQx}, s{sQx}, {WS_QX}')
    L(f's_mov_b32 s{sQs}, {f2u(QSCALE)}')
    L(f'v_lshlrev_b32 v{B}, 2, v0'); L(f'v_add_u32 v{B}, s{sW}, v{B}')
    L(f'v_mul_u32_u24 v{B+1}, 7282, v{B}'); L(f'v_lshrrev_b32 v{B+1}, 16, v{B+1}')
    L(f'v_mul_u32_u24 v{B+2}, 9, v{B+1}'); L(f'v_sub_u32 v{B+2}, v{B}, v{B+2}')
    L(f'v_cmp_gt_u32 vcc, {9 * ND}, v{B}'); L(f'v_subrev_u32 v{B+3}, {7 * ND}, v{B}')
    L(f'v_lshrrev_b32 v{B+4}, 1, v{B+3}'); L(f'v_and_or_b32 v{B+3}, v{B+3}, 1, 6')
    L(f'v_cndmask_b32 v{B+1}, v{B+1}, v{B+4}, vcc'); L(f'v_cndmask_b32 v{B+2}, v{B+2}, v{B+3}, vcc')
    L(f'v_mul_u32_u24 v{B+4}, 9363, v{B}'); L(f'v_lshrrev_b32 v{B+4}, 16, v{B+4}')
    L(f'v_mul_u32_u24 v{B+3}, 7, v{B+4}'); L(f'v_sub_u32 v{B+3}, v{B}, v{B+3}')
    L(f'v_cmp_eq_u32 vcc, 6, v{B+3}'); L('s_nop 1'); L(f'v_cndmask_b32_e64 v{B+3}, v{B+3}, 8, vcc')
    L(f'v_cmp_gt_u32 vcc, {7 * ND}, v{B}'); L('s_nop 1')
    L(f'v_cndmask_b32 v{B+1}, v{B+1}, v{B+4}, vcc'); L(f'v_cndmask_b32 v{B}, v{B+2}, v{B+3}, vcc')
    L(f's_and_b32 s{sT2}, s{sS}, 1'); L(f'v_add_u32 v{B}, s{sT2}, v{B}')
    L(f'v_cmp_eq_u32 vcc, 9, v{B}'); L(f's_mul_i32 s{sT2}, s{sS}, 331776'); L(f'v_lshlrev_b32 v{B+1}, 7, v{B+1}')
    L(f'v_cndmask_b32_e64 v{B}, v{B}, 0, vcc')
    L(f'v_mul_u32_u24 v{B}, 36864, v{B}'); L(f'v_add3_u32 v{vDo}, v{B}, v{B+1}, s{sT2}')
    rw, gg, ch, z = B, B + 1, B + 2, B + 3
    L(f'v_lshrrev_b32 v{rw}, 3, v0'); L(f'v_bfe_u32 v{gg}, v{vOffD}, 4, 3')
    L(f'v_mov_b32 v{vSt1}, 9216')
    L(f'v_cmp_gt_u32 vcc, 4, v{gg}')
    L(f'v_mov_b32 v{B+4}, s{P_WU}'); L(f'v_mov_b32 v{B+5}, s{P_WG}'); L(f'v_cndmask_b32 v{vB1}, v{B+4}, v{B+5}, vcc')
    L(f'v_mov_b32 v{B+4}, s{P_WU+1}'); L(f'v_mov_b32 v{B+5}, s{P_WG+1}'); L(f'v_cndmask_b32 v{vB1+1}, v{B+4}, v{B+5}, vcc')
    L(f'v_and_b32 v{ch}, 3, v{gg}'); L(f'v_lshlrev_b32 v{B+4}, 4, v{ch}'); L(f'v_add_u32 v{B+5}, s{sFs}, v{B+4}')
    L(f'v_mad_u32_u24 v{B+5}, v{rw}, v{vSt1}, v{B+5}')
    L(f'v_add_co_u32 v{vB1}, vcc, v{vB1}, v{B+5}')
    L(f'v_lshrrev_b32 v{z}, 2, v{gg}'); L(f's_lshl_b32 s{sT0}, s{sS}, 1')
    L(f'v_addc_co_u32 v{vB1+1}, vcc, 0, v{vB1+1}, vcc')
    L(f'v_add_u32 v{z}, s{sT0}, v{z}')
    L(f'v_min_u32 v{B+4}, 20, v{B+4}'); L(f'v_mad_u32_u24 v{B+4}, v{z}, 36, v{B+4}')
    L(f'v_cmp_gt_u32 vcc, 3, v{z}'); L(f'v_subrev_u32 v{B+5}, 3, v{z}')
    L(f'v_mov_b32 v{B+6}, s{P_WV}'); L(f'v_mov_b32 v{B+7}, s{P_WK}')
    L(f'v_cndmask_b32 v{B+5}, v{B+5}, v{z}, vcc'); L(f'v_cndmask_b32 v{vB2}, v{B+6}, v{B+7}, vcc')
    L(f'v_mov_b32 v{B+6}, s{P_WV+1}'); L(f'v_mov_b32 v{B+7}, s{P_WK+1}'); L(f'v_cndmask_b32 v{vB2+1}, v{B+6}, v{B+7}, vcc')
    L(f'v_lshlrev_b32 v{B+5}, 4, v{B+5}'); L(f'v_min_u32 v{B+5}, 20, v{B+5}')
    L(f'v_cmp_eq_u32 vcc, 6, v{z}'); L(f'v_mov_b32 v{B+6}, s{P_GW}'); L(f'v_mov_b32 v{B+7}, s{P_GW+1}')
    L(f'v_cndmask_b32 v{vB2}, v{vB2}, v{B+6}, vcc'); L(f'v_cndmask_b32 v{vB2+1}, v{vB2+1}, v{B+7}, vcc')
    L(f'v_cndmask_b32_e64 v{B+5}, v{B+5}, 0, vcc'); L(f'v_cndmask_b32_e64 v{B+9}, 36, 2, vcc')
    L(f'v_sub_u32 v{B+6}, 3, v{ch}'); L(f'v_lshl_add_u32 v{B+6}, v{B+6}, 6, v{z}')
    L(f'v_cmp_gt_u32 vcc, 7, v{B+6}')
    L(f'v_mov_b32 v{B+6}, s{P_WQ}'); L(f'v_mov_b32 v{B+7}, s{P_WQ+1}'); L(f'v_mov_b32 v{B+8}, 1152')
    L(f'v_cndmask_b32 v{vB2}, v{B+6}, v{vB2}, vcc'); L(f'v_cndmask_b32 v{vB2+1}, v{B+7}, v{vB2+1}, vcc')
    L(f'v_cndmask_b32 v{B+4}, v{B+4}, v{B+5}, vcc'); L(f'v_cndmask_b32 v{vSt2}, v{B+8}, v{B+9}, vcc')
    L(f'v_mad_u32_u24 v{B+4}, v{rw}, v{vSt2}, v{B+4}')
    L(f'v_add_co_u32 v{vB2}, vcc, v{vB2}, v{B+4}')
    L(f'v_cndmask_b32 v{vSel}, v{vB1}, v{vB2}, s[{sHF}:{sHF+1}]'); L(f'v_cndmask_b32 v{vSel+2}, v{vSt1}, v{vSt2}, s[{sHF}:{sHF+1}]')
    L(f'v_addc_co_u32 v{vB2+1}, vcc, 0, v{vB2+1}, vcc')
    L(f'v_cndmask_b32 v{vSel+1}, v{vB1+1}, v{vB2+1}, s[{sHF}:{sHF+1}]')
    L(f's_mov_b32 s{sDl}, 72704'); L(f's_mov_b32 s{sDl+1}, 0')
    for o_, st_ in ((0, vSt2), (2, vSel + 2)):
        L(f'v_lshlrev_b32 v{vDl+o_}, 3, v{st_}'); L(f'v_subrev_u32 v{vDl+o_}, 1024, v{vDl+o_}'); L(f'v_ashrrev_i32 v{vDl+o_+1}, 31, v{vDl+o_}')
    if PF:
        npair = 4 * mper
        L(f's_and_b32 s{sT1}, s{sM_}, {mper - 1}'); L(f's_lshl_b32 s{sT1}, s{sT1}, 2'); L(f's_add_u32 s{sT1}, s{sT1}, s{sW}')
        L(f's_mul_i32 s{sT2}, s{sT1}, {331776 // npair}'); L(f's_mul_i32 s{sT0}, s{sS}, 331776'); L(f's_add_u32 s{sT2}, s{sT2}, s{sT0}')
        DL = cfg.get('pfdl', 21)
        L(f'v_min_u32 v{vPD}, {DL - 1}, v0'); L(f'v_lshlrev_b32 v{vPD}, 7, v{vPD}'); L(f'v_add_u32 v{vPD}, s{sT2}, v{vPD}')
        qrows = 576 // npair
        L(f's_mul_i32 s{sT1}, s{sT1}, {qrows * 1152}'); L(f's_mul_i32 s{sT0}, s{sS}, 72'); L(f's_add_u32 s{sT1}, s{sT1}, s{sT0}')
        L(f'v_lshrrev_b32 v{B}, 1, v0'); L(f'v_min_u32 v{B}, {min(qrows, 32) - 1}, v{B}'); L(f'v_mul_u32_u24 v{B}, 1152, v{B}')
        L(f'v_and_b32 v{B+1}, 1, v0'); L(f'v_mul_u32_u24 v{B+1}, 68, v{B+1}'); L(f'v_add3_u32 v{vPQ}, v{B}, v{B+1}, s{sT1}')
    for t in late: e(t)
    e(f's_mul_i32 s{sT0}, s2, 3'); e(f's_add_u32 s{sT0}, s{sT0}, s{sW}')
    e(f's_mul_hi_u32 s{sT1}, s{sT0}, {(2**32 + 17) // 18}')
    e(f's_mul_i32 s{sT2}, s{sT1}, 18'); e(f's_sub_u32 s{sT2}, s{sT0}, s{sT2}')
    e(f's_lshl_b32 s{sWoD}, s{sT0}, 10'); e(f's_add_u32 s{sWoD}, s{sWoD}, {WS_WO}')
    e(f's_lshr_b32 s{sso2}, s{sT1}, 1'); e(f's_lshl_b32 s{sso2}, s{sso2}, 6')
    e(f's_and_b32 s{sT1}, s{sT1}, 1'); e(f's_lshl_b32 s{sT1}, s{sT1}, 3'); e(f's_add_u32 s{sso2}, s{sso2}, s{sT1}')
    e(f'v_bfe_u32 v{A}, v0, 2, 2'); e(f'v_and_b32 v{A+2}, 3, v0'); e(f'v_lshlrev_b32 v{A+2}, 1, v{A+2}')
    e(f'v_lshl_add_u32 v{A}, v{A}, 4, v{A+2}'); e(f'v_add_u32 v{A}, s{sso2}, v{A}')
    e(f'v_bfe_u32 v{A+2}, v0, 4, 1'); e(f'v_mul_u32_u24 v{A+2}, 18, v{A+2}')
    e(f'v_lshrrev_b32 v{A+1}, 5, v0'); e(f'v_lshl_add_u32 v{A+2}, v{A+1}, 2, v{A+2}')
    e(f'v_lshrrev_b32 v{A+4}, 4, v0'); e(f'v_mul_u32_u24 v{A+4}, 72, v{A+4}')
    e(f's_cmp_ge_u32 s{sT2}, 9'); e(f's_cselect_b32 s{sso2}, 1, 0')
    e(f's_sub_u32 s{sT1}, s{sT2}, s{sso2}'); e(f's_mul_i32 s{sT1}, s{sT1}, 36')
    e(f's_mul_i32 s{sWoJ}, s{sso2}, 9'); e(f's_sub_u32 s{sT2}, s{sT2}, s{sWoJ}')
    e(f's_mul_i32 s{sso2}, s{sso2}, 288'); e(f's_add_u32 s{sso2}, s{sso2}, 16')
    e(f's_cmp_eq_u32 s{sT2}, 8'); e(f's_cselect_b64 vcc, -1, 0'); e(f's_cselect_b32 s{sT1}, s{sso2}, s{sT1}')
    for j in range(8): e(f's_cselect_b32 s{sWoJ+j}, {18 * (j >> 1) + (j & 1)}, {8 * (j >> 2) + (j & 3)}')
    for j in range(8): e(f's_mul_i32 s{sWoJ+j}, s{sWoJ+j}, 1152')
    e(f'v_cndmask_b32 v{A+2}, v{A+2}, v{A+4}, vcc'); e(f'v_add_u32 v{A+2}, s{sT1}, v{A+2}')
    e(f'v_mul_u32_u24 v{A+2}, 1152, v{A+2}'); e(f'v_add_u32 v{vWo}, v{A}, v{A+2}')
    e(f's_cmp_lt_u32 s{sW}, 3'); e(f's_cselect_b32 s{sT1}, 648, 0'); e(f's_cmp_lt_u32 s{sT0}, s{sT1}')
    e(f's_cselect_b32 s{sT1}, 0, {OOB}')
    e(f'v_add_u32 v{vWo}, s{sT1}, v{vWo}'); e(f'v_add_u32 v{vWo+1}, s{sT1}, v{vL16}')

    if cfg.get('setup_extra'): cfg['setup_extra'](p)
    e = e0
    if cfg.get('hop'):
        e('s_mov_b64 exec, 0')
        for w_ in range(3): e(f's_cmp_eq_u32 s{sW}, {w_}'); e(f's_cbranch_scc1 PAD{w_}')
        e('s_branch PAD3')
        p.label('HOPBACK'); e('s_mov_b64 exec, -1'); e('s_branch MAIN'); p.raw('.p2align 12'); p.label('MAIN')
    for t2, tag in pro: e0(t2, tag=tag)
    S = Sched(NQ, 2)
    S.temps = list(range(GT, GT + NGT))
    S.nolds = lambda g: 11 <= g % 32 <= 15
    qb = lambda b: 32 * (b - 1) + 15
    WSr = f's[{SRD_WS}:{SRD_WS+3}]'
    NF = NQ // 4
    def tread(n, h):
        U, i = divmod(n, 8); pl = place[('W', U)]
        a = AB + 4 * i + 2 * h
        return f'ds_read_b64_tr_b16 v[{a}:{a+1}], v{vRd + 3 * (i & 1) + pl // 4} offset:{(pl % 4) * 16384 + (i >> 1) * 4096 + 2048 * h}'
    TP = cfg.get('tpos', [16, 17, 18, 20, 21, 23, 24, 26, 28, 29, 30, 32, 34, 36, 38, 40])
    def barrier(b):
        st_ = (b % cfg.get('stampevery', 1) == 0)
        if st_: pf.start()
        p.wait(vmtags=[(k, i) for k, i, need in items if need == b] + cfg.get('bar_tags', {}).get(b, []), lg0=True)
        e('s_barrier')
        if st_: pf.save(b // cfg.get('stampevery', 1))
    for b in range(1, NU):
        S.fix(qb(b), (lambda b=b: barrier(b)), cost=99)
        for i in range(16):
            n = 8 * b + i // 2
            if n < NF: S.fix(32 * (b - 1) + TP[i], tread(n, i & 1), tag=('T', b, i // 8))
        S.fix(32 * b - 1, (lambda b=b: p.wait_lg({('T', b, 0)})))
    dq = []
    LPS = cfg.get('lps', 4); MINL = cfg.get('minlead', 3); dcost = cfg.get('dcost', 2)
    for b in range(0, NU + 1):
        for kind, idx, need in issue_at.get(b, []): dq += [(t, tag, need) for t, tag in dma_instrs(kind, idx)]
        dq += [(t, tag, cfg.get('kv_need', 66)) for t, tag in cfg.get('extra_units', {}).get(b, [])]
        if cfg.get('nodma') or not dq: dq = []; continue
        must = max([i + 1 for i, (t, tag, need) in enumerate(dq) if need <= b + MINL] + [0])
        nl = max(min(LPS if b < 44 else cfg.get('lpsb', 5), sum(1 for x in dq if x[1])), sum(1 for x in dq[:must] if x[1]))
        lo, hi = (32, 46) if b == 0 else (16, 46)
        cand = [g for g in range(lo + 4 if nl <= 8 and b else lo + 1, hi) if g != 31 and (nl > 8 or (g in TP) == (dcost == 1))]
        prev = lo
        for i in range(nl):
            tg = cand[(i * len(cand)) // nl]
            k = next(j for j, x in enumerate(dq) if x[1])
            for j in range(k):
                prev = max(prev, tg - 3 - (k - 1 - j)); S.fix(32 * (b - 1) + prev, dq[j][0])
            prev = max(prev, tg); S.fix(32 * (b - 1) + prev, dq[k][0], tag=dq[k][1], cost=dcost)
            dq = dq[k + 1:]
    assert not dq
    def xreads(cx):
        pl = place[('X', cx)]; out = []; base = XA
        if pl >= 4:
            out += [f'v_add_u32 v{XAT+q}, {(pl // 4) * 65536}, v{XA+q}' for q in range(4)]; base = XAT
        for kk in range(2):
            for rt in range(4):
                for jh in range(2):
                    out.append(f'ds_read_b64 {xf(2 * cx + kk, rt, 2, 2 * jh)}, v{base + 2 * kk + jh} offset:{(pl % 4) * 16384 + 2048 * rt}')
        return out
    prevx = []
    for b in range(1, 5):
        xs = [i for k_, i, need in items if k_ == 'X' and need == b]
        for n_, cx in enumerate(xs):
            ch_ = S.chain(xreads(cx), qb(b) + 1, qb(b) + (14 if n_ == 0 else 27))
            ch_[0].same = prevx; prevx = [ch_[-1]]
    if PF:
        lead = cfg.get('pflead', 420)
        def touch(t, g, w_=30):
            def f(): p.e(t).dst = set()
            o_ = S.add(Op(f, 2, start=g, end=g + w_)); o_.call = True
        if PF & 2:
            nb_ = -(-wrows // WL); span = cfg.get('pfspan', 200)
            for k in range(1, 5):
                for i in range(nb_):
                    g_ = max(cfg.get('pf0', 100), 288 * k - lead) + (i * (span if k > 1 else cfg.get('pfspan1', 100))) // nb_
                    base_, col = (sFs, 0) if k == kS else (sFp, 128 * rho[k])
                    o1 = S.add(Op(f's_add_u32 s{sTc}, s{base_}, {col + i * WL * 9216}', start=g_ - 6, end=g_)); touch(wtouch(f's{sTc}')[0], g_, 14)
            touch(f'global_load_dword v{vDum}, v{vPQ}, s[{P_WQ}:{P_WQ+1}]', 288 * kS + 144 - lead)
        if PF & 4:
            nl = -(-2592 // (4 * mper)); nb_ = -(-nl // DL); g0 = cfg.get('pfd0', 700); dg = cfg.get('pfdg', 100)
            for i in range(nb_):
                if i: S.add(Op(f'v_add_u32 v{vPD}, {128 * DL}, v{vPD}', start=g0 + dg * i - 9, end=g0 + dg * i))
                touch(f'buffer_load_dword v{vDum}, v{vPD}, s[{SRD_WD}:{SRD_WD+3}], 0 offen', g0 + dg * i)
    ld = [S.add(Op(f'buffer_load_ushort v{vWo+2+j}, v{vWo}, s[{SRD_WO}:{SRD_WO+3}], s{sWoJ+j} offen', start=150 + 4 * j, end=250)) for j in range(8)]
    S.chain([f'v_lshl_or_b32 v{vWo+2+j}, v{vWo+2*j+3}, 16, v{vWo+2*j+2}' for j in range(4)] +
            [f'buffer_store_dwordx4 v[{vWo+2}:{vWo+5}], v{vWo+1}, {WSr}, s{sWoD} offen {stf}'], 400, 426, deps=ld)[-1].tag = 'QKV'
    def gelu_h(g, u, n, s1, e1, s2, e2, wr, sw, deps=()):
        last = []
        for i in range(n):
            t = []
            d1 = e1 - (n - 1 - i) * (e1 - s1 - 24) // n
            a = S.add(Op(lambda i=i, t=t: f'v_mul_f32 v{t[0]}, v{g+i}, v{g+i}', 1, deps, s1, e1 - 12, res=t, prio=d1 - 12))
            a = S.add(Op(lambda t=t: f'v_fmaak_f32 v{t[0]}, v{t[0]}, v{vC1}, {f2u(GC0)}', 1, [a], s1, e1 - 10, prio=d1 - 12))
            a = S.add(Op(lambda i=i, t=t: f'v_mul_f32 v{t[0]}, v{t[0]}, v{g+i}', 1, [a], s1, e1 - 8, prio=d1 - 12))
            a = S.add(Op(lambda t=t: f'v_exp_f32 v{t[0]}, v{t[0]}', 2, [a], s1, e1 - 6, prio=d1 - 12))
            a = S.add(Op(lambda t=t: f'v_add_f32 v{t[0]}, 1.0, v{t[0]}', 1, [a], s1, e1 - 4, prio=d1 - 12))
            a = S.add(Op(lambda t=t: f'v_rcp_f32 v{t[0]}, v{t[0]}', 2, [a], s1, e1 - 2, prio=d1 - 12))
            a = S.add(Op(lambda i=i, t=t: f'v_mul_f32 v{g+i}, v{t[0]}, v{g+i}', 1, [a], s1, e1, rel=t, prio=d1 - 12))
            a = S.add(Op(f'v_mul_f32 v{g+i}, v{g+i}, v{u+i}', 1, [a], s2, e2 - 8, prio=d1))
            last.append(a)
        wrs = []
        for gi in range(n // 8):
            prev = []
            for c in range(4):
                o = S.add(Op(f'v_cvt_pk_bf16_f32 v{g+8*gi+c}, v{g+8*gi+2*c}, v{g+8*gi+2*c+1}', 1, last[8*gi+2*c:8*gi+2*c+2], s2, e2 - 4, same=prev, prio=0))
                prev = [o]
            wrs.append(S.add(Op(wr(gi), 2, prev, sw + 12 * gi, e2, lds=True, prio=0)))
        return wrs
    for k in rho:
        g = (G0, G1)[k % 2]; q0 = 288 * k
        e2_ = q0 + 288 + 139 if k < 4 else qb(bH) - 4
        gelu_h(g, UU, 32, q0 + 147, e2_ - 13, q0 + 291, e2_,
               lambda i, g=g, k=k: f'ds_write_b128 v{vHw}, v[{g+8*i}:{g+8*i+3}] offset:{16384 * rho[k] + 1024 * i}', qb(9 * (k + 1) + HWD) + 1)
    GS = (G0, G1)[kS % 2]; qS = 288 * kS; bS = 9 * kS
    def xch(write):
        Lb = 'F_xw' if write else 'F_xr'
        def arm(base, em):
            for q in range(4):
                r = f'v[{base+4*q}:{base+4*q+3}]'
                em(f'ds_write_b128 v{vXw}, {r} offset:{1024*q}' if write else f'ds_read_b128 {r}, v{vXr} offset:{1024*q}')
        e(f's_cmp_ge_u32 s{sW}, 2'); e(f's_cbranch_scc1 {Lb}1')
        arm(GS + 16, p.raw); e(f's_branch {Lb}2'); p.label(f'{Lb}1')
        def em(t):
            i = e(t)
            if not write: i.dst = i.dst | {('v', r[1] + 16) for r in i.dst}
        arm(GS, em); p.label(f'{Lb}2')
    S.fix(qS + 149, lambda: xch(True), cost=7)
    S.fix(qb(bS + 6) + 4, lambda: xch(False), cost=7)
    gelu_h(GS, GS + 16, 16, qb(bS + 6) + 10, qS + 288 + 120, qb(bS + 6) + 10, qS + 288 + 139,
           lambda i: f'ds_write_b128 v{vHs}, v[{GS+8*i}:{GS+8*i+3}] offset:{1024 * i}', qb(bS + 7) + 1)
    for n_, t in enumerate((0, 1, 2, 3, 4, 5, 8)):
        for rt in range(4):
            ad = f'v{vH} offset:{8192 * t + 1024 * rt}' if t < 8 else f'v{vH2} offset:{1024 * rt}'
            S.add(Op(f'ds_read_b128 {xf(t, rt)}, {ad}', start=1296 + 8 * (t + 1), end=min(1430 + 4 * n_, qb(46) - 4), lds=True))
    for t in (6, 7):
        for rt in range(4): S.add(Op(f'ds_read_b128 {xf(t, rt)}, v{vH} offset:{8192 * t + 1024 * rt}', start=qb(bH) + 1, end=qb(bH) + 8 + 6 * (t - 6), lds=True))
    qa, qx, tq = vAd, vAd + 1, vAd + 2
    q = [f'v_and_b32 v{tq}, 15, v0', f'v_lshrrev_b32 v{tq+1}, 4, v0', f'v_lshlrev_b32 v{qa}, 3, v{tq+1}', f'v_lshl_add_u32 v{qa}, v{tq}, 5, v{qa}',
         f'v_xor_b32 v{tq+1}, 1, v{tq+1}', f'v_lshlrev_b32 v{tq+1}, 28, v{tq+1}', f'v_lshl_add_u32 v{qx}, v{tq}, 2, v{tq+1}']
    for rt in range(4):
        u = UU + 8 * rt
        q += [f'v_mul_f32 v{u+i}, s{sQs}, v{u+i}' for i in range(4)]
        q += [f'v_mul_f32 v{tq}, s{sQs}, v{u+6}', f'v_mul_f32 v{tq+1}, s{sQs}, v{u+7}',
              f'v_cvt_pk_bf16_f32 v{u}, v{u}, v{u+1}', f'v_cvt_pk_bf16_f32 v{u+1}, v{u+2}, v{u+3}', f'v_cvt_pk_bf16_f32 v{u+2}, v{tq}, v{tq+1}',
              f'buffer_store_dwordx2 v[{u}:{u+1}], v{qa}, {WSr}, s{sQm} offen offset:{512 * rt} {stf}',
              f'buffer_store_dword v{u+2}, v{qx}, {WSr}, s{sQx} offen offset:{64 * rt} {stf}']
    qc = S.chain(q, qS + 292, qS + 288 + cfg.get('qkv_end', 100))
    def kv_block():
        L = 'F_kv'; o = lambda t: p.e(t, optional=True, tag='QKV')
        a, b2 = tq, tq + 1
        e(f's_cmp_ge_u32 s{sHd}, 7'); e(f's_cbranch_scc1 {L}_end')
        e(f's_cmp_lg_u32 s{sHd}, 6'); e(f's_cbranch_scc1 {L}_kv')
        e(f'v_and_b32 v{a}, 15, v0'); e(f'v_lshrrev_b32 v{b2}, 4, v0'); e(f'v_lshlrev_b32 v{a}, 2, v{a}')
        e(f'v_xor_b32 v{b2}, 2, v{b2}'); e(f'v_lshl_add_u32 v{a}, v{b2}, 28, v{a}')
        e(f's_add_u32 s{sT0}, s{sQx}, {WS_G - WS_QX - 6 * 8192}')
        for rt in range(4): o(f'buffer_store_dword v{UU+8*rt+4}, v{a}, {WSr}, s{sT0} offen offset:{64 * rt} {stf}')
        e(f's_branch {L}_end')
        p.label(f'{L}_kv')
        for rt in range(4):
            u = UU + 8 * rt
            e(f'v_cvt_pk_bf16_f32 v{u+4}, v{u+4}, v{u+5}'); e(f'v_cvt_pk_bf16_f32 v{u+5}, v{u+6}, v{u+7}')
        e(f'v_and_b32 v{a}, 15, v0'); e(f'v_lshrrev_b32 v{b2}, 4, v0')
        e(f's_cmp_ge_u32 s{sHd}, 3'); e(f's_cbranch_scc1 {L}_v')
        e(f'v_lshlrev_b32 v{a}, 4, v{a}')
        e(f's_cmp_eq_u32 s{sHd}, 2'); e(f's_cbranch_scc1 {L}_kx')
        e(f'v_subrev_u32 v{b2}, 2, v{b2}'); e(f'v_and_b32 v{b2}, 0x04000001, v{b2}'); e(f'v_lshl_add_u32 v{a}, v{b2}, 3, v{a}')
        e(f's_lshl_b32 s{sT0}, s{sHd}, 9'); e(f's_add_u32 s{sT0}, s{sT0}, s{sKV}')
        for rt in range(4): o(f'buffer_store_dwordx2 v[{UU+8*rt+4}:{UU+8*rt+5}], v{a}, {WSr}, s{sT0} offen offset:{(rt >> 1) * KVB + 256 * (rt & 1)} {stf}')
        e(f's_branch {L}_end')
        p.label(f'{L}_kx')
        e(f'v_xor_b32 v{b2}, 3, v{b2}'); e(f'v_lshl_add_u32 v{a}, v{b2}, 28, v{a}')
        for rt in range(4): o(f'buffer_store_dword v{UU+8*rt+5}, v{a}, {WSr}, s{sKX} offen offset:{4 * (rt >> 1) + 256 * (rt & 1)} {stf}')
        e(f's_branch {L}_end')
        p.label(f'{L}_v')
        c = tq + 2
        e(f'v_bfe_u32 v{c}, v0, 2, 1'); e(f'v_mul_u32_u24 v{c}, 304, v{c}')
        e(f'v_and_b32 v{a}, 8, v0'); e(f'v_add_u32 v{c}, v{c}, v{a}')
        e(f'v_and_b32 v{a}, 3, v0'); e(f'v_lshl_add_u32 v{a}, v{a}, 1, v{c}')
        e(f's_add_u32 s{sT1}, s{sKV}, 1024')
        e(f's_cmp_eq_u32 s{sHd}, 5'); e(f's_cbranch_scc1 {L}_vx')
        e(f'v_subrev_u32 v{b2}, 2, v{b2}'); e(f'v_and_b32 v{b2}, 0x00800001, v{b2}'); e(f'v_lshl_add_u32 v{a}, v{b2}, 6, v{a}')
        e(f's_sub_u32 s{sT0}, s{sHd}, 3'); e(f's_lshl_b32 s{sT0}, s{sT0}, 7'); e(f's_add_u32 s{sT0}, s{sT0}, s{sT1}')
        for rt in range(4):
            for ee in range(4):
                o(f'buffer_store_short{"_d16_hi" if ee & 1 else ""} v{UU+8*rt+4+(ee>>1)}, v{a}, {WSr}, s{sT0} offen offset:{(rt >> 1) * KVB + 608 * (rt & 1) + 16 * ee} {stf}')
        e(f's_branch {L}_end')
        p.label(f'{L}_vx')
        e(f'v_xor_b32 v{b2}, 3, v{b2}'); e(f'v_lshl_add_u32 v{a}, v{b2}, 28, v{a}')
        e(f'v_mov_b32 v{c}, 0x3f80')
        for rt in range(4):
            of = (rt >> 1) * KVB + 608 * (rt & 1) + 256
            o(f'buffer_store_short v{UU+8*rt+5}, v{a}, {WSr}, s{sT1} offen offset:{of} {stf}')
            o(f'buffer_store_short_d16_hi v{UU+8*rt+5}, v{a}, {WSr}, s{sT1} offen offset:{of + 16} {stf}')
            o(f'buffer_store_short v{c}, v{a}, {WSr}, s{sT1} offen offset:{of + 32} {stf}')
        p.label(f'{L}_end')
    for o_ in qc:
        if 'store' in o_.text: o_.tag = 'QKV'
    kvop = S.add(Op(kv_block, 2, [qc[-1]], qS + 292, qS + 288 + cfg.get('qkv_end', 100) + 10)); kvop.call = True
    lastst = []; qs_ = 0; NST = cfg.get('nst', 5); deferred = []
    hold = [G1, XV, X3, XV + 16, X3 + 16, XV, X3, XV + 16, X3 + 16]; freed = {}
    for j in range(9):
        acc = accB[j]; q1 = 1440 + 8 * (max(i for i, (jj, c) in enumerate(seqB) if jj == j) + 1)
        nxt_ = [1440 + 8 * i for i, (jj, c) in enumerate(seqB) if jj > j and accB[jj] == acc]
        dl = min(nxt_[0] - 2 if nxt_ else 10 ** 6, NQ - 4 if j < 8 else 10 ** 6); h = hold[j]
        cv = S.chain([f'v_cvt_pk_bf16_f32 v{h+i}, v{acc+2*i}, v{acc+2*i+1}' for i in range(16)], min(q1 + 3, NQ), min(dl, q1 + 60), deps=freed.get(h, []))
        sot = f's_add_u32 s{sPo}, s{sP}, {16384 * j}'
        sts = [f'buffer_store_dwordx4 v[{h+4*rt}:{h+4*rt+3}], v{vL16}, {WSr}, s{sPo} offen offset:{1024 * rt} {stf}' for rt in range(4)]
        if j >= NST:
            deferred.append([sot] + sts); continue
        so = S.add(Op(sot, start=q1, end=NQ, same=lastst, prio=0))
        for rt in range(4):
            qs_ = max(qs_ + cfg.get('stspace', 22), q1 + 8)
            for o_ in cv[4 * rt:4 * rt + 4]: o_.prio = min(o_.prio, qs_ - 2); o_.end = min(o_.end, qs_ + 8)
            lastst = [S.add(Op(sts[rt], 2, [cv[4 * rt + 3], so], qs_, min(qs_ + 12, dl if h == acc else NQ), tag='PART', same=lastst))]
        freed[h] = lastst
    cfg['deferred'] = deferred
    if cfg.get('sched_extra'): cfg['sched_extra'](S, p)
    if cfg.get('nofill'): S.ops = [o for o in S.ops if isinstance(o.text, str) and ('lds' in o.text or 'm0' in o.text or f's{sso},' in o.text)]
    placed = S.run()
    print('ffn schedule: overflow slots', S.over)

    def emit(item, tag):
        if callable(item): item()
        else: e(item, tag=tag)
    barrier(0)
    for i in range(4): e(tread(i // 2, i & 1))
    x01 = xreads(0) + xreads(1)
    for t in x01[:len(x01) // 4]: e(t)
    for i in range(4, 16): e(tread(i // 2, i & 1))
    for t in x01[len(x01) // 4:]: e(t)
    snake = cfg.get('snake', 1)
    for q in range(NQ + 1):
        if q < NQ:
            n, rt = divmod(q, 4); ft = n & 1
            if snake and ft: rt = 3 - rt
            if q < 1440:
                ps, kk = divmod(n // 2, 18); D = UU if ps & 1 else (G0, G1)[(ps // 2) % 2]
            else:
                j, kk = seqB[n // 2 - 180]; D = accB[j]
            d = D + (rt * 2 + ft) * 4; a = AB + 4 * (n % 8)
            C = '0' if kk == 0 else f'v[{d}:{d+3}]'
            e(f'v_mfma_f32_16x16x32_bf16 v[{d}:{d+3}], v[{a}:{a+3}], {xf(kk, rt)}, {C}')
        if q == NQ and cfg.get('pre_tail'): cfg['pre_tail'](p)
        fx = S.fixed[q]
        lastw = [f for f in fx if callable(f[1]) and q % 32 == 31]
        for c, item, tag in fx:
            if (c, item, tag) not in lastw: emit(item, tag)
        mid = cfg.get('mid_tail') if q == NQ else None
        for n_, o in enumerate(placed[q]):
            if mid and n_ == 5: mid(p)
            if getattr(o, 'call', False): o.text()
            else: e(o.text() if callable(o.text) else o.text, tag=o.tag)
        for c, item, tag in lastw: emit(item, tag)
```

```python
import sys
from common import *
import ffn, att, k23
from ffn import sW, sT0, sT1, sT2, SRD_WS, SRD_X, vL16, KVG, KVB, sMb, sso, NQ

att.sRG, att.sHH = 6, 7
att.PP, att.KM, att.VV, att.KX = 24, 32, 40, 56
att.SA, att.SB, att.OA, att.OB = 64, 80, 96, 112
att.QM, att.QX = 128, 136
SEL, SELX = 152, 160
att.vAK, att.vAV = 164, 165
vG, vPoll, vTch = 166, 252, 240
att.vT = 236
BACC = 172
PBUF, NPB = 192, 11
vFP, vFO = 244, 245
vL2, vLX, vLO, vPa = 246, 247, 248, 249
vL4, vGt = 250, 251
sH0, sH1 = 8, 15
sRG, sHH = att.sRG, att.sHH
SRD_OUT, SRD_DBG = 52, 68
vAt = 238
sPb, sWo, sWx, sOo, sOp, sSpin = 74, 75, 76, 77, 78, 79
sPb = 80; sWo = 81; sWx = 82; sOo = 83; sOp = 84; sSpin = 85; sKVs = 86; sLd = 87
LDS_O, LDS_G = 154560, 163776
FLO = 4096
WSr = f's[{SRD_WS}:{SRD_WS+3}]'
mf16 = att.mf16

class Rec:
    def __init__(self): self.l = []
    def e(self, t, **kw): self.l.append(t)

def poll(p, L, srdr, want, mask, first_issued):
    e = p.e
    cmpop = 'le' if want == 64 else 'eq'
    ld = f'buffer_load_dword v{vPoll}, v{vPa}, {srdr}, 0 offen sc1'
    if not first_issued: e(ld)
    e(f'v_cmp_{cmpop}_u32 vcc, {want}, v{vPoll}')
    e(f's_cmp_eq_u32 vcc_lo, {mask}')
    e(f's_cbranch_scc0 {L}_spin')
    p.label(f'{L}_go')
    def out(q):
        r = q.raw
        q.label(f'{L}_spin'); r(f's_mov_b32 s{sSpin}, 0')
        q.label(f'{L}_sp2'); r('s_sleep 8'); r(ld); r(f's_add_u32 s{sSpin}, s{sSpin}, 1'); r('s_waitcnt vmcnt(0)')
        r(f'v_cmp_{cmpop}_u32 vcc, {want}, v{vPoll}')
        r(f's_cmp_gt_u32 s{sSpin}, 0x80000'); r(f's_cbranch_scc1 {L}_go')
        r(f's_cmp_eq_u32 vcc_lo, {mask}'); r(f's_cbranch_scc0 {L}_sp2'); r(f's_branch {L}_go')
    return out

def gen(p, cfg, pf):
    cfg = dict(cfg); cfg.setdefault('stflags', 'sc1')
    cfg.setdefault('apat', 'E0 E1 PB rK x0 E2 E3 C0 C1 E4 QX w x1 E5 E6 E7 y0 C2 C3 E8 QM rA x2 E9 E10 E11 y1 C4 C5 E12 PA rB x3 E13 E14 E15 C6 C7')
    BS, BP, BQ = cfg.get('bsig', 36), cfg.get('bpoll', 48), cfg.get('bq', 54)
    assert BP <= 49
    cfg['kvb0'] = BQ; cfg['bar_tags'] = {BS: ['QKV']}
    e = p.e; ool = []
    qb = lambda b: 32 * (b - 1) + 15
    vT = att.vT

    def setup_extra(p):
        e = p.e
        e(f'v_cmp_eq_u32 vcc, 0, v0'); e(f'v_mov_b32 v{vFO}, {OOB}'); e(f'v_mov_b32 v{vTch+1}, 0')
        e(f'v_cndmask_b32_e64 v{vFO}, v{vFO}, 0, vcc')
        e(f's_lshl_b32 s{sT0}, s{ffn.sM_}, 6'); e(f's_lshl_b32 s{sT1}, s{ffn.sS}, 2'); e(f's_add_u32 s{sT0}, s{sT0}, s{sT1}')
        e(f's_add_u32 s{sT0}, s{sT0}, {WS_FL}'); e(f's_lshl_b32 s{sT1}, s{sW}, 28'); e(f's_add_u32 s{sT0}, s{sT0}, s{sT1}')
        e(f'v_add_u32 v{vFP}, s{sT0}, v{vFO}')
        e(f's_and_b32 s{sT0}, s2, 3'); e(f's_lshl_b32 s{sT0}, s{sT0}, 6'); e(f's_lshl_b32 s{sT1}, s{sW}, 12'); e(f's_add_u32 s{sT0}, s{sT0}, s{sT1}')
        e(f'v_lshlrev_b32 v{vPa}, 6, v0'); e(f'v_lshlrev_b32 v{vAt}, 8, v0'); e(f'v_add_u32 v{vAt}, s{sT0}, v{vAt}'); e(f'v_mov_b32 v{vAt+1}, 1')
        e(f's_lshr_b32 s{sT0}, s2, 3'); e(f's_lshl_b32 s{sT0}, s{sT0}, 2'); e(f's_add_u32 s{sT0}, s{sT0}, s{sW}'); e(f's_mul_i32 s{sT0}, s{sT0}, {51 * 128}')
        e(f's_add_u32 s{sT0}, s{sT0}, {WS_KV}'); e(f'v_min_u32 v{vTch}, 50, v0'); e(f'v_lshlrev_b32 v{vTch}, 7, v{vTch}'); e(f'v_add_u32 v{vTch}, s{sT0}, v{vTch}')
        e(f'buffer_store_dword v{vTch+1}, v{vFP}, {WSr}, 0 offen sc1', tag='QKV')
    cfg['setup_extra'] = setup_extra

    def kv_unit(i, n=4):
        if n == 4:
            return [(f's_add_u32 m0, s{sMb}, {16384 * i}', None), (f's_add_u32 s{sso}, s{sKVs}, {16384 * i}', None)] + \
               [(f'buffer_load_dwordx4 v{vL16}, {WSr}, s{sso} offen' + (f' offset:{1024 * q}' if q else '') + ' lds', 'KV') for q in range(4)]
        return [(f's_lshr_b32 s{sso}, s{sMb}, 2', None), (f's_add_u32 m0, s{sso}, {16384 * i}', None), (f's_add_u32 s{sso}, s{sso}, {WS_KV + 16384 * i}', None),
                (f'buffer_load_dwordx4 v{vL16}, {WSr}, s{sso} offen lds', 'KV')]

    cfg.setdefault('kv_at', [4, 5, 6, 7, 8])
    cfg['extra_units'] = {}
    for i in range(5): cfg['extra_units'].setdefault(BQ + cfg['kv_at'][i], []).extend(kv_unit(i))
    quads = [f'a[{4*i}:{4*i+3}]' for i in list(range(36, 64)) + list(range(36))] + [f'v[{r}:{r+3}]' for r in (4, 8, 12, 16, 168)]
    nearly = len(quads)
    quads += [f'v[{PBUF+4*i}:{PBUF+4*i+3}]' for i in range(NPB)] + [f'v[{r}:{r+3}]' for r in (SEL, SEL + 4, SELX)]
    nmid = len(quads)
    quads += [f'v[{r}:{r+3}]' for r in (128, 132, 136, 140, 144, 148, 84)]
    assert len(quads) == 90
    def wo_load(f):
        half, r = divmod(f, 45); g, i = divmod(r, 9); out = []
        hreg = (sH0, sH1)[half]
        if g < 4:
            if i == 0: out.append(f's_add_u32 s{sLd}, s{sWo}, s{hreg}'); out += [f's_add_u32 s{sLd}, s{sLd}, {18432 * g}'] if g else []
            vo = (vL16, vL4, vL2)[i // 4]
        else:
            if i == 0: out.append(f's_add_u32 s{sLd}, s{sWx}, s{hreg}')
            elif i % 4 == 0: out.append(f's_add_u32 s{sLd}, s{sLd}, 4096')
            vo = vLO
        out.append(f'buffer_load_dwordx4 {quads[f]}, v{vo}, {WSr}, s{sLd} offen' + (f' offset:{1024 * (i % 4)}' if i % 4 else ''))
        return out
    NWB = cfg.get('nwb', 0)
    def sched_extra(S, p):
        r = Rec(); e = r.e
        r0 = Rec(); srd(r0, SRD_DBG, P_DBG, 256)
        att.att_ids(r0); PZ = 228
        r0.e(f's_lshl_b32 s{sOp}, s{sRG}, 1'); r0.e(f's_add_u32 s{sOp}, s{sOp}, s{sHH}'); r0.e(f's_mul_i32 s{sOo}, s{sOp}, 9216'); r0.e(f's_add_u32 s{sOo}, s{sOo}, {WS_O}')
        r0.e(f's_xor_b32 s{sOp}, s{sOp}, 1'); r0.e(f's_mul_i32 s{sOp}, s{sOp}, 9216'); r0.e(f's_add_u32 s{sOp}, s{sOp}, {WS_O}')
        r0.e(f's_mul_i32 s{sSpin}, s{sW}, 2304'); r0.e(f's_add_u32 s{sSpin}, s{sSpin}, s{sOo}')
        for i in range(4): r0.e(f'v_mov_b32 v{PZ+i}, -1')
        r0.e(f'v_lshlrev_b32 v{PZ+4}, 2, v0')
        r0.e(f'buffer_store_dwordx4 v[{PZ}:{PZ+3}], v{vL16}, {WSr}, s{sSpin} offen sc1')
        r0.e(f'buffer_store_dwordx4 v[{PZ}:{PZ+3}], v{vL16}, {WSr}, s{sSpin} offen offset:1024 sc1')
        r0.e(f'buffer_store_dword v{PZ}, v{PZ+4}, {WSr}, s{sSpin} offen offset:2048 sc1')
        q0_ = 288 * cfg.get('kS', 2) + 146
        for o in S.chain(r0.l, q0_, q0_ + 60, tight=False):
            if 'store' in o.text: o.tag = 'QKV'; o.cost = 2
        srd(r, SRD_OUT, P_OUT, 2048 * 1152)
        nB = len(r.l)
        k23.sel_frags(r, SEL, vT, True)
        e(f's_cmp_eq_u32 s{sW}, 3 | s_cselect_b64 vcc, -1, 0')
        for i in range(4): e(f'v_cndmask_b32 v{SELX+i}, v{SEL+i}, v{SEL+4+i}, vcc')
        e(f's_add_u32 s{sKVs}, s{sMb}, {WS_KV}')
        e(f's_mul_i32 s{sT0}, s{sHH}, 9'); e(f's_lshl_b32 s{sT1}, s{sW}, 1'); e(f's_add_u32 s{sT1}, s{sT1}, s{sT0}')
        e(f's_lshr_b32 s{sPb}, s{sRG}, 3'); e(f's_mul_i32 s{sPb}, s{sPb}, {16 * 147456}')
        e(f's_lshl_b32 s{sT2}, s{sT1}, 13'); e(f's_add_u32 s{sPb}, s{sPb}, s{sT2}')
        e(f's_and_b32 s{sT2}, s{sRG}, 7'); e(f's_lshl_b32 s{sT2}, s{sT2}, 10'); e(f's_add_u32 s{sPb}, s{sPb}, s{sT2}')
        e(f's_mul_i32 s{sWo}, s{sT1}, 36864'); e(f's_add_u32 s{sWo}, s{sWo}, {WS_WO}')
        e(f's_add_u32 s{sT0}, s{sT0}, 8'); e(f's_mul_i32 s{sWx}, s{sT0}, 36864'); e(f's_and_b32 s{sT2}, s{sW}, 1'); e(f's_mul_i32 s{sT2}, s{sT2}, 18432')
        e(f's_add_u32 s{sWx}, s{sWx}, s{sT2}'); e(f's_add_u32 s{sWx}, s{sWx}, {WS_WO}')
        e(f's_andn2_b32 s{sT2}, {OOB}, s{ffn.sHF}'); e(f'v_add_u32 v{vLO}, s{sT2}, v{vL16}')
        e(f's_sub_u32 s{sT0}, s{sT0}, s{sT1}'); e(f's_lshl_b32 s{sT0}, s{sT0}, 13'); e(f'v_add_u32 v{vLX}, s{sT0}, v{vLO}')
        e(f'v_add_u32 v{vL2}, 8192, v{vL16}'); e(f'v_add_u32 v{vL4}, 4096, v{vL16}')
        nC = len(r.l)
        e(f'v_mov_b32 v{vG}, 1'); e(f's_mul_i32 s{sH0}, s{sHH}, 9216'); e(f's_sub_u32 s{sH1}, 9216, s{sH0}')
        nD = len(r.l)
        def mk(t):
            if ' | ' not in t: return t
            def f():
                for x in t.split(' | '): p.e(x)
            return f
        ch = S.chain([mk(t) for t in r.l], 1586, qb(BQ) - 8, tight=False)
        for o in ch:
            if callable(o.text): o.call = True; o.cost = 2
        S.fix(qb(BS) + 4, f'buffer_atomic_add v{vAt+1}, v{vAt}, s[{SRD_DBG}:{SRD_DBG+3}], 0 offen sc1')
        DB = f's[{SRD_DBG}:{SRD_DBG+3}]'
        S.fix(qb(BP) - cfg.get('poll_lead', 110), f'buffer_load_dword v{vPoll}, v{vPa}, {DB}, 0 offen sc1')
        S.fix(qb(BP) - 2, lambda: ool.append(poll(p, 'PK', DB, 64, 15, True)), cost=4)
        r2 = Rec(); att.q_loads(r2, 'sc1')
        r2.e(f'v_and_b32 v{vGt}, 15, v0'); r2.e(f'v_lshlrev_b32 v{vGt}, 2, v{vGt}'); r2.e(f's_lshl_b32 s{sT0}, s{sRG}, 6'); r2.e(f's_add_u32 s{sT0}, s{sT0}, {WS_G}')
        r2.e(f'buffer_load_dword v{vGt}, v{vGt}, {WSr}, s{sT0} offen sc1')
        att.att_addrs(r2, cfg)
        r2.e(f's_lshr_b32 s{sT0}, s{sRG}, 3'); r2.e(f's_lshl_b32 s{sT0}, s{sT0}, 6'); r2.e(f's_add_u32 s{sT0}, s{sT0}, {WS_FL}')
        r2.e(f'v_and_b32 v{vPa}, 48, v0'); r2.e(f'v_lshlrev_b32 v{vPa}, 22, v{vPa}'); r2.e(f'v_lshl_add_u32 v{vPa}, v0, 2, v{vPa}'); r2.e(f'v_add_u32 v{vPa}, s{sT0}, v{vPa}')
        S.chain(r2.l, qb(BQ) + 1, min(qb(BQ) + 80, NQ - 32), tight=False)
        def tch(): p.e(f'buffer_load_dword v{ffn.vDum}, v{vTch}, {WSr}, 0 offen').dst = set()
        if cfg.get('kvtouch', 0): S.fix(qb(BP) + 4, tch)
        prev = []; g0 = qb(BQ) + 4; dg = (NQ - 12 - g0) // max(NWB, 1)
        for f in range(NWB):
            for t in wo_load(f):
                ld_ = 'load' in t
                prev = [S.add(Op(t, 2 if ld_ else 1, prev, g0 + dg * f - (0 if ld_ else 3), g0 + dg * f + dg))]
        r3 = Rec(); att.q_variants(r3)
        r3.e(f'v_mul_f32 v{vGt}, {f2u(-math.log2(math.e))}, v{vGt}'); r3.e(f'v_exp_f32 v{vGt}, v{vGt}'); r3.e(f'v_add_f32 v{vGt}, 1.0, v{vGt}'); r3.e(f'v_rcp_f32 v{vGt}, v{vGt}')
        S.chain(r3.l, NQ - 30, NQ - 2, tight=False)
    cfg['sched_extra'] = sched_extra

    def pre_tail(p):
        pf.start()
        p.wait(vmtags=['KV'], lg0=True); p.e('s_barrier')
        pf.save(70)
        p.e(att.rdKX(0)); p.e(att.rdKM(0)); p.e(att.rdV(0, 0)); p.e(att.rdV(0, 1))
    cfg['pre_tail'] = pre_tail
    SA, SB, OA, OB = att.SA, att.SB, att.OA, att.OB
    def mid_tail(p):
        p.c('ATT'); e(att.qkx(0, 0, SA)); e(att.mf32(SA, att.KM, att.QM, att.vr(SA)))
    cfg['mid_tail'] = mid_tail
    ffn.gen_ffn(p, cfg, pf)

    X = {}
    def at(hs, tk, item, tag=None): X.setdefault((hs, tk), []).append((item, tag))
    SL = [(2 * (i // 4) + (1 if i % 4 else 0), ('x1', 'x0', 'x2', 'x3')[i % 4]) for i in range(256)]
    used = [0] * 256
    def put(item, lo, vm, tag=None, hi=None):
        i = lo
        while i < 256 and (used[i] or (vm and i % 4 == 0)):
            if hi is not None and i >= hi: break
            i += 1
        if i >= 256: return None
        used[i] += 1; at(*SL[i], item, tag); return i
    def stream(groups, lo, pace, tagf=None, gate=None):
        pos = []; prev = lo - 1
        for n, grp in enumerate(groups):
            s0 = max(prev + 1, lo + int(n * pace), gate(n) if gate else 0)
            i = s0
            while i < 256 and (used[i] or i % 4 == 0): i += 1
            if i >= 256: break
            for t in grp[:-1]:
                c = [k for k in range(max(prev + 1, 0), i) if not used[k] and k % 4 == 0]
                k = c[-1] if c else (prev if prev >= 0 and n else i)
                used[k] += 1; at(*SL[k], t); prev = k
            used[i] += 1; at(*SL[i], grp[-1], tagf(n) if tagf else None); prev = i; pos.append(i)
        return pos
    def groups_of(lst):
        out = []; cur = []
        for t in lst:
            cur.append(t)
            if t.startswith('buffer_'): out.append(cur); cur = []
        return out
    BBA, BPL, BPC, LAG = cfg.get('bba', 21), cfg.get('bpl', 26), cfg.get('bpc', 29), cfg.get('lag', 4)
    def bar_a():
        p.wait(vmtags=['KV', 'PART']); e('s_barrier')
        e(f'buffer_store_dword v{vG}, v{vFP}, {WSr}, 0 offen sc1')
    put(bar_a, 4 * BBA + 1, True)
    put(f'buffer_load_dword v{vPoll}, v{vPa}, {WSr}, 0 offen sc1', 4 * BPL + 1, True)
    put(lambda: ool.append(poll(p, 'PP', WSr, 1, 0xffff, True)), 4 * BPC + 3, True)
    ps = stream(groups_of(sum(cfg['deferred'], [])), 0, cfg.get('dpace', 4), lambda n: 'PART')
    pk = stream(groups_of([t for i in range(5, 10) for t, tag in kv_unit(i, 4 if i < 9 else 1)]), 0, 1, lambda n: 'KV')
    assert max(ps + pk) < 4 * BBA
    pg = []
    for i in range(48):
        sl, j = divmod(i, 3); buf = PBUF + 4 * (i % NPB)
        pg.append(([f's_add_u32 s{sPb}, s{sPb}, 147456'] if j == 0 and sl else []) +
                  [f'buffer_load_dwordx4 v[{buf}:{buf+3}], v{(vL16, vL2, vLX)[j]}, {WSr}, s{sPb} offen sc1'])
    pp_ = stream(pg, 4 * BPC + 4, 2, lambda n: ('PL', n))
    cons = [0] * 48; yq = {}
    for i in range(48):
        sl, j = divmod(i, 3); buf = PBUF + 4 * (i % NPB); b_ = pp_[i] // 4 + LAG; cons[i] = b_
        for ti in range(2 if j < 2 else 1):
            d = BACC + 8 * j + 4 * ti; A = SELX if j == 2 else SEL + 4 * ti
            yq.setdefault(b_, []).append(mf16(d, f'v[{A}:{A+3}]', f'v[{buf}:{buf+3}]', '0' if sl == 0 else f'v[{d}:{d+3}]'))
    for b_, lst in yq.items():
        assert len(lst) <= 4 and b_ < 63
        tags = [('PL', i) for i in range(48) if cons[i] == b_]
        used[4 * b_] += 1; at(*SL[4 * b_], lambda tags=tags: p.wait(vmtags=tags))
        for n, t in enumerate(lst): at(2 * b_ + n // 2, f'y{n & 1}', t)
    for i in range(NPB, 48): assert pp_[i] >= 4 * cons[i - NPB] + 3, (i, pp_[i], cons[i - NPB])
    lastuse = [max(cons[i] for i in range(48) if i % NPB == k) for k in range(NPB)] + [max(cons)] * 3
    order = sorted(range(NPB + 3), key=lambda k: lastuse[k])
    quads[nearly:nmid] = [quads[nearly + k] for k in order]
    pw = stream([wo_load(f) for f in range(NWB, nmid)], 0, cfg.get('wpace', 1), None,
                gate=lambda n: 0 if NWB + n < nearly else 4 * lastuse[order[NWB + n - nearly]] + 3)
    f = NWB + len(pw)
    print('wo loads in loop', f, 'slots used', sum(1 for u in used if u), 'shared', sum(1 for u in used if u > 1))
    def extra(hs, tk):
        for item, tag in X.pop((hs, tk), []):
            if callable(item): item()
            else: e(item, tag=tag)
    base = 0
    for b in range(64):
        if b and b % 16 == 0:
            for a in (att.vAK, att.vAV): e(f'v_add_u32 v{a}, {2 * KVG}, v{a}')
            base += 2 * KVG
        for t in range(2): att.half_step(p, b, t, base, cfg, extra, line=True)
        if b % 16 == 15: pf.stamp(71 + b // 16)
    assert not X, X.keys()
    e(att.mf32(OB, att.VV + 12, att.PP + 4, att.vr(OB)))
    vO1, vO2, vO3, vOut = 1, 2, 3, 20
    e(f's_lshl_b32 s{sT0}, s{sW}, 11'); e(f'v_add_u32 v{vO1}, s{sT0}, v{vL16}')
    e(f'v_and_b32 v{vO2}, 15, v0'); e(f'v_lshlrev_b32 v{vO2}, 4, v{vO2}'); e(f'v_bfe_u32 v{vO3}, v0, 4, 1'); e(f'v_lshl_add_u32 v{vO2}, v{vO3}, 2, v{vO2}')
    e(f's_lshl_b32 s{sT0}, s{sW}, 8'); e(f's_add_u32 s{sT0}, s{sT0}, 8192'); e(f'v_add_u32 v{vO2}, s{sT0}, v{vO2}')
    e(f'v_lshrrev_b32 v{vO3}, 5, v0'); e(f'v_lshl_add_u32 v{vOut}, v{vO3}, 20, v{vO2}'); e(f'v_lshl_add_u32 v{vO2}, v{vO3}, 29, v{vO2}')
    att.att_check(p, 'A', cfg, 'test')
    att.o_pack(p)
    e(f'buffer_store_dwordx4 v[{OA}:{OA+3}], v{vO1}, {WSr}, s{sOo} offen sc1', tag='O')
    e(f'buffer_store_dwordx4 v[{OB}:{OB+3}], v{vO1}, {WSr}, s{sOo} offen offset:1024 sc1', tag='O')
    e(f'buffer_store_dword v{OA+4}, v{vO2}, {WSr}, s{sOo} offen sc1', tag='O')
    e(f'buffer_store_dword v{OB+4}, v{vO2}, {WSr}, s{sOo} offen offset:8 sc1', tag='O')
    e(f'v_add_u32 v{vO1}, {LDS_O}, v{vO1}'); e(f'v_add_u32 v{vO2}, {LDS_O}, v{vOut}'); e(f'v_add_u32 v{vO3}, {LDS_O}, v{vL16}')
    e(f'ds_write_b128 v{vO1}, v[{OA}:{OA+3}]'); e(f'ds_write_b128 v{vO1}, v[{OB}:{OB+3}] offset:1024')
    e(f'ds_write_b32 v{vO2}, v{OA+4}'); e(f'ds_write_b32 v{vO2}, v{OB+4} offset:8')
    latew = [t for f_ in range(f, 90) for t in wo_load(f_)]
    e(f'v_and_b32 v{vOut}, 15, v0')
    e('s_waitcnt lgkmcnt(0)'); e('s_barrier')
    pf.stamp(75)
    OF, AACC = 24, 64
    for i in range(9): e(f'ds_read_b128 v[{OF+4*i}:{OF+4*i+3}], v{vO3} offset:{1024 * i}')
    e(f'v_mul_u32_u24 v{vOut}, 1152, v{vOut}'); e(f'v_and_b32 v{vO3}, 48, v0'); e(f'v_add_u32 v{vOut}, v{vOut}, v{vO3}')
    OG, AC2, vMx = 88, 24, 1
    def og_load(i): return f'buffer_load_dwordx4 v[{OG+4*i}:{OG+4*i+3}], v{(vL16, vL4, vL2)[i // 4]}, {WSr}, s{sOp} offen' + (f' offset:{1024 * (i % 4)}' if i % 4 else '') + ' sc1'
    misc = latew + [f's_mul_i32 s{sT0}, s{sRG}, 18432', f's_mul_i32 s{sT1}, s{sHH}, 576', f's_add_u32 s{sT0}, s{sT0}, s{sT1}',
            f's_lshl_b32 s{sT1}, s{sW}, 7', f's_add_u32 s{sT1}, s{sT1}, s{sT0}', f's_and_b32 s{sT2}, s{sW}, 1', f's_lshl_b32 s{sT2}, s{sT2}, 3',
            f's_add_u32 s{sT0}, s{sT0}, s{sT2}', f's_andn2_b32 s{sT2}, {OOB}, s{ffn.sHF}', f'v_add_u32 v{vO3}, s{sT2}, v{vOut}', f's_mov_b32 s{sSpin}, 0']
    LDAT = cfg.get('ldat', 27); n = 0; nl = 0
    for i in range(9):
        for g in range(5):
            d = AACC + 4 * g
            e(mf16(d, quads[g * 9 + i], f'v[{OF+4*i}:{OF+4*i+3}]', '0' if i == 0 else f'v[{d}:{d+3}]')); n += 1
            if misc: e(misc.pop(0))
            elif n >= LDAT and (n - LDAT) % 2 == 0 and nl < 9: e(og_load(nl)); nl += 1
    while nl < 9: e(og_load(nl)); nl += 1
    pf.stamp(76)
    for i in range(20): e(f'v_sub_f32 v{AACC+i}, v{AACC+i}, v{BACC+i}')
    p.label('PO_go')
    for i in range(9):
        for g in range(5):
            d = AC2 + 4 * g
            e(mf16(d, quads[45 + g * 9 + i], f'v[{OG+4*i}:{OG+4*i+3}]', '0' if i == 0 else f'v[{d}:{d+3}]'))
            if g < 2: e(f'v_max3_u32 v{vMx}, v{OG+4*i+2*g}, v{OG+4*i+2*g+1}, ' + (f'v{vMx}' if i or g else '0'))
            if i == 8 and g == 2: e(f'v_cmp_eq_u32 vcc, -1, v{vMx}')
    e('s_cbranch_vccnz PO_spin')
    p.label('PO_done')
    pf.stamp(77)
    def po_out(q):
        r = q.raw
        q.label('PO_spin'); r(f's_add_u32 s{sSpin}, s{sSpin}, 1'); r(f's_cmp_gt_u32 s{sSpin}, 0x8000'); r('s_cbranch_scc1 PO_done')
        for i in range(9): r(og_load(i))
        r('s_waitcnt vmcnt(0)'); r('s_branch PO_go')
    ool.append(po_out)
    OUTr = f's[{SRD_OUT}:{SRD_OUT+3}]'
    for j in range(3):
        n = 8 if j < 2 else 4
        for i in range(n): e(f'v_add_f32 v{AACC+8*j+i}, v{AACC+8*j+i}, v{AC2+8*j+i}')
        for i in range(n): e(f'v_fma_f32 v{AACC+8*j+i}, v{vGt}, v{AACC+8*j+i}, v{BACC+8*j+i}')
        for i in range(n // 2): e(f'v_cvt_pk_bf16_f32 v{AACC+8*j+i}, v{AACC+8*j+2*i}, v{AACC+8*j+2*i+1}')
        if j < 2: e(f'buffer_store_dwordx4 v[{AACC+8*j}:{AACC+8*j+3}], v{vOut}, {OUTr}, s{sT1} offen offset:{64 * j}')
        else: e(f'buffer_store_dwordx2 v[{AACC+16}:{AACC+17}], v{vO3}, {OUTr}, s{sT0} offen offset:512')
    return ool

def build(cfg, path):
    name = NAME + '_kernel'
    p = Prog()
    kernel_header(p, name)
    p.e('s_cmp_ge_u32 s2, 256'); p.e('s_cbranch_scc1 K_exit')
    cfg = dict(cfg); cfg.setdefault('codepf', 74000); cfg.setdefault('hop', 1)
    pf = Prof(p, bool(cfg.get('prof')))
    pf.stamp(100, real=True); pf.stamp(101)
    ool = gen(p, cfg, pf)
    pf.stamp(102)
    if pf.on: p.e('s_waitcnt vmcnt(0)')
    pf.stamp(103); pf.stamp(104, real=True)
    pf.dump(SRD_WS, sW)
    p.label('K_exit'); p.e('s_endpgm')
    for f in ool: f(p)
    p.reset_tracking(); p.auto = False
    att.att_check(p, 'A', cfg, 'fallback')
    if cfg['hop']:
        n0 = len(p.ins)
        for w_ in range(4): p.label(f'PAD{w_}')
        p.e('s_endpgm')
    p.fix_hazards(verbose=cfg.get('verbose', False))
    if cfg['hop']:
        tail = p.ins[-5:]
        sv = p.ins; npad = insert_pads(p, 'MAIN', 'K_exit', 4, 'HOPBACK'); p.ins = p.ins[:-5]; print('pads', npad)
    if cfg.get('align', 0): print('align8 (promoted, still misaligned):', align8(p, cfg.get('maxspan', 3)))
    print('instrs', len(p.ins), 'nops added', p.nops_added)
    txt = ['; @launch grid=(256,1,1) block=(256,1,1) lds=163840', '.amdgcn_target "amdgcn-amd-amdhsa--gfx950"', '.text', p.text(),
           '.section .rodata,"a"', descriptor(name, 512, acc=256)]
    open(path, 'w').write('\n'.join(txt))
if __name__ == '__main__':
    build(eval(sys.argv[2]) if len(sys.argv) > 2 else {}, sys.argv[1])
```

```python
from common import *
from ffn import KVG, KVB, sW, sT0, sT1, sT2, SRD_WS, SRD_X

sRG, sHH, sCnt = 4, 5, 13
SRD_GW, SRD_OUT = 48, 52
sPerm = 14
vAK, vAV, vT = 1, 2, 4
QM = 12
QX = 20
PP = 36
SA, SB, OA, OB = 48, 64, 80, 96
KM, VV, KX = 112, 120, 136
CN = 144

def mf32(D, A, B, C): return f'v_mfma_f32_32x32x16_bf16 v[{D}:{D+15}], v[{A}:{A+3}], v[{B}:{B+3}], {C}'
def mf8(D, A, B, C): return f'v_mfma_f32_32x32x8_bf16 v[{D}:{D+15}], v[{A}:{A+1}], v[{B}:{B+1}], {C}'
def mf16(D, A, B, C): return f'v_mfma_f32_16x16x32_bf16 v[{D}:{D+3}], {A}, {B}, {C}'
def vr(a): return f'v[{a}:{a+15}]'

def att_ids(p):
    e = p.e
    e(f's_lshr_b32 s{sRG}, s2, 4'); e(f's_lshl_b32 s{sRG}, s{sRG}, 3')
    e(f's_and_b32 s{sT0}, s2, 7'); e(f's_add_u32 s{sRG}, s{sRG}, s{sT0}')
    e(f's_bfe_u32 s{sHH}, s2, 0x10003')

def att_addrs(p, cfg):
    e = p.e
    e(f'v_lshlrev_b32 v{vAK}, 4, v0')
    e(f'v_and_b32 v{vT}, 31, v0')
    if cfg.get('vzero', 1): e(f'v_mov_b32 v{vT+1}, 0x10000')
    else: e(f'v_subrev_u32 v{vT+1}, 16, v{vT}')
    e(f'v_cmp_lt_u32 vcc, 18, v{vT}')
    e(f'v_lshrrev_b32 v{vT+2}, 5, v0')
    e(f'v_mul_u32_u24 v{vT+2}, 304, v{vT+2}')
    e(f'v_cndmask_b32 v{vT}, v{vT}, v{vT+1}, vcc')
    e(f'v_lshl_add_u32 v{vAV}, v{vT}, 4, v{vT+2}')

def q_loads(p, fl=''):
    e = p.e; WSr = f's[{SRD_WS}:{SRD_WS+3}]'
    e(f's_lshl_b32 s{sT0}, s{sHH}, 4'); e(f's_lshl_b32 s{sT1}, s{sW}, 2'); e(f's_add_u32 s{sT0}, s{sT0}, s{sT1}')
    e(f's_lshl_b32 s{sT0}, s{sT0}, 11'); e(f's_lshl_b32 s{sT1}, s{sRG}, 4'); e(f's_add_u32 s{sT0}, s{sT0}, s{sT1}')
    e(f'v_bfe_u32 v{vT+3}, v0, 4, 1'); e(f'v_and_b32 v{vT+4}, 15, v0'); e(f'v_lshl_add_u32 v{vT+3}, v{vT+3}, 11, v{vT+4}')
    e(f'v_lshrrev_b32 v{vT+4}, 5, v0'); e(f'v_lshlrev_b32 v{vT+5}, 5, v{vT+3}'); e(f'v_lshl_add_u32 v{vT+5}, v{vT+4}, 4, v{vT+5}')
    e(f'v_lshlrev_b32 v{vT+3}, 2, v{vT+3}')
    e(f's_lshl_b32 s{sT1}, s{sT0}, 5'); e(f's_add_u32 s{sT1}, s{sT1}, {WS_QM}'); e(f's_add_u32 s{sT2}, s{sT1}, {2 * 65536}')
    e(f'buffer_load_dwordx4 v[{QM}:{QM+3}], v{vT+5}, {WSr}, s{sT1} offen {fl}')
    e(f'buffer_load_dwordx4 v[{QM+4}:{QM+7}], v{vT+5}, {WSr}, s{sT2} offen {fl}')
    e(f's_lshl_b32 s{sT1}, s{sT0}, 2'); e(f's_add_u32 s{sT1}, s{sT1}, {WS_QX}'); e(f's_add_u32 s{sT2}, s{sT1}, {2 * 8192}')
    e(f'buffer_load_dword v{vT+6}, v{vT+3}, {WSr}, s{sT1} offen {fl}')
    e(f'buffer_load_dword v{vT+7}, v{vT+3}, {WSr}, s{sT2} offen {fl}')

def q_variants(p):
    e = p.e
    e('v_cmp_gt_u32 vcc, 32, v0')
    for t in range(2):
        b = QX + 8 * t
        for r in (1, 2, 5, 6): e(f'v_mov_b32 v{b+r}, 0')
        e(f'v_cndmask_b32 v{b}, 0, v{vT+6+t}, vcc'); e(f'v_cndmask_b32 v{b+3}, 0, v{vT+6+t}, vcc')
        e(f'v_cndmask_b32_e64 v{b+4}, v{vT+6+t}, 0, vcc'); e(f'v_cndmask_b32_e64 v{b+7}, v{vT+6+t}, 0, vcc')

def boff(b): return (b >> 3) * KVG + 1024 + (b & 7) * KVB
def rdKM(b, base=0): return f'ds_read_b128 v[{KM+4*(b&1)}:{KM+4*(b&1)+3}], v{vAK} offset:{boff(b) - base}'
def rdV(b, i, base=0): return f'ds_read_b128 v[{VV+8*(b&1)+4*i}:{VV+8*(b&1)+4*i+3}], v{vAV} offset:{boff(b) + 1024 + 608 * i - base}'
def rdKX(g, base=0): return f'ds_read_b128 v[{KX+4*(g&1)}:{KX+4*(g&1)+3}], v{vAK} offset:{g * KVG - base}'
def qkx(b, t, D, C='0'):
    return mf8(D, KX + 4 * ((b >> 3) & 1) + 2 * ((b >> 1) & 1), QX + 8 * t + 4 * ((b >> 2) & 1) + 2 * (b & 1), C)

def half_step(p, b, t, base, cfg, extra=None, line=False):
    e = p.e
    cur, nxt = (SA, SB) if t == 0 else (SB, SA)
    Oc, Op_ = (OA, OB) if t == 0 else (OB, OA)
    nb, nt = (b, 1) if t == 0 else (b + 1, 0)
    pb = b - 1 if t == 0 else b
    pat = cfg.get('apat', 'E0 E1 PB r0 E2 E3 C0 C1 E4 w QX x0 E5 E6 E7 y0 C2 C3 E8 QM r1 E9 E10 E11 y1 C4 C5 E12 PA x1 E13 E14 E15 C6 C7')
    for tk in pat.split():
        if tk[0] == 'E': i = int(tk[1:]); e(f'v_exp_f32 v{cur+i}, v{cur+i}')
        elif tk[0] == 'C':
            i = int(tk[1:]); e(f'v_perm_b32 v{PP+i}, v{cur+2*i+1}, v{cur+2*i}, s{sPerm}' if cfg.get('perm') else f'v_cvt_pk_bf16_f32 v{PP+i}, v{cur+2*i}, v{cur+2*i+1}')
        elif tk[0] == 'D':
            i = int(tk[1:]); e(f'v_cvt_pk_bf16_f32 v{PP+i}, v{nxt+2*i}, v{nxt+2*i+1}')
        elif tk == 'PB':
            if not (line and pb < 0): e(mf32(Op_, VV + 8 * (pb & 1) + 4, PP + 4, vr(Op_)))
        elif tk == 'PA': e(mf32(Oc, VV + 8 * (b & 1), PP, '0' if (line and b == 0) else vr(Oc)))
        elif line and nb > 63 and tk in ('QX', 'QM', 'w'): pass
        elif line and b == 63 and tk[0] == 'r': pass
        elif tk == 'rK':
            if t == 0: e(rdKM(b + 1, base))
        elif tk == 'rA':
            if t == 0: e(rdV(b + 1, 0, base))
        elif tk == 'rB':
            if t == 0:
                e(rdV(b + 1, 1, base))
                if b % 8 == 3 and not (line and b > 56): e(rdKX((b >> 3) + 1, base))
        elif tk == 'QX': e(qkx(nb, nt, nxt))
        elif tk == 'QM': e(mf32(nxt, KM + 4 * (nb & 1), QM + 4 * nt, vr(nxt)))
        elif tk == 'w':
            if t == 1: e('s_waitcnt lgkmcnt(0)')
        elif tk == 'r0':
            if t == 0: e(rdKM(b + 1, base)); e(rdV(b + 1, 0, base))
        elif tk == 'r1':
            if t == 0:
                e(rdV(b + 1, 1, base))
                if b % 8 == 3 and not (line and b > 56): e(rdKX((b >> 3) + 1, base))
        elif tk[0] in 'xy':
            if extra: extra(2 * b + t, tk)
        else: raise ValueError(tk)

def att_pre(p):
    e = p.e
    e(rdKX(0)); e(rdKM(0)); e(rdV(0, 0)); e(rdV(0, 1))
    for i in range(16): e(f'v_mov_b32 v{OA+i}, 0'); e(f'v_mov_b32 v{OB+i}, 0')
    for i in range(4): e(f'v_mov_b32 v{PP+4+i}, 0'); e(f'v_mov_b32 v{VV+12+i}, 0')
    e('s_waitcnt lgkmcnt(0)')
    e(qkx(0, 0, SA)); e(mf32(SA, KM, QM, vr(SA)))

def att_loop(p, L, cfg):
    e = p.e
    att_pre(p)
    e(f's_mov_b32 s{sCnt}, 4'); e(f's_mov_b32 s{sPerm}, 0x07060302')
    e('s_nop 9')
    p.raw('.p2align 6'); p.label(f'{L}_loop')
    for b in range(16):
        for t in range(2): half_step(p, b, t, 0, cfg)
    for a in (vAK, vAV): e(f'v_add_u32 v{a}, {2 * KVG}, v{a}')
    e(f's_sub_u32 s{sCnt}, s{sCnt}, 1'); e(f's_cmp_lg_u32 s{sCnt}, 0'); e(f's_cbranch_scc1 {L}_loop')
    e(mf32(OB, VV + 12, PP + 4, vr(OB)))

def att_check(p, L, cfg, part=None):
    e = p.e
    def getl():
        for t, O in ((0, OA), (1, OB)):
            e(f'v_mov_b32 v{vT+2*t}, v{O+10}'); e(f'v_mov_b32 v{vT+2*t+1}, v{O+10}')
        for t in range(2): e(f'v_permlane32_swap_b32 v{vT+2*t}, v{vT+2*t+1}')
    M = 96
    if part == 'fallback':
        p.label(f'{L}_fb'); fallback(p, L, cfg); getl(); e(f's_branch {L}_ok'); return
    getl()
    lo, hi = int(f2u(2.0 ** -30), 16), int(f2u(2.0 ** 40), 16)
    e(f'v_subrev_u32 v{vT+1}, {lo}, v{vT}'); e(f'v_subrev_u32 v{vT+3}, {lo}, v{vT+2}'); e(f'v_max_u32 v{vT+1}, v{vT+1}, v{vT+3}')
    e(f'v_cmp_lt_u32 vcc, {hi - lo}, v{vT+1}'); e('s_cmp_lg_u64 vcc, 0')
    if part == 'test':
        e(f's_cbranch_scc1 {L}_fb'); p.label(f'{L}_ok'); return
    e(f's_cbranch_scc0 {L}_ok')
    fallback(p, L, cfg)
    getl()
    p.label(f'{L}_ok')

def fallback(p, L, cfg):
    e = p.e
    mx = vT + 4
    for t, O in ((0, OA), (1, OB)):
        att_addrs(p, cfg)
        e(f'v_mov_b32 v{mx}, 0xff800000'); e(f's_mov_b32 s{sCnt}, 8')
        p.label(f'{L}_f1{t}')
        e(rdKX(0))
        for b in range(8):
            e(rdKM(b)); e('s_waitcnt lgkmcnt(0)')
            e(qkx(b, t, SA)); e(mf32(SA, KM + 4 * (b & 1), QM + 4 * t, vr(SA)))
            for i in range(0, 16, 2): e(f'v_max3_f32 v{mx}, v{SA+i}, v{SA+i+1}, v{mx}')
        e(f'v_add_u32 v{vAK}, {KVG}, v{vAK}')
        e(f's_sub_u32 s{sCnt}, s{sCnt}, 1'); e(f's_cmp_lg_u32 s{sCnt}, 0'); e(f's_cbranch_scc1 {L}_f1{t}')
        e(f'v_mov_b32 v{mx+1}, v{mx}'); e(f'v_permlane32_swap_b32 v{mx}, v{mx+1}'); e(f'v_max_f32 v{mx}, v{mx}, v{mx+1}')
        att_addrs(p, cfg)
        for i in range(16): e(f'v_sub_f32 v{SB+i}, 0, v{mx}'); e(f'v_mov_b32 v{O+i}, 0')
        e(f's_mov_b32 s{sCnt}, 8')
        p.label(f'{L}_f2{t}')
        e(rdKX(0))
        for b in range(8):
            e(rdKM(b)); e(rdV(b, 0)); e(rdV(b, 1)); e('s_waitcnt lgkmcnt(0)')
            e(qkx(b, t, SA, vr(SB))); e(mf32(SA, KM + 4 * (b & 1), QM + 4 * t, vr(SA)))
            for i in range(16): e(f'v_exp_f32 v{SA+i}, v{SA+i}')
            for i in range(8): e(f'v_cvt_pk_bf16_f32 v{PP+i}, v{SA+2*i}, v{SA+2*i+1}')
            e(mf32(O, VV + 8 * (b & 1), PP, vr(O))); e(mf32(O, VV + 8 * (b & 1) + 4, PP + 4, vr(O)))
        for a in (vAK, vAV): e(f'v_add_u32 v{a}, {KVG}, v{a}')
        e(f's_sub_u32 s{sCnt}, s{sCnt}, 1'); e(f's_cmp_lg_u32 s{sCnt}, 0'); e(f's_cbranch_scc1 {L}_f2{t}')

def o_pack(p):
    e = p.e
    e(f'v_rcp_f32 v{vT}, v{vT}'); e(f'v_rcp_f32 v{vT+2}, v{vT+2}')
    for t, O in ((0, OA), (1, OB)):
        for i in range(10): e(f'v_mul_f32 v{O+i}, v{O+i}, v{vT+2*t}')
        for i in range(5): e(f'v_cvt_pk_bf16_f32 v{O+i}, v{O+2*i}, v{O+2*i+1}')

def gen_k2(p, cfg, pf):
    e = p.e
    load_ptrs(p)
    e('v_lshrrev_b32 v1, 6, v0'); e('v_and_b32 v0, 63, v0'); e(f'v_readfirstlane_b32 s{sW}, v1')
    att_ids(p)
    e('s_waitcnt lgkmcnt(0)')
    srd(p, SRD_WS, P_WS, WS_END)
    WSr = f's[{SRD_WS}:{SRD_WS+3}]'
    e(f'v_lshlrev_b32 v{vAK}, 4, v0')
    e(f's_lshl_b32 s{sT0}, s{sW}, 12')
    for i in range(10):
        e(f's_add_u32 m0, s{sT0}, {16384 * i}')
        e(f's_add_u32 s{sT1}, s{sT0}, {WS_KV + 16384 * i}')
        for q in range(4): e(f'buffer_load_dwordx4 v{vAK}, {WSr}, s{sT1} offen offset:{1024 * q} lds')
    q_loads(p); q_variants(p); att_addrs(p, cfg)
    e('s_waitcnt vmcnt(0)'); e('s_barrier')
    pf.stamp(0)
    p.auto = False
    att_loop(p, 'K2', cfg)
    p.auto = True; p.lg = []
    pf.stamp(1)
    att_check(p, 'K2', cfg)
    o_pack(p)
    e(f's_lshl_b32 s{sT0}, s{sRG}, 1'); e(f's_add_u32 s{sT0}, s{sT0}, s{sHH}'); e(f's_mul_i32 s{sT0}, s{sT0}, 9216'); e(f's_add_u32 s{sT0}, s{sT0}, {WS_O}')
    e(f's_lshl_b32 s{sT1}, s{sW}, 11'); e(f's_add_u32 s{sT1}, s{sT1}, s{sT0}')
    e(f'v_lshlrev_b32 v{vT}, 4, v0')
    e(f'buffer_store_dwordx4 v[{OA}:{OA+3}], v{vT}, {WSr}, s{sT1} offen')
    e(f'buffer_store_dwordx4 v[{OB}:{OB+3}], v{vT}, {WSr}, s{sT1} offen offset:1024')
    e(f's_lshl_b32 s{sT1}, s{sW}, 8'); e(f's_add_u32 s{sT1}, s{sT1}, s{sT0}'); e(f's_add_u32 s{sT1}, s{sT1}, 8192')
    e(f'v_and_b32 v{vT}, 15, v0'); e(f'v_lshlrev_b32 v{vT}, 4, v{vT}')
    e(f'v_bfe_u32 v{vT+1}, v0, 4, 1'); e(f'v_lshl_add_u32 v{vT}, v{vT+1}, 2, v{vT}')
    e(f'v_lshrrev_b32 v{vT+1}, 5, v0'); e(f'v_lshl_add_u32 v{vT}, v{vT+1}, 30, v{vT}')
    e(f'buffer_store_dword v{OA+4}, v{vT}, {WSr}, s{sT1} offen')
    e(f'buffer_store_dword v{OB+4}, v{vT}, {WSr}, s{sT1} offen offset:8')
```

```python
from common import *

KVG, KVB = 18944, 2240
sW, sM_, sS = 3, 4, 5
sA, sA4, sX, sMb = 6, 7, 8, 9
sT0, sT1, sT2 = 10, 11, 12
sFs, sHd, sK32 = 13, 14, 15
SRD_X, SRD_WG, SRD_WU, SRD_W4, SRD_WD, SRD_WS, SRD_WO = 44, 48, 52, 56, 60, 64, 68
sHF = 72
sP, sQm, sQx, sKV, sKX = 74, 75, 76, 77, 78
sWoD = 79
sWoJ = 80
sso, sso2, sK4, sPo, sQs = 88, 89, 90, 91, 92
vOffW, vOffD, vOffX = 1, 5, 9
vRd = 13
vH, vC1, vL16, vT = 19, 20, 21, 22
XA, XAT = 24, 28
AB = 32
G0, G1, UU = 64, 96, 128
GT = 160; NGT = 12
XV = 172
vB1, vB2, vSel, vSt1, vSt2, vAd = 204, 206, 208, 211, 212, 214
vDo, vTa, vTx, vHs, vXw, vXr, vHw, vH2 = 22, 23, 222, 223, 224, 225, 236, 237
X3 = 204
vDl, sDl = 218, 100
vPW, vPQ, vPD, vDum = 250, 251, 252, 253
sFp, sPC, sTc = 93, 98, 90
vWo = 226
NPL = 10
NQ = 2088

def xf(k, rt, n=4, o=0):
    i = (k * 4 + rt) * 4 + o
    if k < 16: return f'a[{i}:{i+n-1}]'
    i = XV + i - 256
    return f'v[{i}:{i+n-1}]'

def gen_ffn(p, cfg, pf):
    DMAX = cfg.get('dmax', 7)
    stf = cfg.get('stflags', '')
    kS = cfg.get('kS', 2); ND = cfg.get('nd', 3)
    rho = {k: k - (k > kS) for k in range(5) if k != kS}
    seqB = [(j, c) for j in range(ND) for c in (0, 1, 2, 3, 4, 5, 8)] + [(j, c) for j in range(ND) for c in (6, 7)] + [(j, c) for j in range(ND, 9) for c in range(9)]
    accB = ([G1, XV, X3][:ND] + [G0, G1] * 5)[:9]
    accB = [accB[j] if j < ND else (G1, G0)[j % 2] for j in range(9)]
    BAR = set(range(6)); b_ = 5
    for lim, step in cfg.get('bars', [(66, 1)]):
        while b_ + step <= min(lim, 65): b_ += step; BAR.add(b_)
    up = lambda b: min([x for x in BAR if x >= b] + [999]); dn = lambda b: max(x for x in BAR if x <= b)
    cfg['up'] = up
    bH = dn((1440 + 56 * ND - 10 - 15) // 32 + 1)
    e = p.e
    A = GT
    load_ptrs(p)
    e('v_lshrrev_b32 v1, 6, v0')
    e('v_and_b32 v0, 63, v0')
    e(f'v_readfirstlane_b32 s{sW}, v1')
    if cfg.get('codepf'):
        e(f's_getpc_b64 s[{sPC}:{sPC+1}]')
        e(f's_lshr_b32 s{sT1}, s2, 3'); e(f's_lshl_b32 s{sT1}, s{sT1}, 2'); e(f's_add_u32 s{sT1}, s{sT1}, s{sW}')
        e(f'v_lshlrev_b32 v{A+6}, 7, v0'); e(f'v_add_u32 v{A+6}, s{sT1}, v{A+6}')
        e(f'v_lshlrev_b32 v{A+6}, 7, v{A+6}'); e(f'v_min_u32 v{A+6}, {cfg["codepf"]}, v{A+6}')
        e(f'global_load_dword v{vDum}, v{A+6}, s[{sPC}:{sPC+1}]').dst = set()
    e(f's_and_b32 s{sT0}, s2, 7')
    e(f's_lshr_b32 s{sT1}, s2, 3')
    mx = cfg.get('xcd_m', 2)
    lm = int(math.log2(mx)); mper = 16 // mx; lmp = int(math.log2(mper)); sper = 32 // mper
    e(f's_and_b32 s{sM_}, s{sT0}, {mx - 1}')
    e(f's_mul_i32 s{sM_}, s{sM_}, {mper}')
    e(f's_and_b32 s{sT2}, s{sT1}, {mper - 1}')
    e(f's_add_u32 s{sM_}, s{sM_}, s{sT2}')
    e(f's_lshr_b32 s{sS}, s{sT0}, {lm}')
    e(f's_mul_i32 s{sS}, s{sS}, {sper}')
    e(f's_lshr_b32 s{sT2}, s{sT1}, {lmp}')
    e(f's_add_u32 s{sS}, s{sS}, s{sT2}')
    row, l4, g16 = A, A + 1, A + 2
    e(f'v_lshrrev_b32 v{row}, 3, v0')
    e(f'v_lshrrev_b32 v{l4}, 4, v0')
    e(f'v_and_b32 v{A+3}, 7, v0')
    e(f'v_xor_b32 v{A+4}, v{A+3}, v{l4}')
    e(f'v_lshlrev_b32 v{A+4}, 4, v{A+4}')
    e(f'v_mul_u32_u24 v{A+5}, 1152, v{row}')
    e(f'v_add_u32 v{vOffX}, v{A+4}, v{A+5}')
    e(f'v_xor_b32 v{vOffX+1}, 64, v{vOffX}')
    e(f'v_add_u32 v{vOffX+1}, {8192}, v{vOffX+1}')
    e(f'v_add_u32 v{vOffX+2}, {2 * 8192}, v{vOffX}')
    e(f'v_add_u32 v{vOffX+3}, {2 * 8192}, v{vOffX+1}')
    e(f's_lshl_b32 s{sMb}, s{sW}, 12')
    e(f's_lshl_b32 s{sK32}, s{sW}, 5')
    e(f's_lshl_b32 s{sX}, s{sM_}, 7')
    e(f's_add_u32 s{sX}, s{sX}, s{sK32}')
    e(f's_mul_i32 s{sX}, s{sX}, 1152')
    e(f'v_lshlrev_b32 v{g16}, 1, v{l4}')
    e(f'v_xor_b32 v{g16}, v{A+3}, v{g16}')
    e(f'v_lshlrev_b32 v{A+4}, 4, v{g16}')
    e(f'v_and_b32 v{A+6}, 4, v{row}'); e(f'v_add_u32 v{A+6}, v{A+6}, v{row}')
    e(f'v_mul_u32_u24 v{vOffW}, 9216, v{A+6}')
    e(f'v_add_u32 v{vOffW}, v{vOffW}, v{A+4}')
    for q in (1, 2, 3): e(f'v_add_u32 v{vOffW+q}, {(0, 16, 4, 20)[q] * 9216 - 1024 * q}, v{vOffW}')
    e(f's_mul_i32 s{sT2}, s{sS}, 576')
    e(f's_bitcmp1_b32 s{sS}, 0')
    e(f's_cselect_b32 s{sT0}, 64, 0')
    e(f's_cselect_b32 s{sFs}, 0, 512')
    e(f's_add_u32 s{sFp}, s{sT0}, s{sT2}')
    e(f's_add_u32 s{sFs}, s{sFs}, s{sT2}')
    rot = cfg.get('rot', 8)
    if rot == 8:
        xs_ = 8 // sper if sper <= 8 else 1; ms_ = 8 // mper if mper <= 8 else 1
        e(f's_mul_i32 s{sA}, s{sS}, {xs_}'); e(f's_mul_i32 s{sT2}, s{sM_}, {ms_}'); e(f's_add_u32 s{sA}, s{sA}, s{sT2}'); e(f's_and_b32 s{sA}, s{sA}, 7')
    elif rot == 4:
        e(f's_add_u32 s{sA}, s{sS}, s{sM_}'); e(f's_and_b32 s{sA}, s{sA}, 3'); e(f's_mul_i32 s{sA}, s{sA}, 9'); e(f's_lshr_b32 s{sA}, s{sA}, 2')
    else: e(f's_mov_b32 s{sA}, 0')
    e(f'v_add_u32 v{A+6}, s{sA}, v0'); e(f'v_subrev_u32 v{A+7}, 9, v{A+6}'); e(f'v_min_u32 v{A+6}, v{A+6}, v{A+7}')
    e(f'v_lshlrev_b32 v{A+6}, 7, v{A+6}'); e(f'v_add_u32 v{vTx}, s{sX}, v{A+6}')
    e(f'v_mul_u32_u24 v{A+6}, 7282, v0'); e(f'v_lshrrev_b32 v{A+6}, 16, v{A+6}')
    e(f'v_mul_u32_u24 v{A+7}, 9, v{A+6}'); e(f'v_sub_u32 v{A+7}, v0, v{A+7}')
    e(f'v_lshlrev_b32 v{A+7}, 2, v{A+7}'); e(f'v_add_u32 v{A+7}, s{sW}, v{A+7}')
    e(f'v_subrev_u32 v{A+8}, 18, v{A+7}'); e(f'v_min_u32 v{A+7}, v{A+7}, v{A+8}')
    e(f's_lshl_b32 s{sT2}, s{sA}, 1'); e(f'v_add_u32 v{A+7}, s{sT2}, v{A+7}')
    e(f'v_subrev_u32 v{A+8}, 18, v{A+7}'); e(f'v_min_u32 v{A+7}, v{A+7}, v{A+8}')
    e(f'v_cmp_lt_u32 vcc, {kS}, v{A+6}'); e(f'v_mul_u32_u24 v{A+8}, 294912, v{A+7}'); e(f'v_add_u32 v{A+8}, s{sFp}, v{A+8}')
    e(f'v_subbrev_co_u32 v{A+9}, vcc, 0, v{A+6}, vcc')
    e(f'v_cmp_ne_u32 vcc, {kS}, v{A+6}'); e(f'v_lshl_add_u32 v{A+8}, v{A+9}, 7, v{A+8}'); e(f'v_lshlrev_b32 v{A+7}, 5, v{A+7}')
    e(f'v_cndmask_b32 v{vTa}, v{A+7}, v{A+8}, vcc')
    e('s_waitcnt lgkmcnt(0)')
    srd(p, SRD_X, P_X, 2048 * 1152)
    srd(p, SRD_WG, P_WG, 576 * 9216)

    NU = 66
    HWD = cfg.get('hwd', 2)
    items = []
    for U in range(NU):
        if U < 5:
            for cx in ([2 * U, 2 * U + 1] if U < 4 else [8]): items.append(('X', cx, U))
        items.append(('W', U, dn(U)))
    resv = {pl: [] for pl in range(NPL)}
    for k in rho: resv[rho[k]].append((9 * (k + 1) + HWD, up(46) if k < 4 else up(bH + 1)))
    resv[4].append((9 * kS + 5, up(46)))
    if cfg.get('kvb0'):
        for k in range(5): resv[k].append((cfg['kvb0'] + cfg['kv_at'][k], 999))
    busy = {pl: -1 for pl in range(NPL)}
    place = {}; issue_at = {}; nxt = 0
    for b in range(-1, NU):
        lst = []
        while nxt < len(items):
            kind, idx, need = items[nxt]; fb = up(need + 1)
            r0, r1, r2_ = cfg.get('ramp', (7, 0, 1))
            if b >= 0 and (need - b > max(r0, min(DMAX, r0 + (b - r1) // r2_)) or len(lst) >= cfg.get('maxissue', 3)): break
            if b < 0 and len(lst) >= cfg.get('pro_units', 6): break
            cand = [pl for pl in range(NPL) if busy[pl] <= b and all(fb <= rs or b >= re for rs, re in resv[pl])]
            if not cand: break
            cand.sort(key=lambda pl: min([rs for rs, re in resv[pl] if rs >= fb] + [999]))
            pl = cand[0]; assert need > b
            place[(kind, idx)] = pl; busy[pl] = fb
            lst.append(items[nxt]); nxt += 1
        issue_at[b] = lst
    assert nxt == len(items)
    if cfg.get('verbose'):
        for b in range(-1, NU): print(b, [(k, i, place[(k, i)]) for k, i, n in issue_at[b]])

    def dma_instrs(kind, idx):
        pl = place[(kind, idx)]; tag = (kind, idx)
        m0 = (f's_add_u32 m0, s{sMb}, {pl * 16384}', None)
        def four(vo, sr): return [(f'buffer_load_dwordx4 v{vo+q}, s[{sr}:{sr+3}], s{sso} offen' + (f' offset:{1024*q}' if q else '') + ' lds', tag) for q in range(4)]
        if kind == 'X':
            return [(f'v_readlane_b32 s{sso}, v{vTx}, {idx}', None), m0] + four(vOffX, SRD_X)
        U = idx
        if U < 45 and U // 9 != kS:
            u = U % 9
            sr = SRD_WG if u < 4 else (SRD_W4 if u == 4 else SRD_WU)
            return [(f'v_readlane_b32 s{sso}, v{vTa}, {U}', None), m0] + four(vOffW, sr)
        if U < 45:
            u = U % 9
            b_, st = (vB1, vSt1) if u < 4 else ((vB2, vSt2) if u > 4 else (vSel, vSel + 2))
            dl = f's[{sDl}:{sDl+1}]' if u < 4 else (f'v[{vDl}:{vDl+1}]' if u > 4 else f'v[{vDl+2}:{vDl+3}]')
            ad = lambda q: f'v[{vAd+2*(q&1)}:{vAd+2*(q&1)+1}]'
            out = [(f'v_readlane_b32 s{sso}, v{vTa}, {U}', None), m0, (f'v_mad_u64_u32 {ad(0)}, vcc, v{st}, s{sso}, v[{b_}:{b_+1}]', None)]
            for hq in range(2):
                if hq: out += [(f's_add_u32 s{sso}, s{sso}, 4', None), (f's_add_u32 m0, s{sMb}, {pl * 16384 + 2048}', None),
                               (f'v_mad_u64_u32 {ad(0)}, vcc, v{st}, s{sso}, v[{b_}:{b_+1}]', None)]
                out += [(f'global_load_lds_dwordx4 {ad(0)}, off', tag), (f'v_lshl_add_u64 {ad(1)}, {ad(0)}, 0, {dl}', None),
                        (f'global_load_lds_dwordx4 {ad(1)}, off offset:1024', tag)]
            return out
        return [(f'v_readlane_b32 s{sso}, v{vDo}, {U - 45}', None), m0] + four(vOffD, SRD_WD)

    PF = cfg.get('prefetch', 4)
    if PF & 1:
        nrow = 128 // (4 * sper)
        e(f's_and_b32 s{sT1}, s{sS}, {sper - 1}'); e(f's_lshl_b32 s{sT1}, s{sT1}, 2'); e(f's_add_u32 s{sT1}, s{sT1}, s{sW}')
        e(f's_mul_i32 s{sT1}, s{sT1}, {nrow * 1152}'); e(f's_mul_i32 s{sT2}, s{sM_}, {128 * 1152}'); e(f's_add_u32 s{sT1}, s{sT1}, s{sT2}')
        e(f'v_lshl_add_u32 v{A+6}, v{A+3}, 7, v{A+5}')
        if nrow < 8:
            e(f'v_cmp_gt_u32 vcc, {8 * nrow}, v0'); e(f'v_mov_b32 v{A+7}, {OOB}'); e(f'v_cndmask_b32 v{A+6}, v{A+7}, v{A+6}, vcc')
        for i in range(max(1, nrow // 8)):
            e(f'buffer_load_dword v{vDum}, v{A+6}, s[{SRD_X}:{SRD_X+3}], s{sT1} offen offset:128').dst = set()
            if i + 1 < nrow // 8: e(f's_add_u32 s{sT1}, s{sT1}, 9216')
    pro = []
    for kind, idx, need in issue_at[-1]:
        assert kind == 'X' or idx < 4
        pro += dma_instrs(kind, idx)
    srd(p, SRD_WU, P_WU, 576 * 9216)
    e(f's_cmp_ge_u32 s{sW}, 2')
    e(f's_cselect_b32 s{SRD_W4}, s{SRD_WU}, s{SRD_WG}')
    e(f's_cselect_b32 s{SRD_W4+1}, s{SRD_WU+1}, s{SRD_WG+1}')
    e(f's_mov_b32 s{SRD_W4+2}, {576 * 9216}')
    e(f's_mov_b32 s{SRD_W4+3}, 0x20000')
    wrows = 576 // (2 * mper)
    def wtouch(col):
        return [f'buffer_load_dword v{vDum}, v{vPW}, s[{SRD_W4}:{SRD_W4+3}], {col} offen' + (f' offset:0' if 0 else '')]
    if PF & 3:
        assert wrows <= 64 or wrows == 72
        e(f's_and_b32 s{sT1}, s{sM_}, {mper - 1}'); e(f's_lshl_b32 s{sT1}, s{sT1}, 1'); e(f's_and_b32 s{sT2}, s{sW}, 1'); e(f's_add_u32 s{sT1}, s{sT1}, s{sT2}')
        e(f's_mul_i32 s{sT1}, s{sT1}, {wrows}')
        WL = cfg.get('pfwl', 9)
        e(f'v_min_u32 v{A+6}, {WL - 1}, v0'); e(f'v_add_u32 v{A+6}, s{sT1}, v{A+6}'); e(f'v_mul_u32_u24 v{vPW}, 9216, v{A+6}')
        if PF & 1: e(wtouch(f's{sFp}')[0]).dst = set()
    npre = cfg.get('pro_first', 18)
    for t, tag in pro[:npre]: e(t, tag=tag)
    pro = pro[npre:]
    e0 = e; cnt_ = [0]
    def e(t, **kw):
        r = e0(t, **kw); cnt_[0] += 1
        if pro and cnt_[0] % cfg.get('pro_every', 1000) == 0 and not t.startswith(('s_cmp', 's_cselect', 's_bitcmp')):
            while pro:
                t2, tag = pro.pop(0); e0(t2, tag=tag)
                if tag: break
        return r

    e(f'v_add_u32 v{vOffD}, v{A+4}, v{A+5}')
    for q in (1, 2, 3): e(f'v_add_u32 v{vOffD+q}, {q * 8192}, v{vOffD}')
    srd(p, SRD_WD, P_WD, 4608 * 1152)
    srd(p, SRD_WS, P_WS, WS_END)
    srd(p, SRD_WO, P_WO, 576 * 1152)
    e(f's_cmp_ge_u32 s{sW}, 2')
    e(f's_cselect_b64 s[{sHF}:{sHF+1}], -1, 0')
    e(f's_cselect_b32 s{sHd}, 1, 0')
    e(f'v_lshrrev_b32 v{A+3}, 2, v0')
    e(f'v_bfe_u32 v{A+6}, v0, 3, 2')
    e(f's_and_b32 s{sT0}, s{sHF}, 2')
    e(f'v_xor_b32 v{A+6}, s{sT0}, v{A+6}')
    e(f'v_lshlrev_b32 v{A+6}, 5, v{A+6}')
    e(f'v_lshl_add_u32 v{A+6}, v{A+3}, 7, v{A+6}')
    e(f'v_and_b32 v{A+3}, 3, v0')
    e(f'v_lshl_add_u32 v{vRd}, v{A+3}, 3, v{A+6}')
    e(f'v_xor_b32 v{vRd+3}, 32, v{vRd}')
    for wd in (1, 2):
        e(f'v_add_u32 v{vRd+wd}, {65536 * wd}, v{vRd}')
        e(f'v_add_u32 v{vRd+3+wd}, {65536 * wd}, v{vRd+3}')
    e(f's_and_b32 s{sT0}, s{sW}, 1')
    e(f'v_lshrrev_b32 v{A+3}, 4, v0')
    e(f'v_bfe_u32 v{A+6}, v0, 1, 3')
    e(f'v_xor_b32 v{A+6}, v{A+6}, v{A+3}')
    e(f'v_lshlrev_b32 v{A+6}, 4, v{A+6}')
    e(f'v_and_b32 v{A+3}, 15, v0')
    e(f'v_lshl_add_u32 v{A+6}, v{A+3}, 7, v{A+6}')
    e(f's_lshl_b32 s{sT1}, s{sT0}, 13')
    e(f'v_add_u32 v{XA}, s{sT1}, v{A+6}')
    e(f'v_xor_b32 v{XA+1}, 64, v{XA}')
    for wd in (1, 2):
        for q in range(2): e(f'v_add_u32 v{XA+2*wd+q}, {65536 * wd}, v{XA+q}')
    e(f'v_lshlrev_b32 v{vL16}, 4, v0')
    e(f's_lshl_b32 s{sT1}, s{sT0}, 12')
    e(f'v_add_u32 v{vH}, s{sT1}, v{vL16}')
    e(f'v_mov_b32 v{vC1}, {f2u(GC1)}')
    late = []
    L = late.append
    B = vWo
    B = 238
    L(f's_and_b32 s{sT2}, s{sHF}, 8192'); L(f'v_add_u32 v{vHw}, s{sT2}, v{vH}')
    L(f'v_add_u32 v{vH2}, 65536, v{vH}'); L(f's_and_b32 s{sT2}, s{sHF}, 2048'); L(f'v_add_u32 v{vHs}, s{sT2}, v{vH2}')
    L(f's_add_u32 s{sT2}, s{sMb}, 65536'); L(f'v_add_u32 v{vXw}, s{sT2}, v{vL16}')
    L(f'v_xor_b32 v{vXr}, 8192, v{vXw}')
    L(f's_and_b32 s{sT0}, s{sW}, 1')
    L(f's_lshl_b32 s{sP}, s{sM_}, 4'); L(f's_add_u32 s{sP}, s{sP}, s{sS}'); L(f's_mul_i32 s{sP}, s{sP}, 147456')
    L(f's_lshl_b32 s{sT1}, s{sT0}, 12'); L(f's_add_u32 s{sP}, s{sP}, s{sT1}')
    L(f's_and_b32 s{sT1}, s{sHF}, 8192'); L(f's_add_u32 s{sP}, s{sP}, s{sT1}')
    assert WS_P == 0
    L(f's_lshl_b32 s{sT1}, s{sS}, 1'); L(f's_add_u32 s{sHd}, s{sHd}, s{sT1}')
    L(f's_lshl_b32 s{sT1}, s{sM_}, 1'); L(f's_add_u32 s{sT1}, s{sT1}, s{sT0}')
    L(f's_lshr_b32 s{sT2}, s{sT1}, 2'); L(f's_mul_i32 s{sKX}, s{sT2}, {KVG}'); L(f's_add_u32 s{sKX}, s{sKX}, {WS_KV}')
    L(f's_and_b32 s{sT2}, s{sT1}, 3'); L(f's_mul_i32 s{sKV}, s{sT2}, {2 * KVB}'); L(f's_add_u32 s{sKV}, s{sKV}, s{sKX}')
    L(f's_add_u32 s{sKV}, s{sKV}, 1024')
    L(f's_and_b32 s{sT2}, s{sM_}, 1'); L(f's_lshl_b32 s{sT2}, s{sT2}, 9'); L(f's_add_u32 s{sKX}, s{sKX}, s{sT2}')
    L(f's_lshl_b32 s{sT2}, s{sT0}, 3'); L(f's_add_u32 s{sKX}, s{sKX}, s{sT2}')
    L(f's_lshl_b32 s{sT2}, s{sHd}, 5'); L(f's_add_u32 s{sT1}, s{sT1}, s{sT2}')
    L(f's_lshl_b32 s{sQm}, s{sT1}, 11'); L(f's_add_u32 s{sQm}, s{sQm}, {WS_QM}')
    L(f's_lshl_b32 s{sQx}, s{sT1}, 8'); L(f's_add_u32 s{sQx}, s{sQx}, {WS_QX}')
    L(f's_mov_b32 s{sQs}, {f2u(QSCALE)}')
    L(f'v_lshlrev_b32 v{B}, 2, v0'); L(f'v_add_u32 v{B}, s{sW}, v{B}')
    L(f'v_mul_u32_u24 v{B+1}, 7282, v{B}'); L(f'v_lshrrev_b32 v{B+1}, 16, v{B+1}')
    L(f'v_mul_u32_u24 v{B+2}, 9, v{B+1}'); L(f'v_sub_u32 v{B+2}, v{B}, v{B+2}')
    L(f'v_cmp_gt_u32 vcc, {9 * ND}, v{B}'); L(f'v_subrev_u32 v{B+3}, {7 * ND}, v{B}')
    L(f'v_lshrrev_b32 v{B+4}, 1, v{B+3}'); L(f'v_and_or_b32 v{B+3}, v{B+3}, 1, 6')
    L(f'v_cndmask_b32 v{B+1}, v{B+1}, v{B+4}, vcc'); L(f'v_cndmask_b32 v{B+2}, v{B+2}, v{B+3}, vcc')
    L(f'v_mul_u32_u24 v{B+4}, 9363, v{B}'); L(f'v_lshrrev_b32 v{B+4}, 16, v{B+4}')
    L(f'v_mul_u32_u24 v{B+3}, 7, v{B+4}'); L(f'v_sub_u32 v{B+3}, v{B}, v{B+3}')
    L(f'v_cmp_eq_u32 vcc, 6, v{B+3}'); L('s_nop 1'); L(f'v_cndmask_b32_e64 v{B+3}, v{B+3}, 8, vcc')
    L(f'v_cmp_gt_u32 vcc, {7 * ND}, v{B}'); L('s_nop 1')
    L(f'v_cndmask_b32 v{B+1}, v{B+1}, v{B+4}, vcc'); L(f'v_cndmask_b32 v{B}, v{B+2}, v{B+3}, vcc')
    L(f's_and_b32 s{sT2}, s{sS}, 1'); L(f'v_add_u32 v{B}, s{sT2}, v{B}')
    L(f'v_cmp_eq_u32 vcc, 9, v{B}'); L(f's_mul_i32 s{sT2}, s{sS}, 331776'); L(f'v_lshlrev_b32 v{B+1}, 7, v{B+1}')
    L(f'v_cndmask_b32_e64 v{B}, v{B}, 0, vcc')
    L(f'v_mul_u32_u24 v{B}, 36864, v{B}'); L(f'v_add3_u32 v{vDo}, v{B}, v{B+1}, s{sT2}')
    rw, gg, ch, z = B, B + 1, B + 2, B + 3
    L(f'v_lshrrev_b32 v{rw}, 3, v0'); L(f'v_and_b32 v{gg}, 4, v{rw}'); L(f'v_add_u32 v{rw}, v{rw}, v{gg}'); L(f'v_bfe_u32 v{gg}, v{vOffD}, 4, 3')
    L(f'v_mov_b32 v{vSt1}, 9216')
    L(f'v_cmp_gt_u32 vcc, 4, v{gg}')
    L(f'v_mov_b32 v{B+4}, s{P_WU}'); L(f'v_mov_b32 v{B+5}, s{P_WG}'); L(f'v_cndmask_b32 v{vB1}, v{B+4}, v{B+5}, vcc')
    L(f'v_mov_b32 v{B+4}, s{P_WU+1}'); L(f'v_mov_b32 v{B+5}, s{P_WG+1}'); L(f'v_cndmask_b32 v{vB1+1}, v{B+4}, v{B+5}, vcc')
    L(f'v_and_b32 v{ch}, 3, v{gg}'); L(f'v_lshlrev_b32 v{B+4}, 4, v{ch}'); L(f'v_add_u32 v{B+5}, s{sFs}, v{B+4}')
    L(f'v_mad_u32_u24 v{B+5}, v{rw}, v{vSt1}, v{B+5}')
    L(f'v_add_co_u32 v{vB1}, vcc, v{vB1}, v{B+5}')
    L(f'v_lshrrev_b32 v{z}, 2, v{gg}'); L(f's_lshl_b32 s{sT0}, s{sS}, 1')
    L(f'v_addc_co_u32 v{vB1+1}, vcc, 0, v{vB1+1}, vcc')
    L(f'v_add_u32 v{z}, s{sT0}, v{z}')
    L(f'v_min_u32 v{B+4}, 20, v{B+4}'); L(f'v_mad_u32_u24 v{B+4}, v{z}, 36, v{B+4}')
    L(f'v_cmp_gt_u32 vcc, 3, v{z}'); L(f'v_subrev_u32 v{B+5}, 3, v{z}')
    L(f'v_mov_b32 v{B+6}, s{P_WV}'); L(f'v_mov_b32 v{B+7}, s{P_WK}')
    L(f'v_cndmask_b32 v{B+5}, v{B+5}, v{z}, vcc'); L(f'v_cndmask_b32 v{vB2}, v{B+6}, v{B+7}, vcc')
    L(f'v_mov_b32 v{B+6}, s{P_WV+1}'); L(f'v_mov_b32 v{B+7}, s{P_WK+1}'); L(f'v_cndmask_b32 v{vB2+1}, v{B+6}, v{B+7}, vcc')
    L(f'v_lshlrev_b32 v{B+5}, 4, v{B+5}'); L(f'v_min_u32 v{B+5}, 20, v{B+5}')
    L(f'v_cmp_eq_u32 vcc, 6, v{z}'); L(f'v_mov_b32 v{B+6}, s{P_GW}'); L(f'v_mov_b32 v{B+7}, s{P_GW+1}')
    L(f'v_cndmask_b32 v{vB2}, v{vB2}, v{B+6}, vcc'); L(f'v_cndmask_b32 v{vB2+1}, v{vB2+1}, v{B+7}, vcc')
    L(f'v_cndmask_b32_e64 v{B+5}, v{B+5}, 0, vcc'); L(f'v_cndmask_b32_e64 v{B+9}, 36, 2, vcc')
    L(f'v_sub_u32 v{B+6}, 3, v{ch}'); L(f'v_lshl_add_u32 v{B+6}, v{B+6}, 6, v{z}')
    L(f'v_cmp_gt_u32 vcc, 7, v{B+6}')
    L(f'v_mov_b32 v{B+6}, s{P_WQ}'); L(f'v_mov_b32 v{B+7}, s{P_WQ+1}'); L(f'v_mov_b32 v{B+8}, 1152')
    L(f'v_cndmask_b32 v{vB2}, v{B+6}, v{vB2}, vcc'); L(f'v_cndmask_b32 v{vB2+1}, v{B+7}, v{vB2+1}, vcc')
    L(f'v_cndmask_b32 v{B+4}, v{B+4}, v{B+5}, vcc'); L(f'v_cndmask_b32 v{vSt2}, v{B+8}, v{B+9}, vcc')
    L(f'v_mad_u32_u24 v{B+4}, v{rw}, v{vSt2}, v{B+4}')
    L(f'v_add_co_u32 v{vB2}, vcc, v{vB2}, v{B+4}')
    L(f'v_cndmask_b32 v{vSel}, v{vB1}, v{vB2}, s[{sHF}:{sHF+1}]'); L(f'v_cndmask_b32 v{vSel+2}, v{vSt1}, v{vSt2}, s[{sHF}:{sHF+1}]')
    L(f'v_addc_co_u32 v{vB2+1}, vcc, 0, v{vB2+1}, vcc')
    L(f'v_cndmask_b32 v{vSel+1}, v{vB1+1}, v{vB2+1}, s[{sHF}:{sHF+1}]')
    L(f's_mov_b32 s{sDl}, {16 * 9216 - 1024}'); L(f's_mov_b32 s{sDl+1}, 0')
    for o_, st_ in ((0, vSt2), (2, vSel + 2)):
        L(f'v_lshlrev_b32 v{vDl+o_}, 4, v{st_}'); L(f'v_subrev_u32 v{vDl+o_}, 1024, v{vDl+o_}'); L(f'v_ashrrev_i32 v{vDl+o_+1}, 31, v{vDl+o_}')
    if PF:
        npair = 4 * mper
        L(f's_and_b32 s{sT1}, s{sM_}, {mper - 1}'); L(f's_lshl_b32 s{sT1}, s{sT1}, 2'); L(f's_add_u32 s{sT1}, s{sT1}, s{sW}')
        L(f's_mul_i32 s{sT2}, s{sT1}, {331776 // npair}'); L(f's_mul_i32 s{sT0}, s{sS}, 331776'); L(f's_add_u32 s{sT2}, s{sT2}, s{sT0}')
        DL = cfg.get('pfdl', 21)
        L(f'v_min_u32 v{vPD}, {DL - 1}, v0'); L(f'v_lshlrev_b32 v{vPD}, 7, v{vPD}'); L(f'v_add_u32 v{vPD}, s{sT2}, v{vPD}')
        qrows = 576 // npair
        L(f's_mul_i32 s{sT1}, s{sT1}, {qrows * 1152}'); L(f's_mul_i32 s{sT0}, s{sS}, 72'); L(f's_add_u32 s{sT1}, s{sT1}, s{sT0}')
        L(f'v_lshrrev_b32 v{B}, 1, v0'); L(f'v_min_u32 v{B}, {min(qrows, 32) - 1}, v{B}'); L(f'v_mul_u32_u24 v{B}, 1152, v{B}')
        L(f'v_and_b32 v{B+1}, 1, v0'); L(f'v_mul_u32_u24 v{B+1}, 68, v{B+1}'); L(f'v_add3_u32 v{vPQ}, v{B}, v{B+1}, s{sT1}')
    for t in late: e(t)
    e(f's_mul_i32 s{sT0}, s2, 3'); e(f's_add_u32 s{sT0}, s{sT0}, s{sW}')
    e(f's_mul_hi_u32 s{sT1}, s{sT0}, {(2**32 + 17) // 18}')
    e(f's_mul_i32 s{sT2}, s{sT1}, 18'); e(f's_sub_u32 s{sT2}, s{sT0}, s{sT2}')
    e(f's_lshl_b32 s{sWoD}, s{sT0}, 10'); e(f's_add_u32 s{sWoD}, s{sWoD}, {WS_WO}')
    e(f's_lshr_b32 s{sso2}, s{sT1}, 1'); e(f's_lshl_b32 s{sso2}, s{sso2}, 6')
    e(f's_and_b32 s{sT1}, s{sT1}, 1'); e(f's_lshl_b32 s{sT1}, s{sT1}, 3'); e(f's_add_u32 s{sso2}, s{sso2}, s{sT1}')
    e(f'v_bfe_u32 v{A}, v0, 2, 2'); e(f'v_and_b32 v{A+2}, 3, v0'); e(f'v_lshlrev_b32 v{A+2}, 1, v{A+2}')
    e(f'v_lshl_add_u32 v{A}, v{A}, 4, v{A+2}'); e(f'v_add_u32 v{A}, s{sso2}, v{A}')
    e(f'v_bfe_u32 v{A+2}, v0, 4, 1'); e(f'v_mul_u32_u24 v{A+2}, 18, v{A+2}')
    e(f'v_lshrrev_b32 v{A+1}, 5, v0'); e(f'v_lshl_add_u32 v{A+2}, v{A+1}, 2, v{A+2}')
    e(f'v_lshrrev_b32 v{A+4}, 4, v0'); e(f'v_mul_u32_u24 v{A+4}, 72, v{A+4}')
    e(f's_cmp_ge_u32 s{sT2}, 9'); e(f's_cselect_b32 s{sso2}, 1, 0')
    e(f's_sub_u32 s{sT1}, s{sT2}, s{sso2}'); e(f's_mul_i32 s{sT1}, s{sT1}, 36')
    e(f's_mul_i32 s{sWoJ}, s{sso2}, 9'); e(f's_sub_u32 s{sT2}, s{sT2}, s{sWoJ}')
    e(f's_mul_i32 s{sso2}, s{sso2}, 288'); e(f's_add_u32 s{sso2}, s{sso2}, 16')
    e(f's_cmp_eq_u32 s{sT2}, 8'); e(f's_cselect_b64 vcc, -1, 0'); e(f's_cselect_b32 s{sT1}, s{sso2}, s{sT1}')
    for j in range(8): e(f's_cselect_b32 s{sWoJ+j}, {18 * (j >> 1) + (j & 1)}, {8 * (j >> 2) + (j & 3)}')
    for j in range(8): e(f's_mul_i32 s{sWoJ+j}, s{sWoJ+j}, 1152')
    e(f'v_cndmask_b32 v{A+2}, v{A+2}, v{A+4}, vcc'); e(f'v_add_u32 v{A+2}, s{sT1}, v{A+2}')
    e(f'v_mul_u32_u24 v{A+2}, 1152, v{A+2}'); e(f'v_add_u32 v{vWo}, v{A}, v{A+2}')
    e(f's_cmp_lt_u32 s{sW}, 3'); e(f's_cselect_b32 s{sT1}, 648, 0'); e(f's_cmp_lt_u32 s{sT0}, s{sT1}')
    e(f's_cselect_b32 s{sT1}, 0, {OOB}')
    e(f'v_add_u32 v{vWo}, s{sT1}, v{vWo}'); e(f'v_add_u32 v{vWo+1}, s{sT1}, v{vL16}')

    for j in range(8): e(f'buffer_load_ushort v{vWo+2+j}, v{vWo}, s[{SRD_WO}:{SRD_WO+3}], s{sWoJ+j} offen')
    if cfg.get('fake'): e(f'v_mov_b32 v{vTa}, s{sK32}'); e(f'v_mov_b32 v{vDo}, 0')
    if cfg.get('setup_extra'): cfg['setup_extra'](p)
    e = e0
    if cfg.get('hop'):
        e('s_mov_b64 exec, 0')
        for w_ in range(3): e(f's_cmp_eq_u32 s{sW}, {w_}'); e(f's_cbranch_scc1 PAD{w_}')
        e('s_branch PAD3')
        p.label('HOPBACK'); e('s_mov_b64 exec, -1'); e('s_branch MAIN'); p.raw('.p2align 12'); p.label('MAIN')
    for t2, tag in pro: e0(t2, tag=tag)
    S = Sched(NQ, 2)
    S.temps = list(range(GT, GT + NGT))
    S.nolds = lambda g: 11 <= g % 32 <= 15 and g // 32 + 1 in BAR
    qb = lambda b: 32 * (b - 1) + 15
    WSr = f's[{SRD_WS}:{SRD_WS+3}]'
    NF = NQ // 4
    def kinfo(K):
        if K < 180:
            ps, kk = divmod(K, 18); return (UU if ps & 1 else (G0, G1)[(ps // 2) % 2]), kk, ps
        j, kk = seqB[K - 180]; return accB[j], kk, 100 + j
    CH = cfg.get('chain', 4); SEQ = []; FM = {}
    for U in range(NU):
        Ks = [K for K in range(4 * U, 4 * U + 4) if K < 261]
        if CH >= 4 and U >= 5 and len(Ks) == 4 and len({kinfo(K)[2] for K in Ks}) == 1:
            FM[U] = [(i % 4, i // 4) for i in range(8)]
            SEQ += [(4 * ft + k, Ks[k], ft, rt) for ft in range(2) for rt in range(4) for k in range(4)]
            continue
        FM[U] = [(i // 2, i % 2) for i in range(8)]
        for hh in range(0, len(Ks), 2):
            pr = Ks[hh:hh + 2]
            if CH >= 2 and len(pr) == 2 and kinfo(pr[0])[2] == kinfo(pr[1])[2]:
                SEQ += [(2 * (hh + k) + ft, pr[k], ft, rt) for ft in range(2) for rt in range(4) for k in range(2)]
            else:
                SEQ += [(2 * (hh + k) + ft, pr[k], ft, (3 - rt if ft else rt)) for k in range(len(pr)) for ft in range(2) for rt in range(4)]
    assert len(SEQ) == NQ
    firstq = lambda K: min(q for q in range(8 * K - 32 if K > 4 else 0, min(NQ, 8 * K + 32)) if SEQ[q][1] == K)
    lastq = lambda K: max(q for q in range(8 * K - 32 if K > 4 else 0, min(NQ, 8 * K + 32)) if SEQ[q][1] == K)
    def tread(n, h):
        U, i = divmod(n, 8); pl = place[('W', U)]; k, ft = FM[U][i]
        a = AB + 4 * i + 2 * h
        return f'ds_read_b64_tr_b16 v[{a}:{a+1}], v{vRd + 3 * ft + pl // 4} offset:{(pl % 4) * 16384 + k * 4096 + 2048 * h}'
    TP = cfg.get('tpos', [16, 17, 18, 20, 21, 23, 24, 26, 28, 29, 30, 32, 34, 36, 38, 40])
    def barrier(b):
        st_ = (b % cfg.get('stampevery', 1) == 0)
        if st_: pf.start()
        p.wait(vmtags=[(k, i) for k, i, need in items if need == b] + sum([v_ for k_, v_ in cfg.get('bar_tags', {}).items() if up(k_) == b], []), lg0=True)
        e('s_barrier')
        if st_: pf.save(b // cfg.get('stampevery', 1))
    WC = cfg.get('wcost', 0)
    def vstamp(b):
        if b % cfg.get('stampevery', 1) == 0: pf.stamp(b // cfg.get('stampevery', 1))
    for b in range(1, NU):
        if b in BAR: S.fix(qb(b), (lambda b=b: barrier(b)), cost=99)
        else: S.fix(qb(b), (lambda b=b: (p.wait_lg({('T', b - 1, 1)}), vstamp(b))), cost=WC)
        for i in range(16):
            n = 8 * b + i // 2
            if n < NF:
                assert TP[i] >= max(g for g in range(32) if SEQ[32 * (b - 1) + g][0] == i // 2)
                S.fix(32 * (b - 1) + TP[i], tread(n, i & 1), tag=('T', b, i // 8))
        S.fix(32 * b - 1, (lambda b=b: p.wait_lg({('T', b, 0)})), cost=WC)
    dq = []
    LPS = cfg.get('lps', 4); MINL = cfg.get('minlead', 3); dcost = cfg.get('dcost', 2)
    for b in range(0, NU + 1):
        for kind, idx, need in issue_at.get(b, []): dq += [(t, tag, need - (min(up(need + 1), NU) - 1 - idx if kind == 'W' else 0)) for t, tag in dma_instrs(kind, idx)]
        dq += [(t, tag, cfg.get('kv_need', 66)) for t, tag in cfg.get('extra_units', {}).get(b, [])]
        if cfg.get('nodma') or not dq: dq = []; continue
        must = max([i + 1 for i, (t, tag, need) in enumerate(dq) if need <= b + MINL] + [0])
        nl = max(min(LPS if b < 44 else cfg.get('lpsb', 5), sum(1 for x in dq if x[1])), sum(1 for x in dq[:must] if x[1]))
        lo, hi = (32, 46) if b == 0 else (16, 46)
        cand = [g for g in range(lo + 4 if nl <= 8 and b else lo + 1, hi) if g != 31 and (nl > 8 or (g in TP) == (dcost == 1))]
        prev = lo
        for i in range(nl):
            tg = cand[(i * len(cand)) // nl]
            k = next(j for j, x in enumerate(dq) if x[1])
            for j in range(k):
                prev = max(prev, tg - 3 - (k - 1 - j)); c_ = 1
                if dq[j][0].startswith('s_') and not WC:
                    fr_ = [g for g in range(prev, tg) if not S.fixed[32 * (b - 1) + g]]
                    if fr_: prev = fr_[0]; c_ = 0
                S.fix(32 * (b - 1) + prev, dq[j][0], cost=c_)
            prev = max(prev, tg); S.fix(32 * (b - 1) + prev, dq[k][0], tag=dq[k][1], cost=dcost)
            dq = dq[k + 1:]
    assert not dq
    def xreads(cx):
        pl = place[('X', cx)]
        return [f'ds_read_b128 {xf(2 * cx + kk, rt)}, v{XA + 2 * (pl // 4) + kk} offset:{(pl % 4) * 16384 + 2048 * rt}' for rt in range(4) for kk in range(2)]
    XP = cfg.get('xpos', [19, 19, 22, 22, 25, 25, 27, 27, 33, 33, 35, 35, 37, 37, 39, 39])
    for b in range(1, 5):
        xs = sum([xreads(i) for k_, i, need in items if k_ == 'X' and need == b], [])
        for n_, t in enumerate(xs): S.fix(32 * (b - 1) + XP[n_], t, tag=('T', b, n_ // 8))
    if PF:
        lead = cfg.get('pflead', 420)
        def touch(t, g, w_=30):
            def f(): p.e(t).dst = set()
            o_ = S.add(Op(f, 2, start=g, end=g + w_)); o_.call = True
        if PF & 2:
            nb_ = -(-wrows // WL); span = cfg.get('pfspan', 200)
            for k in range(1, 5):
                for i in range(nb_):
                    g_ = max(cfg.get('pf0', 100), 288 * k - lead) + (i * (span if k > 1 else cfg.get('pfspan1', 100))) // nb_
                    base_, col = (sFs, 0) if k == kS else (sFp, 128 * rho[k])
                    o1 = S.add(Op(f's_add_u32 s{sTc}, s{base_}, {col + i * WL * 9216}', start=g_ - 6, end=g_)); touch(wtouch(f's{sTc}')[0], g_, 14)
            touch(f'global_load_dword v{vDum}, v{vPQ}, s[{P_WQ}:{P_WQ+1}]', 288 * kS + 144 - lead)
        if PF & 4:
            nl = -(-2592 // (4 * mper)); nb_ = -(-nl // DL); g0 = cfg.get('pfd0', 700); dg = cfg.get('pfdg', 100)
            for i in range(nb_):
                if i: S.add(Op(f'v_add_u32 v{vPD}, {128 * DL}, v{vPD}', start=g0 + dg * i - 9, end=g0 + dg * i))
                touch(f'buffer_load_dword v{vDum}, v{vPD}, s[{SRD_WD}:{SRD_WD+3}], 0 offen', g0 + dg * i)
    S.chain([f'v_lshl_or_b32 v{vWo+2+j}, v{vWo+2*j+3}, 16, v{vWo+2*j+2}' for j in range(4)] +
            [f'buffer_store_dwordx4 v[{vWo+2}:{vWo+5}], v{vWo+1}, {WSr}, s{sWoD} offen {stf}'], 130, 146)[-1].tag = 'QKV'
    def gelu_h(g, u, n, s1, e1, s2, e2, wr, sw, deps=()):
        last = []
        for i in range(n):
            t = []
            d1 = e1 - (n - 1 - i) * (e1 - s1 - 24) // n
            a = S.add(Op(lambda i=i, t=t: f'v_mul_f32 v{t[0]}, v{g+i}, v{g+i}', 1, deps, s1, e1 - 12, res=t, prio=d1 - 12))
            a = S.add(Op(lambda t=t: f'v_fmaak_f32 v{t[0]}, v{t[0]}, v{vC1}, {f2u(GC0)}', 1, [a], s1, e1 - 10, prio=d1 - 12))
            a = S.add(Op(lambda i=i, t=t: f'v_mul_f32 v{t[0]}, v{t[0]}, v{g+i}', 1, [a], s1, e1 - 8, prio=d1 - 12))
            a = S.add(Op(lambda t=t: f'v_exp_f32 v{t[0]}, v{t[0]}', 2, [a], s1, e1 - 6, prio=d1 - 12))
            a = S.add(Op(lambda t=t: f'v_add_f32 v{t[0]}, 1.0, v{t[0]}', 1, [a], s1, e1 - 4, prio=d1 - 12))
            a = S.add(Op(lambda t=t: f'v_rcp_f32 v{t[0]}, v{t[0]}', 2, [a], s1, e1 - 2, prio=d1 - 12))
            a = S.add(Op(lambda i=i, t=t: f'v_mul_f32 v{g+i}, v{t[0]}, v{g+i}', 1, [a], s1, e1, rel=t, prio=d1 - 12))
            a = S.add(Op(f'v_mul_f32 v{g+i}, v{g+i}, v{u+i}', 1, [a], s2, e2 - 8, prio=d1))
            last.append(a)
        wrs = []
        for gi in range(n // 8):
            prev = []
            for c in range(4):
                o = S.add(Op(f'v_cvt_pk_bf16_f32 v{g+8*gi+c}, v{g+8*gi+2*c}, v{g+8*gi+2*c+1}', 1, last[8*gi+2*c:8*gi+2*c+2], s2, e2 - 4, same=prev, prio=0))
                prev = [o]
            wrs.append(S.add(Op(wr(gi), 2, prev, sw + 12 * gi, e2, lds=True, prio=0)))
        return wrs
    for k in rho:
        g = (G0, G1)[k % 2]; q0 = 288 * k
        e2_ = q0 + 288 + 139 if k < 4 else qb(bH) - 4
        gelu_h(g, UU, 32, q0 + 147, e2_ - 13, q0 + 291, e2_,
               lambda i, g=g, k=k: f'ds_write_b128 v{vHw}, v[{g+8*i}:{g+8*i+3}] offset:{16384 * rho[k] + 1024 * i}', qb(9 * (k + 1) + HWD) + 1)
    GS = (G0, G1)[kS % 2]; qS = 288 * kS; bS = 9 * kS
    def xch(write):
        Lb = 'F_xw' if write else 'F_xr'
        def arm(base, em):
            for q in range(4):
                r = f'v[{base+4*q}:{base+4*q+3}]'
                em(f'ds_write_b128 v{vXw}, {r} offset:{1024*q}' if write else f'ds_read_b128 {r}, v{vXr} offset:{1024*q}')
        e(f's_cmp_ge_u32 s{sW}, 2'); e(f's_cbranch_scc1 {Lb}1')
        arm(GS + 16, p.raw); e(f's_branch {Lb}2'); p.label(f'{Lb}1')
        def em(t):
            i = e(t)
            if not write: i.dst = i.dst | {('v', r[1] + 16) for r in i.dst}
        arm(GS, em); p.label(f'{Lb}2')
    S.fix(qS + 149, lambda: xch(True), cost=7)
    x1 = up(bS + 6)
    S.fix(qb(x1) + 4, lambda: xch(False), cost=7)
    gelu_h(GS, GS + 16, 16, qb(x1) + 10, qS + 288 + 120, qb(x1) + 10, qS + 288 + 139,
           lambda i: f'ds_write_b128 v{vHs}, v[{GS+8*i}:{GS+8*i+3}] offset:{1024 * i}', qb(up(x1 + 1)) + 1)
    for n_, t in enumerate((0, 1, 2, 3, 4, 5, 8)):
        for rt in range(4):
            ad = f'v{vH} offset:{8192 * t + 1024 * rt}' if t < 8 else f'v{vH2} offset:{1024 * rt}'
            S.add(Op(f'ds_read_b128 {xf(t, rt)}, {ad}', start=max(lastq(162 + t), qb(up(41)) + 1), end=min(firstq(180 + n_) - 8, qb(46) - 4), lds=True))
    for t in (6, 7):
        for rt in range(4): S.add(Op(f'ds_read_b128 {xf(t, rt)}, v{vH} offset:{8192 * t + 1024 * rt}', start=qb(bH) + 1, end=qb(bH) + 8 + 6 * (t - 6), lds=True))
    qa, qx, tq = vAd, vAd + 1, vAd + 2
    q = [f'v_and_b32 v{tq}, 15, v0', f'v_lshrrev_b32 v{tq+1}, 4, v0', f'v_lshlrev_b32 v{qa}, 3, v{tq+1}', f'v_lshl_add_u32 v{qa}, v{tq}, 5, v{qa}',
         f'v_xor_b32 v{tq+1}, 1, v{tq+1}', f'v_lshlrev_b32 v{tq+1}, 28, v{tq+1}', f'v_lshl_add_u32 v{qx}, v{tq}, 2, v{tq+1}']
    for rt in range(4):
        u = UU + 8 * rt
        q += [f'v_mul_f32 v{u+i}, s{sQs}, v{u+i}' for i in range(4)]
        q += [f'v_mul_f32 v{tq}, s{sQs}, v{u+6}', f'v_mul_f32 v{tq+1}, s{sQs}, v{u+7}',
              f'v_cvt_pk_bf16_f32 v{u}, v{u}, v{u+1}', f'v_cvt_pk_bf16_f32 v{u+1}, v{u+2}, v{u+3}', f'v_cvt_pk_bf16_f32 v{u+2}, v{tq}, v{tq+1}',
              f'buffer_store_dwordx2 v[{u}:{u+1}], v{qa}, {WSr}, s{sQm} offen offset:{512 * rt} {stf}',
              f'buffer_store_dword v{u+2}, v{qx}, {WSr}, s{sQx} offen offset:{64 * rt} {stf}']
    qc = S.chain(q, qS + 292, qS + 288 + cfg.get('qkv_end', 100))
    def kv_block():
        L = 'F_kv'; o = lambda t: p.e(t, optional=True, tag='QKV')
        a, b2 = tq, tq + 1
        e(f's_cmp_ge_u32 s{sHd}, 7'); e(f's_cbranch_scc1 {L}_end')
        e(f's_cmp_lg_u32 s{sHd}, 6'); e(f's_cbranch_scc1 {L}_kv')
        e(f'v_and_b32 v{a}, 15, v0'); e(f'v_lshrrev_b32 v{b2}, 4, v0'); e(f'v_lshlrev_b32 v{a}, 2, v{a}')
        e(f'v_xor_b32 v{b2}, 2, v{b2}'); e(f'v_lshl_add_u32 v{a}, v{b2}, 28, v{a}')
        e(f's_add_u32 s{sT0}, s{sQx}, {WS_G - WS_QX - 6 * 8192}')
        for rt in range(4): o(f'buffer_store_dword v{UU+8*rt+4}, v{a}, {WSr}, s{sT0} offen offset:{64 * rt} {stf}')
        e(f's_branch {L}_end')
        p.label(f'{L}_kv')
        for rt in range(4):
            u = UU + 8 * rt
            e(f'v_cvt_pk_bf16_f32 v{u+4}, v{u+4}, v{u+5}'); e(f'v_cvt_pk_bf16_f32 v{u+5}, v{u+6}, v{u+7}')
        e(f'v_and_b32 v{a}, 15, v0'); e(f'v_lshrrev_b32 v{b2}, 4, v0')
        e(f's_cmp_ge_u32 s{sHd}, 3'); e(f's_cbranch_scc1 {L}_v')
        e(f'v_lshlrev_b32 v{a}, 4, v{a}')
        e(f's_cmp_eq_u32 s{sHd}, 2'); e(f's_cbranch_scc1 {L}_kx')
        e(f'v_subrev_u32 v{b2}, 2, v{b2}'); e(f'v_and_b32 v{b2}, 0x04000001, v{b2}'); e(f'v_lshl_add_u32 v{a}, v{b2}, 3, v{a}')
        e(f's_lshl_b32 s{sT0}, s{sHd}, 9'); e(f's_add_u32 s{sT0}, s{sT0}, s{sKV}')
        for rt in range(4): o(f'buffer_store_dwordx2 v[{UU+8*rt+4}:{UU+8*rt+5}], v{a}, {WSr}, s{sT0} offen offset:{(rt >> 1) * KVB + 256 * (rt & 1)} {stf}')
        e(f's_branch {L}_end')
        p.label(f'{L}_kx')
        e(f'v_xor_b32 v{b2}, 3, v{b2}'); e(f'v_lshl_add_u32 v{a}, v{b2}, 28, v{a}')
        for rt in range(4): o(f'buffer_store_dword v{UU+8*rt+5}, v{a}, {WSr}, s{sKX} offen offset:{4 * (rt >> 1) + 256 * (rt & 1)} {stf}')
        e(f's_branch {L}_end')
        p.label(f'{L}_v')
        c = tq + 2
        e(f'v_bfe_u32 v{c}, v0, 2, 1'); e(f'v_mul_u32_u24 v{c}, 304, v{c}')
        e(f'v_and_b32 v{a}, 8, v0'); e(f'v_add_u32 v{c}, v{c}, v{a}')
        e(f'v_and_b32 v{a}, 3, v0'); e(f'v_lshl_add_u32 v{a}, v{a}, 1, v{c}')
        e(f's_add_u32 s{sT1}, s{sKV}, 1024')
        e(f's_cmp_eq_u32 s{sHd}, 5'); e(f's_cbranch_scc1 {L}_vx')
        e(f'v_subrev_u32 v{b2}, 2, v{b2}'); e(f'v_and_b32 v{b2}, 0x00800001, v{b2}'); e(f'v_lshl_add_u32 v{a}, v{b2}, 6, v{a}')
        e(f's_sub_u32 s{sT0}, s{sHd}, 3'); e(f's_lshl_b32 s{sT0}, s{sT0}, 7'); e(f's_add_u32 s{sT0}, s{sT0}, s{sT1}')
        for rt in range(4):
            for ee in range(4):
                o(f'buffer_store_short{"_d16_hi" if ee & 1 else ""} v{UU+8*rt+4+(ee>>1)}, v{a}, {WSr}, s{sT0} offen offset:{(rt >> 1) * KVB + 608 * (rt & 1) + 16 * ee} {stf}')
        e(f's_branch {L}_end')
        p.label(f'{L}_vx')
        e(f'v_xor_b32 v{b2}, 3, v{b2}'); e(f'v_lshl_add_u32 v{a}, v{b2}, 28, v{a}')
        e(f'v_mov_b32 v{c}, 0x3f80')
        for rt in range(4):
            of = (rt >> 1) * KVB + 608 * (rt & 1) + 256
            o(f'buffer_store_short v{UU+8*rt+5}, v{a}, {WSr}, s{sT1} offen offset:{of} {stf}')
            o(f'buffer_store_short_d16_hi v{UU+8*rt+5}, v{a}, {WSr}, s{sT1} offen offset:{of + 16} {stf}')
            o(f'buffer_store_short v{c}, v{a}, {WSr}, s{sT1} offen offset:{of + 32} {stf}')
        p.label(f'{L}_end')
    for o_ in qc:
        if 'store' in o_.text: o_.tag = 'QKV'
    kvop = S.add(Op(kv_block, 2, [qc[-1]], qS + 292, qS + 288 + cfg.get('qkv_end', 100) + 10)); kvop.call = True
    lastst = []; qs_ = 0; NST = cfg.get('nst', 5); deferred = []
    hold = [G1, XV, X3, XV + 16, X3 + 16, XV, X3, XV + 16, X3 + 16]; freed = {}
    for j in range(9):
        acc = accB[j]; q1 = 1440 + 8 * (max(i for i, (jj, c) in enumerate(seqB) if jj == j) + 1)
        nxt_ = [1440 + 8 * i for i, (jj, c) in enumerate(seqB) if jj > j and accB[jj] == acc]
        dl = min(nxt_[0] - 2 if nxt_ else 10 ** 6, NQ - 4 if j < 8 else 10 ** 6); h = hold[j]
        cv = S.chain([f'v_cvt_pk_bf16_f32 v{h+i}, v{acc+2*i}, v{acc+2*i+1}' for i in range(16)], min(q1 + 3, NQ), min(dl, q1 + 60), deps=freed.get(h, []))
        sot = f's_add_u32 s{sPo}, s{sP}, {16384 * j}'
        sts = [f'buffer_store_dwordx4 v[{h+4*rt}:{h+4*rt+3}], v{vL16}, {WSr}, s{sPo} offen offset:{1024 * rt} {stf}' for rt in range(4)]
        if j >= NST:
            deferred.append([sot] + sts); continue
        so = S.add(Op(sot, start=q1, end=NQ, same=lastst, prio=0))
        for rt in range(4):
            qs_ = max(qs_ + cfg.get('stspace', 22), q1 + 8)
            for o_ in cv[4 * rt:4 * rt + 4]: o_.prio = min(o_.prio, qs_ - 2); o_.end = min(o_.end, qs_ + 8)
            lastst = [S.add(Op(sts[rt], 2, [cv[4 * rt + 3], so], qs_, min(qs_ + 12, dl if h == acc else NQ), tag='PART', same=lastst))]
        freed[h] = lastst
    cfg['deferred'] = deferred
    if cfg.get('sched_extra'): cfg['sched_extra'](S, p)
    if cfg.get('nofill'): S.ops = [o for o in S.ops if isinstance(o.text, str) and ('lds' in o.text or 'm0' in o.text or f's{sso},' in o.text)]
    placed = S.run()
    print('ffn schedule: overflow slots', S.over)

    def emit(item, tag):
        if callable(item): item()
        else: e(item, tag=tag)
    barrier(0)
    x0, x1_ = xreads(0), xreads(1)
    for i in (0, 1, 4, 5): e(tread(i // 2, i & 1))
    for t in x0: e(t)
    for i in (2, 3, 6, 7): e(tread(i // 2, i & 1))
    rest = [tread(i // 2, i & 1) for i in range(8, 16)] + x1_
    for n_, t in enumerate(rest): S.fixed[(n_ * 10) // 16].insert(0, (1, t, None))
    snake = cfg.get('snake', 1)
    for q in range(NQ + 1):
        if q < NQ:
            bi, K, ft, rt = SEQ[q]; D, kk, _ = kinfo(K)
            d = D + (rt * 2 + ft) * 4; a = AB + 4 * bi
            C = '0' if kk == 0 else f'v[{d}:{d+3}]'
            e(f'v_mfma_f32_16x16x32_bf16 v[{d}:{d+3}], v[{a}:{a+3}], {xf(kk, rt)}, {C}')
        if q == NQ and cfg.get('pre_tail'): cfg['pre_tail'](p)
        fx = S.fixed[q]
        lastw = [f for f in fx if callable(f[1]) and q % 16 == 15 and WC]
        for c, item, tag in fx:
            if (c, item, tag) not in lastw: emit(item, tag)
        mid = cfg.get('mid_tail') if q == NQ else None
        for n_, o in enumerate(placed[q]):
            if mid and n_ == 5: mid(p)
            if getattr(o, 'call', False): o.text()
            else: e(o.text() if callable(o.text) else o.text, tag=o.tag)
        for c, item, tag in lastw: emit(item, tag)
```

```python
import sys
from common import *
import ffn, att, k23
from ffn import sW, sT0, sT1, sT2, SRD_WS, SRD_X, vL16, KVG, KVB, sMb, sso, NQ

att.sRG, att.sHH = 6, 7
att.PP, att.KM, att.VV, att.KX = 24, 32, 40, 56
att.SA, att.SB, att.OA, att.OB = 64, 80, 96, 112
att.QM, att.QX = 128, 136
SEL, SELX = 152, 160
att.vAK, att.vAV = 164, 165
vG, vPoll, vTch = 166, 252, 240
att.vT = 236
BACC = 172
PBUF, NPB = 192, 11
vFP, vFO = 244, 245
vL2, vLX, vLO, vPa = 246, 247, 248, 249
vL4, vGt = 250, 251
sH0, sH1 = 8, 15
sRG, sHH = att.sRG, att.sHH
SRD_OUT, SRD_DBG = 52, 68
vAt = 238
sPb, sWo, sWx, sOo, sOp, sSpin = 74, 75, 76, 77, 78, 79
sPb = 80; sWo = 81; sWx = 82; sOo = 83; sOp = 84; sSpin = 85; sKVs = 86; sLd = 87
LDS_O, LDS_G = 154560, 163776
FLO = 4096
WSr = f's[{SRD_WS}:{SRD_WS+3}]'
mf16 = att.mf16

class Rec:
    def __init__(self): self.l = []
    def e(self, t, **kw): self.l.append(t)

def poll(p, L, srdr, want, mask, first_issued):
    e = p.e
    cmpop = 'le' if want == 64 else 'eq'
    ld = f'buffer_load_dword v{vPoll}, v{vPa}, {srdr}, 0 offen sc1'
    if not first_issued: e(ld)
    e(f'v_cmp_{cmpop}_u32 vcc, {want}, v{vPoll}')
    e(f's_cmp_eq_u32 vcc_lo, {mask}')
    e(f's_cbranch_scc0 {L}_spin')
    p.label(f'{L}_go')
    def out(q):
        r = q.raw
        q.label(f'{L}_spin'); r(f's_mov_b32 s{sSpin}, 0')
        q.label(f'{L}_sp2'); r('s_sleep 8'); r(ld); r(f's_add_u32 s{sSpin}, s{sSpin}, 1'); r('s_waitcnt vmcnt(0)')
        r(f'v_cmp_{cmpop}_u32 vcc, {want}, v{vPoll}')
        r(f's_cmp_gt_u32 s{sSpin}, 0x80000'); r(f's_cbranch_scc1 {L}_go')
        r(f's_cmp_eq_u32 vcc_lo, {mask}'); r(f's_cbranch_scc0 {L}_sp2'); r(f's_branch {L}_go')
    return out

def gen(p, cfg, pf):
    cfg = dict(cfg); cfg.setdefault('stflags', 'sc1'); cfg.setdefault('perm', 1); cfg.setdefault('bars', [(6, 1), (66, 2)]); cfg.setdefault('pfd0', 1000); cfg.setdefault('pfdg', 60)
    cfg.setdefault('apat', 'E0 E1 PB rK x0 E2 E3 C0 C1 E4 QX w x1 E5 E6 E7 y0 C2 C3 E8 QM rA x2 E9 E10 E11 y1 C4 C5 E12 PA rB x3 E13 E14 E15 C6 C7')
    BS, BP, BQ = cfg.get('bsig', 36), cfg.get('bpoll', 48), cfg.get('bq', 54)
    assert BP <= 49
    cfg['kvb0'] = BQ; cfg['bar_tags'] = {BS: ['QKV']}
    e = p.e; ool = []
    qb = lambda b: 32 * (b - 1) + 15
    vT = att.vT

    def setup_extra(p):
        e = p.e
        e(f'v_cmp_eq_u32 vcc, 0, v0'); e(f'v_mov_b32 v{vFO}, {OOB}'); e(f'v_mov_b32 v{vTch+1}, 0')
        e(f'v_cndmask_b32_e64 v{vFO}, v{vFO}, 0, vcc')
        e(f's_lshl_b32 s{sT0}, s{ffn.sM_}, 6'); e(f's_lshl_b32 s{sT1}, s{ffn.sS}, 2'); e(f's_add_u32 s{sT0}, s{sT0}, s{sT1}')
        e(f's_add_u32 s{sT0}, s{sT0}, {WS_FL}'); e(f's_lshl_b32 s{sT1}, s{sW}, 28'); e(f's_add_u32 s{sT0}, s{sT0}, s{sT1}')
        e(f'v_add_u32 v{vFP}, s{sT0}, v{vFO}')
        e(f's_and_b32 s{sT0}, s2, 3'); e(f's_lshl_b32 s{sT0}, s{sT0}, 6'); e(f's_lshl_b32 s{sT1}, s{sW}, 12'); e(f's_add_u32 s{sT0}, s{sT0}, s{sT1}')
        e(f'v_lshlrev_b32 v{vPa}, 6, v0'); e(f'v_lshlrev_b32 v{vAt}, 8, v0'); e(f'v_add_u32 v{vAt}, s{sT0}, v{vAt}'); e(f'v_mov_b32 v{vAt+1}, 1')
        e(f's_lshr_b32 s{sT0}, s2, 3'); e(f's_lshl_b32 s{sT0}, s{sT0}, 2'); e(f's_add_u32 s{sT0}, s{sT0}, s{sW}'); e(f's_mul_i32 s{sT0}, s{sT0}, {51 * 128}')
        e(f's_add_u32 s{sT0}, s{sT0}, {WS_KV}'); e(f'v_min_u32 v{vTch}, 50, v0'); e(f'v_lshlrev_b32 v{vTch}, 7, v{vTch}'); e(f'v_add_u32 v{vTch}, s{sT0}, v{vTch}')
        e(f'buffer_store_dword v{vTch+1}, v{vFP}, {WSr}, 0 offen sc1', tag='QKV')
    cfg['setup_extra'] = setup_extra

    def kv_unit(i, n=4):
        if n == 4:
            return [(f's_add_u32 m0, s{sMb}, {16384 * i}', None), (f's_add_u32 s{sso}, s{sKVs}, {16384 * i}', None)] + \
               [(f'buffer_load_dwordx4 v{vL16}, {WSr}, s{sso} offen' + (f' offset:{1024 * q}' if q else '') + ' lds', 'KV') for q in range(4)]
        return [(f's_lshr_b32 s{sso}, s{sMb}, 2', None), (f's_add_u32 m0, s{sso}, {16384 * i}', None), (f's_add_u32 s{sso}, s{sso}, {WS_KV + 16384 * i}', None),
                (f'buffer_load_dwordx4 v{vL16}, {WSr}, s{sso} offen lds', 'KV')]

    cfg.setdefault('kv_at', [4, 5, 6, 7, 8])
    cfg['extra_units'] = {}
    for i in range(5): cfg['extra_units'].setdefault(BQ + cfg['kv_at'][i], []).extend(kv_unit(i))
    quads = [f'a[{4*i}:{4*i+3}]' for i in list(range(36, 64)) + list(range(36))] + [f'v[{r}:{r+3}]' for r in (4, 8, 12, 16, 168)]
    nearly = len(quads)
    quads += [f'v[{PBUF+4*i}:{PBUF+4*i+3}]' for i in range(NPB)] + [f'v[{r}:{r+3}]' for r in (SEL, SEL + 4, SELX)]
    nmid = len(quads)
    quads += [f'v[{r}:{r+3}]' for r in (128, 132, 136, 140, 144, 148, 84)]
    assert len(quads) == 90
    def wo_load(f):
        half, r = divmod(f, 45); g, i = divmod(r, 9); out = []
        hreg = (sH0, sH1)[half]
        if g < 4:
            if i == 0: out.append(f's_add_u32 s{sLd}, s{sWo}, s{hreg}'); out += [f's_add_u32 s{sLd}, s{sLd}, {18432 * g}'] if g else []
            vo = (vL16, vL4, vL2)[i // 4]
        else:
            if i == 0: out.append(f's_add_u32 s{sLd}, s{sWx}, s{hreg}')
            elif i % 4 == 0: out.append(f's_add_u32 s{sLd}, s{sLd}, 4096')
            vo = vLO
        out.append(f'buffer_load_dwordx4 {quads[f]}, v{vo}, {WSr}, s{sLd} offen' + (f' offset:{1024 * (i % 4)}' if i % 4 else ''))
        return out
    NWB = cfg.get('nwb', 0)
    def sched_extra(S, p):
        r = Rec(); e = r.e
        r0 = Rec(); srd(r0, SRD_DBG, P_DBG, 256)
        att.att_ids(r0); PZ = 228
        r0.e(f's_lshl_b32 s{sOp}, s{sRG}, 1'); r0.e(f's_add_u32 s{sOp}, s{sOp}, s{sHH}'); r0.e(f's_mul_i32 s{sOo}, s{sOp}, 9216'); r0.e(f's_add_u32 s{sOo}, s{sOo}, {WS_O}')
        r0.e(f's_xor_b32 s{sOp}, s{sOp}, 1'); r0.e(f's_mul_i32 s{sOp}, s{sOp}, 9216'); r0.e(f's_add_u32 s{sOp}, s{sOp}, {WS_O}')
        r0.e(f's_mul_i32 s{sSpin}, s{sW}, 2304'); r0.e(f's_add_u32 s{sSpin}, s{sSpin}, s{sOo}')
        for i in range(4): r0.e(f'v_mov_b32 v{PZ+i}, -1')
        r0.e(f'v_lshlrev_b32 v{PZ+4}, 2, v0')
        r0.e(f'buffer_store_dwordx4 v[{PZ}:{PZ+3}], v{vL16}, {WSr}, s{sSpin} offen sc1')
        r0.e(f'buffer_store_dwordx4 v[{PZ}:{PZ+3}], v{vL16}, {WSr}, s{sSpin} offen offset:1024 sc1')
        r0.e(f'buffer_store_dword v{PZ}, v{PZ+4}, {WSr}, s{sSpin} offen offset:2048 sc1')
        q0_ = 288 * cfg.get('kS', 2) + 146
        for o in S.chain(r0.l, q0_, q0_ + 60, tight=False):
            if 'store' in o.text: o.tag = 'QKV'; o.cost = 2
        srd(r, SRD_OUT, P_OUT, 2048 * 1152)
        nB = len(r.l)
        k23.sel_frags(r, SEL, vT, True)
        e(f's_cmp_eq_u32 s{sW}, 3 | s_cselect_b64 vcc, -1, 0')
        for i in range(4): e(f'v_cndmask_b32 v{SELX+i}, v{SEL+i}, v{SEL+4+i}, vcc')
        e(f's_add_u32 s{sKVs}, s{sMb}, {WS_KV}')
        e(f's_mul_i32 s{sT0}, s{sHH}, 9'); e(f's_lshl_b32 s{sT1}, s{sW}, 1'); e(f's_add_u32 s{sT1}, s{sT1}, s{sT0}')
        e(f's_lshr_b32 s{sPb}, s{sRG}, 3'); e(f's_mul_i32 s{sPb}, s{sPb}, {16 * 147456}')
        e(f's_lshl_b32 s{sT2}, s{sT1}, 13'); e(f's_add_u32 s{sPb}, s{sPb}, s{sT2}')
        e(f's_and_b32 s{sT2}, s{sRG}, 7'); e(f's_lshl_b32 s{sT2}, s{sT2}, 10'); e(f's_add_u32 s{sPb}, s{sPb}, s{sT2}')
        e(f's_mul_i32 s{sWo}, s{sT1}, 36864'); e(f's_add_u32 s{sWo}, s{sWo}, {WS_WO}')
        e(f's_add_u32 s{sT0}, s{sT0}, 8'); e(f's_mul_i32 s{sWx}, s{sT0}, 36864'); e(f's_and_b32 s{sT2}, s{sW}, 1'); e(f's_mul_i32 s{sT2}, s{sT2}, 18432')
        e(f's_add_u32 s{sWx}, s{sWx}, s{sT2}'); e(f's_add_u32 s{sWx}, s{sWx}, {WS_WO}')
        e(f's_andn2_b32 s{sT2}, {OOB}, s{ffn.sHF}'); e(f'v_add_u32 v{vLO}, s{sT2}, v{vL16}')
        e(f's_sub_u32 s{sT0}, s{sT0}, s{sT1}'); e(f's_lshl_b32 s{sT0}, s{sT0}, 13'); e(f'v_add_u32 v{vLX}, s{sT0}, v{vLO}')
        e(f'v_add_u32 v{vL2}, 8192, v{vL16}'); e(f'v_add_u32 v{vL4}, 4096, v{vL16}')
        nC = len(r.l)
        e(f'v_mov_b32 v{vG}, 1'); e(f's_mov_b32 s{att.sPerm}, 0x07060302'); e(f's_mul_i32 s{sH0}, s{sHH}, 9216'); e(f's_sub_u32 s{sH1}, 9216, s{sH0}')
        nD = len(r.l)
        def mk(t):
            if ' | ' not in t: return t
            def f():
                for x in t.split(' | '): p.e(x)
            return f
        ch = S.chain([mk(t) for t in r.l], 1586, qb(BQ) - 8, tight=False)
        for o in ch:
            if callable(o.text): o.call = True; o.cost = 2
        S.fix(qb(cfg['up'](BS)) + 4, f'buffer_atomic_add v{vAt+1}, v{vAt}, s[{SRD_DBG}:{SRD_DBG+3}], 0 offen sc1')
        DB = f's[{SRD_DBG}:{SRD_DBG+3}]'
        S.fix(qb(BP) - cfg.get('poll_lead', 110), f'buffer_load_dword v{vPoll}, v{vPa}, {DB}, 0 offen sc1')
        S.fix(qb(BP) - 2, lambda: ool.append(poll(p, 'PK', DB, 64, 15, True)), cost=4)
        r2 = Rec(); att.q_loads(r2, 'sc1')
        r2.e(f'v_and_b32 v{vGt}, 15, v0'); r2.e(f'v_lshlrev_b32 v{vGt}, 2, v{vGt}'); r2.e(f's_lshl_b32 s{sT0}, s{sRG}, 6'); r2.e(f's_add_u32 s{sT0}, s{sT0}, {WS_G}')
        r2.e(f'buffer_load_dword v{vGt}, v{vGt}, {WSr}, s{sT0} offen sc1')
        att.att_addrs(r2, cfg)
        r2.e(f's_lshr_b32 s{sT0}, s{sRG}, 3'); r2.e(f's_lshl_b32 s{sT0}, s{sT0}, 6'); r2.e(f's_add_u32 s{sT0}, s{sT0}, {WS_FL}')
        r2.e(f'v_and_b32 v{vPa}, 48, v0'); r2.e(f'v_lshlrev_b32 v{vPa}, 22, v{vPa}'); r2.e(f'v_lshl_add_u32 v{vPa}, v0, 2, v{vPa}'); r2.e(f'v_add_u32 v{vPa}, s{sT0}, v{vPa}')
        S.chain(r2.l, qb(BQ) + 1, min(qb(BQ) + 80, NQ - 32), tight=False)
        def tch(): p.e(f'buffer_load_dword v{ffn.vDum}, v{vTch}, {WSr}, 0 offen').dst = set()
        if cfg.get('kvtouch', 0): S.fix(qb(BP) + 4, tch)
        prev = []; g0 = qb(BQ) + 4; dg = (NQ - 12 - g0) // max(NWB, 1)
        for f in range(NWB):
            for t in wo_load(f):
                ld_ = 'load' in t
                prev = [S.add(Op(t, 2 if ld_ else 1, prev, g0 + dg * f - (0 if ld_ else 3), g0 + dg * f + dg))]
        r3 = Rec(); att.q_variants(r3)
        r3.e(f'v_mul_f32 v{vGt}, {f2u(-math.log2(math.e))}, v{vGt}'); r3.e(f'v_exp_f32 v{vGt}, v{vGt}'); r3.e(f'v_add_f32 v{vGt}, 1.0, v{vGt}'); r3.e(f'v_rcp_f32 v{vGt}, v{vGt}')
        S.chain(r3.l, NQ - 30, NQ - 2, tight=False)
    cfg['sched_extra'] = sched_extra

    def pre_tail(p):
        pf.start()
        p.wait(vmtags=['KV'], lg0=True); p.e('s_barrier')
        pf.save(70)
        p.e(att.rdKX(0)); p.e(att.rdKM(0)); p.e(att.rdV(0, 0)); p.e(att.rdV(0, 1))
    cfg['pre_tail'] = pre_tail
    SA, SB, OA, OB = att.SA, att.SB, att.OA, att.OB
    def mid_tail(p):
        p.c('ATT'); e(att.qkx(0, 0, SA)); e(att.mf32(SA, att.KM, att.QM, att.vr(SA)))
    cfg['mid_tail'] = mid_tail
    ffn.gen_ffn(p, cfg, pf)

    X = {}
    def at(hs, tk, item, tag=None): X.setdefault((hs, tk), []).append((item, tag))
    SL = [(2 * (i // 4) + (1 if i % 4 else 0), ('x1', 'x0', 'x2', 'x3')[i % 4]) for i in range(256)]
    used = [0] * 256
    def put(item, lo, vm, tag=None, hi=None):
        i = lo
        while i < 256 and (used[i] or (vm and i % 4 == 0)):
            if hi is not None and i >= hi: break
            i += 1
        if i >= 256: return None
        used[i] += 1; at(*SL[i], item, tag); return i
    def stream(groups, lo, pace, tagf=None, gate=None):
        pos = []; prev = lo - 1
        for n, grp in enumerate(groups):
            s0 = max(prev + 1, lo + int(n * pace), gate(n) if gate else 0)
            i = s0
            while i < 256 and (used[i] or i % 4 == 0): i += 1
            if i >= 256: break
            for t in grp[:-1]:
                c = [k for k in range(max(prev + 1, 0), i) if not used[k] and k % 4 == 0]
                k = c[-1] if c else (prev if prev >= 0 and n else i)
                used[k] += 1; at(*SL[k], t); prev = k
            used[i] += 1; at(*SL[i], grp[-1], tagf(n) if tagf else None); prev = i; pos.append(i)
        return pos
    def groups_of(lst):
        out = []; cur = []
        for t in lst:
            cur.append(t)
            if t.startswith('buffer_'): out.append(cur); cur = []
        return out
    BBA, BPL, BPC, LAG = cfg.get('bba', 17), cfg.get('bpl', 27), cfg.get('bpc', 30), cfg.get('lag', 4)
    def bar_a():
        p.wait(vmtags=['KV', 'PART']); e('s_barrier')
        e(f'buffer_store_dword v{vG}, v{vFP}, {WSr}, 0 offen sc1')
    put(bar_a, 4 * BBA + 1, True)
    put(f'buffer_load_dword v{vPoll}, v{vPa}, {WSr}, 0 offen sc1', 4 * BPL + 1, True)
    put(lambda: ool.append(poll(p, 'PP', WSr, 1, 0xffff, True)), 4 * BPC + 3, True)
    ps = stream(groups_of(sum(cfg['deferred'], [])), 0, cfg.get('dpace', 3), lambda n: 'PART')
    pk = stream(groups_of([t for i in range(5, 10) for t, tag in kv_unit(i, 4 if i < 9 else 1)]), 0, 1, lambda n: 'KV')
    assert max(ps + pk) < 4 * BBA
    pg = []
    for i in range(48):
        sl, j = divmod(i, 3); buf = PBUF + 4 * (i % NPB)
        pg.append(([f's_add_u32 s{sPb}, s{sPb}, 147456'] if j == 0 and sl else []) +
                  [f'buffer_load_dwordx4 v[{buf}:{buf+3}], v{(vL16, vL2, vLX)[j]}, {WSr}, s{sPb} offen sc1'])
    pp_ = stream(pg, 4 * BPC + 4, 2, lambda n: ('PL', n))
    cons = [0] * 48; yq = {}
    for i in range(48):
        sl, j = divmod(i, 3); buf = PBUF + 4 * (i % NPB); b_ = pp_[i] // 4 + LAG; cons[i] = b_
        for ti in range(2 if j < 2 else 1):
            d = BACC + 8 * j + 4 * ti; A = SELX if j == 2 else SEL + 4 * ti
            yq.setdefault(b_, []).append(mf16(d, f'v[{A}:{A+3}]', f'v[{buf}:{buf+3}]', '0' if sl == 0 else f'v[{d}:{d+3}]'))
    for b_, lst in yq.items():
        assert len(lst) <= 4 and b_ < 63
        tags = [('PL', i) for i in range(48) if cons[i] == b_]
        used[4 * b_] += 1; at(*SL[4 * b_], lambda tags=tags: p.wait(vmtags=tags))
        for n, t in enumerate(lst): at(2 * b_ + n // 2, f'y{n & 1}', t)
    for i in range(NPB, 48): assert pp_[i] >= 4 * cons[i - NPB] + 3, (i, pp_[i], cons[i - NPB])
    lastuse = [max(cons[i] for i in range(48) if i % NPB == k) for k in range(NPB)] + [max(cons)] * 3
    order = sorted(range(NPB + 3), key=lambda k: lastuse[k])
    quads[nearly:nmid] = [quads[nearly + k] for k in order]
    pw = stream([wo_load(f) for f in range(NWB, nmid)], 0, cfg.get('wpace', 1), None,
                gate=lambda n: 0 if NWB + n < nearly else 4 * lastuse[order[NWB + n - nearly]] + 3)
    f = NWB + len(pw)
    print('wo loads in loop', f, 'slots used', sum(1 for u in used if u), 'shared', sum(1 for u in used if u > 1))
    def extra(hs, tk):
        for item, tag in X.pop((hs, tk), []):
            if callable(item): item()
            else: e(item, tag=tag)
    base = 0
    for b in range(64):
        if b and b % 16 == 0:
            for a in (att.vAK, att.vAV): e(f'v_add_u32 v{a}, {2 * KVG}, v{a}')
            base += 2 * KVG
        for t in range(2): att.half_step(p, b, t, base, cfg, extra, line=True)
        if b % 16 == 15: pf.stamp(71 + b // 16)
    assert not X, X.keys()
    e(att.mf32(OB, att.VV + 12, att.PP + 4, att.vr(OB)))
    vO1, vO2, vO3, vOut = 1, 2, 3, 20
    e(f's_lshl_b32 s{sT0}, s{sW}, 11'); e(f'v_add_u32 v{vO1}, s{sT0}, v{vL16}')
    e(f'v_and_b32 v{vO2}, 15, v0'); e(f'v_lshlrev_b32 v{vO2}, 4, v{vO2}'); e(f'v_bfe_u32 v{vO3}, v0, 4, 1'); e(f'v_lshl_add_u32 v{vO2}, v{vO3}, 2, v{vO2}')
    e(f's_lshl_b32 s{sT0}, s{sW}, 8'); e(f's_add_u32 s{sT0}, s{sT0}, 8192'); e(f'v_add_u32 v{vO2}, s{sT0}, v{vO2}')
    e(f'v_lshrrev_b32 v{vO3}, 5, v0'); e(f'v_lshl_add_u32 v{vOut}, v{vO3}, 20, v{vO2}'); e(f'v_lshl_add_u32 v{vO2}, v{vO3}, 29, v{vO2}')
    att.att_check(p, 'A', cfg, 'test')
    att.o_pack(p)
    e(f'buffer_store_dwordx4 v[{OA}:{OA+3}], v{vO1}, {WSr}, s{sOo} offen sc1', tag='O')
    e(f'buffer_store_dwordx4 v[{OB}:{OB+3}], v{vO1}, {WSr}, s{sOo} offen offset:1024 sc1', tag='O')
    e(f'buffer_store_dword v{OA+4}, v{vO2}, {WSr}, s{sOo} offen sc1', tag='O')
    e(f'buffer_store_dword v{OB+4}, v{vO2}, {WSr}, s{sOo} offen offset:8 sc1', tag='O')
    e(f'v_add_u32 v{vO1}, {LDS_O}, v{vO1}'); e(f'v_add_u32 v{vO2}, {LDS_O}, v{vOut}'); e(f'v_add_u32 v{vO3}, {LDS_O}, v{vL16}')
    e(f'ds_write_b128 v{vO1}, v[{OA}:{OA+3}]'); e(f'ds_write_b128 v{vO1}, v[{OB}:{OB+3}] offset:1024')
    e(f'ds_write_b32 v{vO2}, v{OA+4}'); e(f'ds_write_b32 v{vO2}, v{OB+4} offset:8')
    latew = [t for f_ in range(f, 90) for t in wo_load(f_)]
    e(f'v_and_b32 v{vOut}, 15, v0')
    e('s_waitcnt lgkmcnt(0)'); e('s_barrier')
    pf.stamp(75)
    OF, AACC = 24, 64
    for i in range(9): e(f'ds_read_b128 v[{OF+4*i}:{OF+4*i+3}], v{vO3} offset:{1024 * i}')
    e(f'v_mul_u32_u24 v{vOut}, 1152, v{vOut}'); e(f'v_and_b32 v{vO3}, 48, v0'); e(f'v_add_u32 v{vOut}, v{vOut}, v{vO3}')
    OG, AC2, vMx = 88, 24, 1
    def og_load(i): return f'buffer_load_dwordx4 v[{OG+4*i}:{OG+4*i+3}], v{(vL16, vL4, vL2)[i // 4]}, {WSr}, s{sOp} offen' + (f' offset:{1024 * (i % 4)}' if i % 4 else '') + ' sc1'
    misc = latew + [f's_mul_i32 s{sT0}, s{sRG}, 18432', f's_mul_i32 s{sT1}, s{sHH}, 576', f's_add_u32 s{sT0}, s{sT0}, s{sT1}',
            f's_lshl_b32 s{sT1}, s{sW}, 7', f's_add_u32 s{sT1}, s{sT1}, s{sT0}', f's_and_b32 s{sT2}, s{sW}, 1', f's_lshl_b32 s{sT2}, s{sT2}, 3',
            f's_add_u32 s{sT0}, s{sT0}, s{sT2}', f's_andn2_b32 s{sT2}, {OOB}, s{ffn.sHF}', f'v_add_u32 v{vO3}, s{sT2}, v{vOut}', f's_mov_b32 s{sSpin}, 0']
    LDAT = cfg.get('ldat', 27); n = 0; nl = 0
    for i in range(9):
        for g in range(5):
            d = AACC + 4 * g
            e(mf16(d, quads[g * 9 + i], f'v[{OF+4*i}:{OF+4*i+3}]', '0' if i == 0 else f'v[{d}:{d+3}]')); n += 1
            if misc: e(misc.pop(0))
            elif n >= LDAT and (n - LDAT) % 2 == 0 and nl < 9: e(og_load(nl)); nl += 1
    while nl < 9: e(og_load(nl)); nl += 1
    pf.stamp(76)
    for i in range(20): e(f'v_sub_f32 v{AACC+i}, v{AACC+i}, v{BACC+i}')
    p.label('PO_go')
    for i in range(9):
        for g in range(5):
            d = AC2 + 4 * g
            e(mf16(d, quads[45 + g * 9 + i], f'v[{OG+4*i}:{OG+4*i+3}]', '0' if i == 0 else f'v[{d}:{d+3}]'))
            if g < 2: e(f'v_max3_u32 v{vMx}, v{OG+4*i+2*g}, v{OG+4*i+2*g+1}, ' + (f'v{vMx}' if i or g else '0'))
            if i == 8 and g == 2: e(f'v_cmp_eq_u32 vcc, -1, v{vMx}')
    e('s_cbranch_vccnz PO_spin')
    p.label('PO_done')
    pf.stamp(77)
    def po_out(q):
        r = q.raw
        q.label('PO_spin'); r(f's_add_u32 s{sSpin}, s{sSpin}, 1'); r(f's_cmp_gt_u32 s{sSpin}, 0x8000'); r('s_cbranch_scc1 PO_done')
        for i in range(9): r(og_load(i))
        r('s_waitcnt vmcnt(0)'); r('s_branch PO_go')
    ool.append(po_out)
    OUTr = f's[{SRD_OUT}:{SRD_OUT+3}]'
    for j in range(3):
        n = 8 if j < 2 else 4
        for i in range(n): e(f'v_add_f32 v{AACC+8*j+i}, v{AACC+8*j+i}, v{AC2+8*j+i}')
        for i in range(n): e(f'v_fma_f32 v{AACC+8*j+i}, v{vGt}, v{AACC+8*j+i}, v{BACC+8*j+i}')
        for i in range(n // 2): e(f'v_cvt_pk_bf16_f32 v{AACC+8*j+i}, v{AACC+8*j+2*i}, v{AACC+8*j+2*i+1}')
        if j < 2: e(f'buffer_store_dwordx4 v[{AACC+8*j}:{AACC+8*j+3}], v{vOut}, {OUTr}, s{sT1} offen offset:{64 * j} {cfg.get("outf", "")}')
        else: e(f'buffer_store_dwordx2 v[{AACC+16}:{AACC+17}], v{vO3}, {OUTr}, s{sT0} offen offset:512 {cfg.get("outf", "")}')
    return ool

def build(cfg, path):
    name = NAME + '_kernel'
    p = Prog()
    kernel_header(p, name)
    p.e('s_cmp_ge_u32 s2, 256'); p.e('s_cbranch_scc1 K_exit')
    cfg = dict(cfg); cfg.setdefault('codepf', 74000); cfg.setdefault('hop', 1)
    pf = Prof(p, 'real' if cfg.get('real') else bool(cfg.get('prof')))
    pf.stamp(100, real=True); pf.stamp(101)
    ool = gen(p, cfg, pf)
    pf.stamp(102)
    if pf.on: p.e('s_waitcnt vmcnt(0)')
    pf.stamp(103); pf.stamp(104, real=True)
    pf.dump(SRD_WS, sW)
    p.label('K_exit'); p.e('s_endpgm')
    for f in ool: f(p)
    p.reset_tracking(); p.auto = False
    att.att_check(p, 'A', cfg, 'fallback')
    if cfg['hop']:
        n0 = len(p.ins)
        for w_ in range(4): p.label(f'PAD{w_}')
        p.e('s_endpgm')
    p.fix_hazards(verbose=cfg.get('verbose', False))
    if cfg['hop']:
        tail = p.ins[-5:]
        sv = p.ins; npad = insert_pads(p, 'MAIN', 'K_exit', 4, 'HOPBACK'); p.ins = p.ins[:-5]; print('pads', npad)
    if cfg.get('align', 0): print('align8 (promoted, still misaligned):', align8(p, cfg.get('maxspan', 3)))
    print('instrs', len(p.ins), 'nops added', p.nops_added)
    txt = ['; @launch grid=(256,1,1) block=(256,1,1) lds=163840', '.amdgcn_target "amdgcn-amd-amdhsa--gfx950"', '.text', p.text(),
           '.section .rodata,"a"', descriptor(name, 512, acc=256)]
    open(path, 'w').write('\n'.join(txt))
if __name__ == '__main__':
    build(eval(sys.argv[2]) if len(sys.argv) > 2 else {}, sys.argv[1])
```

```python
import sys
from common import *
base = open('v5p.s').read()
K = NAME + '_kernel'
main = f'; @launch kernel={K} grid=(256,1,1) block=(256,1,1) lds=163840'
SLOT = WS_PROF + 0xF0000 + 0x800 * 3
def spin(off):
    p = Prog(); kernel_header(p, 'spin_kernel')
    p.e(f's_cmp_ge_u32 s2, 1'); p.e('s_cbranch_scc1 spin_exit')
    load_ptrs(p); p.e('s_waitcnt lgkmcnt(0)'); srd(p, 44, P_WS, WS_END)
    p.e(f'v_mov_b32 v1, {off}'); p.e('buffer_load_dword v2, v1, s[44:47], 0 offen'); p.e('v_readfirstlane_b32 s4, v2')
    p.e('s_mov_b32 s6, 10000'); p.e('s_mov_b32 s12, 0')
    p.label('PS'); p.e('s_memrealtime s[8:9]'); p.e('s_waitcnt lgkmcnt(0)')
    p.e('s_add_u32 s12, s12, 1'); p.e('s_cmp_gt_u32 s12, 100000'); p.e('s_cbranch_scc1 spin_exit')
    p.e('s_sub_u32 s8, s8, s4'); p.e('s_cmp_lt_u32 s8, s6'); p.e('s_cbranch_scc1 PS')
    p.label('spin_exit'); p.e('s_endpgm'); p.fix_hazards(); return p
def first(wg):
    p = Prog(); kernel_header(p, 'first_kernel')
    p.e('s_memrealtime s[8:9]')
    p.e(f's_cmp_lg_u32 s2, {wg}'); p.e('s_cbranch_scc1 first_exit')
    load_ptrs(p); p.e('s_waitcnt lgkmcnt(0)'); srd(p, 44, P_WS, WS_END)
    p.e(f'v_mov_b32 v1, {SLOT}'); p.e('v_mov_b32 v2, s8'); p.e('buffer_store_dword v2, v1, s[44:47], 0 offen')
    p.label('first_exit'); p.e('s_endpgm'); p.fix_hazards(); return p
def mk(name, grid, block, lds, vg, off=SLOT, usefirst=True):
    hdr = ([f'; @launch kernel=first_kernel grid=({grid},1,1) block=({block},1,1) lds={lds}'] if usefirst else []) + [main, '; @launch kernel=spin_kernel grid=(1,1,1) block=(64,1,1) lds=0']
    t = base.replace('; @launch grid=(256,1,1) block=(256,1,1) lds=163840', '\n'.join(hdr), 1)
    code = spin(off).text() + (first(min(37, grid - 1)).text() if usefirst else '')
    d = descriptor('spin_kernel', 32, 64) + (descriptor('first_kernel', vg, 64, acc=min(vg, 256)) if usefirst else '')
    t = t.replace('.section .rodata,"a"', code + '.section .rodata,"a"\n' + d, 1)
    open(f'probe_{name}.s', 'w').write(t)
mk('f0', 0, 0, 0, 0, off=WS_PROF + 37 * 4096 + 400, usefirst=False)
mk('f1', 1, 64, 0, 32)
mk('f2', 256, 256, 163840, 512)
mk('f3', 256, 256, 0, 32)
mk('f4', 0, 0, 0, 0, off=WS_PROF + 37 * 4096 + 416, usefirst=False)
```

```python
from common import *

KVG, KVB = 18944, 2240
sW, sM_, sS = 3, 4, 5
sA, sA4, sX, sMb = 6, 7, 8, 9
sT0, sT1, sT2 = 10, 11, 12
sFs, sHd, sK32 = 13, 14, 15
SRD_X, SRD_WG, SRD_WU, SRD_W4, SRD_WD, SRD_WS, SRD_WO = 44, 48, 52, 56, 60, 64, 68
sHF = 72
sP, sQm, sQx, sKV, sKX = 74, 75, 76, 77, 78
sWoD = 79
sWoJ = 80
sso, sso2, sK4, sPo, sQs = 88, 89, 90, 91, 92
vOffW, vOffD, vOffX = 1, 5, 9
vRd = 13
vH, vC1, vL16, vT = 19, 20, 21, 22
XA, XAT = 24, 28
AB = 32
G0, G1, UU = 64, 96, 128
GT = 160; NGT = 12
XV = 172
vB1, vB2, vSel, vSt1, vSt2, vAd = 204, 206, 208, 211, 212, 214
vDo, vTa, vTx, vHs, vXw, vXr, vHw, vH2 = 22, 23, 222, 223, 224, 225, 236, 237
X3 = 204
vDl, sDl = 218, 100
vPW, vPQ, vPD, vDum = 250, 251, 252, 253
sFp, sPC, sTc = 93, 98, 90
vWo = 226
NPL = 10
NQ = 2088

def xf(k, rt, n=4, o=0):
    i = (k * 4 + rt) * 4 + o
    if k < 16: return f'a[{i}:{i+n-1}]'
    i = XV + i - 256
    return f'v[{i}:{i+n-1}]'

def gen_ffn(p, cfg, pf):
    DMAX = cfg.get('dmax', 7)
    stf = cfg.get('stflags', '')
    kS = cfg.get('kS', 2); ND = cfg.get('nd', 3)
    rho = {k: k - (k > kS) for k in range(5) if k != kS}
    seqB = [(j, c) for j in range(ND) for c in (0, 1, 2, 3, 4, 5, 8)] + [(j, c) for j in range(ND) for c in (6, 7)] + [(j, c) for j in range(ND, 9) for c in range(9)]
    accB = ([G1, XV, X3][:ND] + [G0, G1] * 5)[:9]
    accB = [accB[j] if j < ND else (G1, G0)[j % 2] for j in range(9)]
    BAR = set(range(6)); b_ = 5
    for lim, step in cfg.get('bars', [(66, 1)]):
        while b_ + step <= min(lim, 65): b_ += step; BAR.add(b_)
    up = lambda b: min([x for x in BAR if x >= b] + [999]); dn = lambda b: max(x for x in BAR if x <= b)
    cfg['up'] = up
    bH = dn((1440 + 56 * ND - 10 - 15) // 32 + 1)
    e = p.e
    A = GT
    load_ptrs(p)
    e('v_lshrrev_b32 v1, 6, v0')
    e('v_and_b32 v0, 63, v0')
    e(f'v_readfirstlane_b32 s{sW}, v1')
    if cfg.get('codepf'):
        e(f's_getpc_b64 s[{sPC}:{sPC+1}]'); p.label('PCL')
        e(f's_lshr_b32 s{sT1}, s2, 3'); e(f's_lshl_b32 s{sT1}, s{sT1}, 2'); e(f's_add_u32 s{sT1}, s{sT1}, s{sW}')
        e(f'v_lshlrev_b32 v{A+6}, 7, v0'); e(f'v_add_u32 v{A+6}, s{sT1}, v{A+6}')
        e(f'v_lshlrev_b32 v{A+6}, 7, v{A+6}'); e(f'v_min_u32 v{A+6}, {cfg["codepf"]}, v{A+6}')
        e(f'global_load_dword v{vDum}, v{A+6}, s[{sPC}:{sPC+1}]').dst = set()
    e(f's_and_b32 s{sT0}, s2, 7')
    e(f's_lshr_b32 s{sT1}, s2, 3')
    mx = cfg.get('xcd_m', 2)
    lm = int(math.log2(mx)); mper = 16 // mx; lmp = int(math.log2(mper)); sper = 32 // mper
    e(f's_and_b32 s{sM_}, s{sT0}, {mx - 1}')
    e(f's_mul_i32 s{sM_}, s{sM_}, {mper}')
    e(f's_and_b32 s{sT2}, s{sT1}, {mper - 1}')
    e(f's_add_u32 s{sM_}, s{sM_}, s{sT2}')
    e(f's_lshr_b32 s{sS}, s{sT0}, {lm}')
    e(f's_mul_i32 s{sS}, s{sS}, {sper}')
    e(f's_lshr_b32 s{sT2}, s{sT1}, {lmp}')
    e(f's_add_u32 s{sS}, s{sS}, s{sT2}')
    row, l4, g16 = A, A + 1, A + 2
    e(f'v_lshrrev_b32 v{row}, 3, v0')
    e(f'v_lshrrev_b32 v{l4}, 4, v0')
    e(f'v_and_b32 v{A+3}, 7, v0')
    e(f'v_xor_b32 v{A+4}, v{A+3}, v{l4}')
    e(f'v_lshlrev_b32 v{A+4}, 4, v{A+4}')
    e(f'v_mul_u32_u24 v{A+5}, 1152, v{row}')
    e(f'v_add_u32 v{vOffX}, v{A+4}, v{A+5}')
    e(f'v_xor_b32 v{vOffX+1}, 64, v{vOffX}')
    e(f'v_add_u32 v{vOffX+1}, {8192}, v{vOffX+1}')
    e(f'v_add_u32 v{vOffX+2}, {2 * 8192}, v{vOffX}')
    e(f'v_add_u32 v{vOffX+3}, {2 * 8192}, v{vOffX+1}')
    e(f's_lshl_b32 s{sMb}, s{sW}, 12')
    e(f's_lshl_b32 s{sK32}, s{sW}, 5')
    e(f's_lshl_b32 s{sX}, s{sM_}, 7')
    e(f's_add_u32 s{sX}, s{sX}, s{sK32}')
    e(f's_mul_i32 s{sX}, s{sX}, 1152')
    rot = cfg.get('rot', 8)
    if rot == 8:
        xs_ = 8 // sper if sper <= 8 else 1; ms_ = 8 // mper if mper <= 8 else 1
        e(f's_mul_i32 s{sA}, s{sS}, {xs_}'); e(f's_mul_i32 s{sT2}, s{sM_}, {ms_}'); e(f's_add_u32 s{sA}, s{sA}, s{sT2}'); e(f's_and_b32 s{sA}, s{sA}, 7')
    elif rot == 'x':
        e(f's_lshl_b32 s{sA}, s{sS}, 1'); e(f's_and_b32 s{sA}, s{sA}, 7')
    elif rot == 4:
        e(f's_add_u32 s{sA}, s{sS}, s{sM_}'); e(f's_and_b32 s{sA}, s{sA}, 3'); e(f's_mul_i32 s{sA}, s{sA}, 9'); e(f's_lshr_b32 s{sA}, s{sA}, 2')
    else: e(f's_mov_b32 s{sA}, 0')
    def wprep(e):
        e(f'v_lshlrev_b32 v{g16}, 1, v{l4}')
        e(f'v_xor_b32 v{g16}, v{A+3}, v{g16}')
        e(f'v_lshlrev_b32 v{A+4}, 4, v{g16}')
        e(f'v_and_b32 v{A+6}, 4, v{row}'); e(f'v_add_u32 v{A+6}, v{A+6}, v{row}')
        e(f'v_mul_u32_u24 v{vOffW}, 9216, v{A+6}')
        e(f'v_add_u32 v{vOffW}, v{vOffW}, v{A+4}')
        for q in (1, 2, 3): e(f'v_add_u32 v{vOffW+q}, {(0, 16, 4, 20)[q] * 9216 - 1024 * q}, v{vOffW}')
        e(f's_mul_i32 s{sT2}, s{sS}, 576')
        e(f's_bitcmp1_b32 s{sS}, 0')
        e(f's_cselect_b32 s{sT0}, 64, 0')
        e(f's_cselect_b32 s{sFs}, 0, 512')
        e(f's_add_u32 s{sFp}, s{sT0}, s{sT2}')
        e(f's_add_u32 s{sFs}, s{sFs}, s{sT2}')
    def tables(e):
        e(f'v_add_u32 v{A+6}, s{sA}, v0'); e(f'v_subrev_u32 v{A+7}, 9, v{A+6}'); e(f'v_min_u32 v{A+6}, v{A+6}, v{A+7}')
        e(f'v_lshlrev_b32 v{A+6}, 7, v{A+6}'); e(f'v_add_u32 v{vTx}, s{sX}, v{A+6}')
        e(f'v_mul_u32_u24 v{A+6}, 7282, v0'); e(f'v_lshrrev_b32 v{A+6}, 16, v{A+6}')
        e(f'v_mul_u32_u24 v{A+7}, 9, v{A+6}'); e(f'v_sub_u32 v{A+7}, v0, v{A+7}')
        e(f'v_lshlrev_b32 v{A+7}, 2, v{A+7}'); e(f'v_add_u32 v{A+7}, s{sW}, v{A+7}')
        e(f'v_subrev_u32 v{A+8}, 18, v{A+7}'); e(f'v_min_u32 v{A+7}, v{A+7}, v{A+8}')
        e(f's_lshl_b32 s{sT2}, s{sA}, 1'); e(f'v_add_u32 v{A+7}, s{sT2}, v{A+7}')
        e(f'v_subrev_u32 v{A+8}, 18, v{A+7}'); e(f'v_min_u32 v{A+7}, v{A+7}, v{A+8}')
        e(f'v_cmp_lt_u32 vcc, {kS}, v{A+6}'); e(f'v_mul_u32_u24 v{A+8}, 294912, v{A+7}'); e(f'v_add_u32 v{A+8}, s{sFp}, v{A+8}')
        e(f'v_subbrev_co_u32 v{A+9}, vcc, 0, v{A+6}, vcc')
        e(f'v_cmp_ne_u32 vcc, {kS}, v{A+6}'); e(f'v_lshl_add_u32 v{A+8}, v{A+9}, 7, v{A+8}'); e(f'v_lshlrev_b32 v{A+7}, 5, v{A+7}')
        e(f'v_cndmask_b32 v{vTa}, v{A+7}, v{A+8}, vcc')
    e(f's_lshl_b32 s{sso}, s{sA}, 7'); e(f's_add_u32 s{sso}, s{sso}, s{sX}')
    if cfg.get('pstamp'): e(f's_memrealtime s[96:97]')
    e('s_waitcnt lgkmcnt(0)')
    if cfg.get('pstamp'): e(f'v_writelane_b32 v255, s96, 20'); pf.stamp(85)
    srd(p, SRD_X, P_X, 2048 * 1152)

    NU = 66
    HWD = cfg.get('hwd', 2)
    items = []
    for U in range(NU):
        if U < 5:
            for cx in ([2 * U, 2 * U + 1] if U < 4 else [8]): items.append(('X', cx, U))
        items.append(('W', U, dn(U)))
    resv = {pl: [] for pl in range(NPL)}
    for k in rho: resv[rho[k]].append((9 * (k + 1) + HWD, up(46) if k < 4 else up(bH + 1)))
    resv[4].append((9 * kS + 5, up(46)))
    if cfg.get('kvb0'):
        for k in range(5): resv[k].append((cfg['kvb0'] + cfg['kv_at'][k], 999))
    busy = {pl: -1 for pl in range(NPL)}
    place = {}; issue_at = {}; nxt = 0
    for b in range(-1, NU):
        lst = []
        while nxt < len(items):
            kind, idx, need = items[nxt]; fb = up(need + 1)
            r0, r1, r2_ = cfg.get('ramp', (7, 0, 1))
            if b >= 0 and (need - b > max(r0, min(DMAX, r0 + (b - r1) // r2_)) or len(lst) >= cfg.get('maxissue', 3)): break
            if b < 0 and len(lst) >= cfg.get('pro_units', 6): break
            cand = [pl for pl in range(NPL) if busy[pl] <= b and all(fb <= rs or b >= re for rs, re in resv[pl])]
            if not cand: break
            cand.sort(key=lambda pl: min([rs for rs, re in resv[pl] if rs >= fb] + [999]))
            pl = cand[0]; assert need > b
            place[(kind, idx)] = pl; busy[pl] = fb
            lst.append(items[nxt]); nxt += 1
        issue_at[b] = lst
    assert nxt == len(items)
    if cfg.get('verbose'):
        for b in range(-1, NU): print(b, [(k, i, place[(k, i)]) for k, i, n in issue_at[b]])

    def dma_instrs(kind, idx):
        pl = place[(kind, idx)]; tag = (kind, idx)
        m0 = (f's_add_u32 m0, s{sMb}, {pl * 16384}', None)
        def four(vo, sr): return [(f'buffer_load_dwordx4 v{vo+q}, s[{sr}:{sr+3}], s{sso} offen' + (f' offset:{1024*q}' if q else '') + ' lds', tag) for q in range(4)]
        if kind == 'X':
            return [(f'v_readlane_b32 s{sso}, v{vTx}, {idx}', None), m0] + four(vOffX, SRD_X)
        U = idx
        if U < 45 and U // 9 != kS:
            u = U % 9
            sr = SRD_WG if u < 4 else (SRD_W4 if u == 4 else SRD_WU)
            return [(f'v_readlane_b32 s{sso}, v{vTa}, {U}', None), m0] + four(vOffW, sr)
        if U < 45:
            u = U % 9
            b_, st = (vB1, vSt1) if u < 4 else ((vB2, vSt2) if u > 4 else (vSel, vSel + 2))
            dl = f's[{sDl}:{sDl+1}]' if u < 4 else (f'v[{vDl}:{vDl+1}]' if u > 4 else f'v[{vDl+2}:{vDl+3}]')
            ad = lambda q: f'v[{vAd+2*(q&1)}:{vAd+2*(q&1)+1}]'
            out = [(f'v_readlane_b32 s{sso}, v{vTa}, {U}', None), m0, (f'v_mad_u64_u32 {ad(0)}, vcc, v{st}, s{sso}, v[{b_}:{b_+1}]', None)]
            for hq in range(2):
                if hq: out += [(f's_add_u32 s{sso}, s{sso}, 4', None), (f's_add_u32 m0, s{sMb}, {pl * 16384 + 2048}', None),
                               (f'v_mad_u64_u32 {ad(0)}, vcc, v{st}, s{sso}, v[{b_}:{b_+1}]', None)]
                out += [(f'global_load_lds_dwordx4 {ad(0)}, off', tag), (f'v_lshl_add_u64 {ad(1)}, {ad(0)}, 0, {dl}', None),
                        (f'global_load_lds_dwordx4 {ad(1)}, off offset:1024', tag)]
            return out
        return [(f'v_readlane_b32 s{sso}, v{vDo}, {U - 45}', None), m0] + four(vOffD, SRD_WD)

    PF = cfg.get('prefetch', 4)
    if PF & 1:
        nrow = 128 // (4 * sper)
        e(f's_and_b32 s{sT1}, s{sS}, {sper - 1}'); e(f's_lshl_b32 s{sT1}, s{sT1}, 2'); e(f's_add_u32 s{sT1}, s{sT1}, s{sW}')
        e(f's_mul_i32 s{sT1}, s{sT1}, {nrow * 1152}'); e(f's_mul_i32 s{sT2}, s{sM_}, {128 * 1152}'); e(f's_add_u32 s{sT1}, s{sT1}, s{sT2}')
        e(f'v_lshl_add_u32 v{A+6}, v{A+3}, 7, v{A+5}')
        if nrow < 8:
            e(f'v_cmp_gt_u32 vcc, {8 * nrow}, v0'); e(f'v_mov_b32 v{A+7}, {OOB}'); e(f'v_cndmask_b32 v{A+6}, v{A+7}, v{A+6}, vcc')
        for i in range(max(1, nrow // 8)):
            e(f'buffer_load_dword v{vDum}, v{A+6}, s[{SRD_X}:{SRD_X+3}], s{sT1} offen offset:128').dst = set()
            if i + 1 < nrow // 8: e(f's_add_u32 s{sT1}, s{sT1}, 9216')
    pro = []
    for kind, idx, need in issue_at[-1]:
        assert kind == 'X' or idx < 4
        pro += dma_instrs(kind, idx)
    wrows = 576 // (2 * mper)
    def wtouch(col):
        return [f'buffer_load_dword v{vDum}, v{vPW}, s[{SRD_W4}:{SRD_W4+3}], {col} offen' + (f' offset:0' if 0 else '')]
    if PF & 3:
        assert wrows <= 64 or wrows == 72
        e(f's_and_b32 s{sT1}, s{sM_}, {mper - 1}'); e(f's_lshl_b32 s{sT1}, s{sT1}, 1'); e(f's_and_b32 s{sT2}, s{sW}, 1'); e(f's_add_u32 s{sT1}, s{sT1}, s{sT2}')
        e(f's_mul_i32 s{sT1}, s{sT1}, {wrows}')
        WL = cfg.get('pfwl', 9)
        e(f'v_min_u32 v{A+6}, {WL - 1}, v0'); e(f'v_add_u32 v{A+6}, s{sT1}, v{A+6}'); e(f'v_mul_u32_u24 v{vPW}, 9216, v{A+6}')
        if PF & 1: e(wtouch(f's{sFp}')[0]).dst = set()
    assert not PF & 3
    class R_:
        l = []
        def e(self, t): self.l.append(t)
    r_ = R_(); wprep(r_.e); srd(r_, SRD_WG, P_WG, 576 * 9216)
    r_.l += [f's_lshl_b32 s{sso2}, s{sA}, 1', f's_add_u32 s{sso2}, s{sso2}, s{sW}', f's_mul_i32 s{sso2}, s{sso2}, 294912', f's_add_u32 s{sso2}, s{sso2}, s{sFp}']
    fb_ = pro[1:6] + [(f's_add_u32 s{sso}, s{sso}, 128', None)] + pro[7:12]
    for t, tag in fb_:
        e(t, tag=tag)
        if tag:
            for _ in range(4):
                if r_.l: t_ = r_.l.pop(0); e(t_)
            while r_.l and r_.l[0].startswith('s_cselect'): e(r_.l.pop(0))
    for t_ in r_.l: e(t_)
    for t, tag in pro[13:18]: e(t.replace(f's{sso} offen', f's{sso2} offen'), tag=tag)
    pro = pro[18:]
    tables(e)
    srd(p, SRD_WU, P_WU, 576 * 9216)
    e(f's_cmp_ge_u32 s{sW}, 2')
    e(f's_cselect_b32 s{SRD_W4}, s{SRD_WU}, s{SRD_WG}')
    e(f's_cselect_b32 s{SRD_W4+1}, s{SRD_WU+1}, s{SRD_WG+1}')
    e(f's_mov_b32 s{SRD_W4+2}, {576 * 9216}')
    e(f's_mov_b32 s{SRD_W4+3}, 0x20000')
    if cfg.get('pstamp'): pf.stamp(86)
    e0 = e; cnt_ = [0]
    def e(t, **kw):
        r = e0(t, **kw); cnt_[0] += 1
        if pro and cnt_[0] % cfg.get('pro_every', 1000) == 0 and not t.startswith(('s_cmp', 's_cselect', 's_bitcmp')):
            while pro:
                t2, tag = pro.pop(0); e0(t2, tag=tag)
                if tag and not cfg.get('burst'): break
        return r

    e(f'v_add_u32 v{vOffD}, v{A+4}, v{A+5}')
    for q in (1, 2, 3): e(f'v_add_u32 v{vOffD+q}, {q * 8192}, v{vOffD}')
    srd(p, SRD_WD, P_WD, 4608 * 1152)
    srd(p, SRD_WS, P_WS, WS_END)
    srd(p, SRD_WO, P_WO, 576 * 1152)
    e(f's_cmp_ge_u32 s{sW}, 2')
    e(f's_cselect_b64 s[{sHF}:{sHF+1}], -1, 0')
    e(f's_cselect_b32 s{sHd}, 1, 0')
    e(f'v_lshrrev_b32 v{A+3}, 2, v0')
    e(f'v_bfe_u32 v{A+6}, v0, 3, 2')
    e(f's_and_b32 s{sT0}, s{sHF}, 2')
    e(f'v_xor_b32 v{A+6}, s{sT0}, v{A+6}')
    e(f'v_lshlrev_b32 v{A+6}, 5, v{A+6}')
    e(f'v_lshl_add_u32 v{A+6}, v{A+3}, 7, v{A+6}')
    e(f'v_and_b32 v{A+3}, 3, v0')
    e(f'v_lshl_add_u32 v{vRd}, v{A+3}, 3, v{A+6}')
    e(f'v_xor_b32 v{vRd+3}, 32, v{vRd}')
    for wd in (1, 2):
        e(f'v_add_u32 v{vRd+wd}, {65536 * wd}, v{vRd}')
        e(f'v_add_u32 v{vRd+3+wd}, {65536 * wd}, v{vRd+3}')
    e(f's_and_b32 s{sT0}, s{sW}, 1')
    e(f'v_lshrrev_b32 v{A+3}, 4, v0')
    e(f'v_bfe_u32 v{A+6}, v0, 1, 3')
    e(f'v_xor_b32 v{A+6}, v{A+6}, v{A+3}')
    e(f'v_lshlrev_b32 v{A+6}, 4, v{A+6}')
    e(f'v_and_b32 v{A+3}, 15, v0')
    e(f'v_lshl_add_u32 v{A+6}, v{A+3}, 7, v{A+6}')
    e(f's_lshl_b32 s{sT1}, s{sT0}, 13')
    e(f'v_add_u32 v{XA}, s{sT1}, v{A+6}')
    e(f'v_xor_b32 v{XA+1}, 64, v{XA}')
    for wd in (1, 2):
        for q in range(2): e(f'v_add_u32 v{XA+2*wd+q}, {65536 * wd}, v{XA+q}')
    e(f'v_lshlrev_b32 v{vL16}, 4, v0')
    e(f's_lshl_b32 s{sT1}, s{sT0}, 12')
    e(f'v_add_u32 v{vH}, s{sT1}, v{vL16}')
    e(f'v_mov_b32 v{vC1}, {f2u(GC1)}')
    late = []
    L = late.append
    B = vWo
    B = 238
    L(f's_and_b32 s{sT2}, s{sHF}, 8192'); L(f'v_add_u32 v{vHw}, s{sT2}, v{vH}')
    L(f'v_add_u32 v{vH2}, 65536, v{vH}'); L(f's_and_b32 s{sT2}, s{sHF}, 2048'); L(f'v_add_u32 v{vHs}, s{sT2}, v{vH2}')
    L(f's_add_u32 s{sT2}, s{sMb}, 65536'); L(f'v_add_u32 v{vXw}, s{sT2}, v{vL16}')
    L(f'v_xor_b32 v{vXr}, 8192, v{vXw}')
    L(f's_and_b32 s{sT0}, s{sW}, 1')
    L(f's_lshl_b32 s{sP}, s{sM_}, 4'); L(f's_add_u32 s{sP}, s{sP}, s{sS}'); L(f's_mul_i32 s{sP}, s{sP}, 147456')
    L(f's_lshl_b32 s{sT1}, s{sT0}, 12'); L(f's_add_u32 s{sP}, s{sP}, s{sT1}')
    L(f's_and_b32 s{sT1}, s{sHF}, 8192'); L(f's_add_u32 s{sP}, s{sP}, s{sT1}')
    assert WS_P == 0
    L(f's_lshl_b32 s{sT1}, s{sS}, 1'); L(f's_add_u32 s{sHd}, s{sHd}, s{sT1}')
    L(f's_lshl_b32 s{sT1}, s{sM_}, 1'); L(f's_add_u32 s{sT1}, s{sT1}, s{sT0}')
    L(f's_lshr_b32 s{sT2}, s{sT1}, 2'); L(f's_mul_i32 s{sKX}, s{sT2}, {KVG}'); L(f's_add_u32 s{sKX}, s{sKX}, {WS_KV}')
    L(f's_and_b32 s{sT2}, s{sT1}, 3'); L(f's_mul_i32 s{sKV}, s{sT2}, {2 * KVB}'); L(f's_add_u32 s{sKV}, s{sKV}, s{sKX}')
    L(f's_add_u32 s{sKV}, s{sKV}, 1024')
    L(f's_and_b32 s{sT2}, s{sM_}, 1'); L(f's_lshl_b32 s{sT2}, s{sT2}, 9'); L(f's_add_u32 s{sKX}, s{sKX}, s{sT2}')
    L(f's_lshl_b32 s{sT2}, s{sT0}, 3'); L(f's_add_u32 s{sKX}, s{sKX}, s{sT2}')
    L(f's_lshl_b32 s{sT2}, s{sHd}, 5'); L(f's_add_u32 s{sT1}, s{sT1}, s{sT2}')
    L(f's_lshl_b32 s{sQm}, s{sT1}, 11'); L(f's_add_u32 s{sQm}, s{sQm}, {WS_QM}')
    L(f's_lshl_b32 s{sQx}, s{sT1}, 8'); L(f's_add_u32 s{sQx}, s{sQx}, {WS_QX}')
    L(f's_mov_b32 s{sQs}, {f2u(QSCALE)}')
    L(f'v_lshlrev_b32 v{B}, 2, v0'); L(f'v_add_u32 v{B}, s{sW}, v{B}')
    L(f'v_mul_u32_u24 v{B+1}, 7282, v{B}'); L(f'v_lshrrev_b32 v{B+1}, 16, v{B+1}')
    L(f'v_mul_u32_u24 v{B+2}, 9, v{B+1}'); L(f'v_sub_u32 v{B+2}, v{B}, v{B+2}')
    L(f'v_cmp_gt_u32 vcc, {9 * ND}, v{B}'); L(f'v_subrev_u32 v{B+3}, {7 * ND}, v{B}')
    L(f'v_lshrrev_b32 v{B+4}, 1, v{B+3}'); L(f'v_and_or_b32 v{B+3}, v{B+3}, 1, 6')
    L(f'v_cndmask_b32 v{B+1}, v{B+1}, v{B+4}, vcc'); L(f'v_cndmask_b32 v{B+2}, v{B+2}, v{B+3}, vcc')
    L(f'v_mul_u32_u24 v{B+4}, 9363, v{B}'); L(f'v_lshrrev_b32 v{B+4}, 16, v{B+4}')
    L(f'v_mul_u32_u24 v{B+3}, 7, v{B+4}'); L(f'v_sub_u32 v{B+3}, v{B}, v{B+3}')
    L(f'v_cmp_eq_u32 vcc, 6, v{B+3}'); L('s_nop 1'); L(f'v_cndmask_b32_e64 v{B+3}, v{B+3}, 8, vcc')
    L(f'v_cmp_gt_u32 vcc, {7 * ND}, v{B}'); L('s_nop 1')
    L(f'v_cndmask_b32 v{B+1}, v{B+1}, v{B+4}, vcc'); L(f'v_cndmask_b32 v{B}, v{B+2}, v{B+3}, vcc')
    L(f's_and_b32 s{sT2}, s{sS}, 1'); L(f'v_add_u32 v{B}, s{sT2}, v{B}')
    L(f'v_cmp_eq_u32 vcc, 9, v{B}'); L(f's_mul_i32 s{sT2}, s{sS}, 331776'); L(f'v_lshlrev_b32 v{B+1}, 7, v{B+1}')
    L(f'v_cndmask_b32_e64 v{B}, v{B}, 0, vcc')
    L(f'v_mul_u32_u24 v{B}, 36864, v{B}'); L(f'v_add3_u32 v{vDo}, v{B}, v{B+1}, s{sT2}')
    rw, gg, ch, z = B, B + 1, B + 2, B + 3
    L(f'v_lshrrev_b32 v{rw}, 3, v0'); L(f'v_and_b32 v{gg}, 4, v{rw}'); L(f'v_add_u32 v{rw}, v{rw}, v{gg}'); L(f'v_bfe_u32 v{gg}, v{vOffD}, 4, 3')
    L(f'v_mov_b32 v{vSt1}, 9216')
    L(f'v_cmp_gt_u32 vcc, 4, v{gg}')
    L(f'v_mov_b32 v{B+4}, s{P_WU}'); L(f'v_mov_b32 v{B+5}, s{P_WG}'); L(f'v_cndmask_b32 v{vB1}, v{B+4}, v{B+5}, vcc')
    L(f'v_mov_b32 v{B+4}, s{P_WU+1}'); L(f'v_mov_b32 v{B+5}, s{P_WG+1}'); L(f'v_cndmask_b32 v{vB1+1}, v{B+4}, v{B+5}, vcc')
    L(f'v_and_b32 v{ch}, 3, v{gg}'); L(f'v_lshlrev_b32 v{B+4}, 4, v{ch}'); L(f'v_add_u32 v{B+5}, s{sFs}, v{B+4}')
    L(f'v_mad_u32_u24 v{B+5}, v{rw}, v{vSt1}, v{B+5}')
    L(f'v_add_co_u32 v{vB1}, vcc, v{vB1}, v{B+5}')
    L(f'v_lshrrev_b32 v{z}, 2, v{gg}'); L(f's_lshl_b32 s{sT0}, s{sS}, 1')
    L(f'v_addc_co_u32 v{vB1+1}, vcc, 0, v{vB1+1}, vcc')
    L(f'v_add_u32 v{z}, s{sT0}, v{z}')
    L(f'v_min_u32 v{B+4}, 20, v{B+4}'); L(f'v_mad_u32_u24 v{B+4}, v{z}, 36, v{B+4}')
    L(f'v_cmp_gt_u32 vcc, 3, v{z}'); L(f'v_subrev_u32 v{B+5}, 3, v{z}')
    L(f'v_mov_b32 v{B+6}, s{P_WV}'); L(f'v_mov_b32 v{B+7}, s{P_WK}')
    L(f'v_cndmask_b32 v{B+5}, v{B+5}, v{z}, vcc'); L(f'v_cndmask_b32 v{vB2}, v{B+6}, v{B+7}, vcc')
    L(f'v_mov_b32 v{B+6}, s{P_WV+1}'); L(f'v_mov_b32 v{B+7}, s{P_WK+1}'); L(f'v_cndmask_b32 v{vB2+1}, v{B+6}, v{B+7}, vcc')
    L(f'v_lshlrev_b32 v{B+5}, 4, v{B+5}'); L(f'v_min_u32 v{B+5}, 20, v{B+5}')
    L(f'v_cmp_eq_u32 vcc, 6, v{z}'); L(f'v_mov_b32 v{B+6}, s{P_GW}'); L(f'v_mov_b32 v{B+7}, s{P_GW+1}')
    L(f'v_cndmask_b32 v{vB2}, v{vB2}, v{B+6}, vcc'); L(f'v_cndmask_b32 v{vB2+1}, v{vB2+1}, v{B+7}, vcc')
    L(f'v_cndmask_b32_e64 v{B+5}, v{B+5}, 0, vcc'); L(f'v_cndmask_b32_e64 v{B+9}, 36, 2, vcc')
    L(f'v_sub_u32 v{B+6}, 3, v{ch}'); L(f'v_lshl_add_u32 v{B+6}, v{B+6}, 6, v{z}')
    L(f'v_cmp_gt_u32 vcc, 7, v{B+6}')
    L(f'v_mov_b32 v{B+6}, s{P_WQ}'); L(f'v_mov_b32 v{B+7}, s{P_WQ+1}'); L(f'v_mov_b32 v{B+8}, 1152')
    L(f'v_cndmask_b32 v{vB2}, v{B+6}, v{vB2}, vcc'); L(f'v_cndmask_b32 v{vB2+1}, v{B+7}, v{vB2+1}, vcc')
    L(f'v_cndmask_b32 v{B+4}, v{B+4}, v{B+5}, vcc'); L(f'v_cndmask_b32 v{vSt2}, v{B+8}, v{B+9}, vcc')
    L(f'v_mad_u32_u24 v{B+4}, v{rw}, v{vSt2}, v{B+4}')
    L(f'v_add_co_u32 v{vB2}, vcc, v{vB2}, v{B+4}')
    L(f'v_cndmask_b32 v{vSel}, v{vB1}, v{vB2}, s[{sHF}:{sHF+1}]'); L(f'v_cndmask_b32 v{vSel+2}, v{vSt1}, v{vSt2}, s[{sHF}:{sHF+1}]')
    L(f'v_addc_co_u32 v{vB2+1}, vcc, 0, v{vB2+1}, vcc')
    L(f'v_cndmask_b32 v{vSel+1}, v{vB1+1}, v{vB2+1}, s[{sHF}:{sHF+1}]')
    L(f's_mov_b32 s{sDl}, {16 * 9216 - 1024}'); L(f's_mov_b32 s{sDl+1}, 0')
    for o_, st_ in ((0, vSt2), (2, vSel + 2)):
        L(f'v_lshlrev_b32 v{vDl+o_}, 4, v{st_}'); L(f'v_subrev_u32 v{vDl+o_}, 1024, v{vDl+o_}'); L(f'v_ashrrev_i32 v{vDl+o_+1}, 31, v{vDl+o_}')
    if PF:
        npair = 4 * mper
        L(f's_and_b32 s{sT1}, s{sM_}, {mper - 1}'); L(f's_lshl_b32 s{sT1}, s{sT1}, 2'); L(f's_add_u32 s{sT1}, s{sT1}, s{sW}')
        L(f's_mul_i32 s{sT2}, s{sT1}, {331776 // npair}'); L(f's_mul_i32 s{sT0}, s{sS}, 331776'); L(f's_add_u32 s{sT2}, s{sT2}, s{sT0}')
        DL = cfg.get('pfdl', 21)
        L(f'v_min_u32 v{vPD}, {DL - 1}, v0'); L(f'v_lshlrev_b32 v{vPD}, 7, v{vPD}'); L(f'v_add_u32 v{vPD}, s{sT2}, v{vPD}')
        qrows = 576 // npair
        L(f's_mul_i32 s{sT1}, s{sT1}, {qrows * 1152}'); L(f's_mul_i32 s{sT0}, s{sS}, 72'); L(f's_add_u32 s{sT1}, s{sT1}, s{sT0}')
        L(f'v_lshrrev_b32 v{B}, 1, v0'); L(f'v_min_u32 v{B}, {min(qrows, 32) - 1}, v{B}'); L(f'v_mul_u32_u24 v{B}, 1152, v{B}')
        L(f'v_and_b32 v{B+1}, 1, v0'); L(f'v_mul_u32_u24 v{B+1}, 68, v{B+1}'); L(f'v_add3_u32 v{vPQ}, v{B}, v{B+1}, s{sT1}')
    for t in late: e(t)
    e(f's_mul_i32 s{sT0}, s2, 3'); e(f's_add_u32 s{sT0}, s{sT0}, s{sW}')
    e(f's_mul_hi_u32 s{sT1}, s{sT0}, {(2**32 + 17) // 18}')
    e(f's_mul_i32 s{sT2}, s{sT1}, 18'); e(f's_sub_u32 s{sT2}, s{sT0}, s{sT2}')
    e(f's_lshl_b32 s{sWoD}, s{sT0}, 10'); e(f's_add_u32 s{sWoD}, s{sWoD}, {WS_WO}')
    e(f's_lshr_b32 s{sso2}, s{sT1}, 1'); e(f's_lshl_b32 s{sso2}, s{sso2}, 6')
    e(f's_and_b32 s{sT1}, s{sT1}, 1'); e(f's_lshl_b32 s{sT1}, s{sT1}, 3'); e(f's_add_u32 s{sso2}, s{sso2}, s{sT1}')
    e(f'v_bfe_u32 v{A}, v0, 2, 2'); e(f'v_and_b32 v{A+2}, 3, v0'); e(f'v_lshlrev_b32 v{A+2}, 1, v{A+2}')
    e(f'v_lshl_add_u32 v{A}, v{A}, 4, v{A+2}'); e(f'v_add_u32 v{A}, s{sso2}, v{A}')
    e(f'v_bfe_u32 v{A+2}, v0, 4, 1'); e(f'v_mul_u32_u24 v{A+2}, 18, v{A+2}')
    e(f'v_lshrrev_b32 v{A+1}, 5, v0'); e(f'v_lshl_add_u32 v{A+2}, v{A+1}, 2, v{A+2}')
    e(f'v_lshrrev_b32 v{A+4}, 4, v0'); e(f'v_mul_u32_u24 v{A+4}, 72, v{A+4}')
    e(f's_cmp_ge_u32 s{sT2}, 9'); e(f's_cselect_b32 s{sso2}, 1, 0')
    e(f's_sub_u32 s{sT1}, s{sT2}, s{sso2}'); e(f's_mul_i32 s{sT1}, s{sT1}, 36')
    e(f's_mul_i32 s{sWoJ}, s{sso2}, 9'); e(f's_sub_u32 s{sT2}, s{sT2}, s{sWoJ}')
    e(f's_mul_i32 s{sso2}, s{sso2}, 288'); e(f's_add_u32 s{sso2}, s{sso2}, 16')
    e(f's_cmp_eq_u32 s{sT2}, 8'); e(f's_cselect_b64 vcc, -1, 0'); e(f's_cselect_b32 s{sT1}, s{sso2}, s{sT1}')
    for j in range(8): e(f's_cselect_b32 s{sWoJ+j}, {18 * (j >> 1) + (j & 1)}, {8 * (j >> 2) + (j & 3)}')
    for j in range(8): e(f's_mul_i32 s{sWoJ+j}, s{sWoJ+j}, 1152')
    e(f'v_cndmask_b32 v{A+2}, v{A+2}, v{A+4}, vcc'); e(f'v_add_u32 v{A+2}, s{sT1}, v{A+2}')
    e(f'v_mul_u32_u24 v{A+2}, 1152, v{A+2}'); e(f'v_add_u32 v{vWo}, v{A}, v{A+2}')
    e(f's_cmp_lt_u32 s{sW}, 3'); e(f's_cselect_b32 s{sT1}, 648, 0'); e(f's_cmp_lt_u32 s{sT0}, s{sT1}')
    e(f's_cselect_b32 s{sT1}, 0, {OOB}')
    e(f'v_add_u32 v{vWo}, s{sT1}, v{vWo}'); e(f'v_add_u32 v{vWo+1}, s{sT1}, v{vL16}')

    for j in range(8): e(f'buffer_load_ushort v{vWo+2+j}, v{vWo}, s[{SRD_WO}:{SRD_WO+3}], s{sWoJ+j} offen')
    if cfg.get('fake'): e(f'v_mov_b32 v{vTa}, s{sK32}'); e(f'v_mov_b32 v{vDo}, 0')
    if cfg.get('setup_extra'): cfg['setup_extra'](p)
    e = e0
    if cfg.get('pstamp'): pf.stamp(87)
    if cfg.get('hop'):
        e('s_mov_b64 exec, 0')
        for w_ in range(3): e(f's_cmp_eq_u32 s{sW}, {w_}'); e(f's_cbranch_scc1 PAD{w_}')
        e('s_branch PAD3')
        p.label('HOPBACK'); e('s_mov_b64 exec, -1'); e('s_branch MAIN'); p.raw('.p2align 12'); p.label('MAIN')
    if cfg.get('pstamp'): pf.stamp(88)
    for t2, tag in pro: e0(t2, tag=tag)
    S = Sched(NQ, 2)
    S.temps = list(range(GT, GT + NGT))
    S.nolds = lambda g: 11 <= g % 32 <= 15 and g // 32 + 1 in BAR
    qb = lambda b: 32 * (b - 1) + 15
    WSr = f's[{SRD_WS}:{SRD_WS+3}]'
    NF = NQ // 4
    def kinfo(K):
        if K < 180:
            ps, kk = divmod(K, 18); return (UU if ps & 1 else (G0, G1)[(ps // 2) % 2]), kk, ps
        j, kk = seqB[K - 180]; return accB[j], kk, 100 + j
    CH = cfg.get('chain', 4); SEQ = []; FM = {}
    for U in range(NU):
        Ks = [K for K in range(4 * U, 4 * U + 4) if K < 261]
        if CH >= 4 and U >= 5 and len(Ks) == 4 and len({kinfo(K)[2] for K in Ks}) == 1:
            FM[U] = [(i % 4, i // 4) for i in range(8)]
            SEQ += [(4 * ft + k, Ks[k], ft, rt) for ft in range(2) for rt in range(4) for k in range(4)]
            continue
        FM[U] = [(i // 2, i % 2) for i in range(8)]
        for hh in range(0, len(Ks), 2):
            pr = Ks[hh:hh + 2]
            if CH >= 2 and len(pr) == 2 and kinfo(pr[0])[2] == kinfo(pr[1])[2]:
                SEQ += [(2 * (hh + k) + ft, pr[k], ft, rt) for ft in range(2) for rt in range(4) for k in range(2)]
            else:
                SEQ += [(2 * (hh + k) + ft, pr[k], ft, (3 - rt if ft else rt)) for k in range(len(pr)) for ft in range(2) for rt in range(4)]
    assert len(SEQ) == NQ
    firstq = lambda K: min(q for q in range(8 * K - 32 if K > 4 else 0, min(NQ, 8 * K + 32)) if SEQ[q][1] == K)
    lastq = lambda K: max(q for q in range(8 * K - 32 if K > 4 else 0, min(NQ, 8 * K + 32)) if SEQ[q][1] == K)
    def tread(n, h):
        U, i = divmod(n, 8); pl = place[('W', U)]; k, ft = FM[U][i]
        a = AB + 4 * i + 2 * h
        return f'ds_read_b64_tr_b16 v[{a}:{a+1}], v{vRd + 3 * ft + pl // 4} offset:{(pl % 4) * 16384 + k * 4096 + 2048 * h}'
    TP = cfg.get('tpos', [16, 17, 18, 20, 21, 23, 24, 26, 28, 29, 30, 32, 34, 36, 38, 40])
    def barrier(b):
        st_ = (b % cfg.get('stampevery', 1) == 0)
        if st_: pf.start()
        p.wait(vmtags=[(k, i) for k, i, need in items if need == b] + sum([v_ for k_, v_ in cfg.get('bar_tags', {}).items() if up(k_) == b], []), lg0=True)
        e('s_barrier')
        if st_: pf.save(b // cfg.get('stampevery', 1))
    WC = cfg.get('wcost', 0)
    def vstamp(b):
        if b % cfg.get('stampevery', 1) == 0: pf.stamp(b // cfg.get('stampevery', 1))
    for b in range(1, NU):
        if b in BAR: S.fix(qb(b), (lambda b=b: barrier(b)), cost=99)
        else: S.fix(qb(b), (lambda b=b: (p.wait_lg({('T', b - 1, 1)}), vstamp(b))), cost=WC)
        for i in range(16):
            n = 8 * b + i // 2
            if n < NF:
                assert TP[i] >= max(g for g in range(32) if SEQ[32 * (b - 1) + g][0] == i // 2)
                S.fix(32 * (b - 1) + TP[i], tread(n, i & 1), tag=('T', b, i // 8))
        S.fix(32 * b - 1, (lambda b=b: p.wait_lg({('T', b, 0)})), cost=WC)
    dq = []
    LPS = cfg.get('lps', 4); MINL = cfg.get('minlead', 3); dcost = cfg.get('dcost', 2)
    for b in range(0, NU + 1):
        for kind, idx, need in issue_at.get(b, []): dq += [(t, tag, need - (min(up(need + 1), NU) - 1 - idx if kind == 'W' else 0)) for t, tag in dma_instrs(kind, idx)]
        dq += [(t, tag, cfg.get('kv_need', 66)) for t, tag in cfg.get('extra_units', {}).get(b, [])]
        if cfg.get('nodma') or not dq: dq = []; continue
        must = max([i + 1 for i, (t, tag, need) in enumerate(dq) if need <= b + (MINL if b >= cfg.get('b0', 0) else cfg.get('minl0', 2))] + [0])
        lim_ = max([i + 1 for i, (t, tag, need) in enumerate(dq) if need <= b + MINL] + [0])
        l0_ = min(cfg.get('lps0', 6), max(LPS, sum(1 for x in dq[:lim_] if x[1])))
        nl = max(min((LPS if b >= cfg.get('b0', 0) else l0_) if b < 44 else cfg.get('lpsb', 5), sum(1 for x in dq if x[1])), sum(1 for x in dq[:must] if x[1]))
        lo, hi = (32, 46) if b == 0 else (16, 46)
        cand = [g for g in range(lo + 4 if nl <= 8 and b else lo + 1, hi) if g != 31 and (nl > 8 or (g in TP) == (dcost == 1))]
        prev = lo
        for i in range(nl):
            tg = cand[(i * len(cand)) // nl]
            k = next(j for j, x in enumerate(dq) if x[1])
            for j in range(k):
                prev = max(prev, tg - 3 - (k - 1 - j)); c_ = 1
                if dq[j][0].startswith('s_') and not WC:
                    fr_ = [g for g in range(prev, tg) if not S.fixed[32 * (b - 1) + g]]
                    if fr_: prev = fr_[0]; c_ = 0
                S.fix(32 * (b - 1) + prev, dq[j][0], cost=c_)
            prev = max(prev, tg); S.fix(32 * (b - 1) + prev, dq[k][0], tag=dq[k][1], cost=dcost)
            dq = dq[k + 1:]
    assert not dq
    def xreads(cx):
        pl = place[('X', cx)]
        return [f'ds_read_b128 {xf(2 * cx + kk, rt)}, v{XA + 2 * (pl // 4) + kk} offset:{(pl % 4) * 16384 + 2048 * rt}' for rt in range(4) for kk in range(2)]
    XP = cfg.get('xpos', [19, 19, 22, 22, 25, 25, 27, 27, 33, 33, 35, 35, 37, 37, 39, 39])
    for b in range(1, 5):
        xs = sum([xreads(i) for k_, i, need in items if k_ == 'X' and need == b], [])
        for n_, t in enumerate(xs): S.fix(32 * (b - 1) + XP[n_], t, tag=('T', b, n_ // 8))
    if PF:
        lead = cfg.get('pflead', 420)
        def touch(t, g, w_=30):
            def f(): p.e(t).dst = set()
            o_ = S.add(Op(f, 2, start=g, end=g + w_)); o_.call = True
        if PF & 2:
            nb_ = -(-wrows // WL); span = cfg.get('pfspan', 200)
            for k in range(1, 5):
                for i in range(nb_):
                    g_ = max(cfg.get('pf0', 100), 288 * k - lead) + (i * (span if k > 1 else cfg.get('pfspan1', 100))) // nb_
                    base_, col = (sFs, 0) if k == kS else (sFp, 128 * rho[k])
                    o1 = S.add(Op(f's_add_u32 s{sTc}, s{base_}, {col + i * WL * 9216}', start=g_ - 6, end=g_)); touch(wtouch(f's{sTc}')[0], g_, 14)
            touch(f'global_load_dword v{vDum}, v{vPQ}, s[{P_WQ}:{P_WQ+1}]', 288 * kS + 144 - lead)
        if PF & 4:
            nl = -(-2592 // (4 * mper)); nb_ = -(-nl // DL); g0 = cfg.get('pfd0', 700); dg = cfg.get('pfdg', 100)
            for i in range(nb_):
                if i: S.add(Op(f'v_add_u32 v{vPD}, {128 * DL}, v{vPD}', start=g0 + dg * i - 9, end=g0 + dg * i))
                touch(f'buffer_load_dword v{vDum}, v{vPD}, s[{SRD_WD}:{SRD_WD+3}], 0 offen', g0 + dg * i)
    S.chain([f'v_lshl_or_b32 v{vWo+2+j}, v{vWo+2*j+3}, 16, v{vWo+2*j+2}' for j in range(4)] +
            [f'buffer_store_dwordx4 v[{vWo+2}:{vWo+5}], v{vWo+1}, {WSr}, s{sWoD} offen {stf}'], 130, 146)[-1].tag = 'QKV'
    def gelu_h(g, u, n, s1, e1, s2, e2, wr, sw, deps=()):
        last = []
        for i in range(n):
            t = []
            d1 = e1 - (n - 1 - i) * (e1 - s1 - 24) // n
            a = S.add(Op(lambda i=i, t=t: f'v_mul_f32 v{t[0]}, v{g+i}, v{g+i}', 1, deps, s1, e1 - 12, res=t, prio=d1 - 12))
            a = S.add(Op(lambda t=t: f'v_fmaak_f32 v{t[0]}, v{t[0]}, v{vC1}, {f2u(GC0)}', 1, [a], s1, e1 - 10, prio=d1 - 12))
            a = S.add(Op(lambda i=i, t=t: f'v_mul_f32 v{t[0]}, v{t[0]}, v{g+i}', 1, [a], s1, e1 - 8, prio=d1 - 12))
            a = S.add(Op(lambda t=t: f'v_exp_f32 v{t[0]}, v{t[0]}', 2, [a], s1, e1 - 6, prio=d1 - 12))
            a = S.add(Op(lambda t=t: f'v_add_f32 v{t[0]}, 1.0, v{t[0]}', 1, [a], s1, e1 - 4, prio=d1 - 12))
            a = S.add(Op(lambda t=t: f'v_rcp_f32 v{t[0]}, v{t[0]}', 2, [a], s1, e1 - 2, prio=d1 - 12))
            a = S.add(Op(lambda i=i, t=t: f'v_mul_f32 v{g+i}, v{t[0]}, v{g+i}', 1, [a], s1, e1, rel=t, prio=d1 - 12))
            a = S.add(Op(f'v_mul_f32 v{g+i}, v{g+i}, v{u+i}', 1, [a], s2, e2 - 8, prio=d1))
            last.append(a)
        wrs = []
        for gi in range(n // 8):
            prev = []
            for c in range(4):
                o = S.add(Op(f'v_cvt_pk_bf16_f32 v{g+8*gi+c}, v{g+8*gi+2*c}, v{g+8*gi+2*c+1}', 1, last[8*gi+2*c:8*gi+2*c+2], s2, e2 - 4, same=prev, prio=0))
                prev = [o]
            wrs.append(S.add(Op(wr(gi), 2, prev, sw + 12 * gi, e2, lds=True, prio=0)))
        return wrs
    for k in rho:
        g = (G0, G1)[k % 2]; q0 = 288 * k
        e2_ = q0 + 288 + 139 if k < 4 else qb(bH) - 4
        gelu_h(g, UU, 32, q0 + 147, e2_ - 13, q0 + 291, e2_,
               lambda i, g=g, k=k: f'ds_write_b128 v{vHw}, v[{g+8*i}:{g+8*i+3}] offset:{16384 * rho[k] + 1024 * i}', qb(9 * (k + 1) + HWD) + 1)
    GS = (G0, G1)[kS % 2]; qS = 288 * kS; bS = 9 * kS
    def xch(write):
        Lb = 'F_xw' if write else 'F_xr'
        def arm(base, em):
            for q in range(4):
                r = f'v[{base+4*q}:{base+4*q+3}]'
                em(f'ds_write_b128 v{vXw}, {r} offset:{1024*q}' if write else f'ds_read_b128 {r}, v{vXr} offset:{1024*q}')
        e(f's_cmp_ge_u32 s{sW}, 2'); e(f's_cbranch_scc1 {Lb}1')
        arm(GS + 16, p.raw); e(f's_branch {Lb}2'); p.label(f'{Lb}1')
        def em(t):
            i = e(t)
            if not write: i.dst = i.dst | {('v', r[1] + 16) for r in i.dst}
        arm(GS, em); p.label(f'{Lb}2')
    S.fix(qS + 149, lambda: xch(True), cost=7)
    x1 = up(bS + 6)
    S.fix(qb(x1) + 4, lambda: xch(False), cost=7)
    gelu_h(GS, GS + 16, 16, qb(x1) + 10, qS + 288 + 120, qb(x1) + 10, qS + 288 + 139,
           lambda i: f'ds_write_b128 v{vHs}, v[{GS+8*i}:{GS+8*i+3}] offset:{1024 * i}', qb(up(x1 + 1)) + 1)
    for n_, t in enumerate((0, 1, 2, 3, 4, 5, 8)):
        for rt in range(4):
            ad = f'v{vH} offset:{8192 * t + 1024 * rt}' if t < 8 else f'v{vH2} offset:{1024 * rt}'
            S.add(Op(f'ds_read_b128 {xf(t, rt)}, {ad}', start=max(lastq(162 + t), qb(up(41)) + 1), end=min(firstq(180 + n_) - 8, qb(46) - 4), lds=True))
    for t in (6, 7):
        for rt in range(4): S.add(Op(f'ds_read_b128 {xf(t, rt)}, v{vH} offset:{8192 * t + 1024 * rt}', start=qb(bH) + 1, end=qb(bH) + 8 + 6 * (t - 6), lds=True))
    qa, qx, tq = vAd, vAd + 1, vAd + 2
    q = [f'v_and_b32 v{tq}, 15, v0', f'v_lshrrev_b32 v{tq+1}, 4, v0', f'v_lshlrev_b32 v{qa}, 3, v{tq+1}', f'v_lshl_add_u32 v{qa}, v{tq}, 5, v{qa}',
         f'v_xor_b32 v{tq+1}, 1, v{tq+1}', f'v_lshlrev_b32 v{tq+1}, 28, v{tq+1}', f'v_lshl_add_u32 v{qx}, v{tq}, 2, v{tq+1}']
    for rt in range(4):
        u = UU + 8 * rt
        q += [f'v_mul_f32 v{u+i}, s{sQs}, v{u+i}' for i in range(4)]
        q += [f'v_mul_f32 v{tq}, s{sQs}, v{u+6}', f'v_mul_f32 v{tq+1}, s{sQs}, v{u+7}',
              f'v_cvt_pk_bf16_f32 v{u}, v{u}, v{u+1}', f'v_cvt_pk_bf16_f32 v{u+1}, v{u+2}, v{u+3}', f'v_cvt_pk_bf16_f32 v{u+2}, v{tq}, v{tq+1}',
              f'buffer_store_dwordx2 v[{u}:{u+1}], v{qa}, {WSr}, s{sQm} offen offset:{512 * rt} {stf}',
              f'buffer_store_dword v{u+2}, v{qx}, {WSr}, s{sQx} offen offset:{64 * rt} {stf}']
    qc = S.chain(q, qS + 292, qS + 288 + cfg.get('qkv_end', 100))
    def kv_block():
        L = 'F_kv'; o = lambda t: p.e(t, optional=True, tag='QKV')
        a, b2 = tq, tq + 1
        e(f's_cmp_ge_u32 s{sHd}, 7'); e(f's_cbranch_scc1 {L}_end')
        e(f's_cmp_lg_u32 s{sHd}, 6'); e(f's_cbranch_scc1 {L}_kv')
        e(f'v_and_b32 v{a}, 15, v0'); e(f'v_lshrrev_b32 v{b2}, 4, v0'); e(f'v_lshlrev_b32 v{a}, 2, v{a}')
        e(f'v_xor_b32 v{b2}, 2, v{b2}'); e(f'v_lshl_add_u32 v{a}, v{b2}, 28, v{a}')
        e(f's_add_u32 s{sT0}, s{sQx}, {WS_G - WS_QX - 6 * 8192}')
        for rt in range(4): o(f'buffer_store_dword v{UU+8*rt+4}, v{a}, {WSr}, s{sT0} offen offset:{64 * rt} {stf}')
        e(f's_branch {L}_end')
        p.label(f'{L}_kv')
        for rt in range(4):
            u = UU + 8 * rt
            e(f'v_cvt_pk_bf16_f32 v{u+4}, v{u+4}, v{u+5}'); e(f'v_cvt_pk_bf16_f32 v{u+5}, v{u+6}, v{u+7}')
        e(f'v_and_b32 v{a}, 15, v0'); e(f'v_lshrrev_b32 v{b2}, 4, v0')
        e(f's_cmp_ge_u32 s{sHd}, 3'); e(f's_cbranch_scc1 {L}_v')
        e(f'v_lshlrev_b32 v{a}, 4, v{a}')
        e(f's_cmp_eq_u32 s{sHd}, 2'); e(f's_cbranch_scc1 {L}_kx')
        e(f'v_subrev_u32 v{b2}, 2, v{b2}'); e(f'v_and_b32 v{b2}, 0x04000001, v{b2}'); e(f'v_lshl_add_u32 v{a}, v{b2}, 3, v{a}')
        e(f's_lshl_b32 s{sT0}, s{sHd}, 9'); e(f's_add_u32 s{sT0}, s{sT0}, s{sKV}')
        for rt in range(4): o(f'buffer_store_dwordx2 v[{UU+8*rt+4}:{UU+8*rt+5}], v{a}, {WSr}, s{sT0} offen offset:{(rt >> 1) * KVB + 256 * (rt & 1)} {stf}')
        e(f's_branch {L}_end')
        p.label(f'{L}_kx')
        e(f'v_xor_b32 v{b2}, 3, v{b2}'); e(f'v_lshl_add_u32 v{a}, v{b2}, 28, v{a}')
        for rt in range(4): o(f'buffer_store_dword v{UU+8*rt+5}, v{a}, {WSr}, s{sKX} offen offset:{4 * (rt >> 1) + 256 * (rt & 1)} {stf}')
        e(f's_branch {L}_end')
        p.label(f'{L}_v')
        c = tq + 2
        e(f'v_bfe_u32 v{c}, v0, 2, 1'); e(f'v_mul_u32_u24 v{c}, 304, v{c}')
        e(f'v_and_b32 v{a}, 8, v0'); e(f'v_add_u32 v{c}, v{c}, v{a}')
        e(f'v_and_b32 v{a}, 3, v0'); e(f'v_lshl_add_u32 v{a}, v{a}, 1, v{c}')
        e(f's_add_u32 s{sT1}, s{sKV}, 1024')
        e(f's_cmp_eq_u32 s{sHd}, 5'); e(f's_cbranch_scc1 {L}_vx')
        e(f'v_subrev_u32 v{b2}, 2, v{b2}'); e(f'v_and_b32 v{b2}, 0x00800001, v{b2}'); e(f'v_lshl_add_u32 v{a}, v{b2}, 6, v{a}')
        e(f's_sub_u32 s{sT0}, s{sHd}, 3'); e(f's_lshl_b32 s{sT0}, s{sT0}, 7'); e(f's_add_u32 s{sT0}, s{sT0}, s{sT1}')
        for rt in range(4):
            for ee in range(4):
                o(f'buffer_store_short{"_d16_hi" if ee & 1 else ""} v{UU+8*rt+4+(ee>>1)}, v{a}, {WSr}, s{sT0} offen offset:{(rt >> 1) * KVB + 608 * (rt & 1) + 16 * ee} {stf}')
        e(f's_branch {L}_end')
        p.label(f'{L}_vx')
        e(f'v_xor_b32 v{b2}, 3, v{b2}'); e(f'v_lshl_add_u32 v{a}, v{b2}, 28, v{a}')
        e(f'v_mov_b32 v{c}, 0x3f80')
        for rt in range(4):
            of = (rt >> 1) * KVB + 608 * (rt & 1) + 256
            o(f'buffer_store_short v{UU+8*rt+5}, v{a}, {WSr}, s{sT1} offen offset:{of} {stf}')
            o(f'buffer_store_short_d16_hi v{UU+8*rt+5}, v{a}, {WSr}, s{sT1} offen offset:{of + 16} {stf}')
            o(f'buffer_store_short v{c}, v{a}, {WSr}, s{sT1} offen offset:{of + 32} {stf}')
        p.label(f'{L}_end')
    for o_ in qc:
        if 'store' in o_.text: o_.tag = 'QKV'
    kvop = S.add(Op(kv_block, 2, [qc[-1]], qS + 292, qS + 288 + cfg.get('qkv_end', 100) + 10)); kvop.call = True
    lastst = []; qs_ = 0; NST = cfg.get('nst', 5); deferred = []
    hold = [G1, XV, X3, XV + 16, X3 + 16, XV, X3, XV + 16, X3 + 16]; freed = {}
    for j in range(9):
        acc = accB[j]; q1 = 1440 + 8 * (max(i for i, (jj, c) in enumerate(seqB) if jj == j) + 1)
        nxt_ = [1440 + 8 * i for i, (jj, c) in enumerate(seqB) if jj > j and accB[jj] == acc]
        dl = min(nxt_[0] - 2 if nxt_ else 10 ** 6, NQ - 4 if j < 8 else 10 ** 6); h = hold[j]
        cv = S.chain([f'v_cvt_pk_bf16_f32 v{h+i}, v{acc+2*i}, v{acc+2*i+1}' for i in range(16)], min(q1 + 3, NQ), min(dl, q1 + 60), deps=freed.get(h, []))
        sot = f's_add_u32 s{sPo}, s{sP}, {16384 * j}'
        sts = [f'buffer_store_dwordx4 v[{h+4*rt}:{h+4*rt+3}], v{vL16}, {WSr}, s{sPo} offen offset:{1024 * rt} {stf}' for rt in range(4)]
        if j >= NST:
            deferred.append([sot] + sts); continue
        so = S.add(Op(sot, start=q1, end=NQ, same=lastst, prio=0))
        for rt in range(4):
            qs_ = max(qs_ + cfg.get('stspace', 22), q1 + 8)
            for o_ in cv[4 * rt:4 * rt + 4]: o_.prio = min(o_.prio, qs_ - 2); o_.end = min(o_.end, qs_ + 8)
            lastst = [S.add(Op(sts[rt], 2, [cv[4 * rt + 3], so], qs_, min(qs_ + 12, dl if h == acc else NQ), tag='PART', same=lastst))]
        freed[h] = lastst
    cfg['deferred'] = deferred
    if cfg.get('sched_extra'): cfg['sched_extra'](S, p)
    if cfg.get('nofill'): S.ops = [o for o in S.ops if isinstance(o.text, str) and ('lds' in o.text or 'm0' in o.text or f's{sso},' in o.text)]
    placed = S.run()
    print('ffn schedule: overflow slots', S.over)

    def emit(item, tag):
        if callable(item): item()
        else: e(item, tag=tag)
    barrier(0)
    if cfg.get('pstamp'): pf.stamp(89)
    x0, x1_ = xreads(0), xreads(1)
    for i in (0, 1, 4, 5): e(tread(i // 2, i & 1))
    for t in x0: e(t)
    for i in (2, 3, 6, 7): e(tread(i // 2, i & 1))
    rest = [tread(i // 2, i & 1) for i in range(8, 16)] + x1_
    for n_, t in enumerate(rest): S.fixed[(n_ * 10) // 16].insert(0, (1, t, None))
    snake = cfg.get('snake', 1)
    for q in range(NQ + 1):
        if q < NQ:
            bi, K, ft, rt = SEQ[q]; D, kk, _ = kinfo(K)
            d = D + (rt * 2 + ft) * 4; a = AB + 4 * bi
            C = '0' if kk == 0 else f'v[{d}:{d+3}]'
            e(f'v_mfma_f32_16x16x32_bf16 v[{d}:{d+3}], v[{a}:{a+3}], {xf(kk, rt)}, {C}')
        if q == NQ and cfg.get('pre_tail'): cfg['pre_tail'](p)
        fx = S.fixed[q]
        lastw = [f for f in fx if callable(f[1]) and q % 16 == 15 and WC]
        for c, item, tag in fx:
            if (c, item, tag) not in lastw: emit(item, tag)
        mid = cfg.get('mid_tail') if q == NQ else None
        for n_, o in enumerate(placed[q]):
            if mid and n_ == 5: mid(p)
            if getattr(o, 'call', False): o.text()
            else: e(o.text() if callable(o.text) else o.text, tag=o.tag)
        for c, item, tag in lastw: emit(item, tag)
```

```python
import sys
from common import *
import ffn, att, k23
from ffn import sW, sT0, sT1, sT2, SRD_WS, SRD_X, vL16, KVG, KVB, sMb, sso, NQ

att.sRG, att.sHH = 6, 7
att.PP, att.KM, att.VV, att.KX = 24, 32, 40, 56
att.SA, att.SB, att.OA, att.OB = 64, 80, 96, 112
att.QM, att.QX = 128, 136
SEL, SELX = 152, 160
att.vAK, att.vAV = 164, 165
vG, vPoll, vTch = 166, 252, 240
att.vT = 236
BACC = 172
PBUF, NPB = 192, 11
vFP, vFO = 244, 245
vL2, vLX, vLO, vPa = 246, 247, 248, 249
vR0, vR1, vR2, vGt = 245, 250, 167, 251
sH0, sH1 = 8, 15
sRG, sHH = att.sRG, att.sHH
SRD_OUT, SRD_DBG = 52, 68
vAt = 238
sPb, sWo, sWx, sOo, sOp, sSpin = 74, 75, 76, 77, 78, 79
sPb = 80; sWo = 81; sWx = 82; sOo = 83; sOp = 84; sSpin = 85; sKVs = 86; sLd = 87
LDS_O, LDS_G = 154560, 163776
FLO = 4096
WSr = f's[{SRD_WS}:{SRD_WS+3}]'
mf16 = att.mf16

class Rec:
    def __init__(self): self.l = []
    def e(self, t, **kw): self.l.append(t)

def poll(p, L, srdr, want, mask, first_issued):
    e = p.e
    cmpop = 'le' if want == 64 else 'eq'
    ld = f'buffer_load_dword v{vPoll}, v{vPa}, {srdr}, 0 offen sc1'
    if not first_issued: e(ld)
    e(f'v_cmp_{cmpop}_u32 vcc, {want}, v{vPoll}')
    e(f's_cmp_eq_u32 vcc_lo, {mask}')
    e(f's_cbranch_scc0 {L}_spin')
    p.label(f'{L}_go')
    def out(q):
        r = q.raw
        q.label(f'{L}_spin'); r(f's_mov_b32 s{sSpin}, 0')
        q.label(f'{L}_sp2'); r('s_sleep 8'); r(ld); r(f's_add_u32 s{sSpin}, s{sSpin}, 1'); r('s_waitcnt vmcnt(0)')
        r(f'v_cmp_{cmpop}_u32 vcc, {want}, v{vPoll}')
        r(f's_cmp_gt_u32 s{sSpin}, 0x80000'); r(f's_cbranch_scc1 {L}_go')
        r(f's_cmp_eq_u32 vcc_lo, {mask}'); r(f's_cbranch_scc0 {L}_sp2'); r(f's_branch {L}_go')
    return out

def gen(p, cfg, pf):
    cfg = dict(cfg); cfg.setdefault('stflags', 'sc1'); cfg.setdefault('perm', 1); cfg.setdefault('bars', [(6, 1), (66, 2)]); cfg.setdefault('pfd0', 1000); cfg.setdefault('pfdg', 60)
    cfg.setdefault('apat', 'E0 E1 PB rK x0 E2 E3 C0 C1 E4 QX w x1 E5 E6 E7 y0 C2 C3 E8 QM rA x2 E9 E10 E11 y1 C4 C5 E12 PA rB x3 E13 E14 E15 C6 C7')
    BS, BP, BQ = cfg.get('bsig', 36), cfg.get('bpoll', 48), cfg.get('bq', 54)
    assert BP <= 49
    cfg['kvb0'] = BQ; cfg['bar_tags'] = {BS: ['QKV']}
    e = p.e; ool = []; O2 = cfg.get('o2', 1); sOo2, sOp2 = 42, 43; poison = []; sPz, sFn, vPz = 96, 97, 243
    qb = lambda b: 32 * (b - 1) + 15
    vT = att.vT

    def setup_extra(p):
        e = p.e
        e(f'v_cmp_eq_u32 vcc, 0, v0'); e(f'v_mov_b32 v{vFO}, {OOB}'); e(f'v_mov_b32 v{vTch+1}, 0')
        e(f'v_cndmask_b32_e64 v{vFO}, v{vFO}, 0, vcc')
        e(f's_lshl_b32 s{sT0}, s{ffn.sM_}, 6'); e(f's_lshl_b32 s{sT1}, s{ffn.sS}, 2'); e(f's_add_u32 s{sT0}, s{sT0}, s{sT1}')
        e(f's_add_u32 s{sT0}, s{sT0}, {WS_FL}'); e(f's_lshl_b32 s{sT1}, s{sW}, 28'); e(f's_add_u32 s{sT0}, s{sT0}, s{sT1}')
        e(f'v_add_u32 v{vFP}, s{sT0}, v{vFO}')
        e(f's_and_b32 s{sT0}, s2, 3'); e(f's_lshl_b32 s{sT0}, s{sT0}, 6'); e(f's_lshl_b32 s{sT1}, s{sW}, 12'); e(f's_add_u32 s{sT0}, s{sT0}, s{sT1}')
        e(f'v_lshlrev_b32 v{vPa}, 6, v0'); e(f'v_lshlrev_b32 v{vAt}, 8, v0'); e(f'v_add_u32 v{vAt}, s{sT0}, v{vAt}'); e(f'v_mov_b32 v{vAt+1}, 1')
        e(f's_lshr_b32 s{sT0}, s2, 3'); e(f's_lshl_b32 s{sT0}, s{sT0}, 2'); e(f's_add_u32 s{sT0}, s{sT0}, s{sW}'); e(f's_mul_i32 s{sT0}, s{sT0}, {51 * 128}')
        e(f's_add_u32 s{sT0}, s{sT0}, {WS_KV}'); e(f'v_min_u32 v{vTch}, 50, v0'); e(f'v_lshlrev_b32 v{vTch}, 7, v{vTch}'); e(f'v_add_u32 v{vTch}, s{sT0}, v{vTch}')
        e(f'buffer_store_dword v{vTch+1}, v{vFP}, {WSr}, 0 offen sc1', tag='QKV')
        r0 = Rec(); att.att_ids(r0); PZ = 168
        r0.e(f's_lshl_b32 s{sOp}, s{sRG}, 1'); r0.e(f's_add_u32 s{sOp}, s{sOp}, s{sHH}'); r0.e(f's_mul_i32 s{sOo}, s{sOp}, 9216'); r0.e(f's_add_u32 s{sOo}, s{sOo}, {WS_O}')
        r0.e(f's_xor_b32 s{sOp}, s{sOp}, 1'); r0.e(f's_mul_i32 s{sOp}, s{sOp}, 9216'); r0.e(f's_add_u32 s{sOp}, s{sOp}, {WS_O}')
        r0.e(f's_mul_i32 s{sSpin}, s{sW}, 2304'); r0.e(f's_add_u32 s{sSpin}, s{sSpin}, s{sOo}')
        for i in range(4): r0.e(f'v_mov_b32 v{PZ+i}, -1')
        r0.e(f'v_lshlrev_b32 v{PZ+4}, 2, v0')
        for cp in range(2 if O2 else 1):
            if cp: r0.e(f's_add_u32 s{sSpin}, s{sSpin}, {OD}')
            r0.e(f'buffer_store_dwordx4 v[{PZ}:{PZ+3}], v{vL16}, {WSr}, s{sSpin} offen sc1')
            r0.e(f'buffer_store_dwordx4 v[{PZ}:{PZ+3}], v{vL16}, {WSr}, s{sSpin} offen offset:1024 sc1')
            r0.e(f'buffer_store_dword v{PZ}, v{PZ+4}, {WSr}, s{sSpin} offen offset:2048 sc1')
        if O2: r0.e(f's_add_u32 s{sOo2}, s{sOo}, {OD}'); r0.e(f's_mov_b32 s{sOp2}, s{sOp}'); r0.e(f's_add_u32 s{sOp}, s{sOp}, {OD}')
        i0 = next(i for i, t in enumerate(r0.l) if t.startswith('v_mov')); i1 = 1 + max(i for i, t in enumerate(r0.l) if 'store' in t)
        for t in r0.l[:i0] + r0.l[i1:]: e(t.replace(f's{sSpin}', f's{sPz}'))
        poison.extend(t.replace(f's{sSpin}', f's{sPz}').replace(f'v{PZ+4}', f'v{vPz}') for t in r0.l[i0:i1])
        e(f'v_readfirstlane_b32 s{sFn}, v{vFP}')
    cfg['setup_extra'] = setup_extra

    def kv_unit(i, n=4):
        if n == 4:
            return [(f's_add_u32 m0, s{sMb}, {16384 * i}', None), (f's_add_u32 s{sso}, s{sKVs}, {16384 * i}', None)] + \
               [(f'buffer_load_dwordx4 v{vL16}, {WSr}, s{sso} offen' + (f' offset:{1024 * q}' if q else '') + ' lds', 'KV') for q in range(4)]
        return [(f's_lshr_b32 s{sso}, s{sMb}, 2', None), (f's_add_u32 m0, s{sso}, {16384 * i}', None), (f's_add_u32 s{sso}, s{sso}, {WS_KV + 16384 * i}', None),
                (f'buffer_load_dwordx4 v{vL16}, {WSr}, s{sso} offen lds', 'KV')]

    cfg.setdefault('kv_at', [4, 5, 6, 7, 8])
    cfg['extra_units'] = {}
    for i in range(5): cfg['extra_units'].setdefault(BQ + cfg['kv_at'][i], []).extend(kv_unit(i))
    quads = [f'a[{4*i}:{4*i+3}]' for i in list(range(36, 64)) + list(range(36))] + [f'v[{r}:{r+3}]' for r in (4, 8, 12, 16, 168)]
    nearly = len(quads)
    quads += [f'v[{PBUF+4*i}:{PBUF+4*i+3}]' for i in range(NPB)] + [f'v[{r}:{r+3}]' for r in (SEL, SEL + 4, SELX)]
    nmid = len(quads)
    quads += [f'v[{r}:{r+3}]' for r in (76, 80, 84, 88, 92, 104, 108, 120, 124)]
    NWO = 82; vR = (vR0, vR1, vR2)
    def wo_load(f):
        half, r = divmod(f, 41); g, i = divmod(r, 9); out = []
        hreg = (sH0, sH1)[half]
        if i == 0:
            if g == 0: out.append(f's_add_u32 s{sLd}, s{sWo}, s{hreg}')
            elif g < 4: out.append(f's_add_u32 s{sLd}, s{sLd}, 18432')
            else: out.append(f's_add_u32 s{sLd}, s{sWx}, s{hreg}')
        vo = vLO if (g == 4 and i == 4) else vR[i // 4]
        out.append(f'buffer_load_dwordx4 {quads[f]}, v{vo}, {WSr}, s{sLd} offen' + (f' offset:{1024 * (i % 4)}' if i % 4 else ''))
        return out
    NWB = cfg.get('nwb', 0)
    def sched_extra(S, p):
        r = Rec(); e = r.e
        r0 = Rec(); srd(r0, SRD_DBG, P_DBG, 256)
        q0_ = 288 * cfg.get('kS', 2) + 146
        for o in S.chain(r0.l, q0_, q0_ + 70, tight=False):
            if 'store' in o.text: o.tag = 'QKV'; o.cost = 2
        srd(r, SRD_OUT, P_OUT, 2048 * 1152)
        nB = len(r.l)
        k23.sel_frags(r, SEL, vT, True)
        e(f's_bitcmp1_b32 s{sW}, 0 | s_cselect_b64 vcc, -1, 0')
        for i in range(4): e(f'v_cndmask_b32 v{SELX+i}, v{SEL+i}, v{SEL+4+i}, vcc')
        e(f's_add_u32 s{sKVs}, s{sMb}, {WS_KV}')
        e(f's_mul_i32 s{sT0}, s{sHH}, 9'); e(f's_lshl_b32 s{sT1}, s{sW}, 1'); e(f's_add_u32 s{sT1}, s{sT1}, s{sT0}')
        e(f's_lshr_b32 s{sPb}, s{sRG}, 3'); e(f's_mul_i32 s{sPb}, s{sPb}, {16 * 147456}')
        e(f's_lshl_b32 s{sT2}, s{sT1}, 13'); e(f's_add_u32 s{sPb}, s{sPb}, s{sT2}')
        e(f's_and_b32 s{sT2}, s{sRG}, 7'); e(f's_lshl_b32 s{sT2}, s{sT2}, 10'); e(f's_add_u32 s{sPb}, s{sPb}, s{sT2}')
        e(f's_mul_i32 s{sWo}, s{sT1}, 36864'); e(f's_add_u32 s{sWo}, s{sWo}, {WS_WO}')
        e(f's_add_u32 s{sT0}, s{sT0}, 8'); e(f's_mul_i32 s{sWx}, s{sT0}, 36864'); e(f's_and_b32 s{sT2}, s{sW}, 1'); e(f's_mul_i32 s{sT2}, s{sT2}, 18432')
        e(f's_add_u32 s{sWx}, s{sWx}, s{sT2}'); e(f's_add_u32 s{sWx}, s{sWx}, {WS_WO}')
        e(f's_sub_u32 s{sT0}, s{sT0}, s{sT1}'); e(f's_lshl_b32 s{sT0}, s{sT0}, 13'); e(f's_and_b32 s{sT2}, s{ffn.sHF}, 147456'); e(f's_add_u32 s{sT0}, s{sT0}, s{sT2}')
        e(f'v_add_u32 v{vLX}, s{sT0}, v{vL16}'); e(f'v_add_u32 v{vL2}, 8192, v{vL16}')
        e(f's_and_b32 s{sT2}, s{ffn.sHF}, 5120'); e(f'v_add_u32 v{vR0}, s{sT2}, v{vL16}')
        e(f's_andn2_b32 s{sT2}, 4096, s{ffn.sHF}'); e(f'v_add_u32 v{vR1}, s{sT2}, v{vL16}'); e(f'v_add_u32 v{vR2}, 4096, v{vR1}')
        e(f's_and_b32 s{sT2}, s{ffn.sHF}, {OOB}'); e(f'v_add_u32 v{vLO}, s{sT2}, v{vR1}')
        nC = len(r.l)
        e(f'v_mov_b32 v{vG}, 1'); e(f's_mov_b32 s{att.sPerm}, 0x07060302'); e(f's_mul_i32 s{sH0}, s{sHH}, 9216'); e(f's_sub_u32 s{sH1}, 9216, s{sH0}')
        nD = len(r.l)
        def mk(t):
            if ' | ' not in t: return t
            def f():
                for x in t.split(' | '): p.e(x)
            return f
        ch = S.chain([mk(t) for t in r.l], 1586, qb(BQ) - 8, tight=False)
        for o in ch:
            if callable(o.text): o.call = True; o.cost = 2
        S.fix(qb(cfg['up'](BS)) + 4, f'buffer_atomic_add v{vAt+1}, v{vAt}, s[{SRD_DBG}:{SRD_DBG+3}], 0 offen sc1')
        DB = f's[{SRD_DBG}:{SRD_DBG+3}]'
        S.fix(qb(BP) - cfg.get('poll_lead', 110), f'buffer_load_dword v{vPoll}, v{vPa}, {DB}, 0 offen sc1')
        S.fix(qb(BP) - 2, lambda: ool.append(poll(p, 'PK', DB, 64, 15, True)), cost=4)
        r2 = Rec(); att.q_loads(r2, 'sc1')
        r2.e(f'v_and_b32 v{vGt}, 15, v0'); r2.e(f'v_lshlrev_b32 v{vGt}, 2, v{vGt}'); r2.e(f's_lshl_b32 s{sT0}, s{sRG}, 6'); r2.e(f's_add_u32 s{sT0}, s{sT0}, {WS_G}')
        r2.e(f'buffer_load_dword v{vGt}, v{vGt}, {WSr}, s{sT0} offen sc1')
        att.att_addrs(r2, cfg)
        r2.e(f's_lshr_b32 s{sT0}, s{sRG}, 3'); r2.e(f's_lshl_b32 s{sT0}, s{sT0}, 6'); r2.e(f's_add_u32 s{sT0}, s{sT0}, {WS_FL}')
        r2.e(f'v_and_b32 v{vPa}, 48, v0'); r2.e(f'v_lshlrev_b32 v{vPa}, 22, v{vPa}'); r2.e(f'v_lshl_add_u32 v{vPa}, v0, 2, v{vPa}'); r2.e(f'v_add_u32 v{vPa}, s{sT0}, v{vPa}')
        r2.e(f's_and_b32 s{sFn}, s{sFn}, 0xfffffff'); r2.e(f's_xor_b32 s{sFn}, s{sFn}, 64'); r2.e(f'v_writelane_b32 v{vPa}, s{sFn}, 16')
        S.chain(r2.l, qb(BQ) + 1, min(qb(BQ) + 80, NQ - 32), tight=False)
        def tch(): p.e(f'buffer_load_dword v{ffn.vDum}, v{vTch}, {WSr}, 0 offen').dst = set()
        if cfg.get('kvtouch', 0): S.fix(qb(BP) + 4, tch)
        prev = []; g0 = qb(BQ) + 4; dg = (NQ - 12 - g0) // max(NWB, 1)
        for f in range(NWB):
            for t in wo_load(f):
                ld_ = 'load' in t
                prev = [S.add(Op(t, 2 if ld_ else 1, prev, g0 + dg * f - (0 if ld_ else 3), g0 + dg * f + dg))]
        r3 = Rec(); att.q_variants(r3)
        r3.e(f'v_mul_f32 v{vGt}, {f2u(-math.log2(math.e))}, v{vGt}'); r3.e(f'v_exp_f32 v{vGt}, v{vGt}'); r3.e(f'v_add_f32 v{vGt}, 1.0, v{vGt}'); r3.e(f'v_rcp_f32 v{vGt}, v{vGt}')
        r3.l += [t for t in poison if t.startswith('v_')]
        S.chain(r3.l, NQ - 36, NQ - 2, tight=False)
    cfg['sched_extra'] = sched_extra

    def pre_tail(p):
        pf.start()
        p.wait(vmtags=['KV'], lg0=True); p.e('s_barrier')
        pf.save(70)
        p.e(att.rdKX(0)); p.e(att.rdKM(0)); p.e(att.rdV(0, 0)); p.e(att.rdV(0, 1))
    cfg['pre_tail'] = pre_tail
    SA, SB, OA, OB = att.SA, att.SB, att.OA, att.OB
    def mid_tail(p):
        p.c('ATT'); e(att.qkx(0, 0, SA)); e(att.mf32(SA, att.KM, att.QM, att.vr(SA)))
    cfg['mid_tail'] = mid_tail
    ffn.gen_ffn(p, cfg, pf)

    X = {}
    def at(hs, tk, item, tag=None): X.setdefault((hs, tk), []).append((item, tag))
    SL = [(2 * (i // 4) + (1 if i % 4 else 0), ('x1', 'x0', 'x2', 'x3')[i % 4]) for i in range(256)]
    used = [0] * 256
    def put(item, lo, vm, tag=None, hi=None):
        i = lo
        while i < 256 and (used[i] or (vm and i % 4 == 0)):
            if hi is not None and i >= hi: break
            i += 1
        if i >= 256: return None
        used[i] += 1; at(*SL[i], item, tag); return i
    def stream(groups, lo, pace, tagf=None, gate=None):
        pos = []; prev = lo - 1
        for n, grp in enumerate(groups):
            s0 = max(prev + 1, lo + int(n * pace), gate(n) if gate else 0)
            i = s0
            while i < 256 and (used[i] or i % 4 == 0): i += 1
            if i >= 256: break
            for t in grp[:-1]:
                c = [k for k in range(max(prev + 1, 0), i) if not used[k] and k % 4 == 0]
                k = c[-1] if c else (prev if prev >= 0 and n else i)
                used[k] += 1; at(*SL[k], t); prev = k
            used[i] += 1; at(*SL[i], grp[-1], tagf(n) if tagf else None); prev = i; pos.append(i)
        return pos
    def groups_of(lst):
        out = []; cur = []
        for t in lst:
            cur.append(t)
            if t.startswith('buffer_'): out.append(cur); cur = []
        return out
    BBA, BPL, BPC, LAG = cfg.get('bba', 17), cfg.get('bpl', 27), cfg.get('bpc', 30), cfg.get('lag', 4)
    def skew(L):
        if cfg.get('skew'):
            for w_ in range(3):
                e(f's_cmp_le_u32 s{sW}, {w_}'); e(f's_cbranch_scc1 {L}'); e(f's_nop {cfg["skew"]}')
            p.label(L)
    skew('SK0')
    def bar_a():
        p.wait(vmtags=['KV', 'PART']); e('s_barrier'); skew('SK1')
        e(f'buffer_store_dword v{vG}, v{vFP}, {WSr}, 0 offen sc1')
    put(bar_a, 4 * BBA + 1, True)
    put(f'buffer_load_dword v{vPoll}, v{vPa}, {WSr}, 0 offen sc1', 4 * BPL + 1, True)
    put(lambda: ool.append(poll(p, 'PP', WSr, 1, 0x1ffff, True)), 4 * BPC + 3, True)
    if cfg.get('otouch', 1) and O2:
        def otouch():
            e(f'v_min_u32 v{vPz}, 17, v0'); e(f'v_lshlrev_b32 v{vPz}, 7, v{vPz}')
            e(f'buffer_load_dword v{ffn.vDum}, v{vPz}, {WSr}, s{sPz} offen sc1').dst = set()
        put(otouch, 4 * cfg.get('bot', 56) + 1, True)
    ps = stream(groups_of(sum(cfg['deferred'], [])), 0, cfg.get('dpace', 3), lambda n: 'PART')
    pk = stream(groups_of([t for i in range(5, 10) for t, tag in kv_unit(i, 4 if i < 9 else 1)]), 0, 1, lambda n: 'KV')
    pz = stream(groups_of([t for t in poison if not t.startswith('v_')]), 0, 1, lambda n: 'PART')
    assert max(ps + pk + pz) < 4 * BBA
    PL = [(sl, j) for sl in range(16) for j in range(3) if j < 2 or sl % 2 == 0]; NP_ = len(PL)
    pg = []
    for i, (sl, j) in enumerate(PL):
        buf = PBUF + 4 * (i % NPB)
        pg.append(([f's_add_u32 s{sPb}, s{sPb}, 147456'] if j == 0 and sl else []) +
                  [f'buffer_load_dwordx4 v[{buf}:{buf+3}], v{(vL16, vL2, vLX)[j]}, {WSr}, s{sPb} offen sc1'])
    pp_ = stream(pg, 4 * BPC + 4, cfg.get('ppace', 2.4), lambda n: ('PL', n))
    cons = [0] * NP_; yq = {}
    for i, (sl, j) in enumerate(PL):
        buf = PBUF + 4 * (i % NPB); b_ = pp_[i] // 4 + LAG; cons[i] = b_
        for ti in range(2 if j < 2 else 1):
            d = BACC + 8 * j + 4 * ti; A = SELX if j == 2 else SEL + 4 * ti
            yq.setdefault(b_, []).append(mf16(d, f'v[{A}:{A+3}]', f'v[{buf}:{buf+3}]', '0' if sl == 0 else f'v[{d}:{d+3}]'))
    for b_, lst in yq.items():
        assert len(lst) <= 4 and b_ < 63
        tags = [('PL', i) for i in range(NP_) if cons[i] == b_]
        used[4 * b_] += 1; at(*SL[4 * b_], lambda tags=tags: p.wait(vmtags=tags))
        for n, t in enumerate(lst): at(2 * b_ + n // 2, f'y{n & 1}', t)
    for i in range(NPB, NP_): assert pp_[i] >= 4 * cons[i - NPB] + 3, (i, pp_[i], cons[i - NPB])
    lastuse = [max(cons[i] for i in range(NP_) if i % NPB == k) for k in range(NPB)] + [max(cons)] * 3
    order = sorted(range(NPB + 3), key=lambda k: lastuse[k])
    quads[nearly:nmid] = [quads[nearly + k] for k in order]
    pw = stream([wo_load(f) for f in range(NWB, min(nmid, NWO))], 0, cfg.get('wpace', 1), None,
                gate=lambda n: 0 if NWB + n < nearly else 4 * lastuse[order[NWB + n - nearly]] + 3)
    f = NWB + len(pw)
    print('wo loads in loop', f, 'slots used', sum(1 for u in used if u), 'shared', sum(1 for u in used if u > 1))
    def extra(hs, tk):
        for item, tag in X.pop((hs, tk), []):
            if callable(item): item()
            else: e(item, tag=tag)
    base = 0
    for b in range(64):
        if b and b % 16 == 0:
            for a in (att.vAK, att.vAV): e(f'v_add_u32 v{a}, {2 * KVG}, v{a}')
            base += 2 * KVG
        for t in range(2): att.half_step(p, b, t, base, cfg, extra, line=True)
        if b % 16 == 15: pf.stamp(71 + b // 16)
    assert not X, X.keys()
    e(att.mf32(OB, att.VV + 12, att.PP + 4, att.vr(OB)))
    vO1, vO2, vO3, vOut = 1, 2, 3, 20
    e(f's_lshl_b32 s{sT0}, s{sW}, 11'); e(f'v_add_u32 v{vO1}, s{sT0}, v{vL16}')
    e(f'v_and_b32 v{vO2}, 15, v0'); e(f'v_lshlrev_b32 v{vO2}, 4, v{vO2}'); e(f'v_bfe_u32 v{vO3}, v0, 4, 1'); e(f'v_lshl_add_u32 v{vO2}, v{vO3}, 2, v{vO2}')
    e(f's_lshl_b32 s{sT0}, s{sW}, 8'); e(f's_add_u32 s{sT0}, s{sT0}, 8192'); e(f'v_add_u32 v{vO2}, s{sT0}, v{vO2}')
    e(f'v_lshrrev_b32 v{vO3}, 5, v0'); e(f'v_lshl_add_u32 v{vOut}, v{vO3}, 20, v{vO2}'); e(f'v_lshl_add_u32 v{vO2}, v{vO3}, 29, v{vO2}'); e(f'v_add_u32 v{vOut}, {LDS_O}, v{vOut}')
    att.att_check(p, 'A', cfg, 'test')
    quads[f:NWO] = quads[nmid:nmid + NWO - f]
    OUTr = f's[{SRD_OUT}:{SRD_OUT+3}]'; of_ = cfg.get('outf', 'sc1')
    e(f'v_rcp_f32 v{vT}, v{vT}'); e(f'v_rcp_f32 v{vT+2}, v{vT+2}')
    e(f'v_add_u32 v{vO3}, {LDS_O}, v{vO1}')
    e(f'v_mul_f32 v{vT}, v{vT}, v{vGt}'); e(f'v_mul_f32 v{vT+2}, v{vT+2}, v{vGt}')
    for t, O in ((0, OA), (1, OB)):
        for i in range(10): e(f'v_mul_f32 v{O+i}, v{O+i}, v{vT+2*t}')
        for i in range(5): e(f'v_cvt_pk_bf16_f32 v{O+i}, v{O+2*i}, v{O+2*i+1}')
        so_, fl_ = (sOo2, '') if O2 else (sOo, 'sc1')
        e(f'buffer_store_dwordx4 v[{O}:{O+3}], v{vO1}, {WSr}, s{so_} offen offset:{1024 * t} {fl_}')
        e(f'buffer_store_dword v{O+4}, v{vO2}, {WSr}, s{so_} offen offset:{8 * t} {fl_}')
        e(f'ds_write_b128 v{vO3}, v[{O}:{O+3}] offset:{1024 * t}'); e(f'ds_write_b32 v{vOut}, v{O+4} offset:{8 * t}')
    e(f'v_sub_f32 v{vGt}, 1.0, v{vGt}')
    for i in range(3): e(f'v_add_u32 v{vT+4+i}, {LDS_O}, v{vR[i]}')
    e('s_waitcnt lgkmcnt(0)'); e('s_barrier')
    pf.stamp(75)
    OF, XR_ = 24, 60; OGq = [128, 132, 136, 140, 144, 148, 64, 68, 72]; OFq = [OF + 4 * i for i in range(9)]
    for i in range(9): e(f'ds_read_b128 v[{OF+4*i}:{OF+4*i+3}], v{vT+4+i//4} offset:{1024 * (i % 4)}')
    for i in range(20): e(f'v_mul_f32 v{BACC+i}, v{BACC+i}, v{vGt}')
    def og_load(i): return f'buffer_load_dwordx4 v[{OGq[i]}:{OGq[i]+3}], v{vR[i // 4]}, {WSr}, s{sOp} offen' + (f' offset:{1024 * (i % 4)}' if i % 4 else '') + ' sc1'
    g_st = [x for t, O in ((0, OA), (1, OB)) for x in (f'buffer_store_dwordx4 v[{O}:{O+3}], v{vO1}, {WSr}, s{sOo} offen offset:{1024 * t} sc1',
                                                    f'buffer_store_dword v{O+4}, v{vO2}, {WSr}, s{sOo} offen offset:{8 * t} sc1')] if O2 else []
    misc = [t for f_ in range(f, NWO) for t in wo_load(f_)] + [
            f'v_and_b32 v{vOut}, 15, v0', f'v_mul_u32_u24 v{vOut}, 1152, v{vOut}', f'v_and_b32 v{vO3}, 48, v0', f'v_add_u32 v{vOut}, v{vOut}, v{vO3}',
            f's_mul_i32 s{sT0}, s{sRG}, 18432', f's_mul_i32 s{sT1}, s{sHH}, 576', f's_add_u32 s{sT0}, s{sT0}, s{sT1}',
            f's_lshl_b32 s{sT1}, s{sW}, 7', f's_add_u32 s{sT1}, s{sT1}, s{sT0}', f's_and_b32 s{sT2}, s{sW}, 1', f's_lshl_b32 s{sT2}, s{sT2}, 3',
            f's_add_u32 s{sT0}, s{sT0}, s{sT2}', f's_and_b32 s{sT2}, s{ffn.sHF}, {OOB}', f'v_add_u32 v{vO3}, s{sT2}, v{vOut}', f's_mov_b32 s{sSpin}, 0']
    LDAT = cfg.get('ldat', 12); n = 0; nl = 0; assert LDAT > 6
    grp = lambda half, g: [mf16(BACC + 4 * g, quads[41 * half + 9 * g + i], f'v[{(OFq, OGq)[half][i]}:{(OFq, OGq)[half][i]+3}]', f'v[{BACC+4*g}:{BACC+4*g+3}]') for i in range(9 if g < 4 else 5)]
    chk = [f'v_max3_u32 v{vT}, v{OGq[i//2]+2*(i&1)}, v{OGq[i//2]+2*(i&1)+1}, ' + (f'v{vT}' if i else '0') for i in range(18)]
    ck_ = list(chk); CKAT = cfg.get('ckat', 36)
    for g in range(5):
        for t in grp(0, g):
            e(t); n += 1
            if n >= LDAT and (n - LDAT) % 2 == 0 and nl < 9: e(og_load(nl), tag='OG'); nl += 1
            elif misc: e(misc.pop(0))
            elif nl == 9 and n >= CKAT and ck_:
                if len(ck_) == 18: p.wait(vmtags=['OG'])
                e(ck_.pop(0)); e(ck_.pop(0))
    for t in misc: e(t)
    while nl < 9: e(og_load(nl)); nl += 1
    pf.stamp(76)
    for t in ck_: e(t)
    e(f'v_cmp_eq_u32 vcc, -1, v{vT}'); e('s_cmp_lg_u64 vcc, 0'); e('s_cbranch_scc1 PO_spin')
    p.label('PO_done')
    pf.stamp(77)
    def po_out(q):
        r = q.raw
        q.label('PO_spin')
        for t in g_st: r(t)
        q.label('PO_sp2'); r(f's_add_u32 s{sSpin}, s{sSpin}, 1'); r(f's_cmp_gt_u32 s{sSpin}, 0x8000'); r('s_cbranch_scc1 PO_done')
        if O2:
            r(f's_cmp_lt_u32 s{sSpin}, 4'); r(f's_cselect_b32 s{sT2}, s{sOp}, s{sOp2}'); r(f's_cselect_b32 s{sOp2}, s{sOp2}, s{sOp}'); r(f's_mov_b32 s{sOp}, s{sT2}')
        for i in range(9): r(og_load(i))
        r('s_waitcnt vmcnt(0)')
        for t in chk: r(t)
        r(f'v_cmp_eq_u32 vcc, -1, v{vT}'); r('s_cmp_lg_u64 vcc, 0'); r('s_cbranch_scc1 PO_sp2'); r('s_branch PO_done')
    ool.append(po_out)
    BX = BACC + 16
    cv = lambda d, s_: f'v_cvt_pk_bf16_f32 v{d}, v{s_}, v{s_+1}'
    fl = {13: [f'ds_write_b128 v{vO1}, v[{BX}:{BX+3}]'],
          20: ['s_waitcnt lgkmcnt(0)', 's_barrier'], 21: [f'ds_read_b128 v[{XR_}:{XR_+3}], v{vO2}'],
          22: [cv(BACC, BACC), cv(BACC + 1, BACC + 2)],
          28: [f'v_add_f32 v{BX}, v{BX}, v{XR_}', f'v_add_f32 v{BX+1}, v{BX+1}, v{XR_+1}'], 29: [f'v_add_f32 v{BX+2}, v{BX+2}, v{XR_+2}', f'v_add_f32 v{BX+3}, v{BX+3}, v{XR_+3}'],
          30: [cv(BACC + 2, BACC + 4), cv(BACC + 3, BACC + 6)],
          31: [f'buffer_store_dwordx4 v[{BACC}:{BACC+3}], v{vOut}, {OUTr}, s{sT1} offen {of_}'],
          33: [cv(BX, BX), cv(BX + 1, BX + 2)], 34: [f'buffer_store_dwordx2 v[{BX}:{BX+1}], v{vO3}, {OUTr}, s{sT0} offen offset:512 {of_}'],
          40: [cv(BACC + 8, BACC + 8), cv(BACC + 9, BACC + 10)]}
    for i_, t in enumerate(g_st): fl[1 + 3 * i_] = [t]
    fl[15] = [f'v_xor_b32 v{vO2}, 4096, v{vO1}']
    n = 0
    for g in (4, 0, 1, 2, 3):
        for t in grp(1, g):
            e(t); n += 1
            for x in fl.get(n, []): e(x)
    e(cv(BACC + 10, BACC + 12)); e(cv(BACC + 11, BACC + 14))
    e(f'buffer_store_dwordx4 v[{BACC+8}:{BACC+11}], v{vOut}, {OUTr}, s{sT1} offen offset:64 {of_}')
    return ool

def build(cfg, path):
    name = NAME + '_kernel'
    p = Prog()
    kernel_header(p, name)
    p.e('s_cmp_ge_u32 s2, 256'); p.e('s_cbranch_scc1 K_exit')
    cfg = dict(cfg); cfg.setdefault('codepf', 'K_exit-PCL'); cfg.setdefault('hop', 1)
    pf = Prof(p, 'real' if cfg.get('real') else bool(cfg.get('prof')))
    pf.stamp(100, real=True); pf.stamp(101)
    ool = gen(p, cfg, pf)
    pf.stamp(102)
    if pf.on: p.e('s_waitcnt vmcnt(0)')
    pf.stamp(103); pf.stamp(104, real=True)
    pf.dump(SRD_WS, sW)
    p.label('K_exit'); p.e('s_endpgm')
    for f in ool: f(p)
    p.reset_tracking(); p.auto = False
    att.att_check(p, 'A', cfg, 'fallback')
    if cfg['hop']:
        n0 = len(p.ins)
        for w_ in range(4): p.label(f'PAD{w_}')
        p.e('s_endpgm')
    p.fix_hazards(verbose=cfg.get('verbose', False))
    if cfg['hop']:
        tail = p.ins[-5:]
        sv = p.ins; npad = insert_pads(p, 'MAIN', 'K_exit', 4, 'HOPBACK'); p.ins = p.ins[:-5]; print('pads', npad)
    if cfg.get('align', 0): print('align8 (promoted, still misaligned):', align8(p, cfg.get('maxspan', 3)))
    print('instrs', len(p.ins), 'nops added', p.nops_added)
    txt = ['; @launch grid=(256,1,1) block=(256,1,1) lds=163840', '.amdgcn_target "amdgcn-amd-amdhsa--gfx950"', '.text', p.text(),
           '.section .rodata,"a"', descriptor(name, 512, acc=256)]
    open(path, 'w').write('\n'.join(txt))
if __name__ == '__main__':
    build(eval(sys.argv[2]) if len(sys.argv) > 2 else {}, sys.argv[1])
```

```python
from common import *

KVG, KVB = 18944, 2240
sW, sM_, sS = 3, 4, 5
sA, sA4, sX, sMb = 6, 7, 8, 9
sT0, sT1, sT2 = 10, 11, 12
sFs, sHd, sK32 = 13, 14, 15
SRD_X, SRD_WG, SRD_WU, SRD_W4, SRD_WD, SRD_WS, SRD_WO = 44, 48, 52, 56, 60, 64, 68
sHF = 72
sP, sQm, sQx, sKV, sKX = 74, 75, 76, 77, 78
sWoD = 79
sWoJ = 80
sso, sso2, sK4, sPo, sQs = 88, 89, 90, 91, 92
vOffW, vOffD, vOffX = 1, 5, 9
vRd = 13
vH, vC1, vL16, vT = 19, 20, 21, 22
XA, XAT = 24, 28
AB = 32
G0, G1, UU = 64, 96, 128
GT = 160; NGT = 12
XV = 172
vB1, vB2, vSel, vSt1, vSt2, vAd = 204, 206, 208, 211, 212, 214
vDo, vTa, vTx, vHs, vXw, vXr, vHw, vH2 = 22, 23, 222, 223, 224, 225, 236, 237
X3 = 204
vDl, sDl = 218, 100
vPW, vPQ, vPD, vDum = 250, 251, 252, 253
sFp, sPC, sTc = 93, 98, 90
vWo = 226
NPL = 10
NQ = 2088

def xf(k, rt, n=4, o=0):
    i = (k * 4 + rt) * 4 + o
    if k < 16: return f'a[{i}:{i+n-1}]'
    i = XV + i - 256
    return f'v[{i}:{i+n-1}]'

def gen_ffn(p, cfg, pf):
    DMAX = cfg.get('dmax', 7)
    stf = cfg.get('stflags', '')
    kS = cfg.get('kS', 2); ND = cfg.get('nd', 3)
    rho = {k: k - (k > kS) for k in range(5) if k != kS}
    seqB = [(j, c) for j in range(ND) for c in (0, 1, 2, 3, 4, 5, 8)] + [(j, c) for j in range(ND) for c in (6, 7)] + [(j, c) for j in range(ND, 9) for c in range(9)]
    accB = ([G1, XV, X3][:ND] + [G0, G1] * 5)[:9]
    accB = [accB[j] if j < ND else (G1, G0)[j % 2] for j in range(9)]
    BAR = set(range(6)); b_ = 5
    for lim, step in cfg.get('bars', [(66, 1)]):
        while b_ + step <= min(lim, 65): b_ += step; BAR.add(b_)
    up = lambda b: min([x for x in BAR if x >= b] + [999]); dn = lambda b: max(x for x in BAR if x <= b)
    cfg['up'] = up
    bH = dn((1440 + 56 * ND - 10 - 15) // 32 + 1)
    e = p.e
    A = GT
    load_ptrs(p)
    e('v_lshrrev_b32 v1, 6, v0')
    e('v_and_b32 v0, 63, v0')
    e(f'v_readfirstlane_b32 s{sW}, v1')
    if cfg.get('codepf'):
        e(f's_getpc_b64 s[{sPC}:{sPC+1}]'); p.label('PCL')
        e(f's_lshr_b32 s{sT1}, s2, 3'); e(f's_lshl_b32 s{sT1}, s{sT1}, 2'); e(f's_add_u32 s{sT1}, s{sT1}, s{sW}')
        e(f'v_lshlrev_b32 v{A+6}, 7, v0'); e(f'v_add_u32 v{A+6}, s{sT1}, v{A+6}')
        e(f'v_lshlrev_b32 v{A+6}, 7, v{A+6}'); e(f'v_min_u32 v{A+6}, {cfg["codepf"]}, v{A+6}')
        e(f'global_load_dword v{vDum}, v{A+6}, s[{sPC}:{sPC+1}]').dst = set()
    e(f's_and_b32 s{sT0}, s2, 7')
    e(f's_lshr_b32 s{sT1}, s2, 3')
    mx = cfg.get('xcd_m', 2)
    lm = int(math.log2(mx)); mper = 16 // mx; lmp = int(math.log2(mper)); sper = 32 // mper
    e(f's_and_b32 s{sM_}, s{sT0}, {mx - 1}')
    e(f's_mul_i32 s{sM_}, s{sM_}, {mper}')
    e(f's_and_b32 s{sT2}, s{sT1}, {mper - 1}')
    e(f's_add_u32 s{sM_}, s{sM_}, s{sT2}')
    e(f's_lshr_b32 s{sS}, s{sT0}, {lm}')
    e(f's_mul_i32 s{sS}, s{sS}, {sper}')
    e(f's_lshr_b32 s{sT2}, s{sT1}, {lmp}')
    e(f's_add_u32 s{sS}, s{sS}, s{sT2}')
    row, l4, g16 = A, A + 1, A + 2
    e(f'v_lshrrev_b32 v{row}, 3, v0')
    e(f'v_lshrrev_b32 v{l4}, 4, v0')
    e(f'v_and_b32 v{A+3}, 7, v0')
    e(f'v_xor_b32 v{A+4}, v{A+3}, v{l4}')
    e(f'v_lshlrev_b32 v{A+4}, 4, v{A+4}')
    e(f'v_mul_u32_u24 v{A+5}, 1152, v{row}')
    e(f'v_add_u32 v{vOffX}, v{A+4}, v{A+5}')
    e(f'v_xor_b32 v{vOffX+1}, 64, v{vOffX}')
    e(f'v_add_u32 v{vOffX+1}, {8192}, v{vOffX+1}')
    e(f'v_add_u32 v{vOffX+2}, {2 * 8192}, v{vOffX}')
    e(f'v_add_u32 v{vOffX+3}, {2 * 8192}, v{vOffX+1}')
    e(f's_lshl_b32 s{sMb}, s{sW}, 12')
    e(f's_lshl_b32 s{sK32}, s{sW}, 5')
    e(f's_lshl_b32 s{sX}, s{sM_}, 7')
    e(f's_add_u32 s{sX}, s{sX}, s{sK32}')
    e(f's_mul_i32 s{sX}, s{sX}, 1152')
    rot = cfg.get('rot', 8)
    if rot == 8:
        xs_ = 8 // sper if sper <= 8 else 1; ms_ = 8 // mper if mper <= 8 else 1
        e(f's_mul_i32 s{sA}, s{sS}, {xs_}'); e(f's_mul_i32 s{sT2}, s{sM_}, {ms_}'); e(f's_add_u32 s{sA}, s{sA}, s{sT2}'); e(f's_and_b32 s{sA}, s{sA}, 7')
    elif rot == 'x':
        e(f's_lshl_b32 s{sA}, s{sS}, 1'); e(f's_and_b32 s{sA}, s{sA}, 7')
    elif rot == 4:
        e(f's_add_u32 s{sA}, s{sS}, s{sM_}'); e(f's_and_b32 s{sA}, s{sA}, 3'); e(f's_mul_i32 s{sA}, s{sA}, 9'); e(f's_lshr_b32 s{sA}, s{sA}, 2')
    else: e(f's_mov_b32 s{sA}, 0')
    def wprep(e):
        e(f'v_lshlrev_b32 v{g16}, 1, v{l4}')
        e(f'v_xor_b32 v{g16}, v{A+3}, v{g16}')
        e(f'v_lshlrev_b32 v{A+4}, 4, v{g16}')
        e(f'v_and_b32 v{A+6}, 4, v{row}'); e(f'v_add_u32 v{A+6}, v{A+6}, v{row}')
        e(f'v_mul_u32_u24 v{vOffW}, 9216, v{A+6}')
        e(f'v_add_u32 v{vOffW}, v{vOffW}, v{A+4}')
        for q in (1, 2, 3): e(f'v_add_u32 v{vOffW+q}, {(0, 16, 4, 20)[q] * 9216 - 1024 * q}, v{vOffW}')
        e(f's_mul_i32 s{sT2}, s{sS}, 576')
        e(f's_bitcmp1_b32 s{sS}, 0')
        e(f's_cselect_b32 s{sT0}, 64, 0')
        e(f's_cselect_b32 s{sFs}, 0, 512')
        e(f's_add_u32 s{sFp}, s{sT0}, s{sT2}')
        e(f's_add_u32 s{sFs}, s{sFs}, s{sT2}')
    def tables(e):
        e(f'v_add_u32 v{A+6}, s{sA}, v0'); e(f'v_subrev_u32 v{A+7}, 9, v{A+6}'); e(f'v_min_u32 v{A+6}, v{A+6}, v{A+7}')
        e(f'v_lshlrev_b32 v{A+6}, 7, v{A+6}'); e(f'v_add_u32 v{vTx}, s{sX}, v{A+6}')
        e(f'v_mul_u32_u24 v{A+6}, 7282, v0'); e(f'v_lshrrev_b32 v{A+6}, 16, v{A+6}')
        e(f'v_mul_u32_u24 v{A+7}, 9, v{A+6}'); e(f'v_sub_u32 v{A+7}, v0, v{A+7}')
        e(f'v_lshlrev_b32 v{A+7}, 2, v{A+7}'); e(f'v_add_u32 v{A+7}, s{sW}, v{A+7}')
        e(f'v_subrev_u32 v{A+8}, 18, v{A+7}'); e(f'v_min_u32 v{A+7}, v{A+7}, v{A+8}')
        e(f's_lshl_b32 s{sT2}, s{sA}, 1'); e(f'v_add_u32 v{A+7}, s{sT2}, v{A+7}')
        e(f'v_subrev_u32 v{A+8}, 18, v{A+7}'); e(f'v_min_u32 v{A+7}, v{A+7}, v{A+8}')
        e(f'v_cmp_lt_u32 vcc, {kS}, v{A+6}'); e(f'v_mul_u32_u24 v{A+8}, 294912, v{A+7}'); e(f'v_add_u32 v{A+8}, s{sFp}, v{A+8}')
        e(f'v_subbrev_co_u32 v{A+9}, vcc, 0, v{A+6}, vcc')
        e(f'v_cmp_ne_u32 vcc, {kS}, v{A+6}'); e(f'v_lshl_add_u32 v{A+8}, v{A+9}, 7, v{A+8}'); e(f'v_lshlrev_b32 v{A+7}, 5, v{A+7}')
        e(f'v_cndmask_b32 v{vTa}, v{A+7}, v{A+8}, vcc')
    e(f's_lshl_b32 s{sso}, s{sA}, 7'); e(f's_add_u32 s{sso}, s{sso}, s{sX}')
    if cfg.get('pstamp'): e(f's_memrealtime s[96:97]')
    e('s_waitcnt lgkmcnt(0)')
    if cfg.get('pstamp'): e(f'v_writelane_b32 v255, s96, 20'); pf.stamp(85)
    srd(p, SRD_X, P_X, 2048 * 1152)

    NU = 66
    HWD = cfg.get('hwd', 2)
    items = []
    for U in range(NU):
        if U < 5:
            for cx in ([2 * U, 2 * U + 1] if U < 4 else [8]): items.append(('X', cx, U))
        items.append(('W', U, dn(U)))
    resv = {pl: [] for pl in range(NPL)}
    for k in rho: resv[rho[k]].append((9 * (k + 1) + HWD, up(46) if k < 4 else up(bH + 1)))
    resv[4].append((9 * kS + 5, up(46)))
    if cfg.get('kvb0'):
        for k in range(5): resv[k].append((cfg['kvb0'] + cfg['kv_at'][k], 999))
    busy = {pl: -1 for pl in range(NPL)}
    place = {}; issue_at = {}; nxt = 0
    for b in range(-1, NU):
        lst = []
        while nxt < len(items):
            kind, idx, need = items[nxt]; fb = up(need + 1)
            r0, r1, r2_ = cfg.get('ramp', (7, 0, 1))
            if b >= 0 and (need - b > max(r0, min(DMAX, r0 + (b - r1) // r2_)) or len(lst) >= cfg.get('maxissue', 3)): break
            if b < 0 and len(lst) >= cfg.get('pro_units', 6): break
            cand = [pl for pl in range(NPL) if busy[pl] <= b and all(fb <= rs or b >= re for rs, re in resv[pl])]
            if not cand: break
            cand.sort(key=lambda pl: min([rs for rs, re in resv[pl] if rs >= fb] + [999]))
            pl = cand[0]; assert need > b
            place[(kind, idx)] = pl; busy[pl] = fb
            lst.append(items[nxt]); nxt += 1
        issue_at[b] = lst
    assert nxt == len(items)
    if cfg.get('verbose'):
        for b in range(-1, NU): print(b, [(k, i, place[(k, i)]) for k, i, n in issue_at[b]])

    def dma_instrs(kind, idx):
        pl = place[(kind, idx)]; tag = (kind, idx)
        m0 = (f's_add_u32 m0, s{sMb}, {pl * 16384}', None)
        def four(vo, sr): return [(f'buffer_load_dwordx4 v{vo+q}, s[{sr}:{sr+3}], s{sso} offen' + (f' offset:{1024*q}' if q else '') + ' lds', tag) for q in range(4)]
        if kind == 'X':
            return [(f'v_readlane_b32 s{sso}, v{vTx}, {idx}', None), m0] + four(vOffX, SRD_X)
        U = idx
        if U < 45 and U // 9 != kS:
            u = U % 9
            sr = SRD_WG if u < 4 else (SRD_W4 if u == 4 else SRD_WU)
            return [(f'v_readlane_b32 s{sso}, v{vTa}, {U}', None), m0] + four(vOffW, sr)
        if U < 45:
            u = U % 9
            b_, st = (vB1, vSt1) if u < 4 else ((vB2, vSt2) if u > 4 else (vSel, vSel + 2))
            dl = f's[{sDl}:{sDl+1}]' if u < 4 else (f'v[{vDl}:{vDl+1}]' if u > 4 else f'v[{vDl+2}:{vDl+3}]')
            ad = lambda q: f'v[{vAd+2*(q&1)}:{vAd+2*(q&1)+1}]'
            out = [(f'v_readlane_b32 s{sso}, v{vTa}, {U}', None), m0, (f'v_mad_u64_u32 {ad(0)}, vcc, v{st}, s{sso}, v[{b_}:{b_+1}]', None)]
            for hq in range(2):
                if hq: out += [(f's_add_u32 s{sso}, s{sso}, 4', None), (f's_add_u32 m0, s{sMb}, {pl * 16384 + 2048}', None),
                               (f'v_mad_u64_u32 {ad(0)}, vcc, v{st}, s{sso}, v[{b_}:{b_+1}]', None)]
                out += [(f'global_load_lds_dwordx4 {ad(0)}, off', tag), (f'v_lshl_add_u64 {ad(1)}, {ad(0)}, 0, {dl}', None),
                        (f'global_load_lds_dwordx4 {ad(1)}, off offset:1024', tag)]
            return out
        return [(f'v_readlane_b32 s{sso}, v{vDo}, {U - 45}', None), m0] + four(vOffD, SRD_WD)

    PF = cfg.get('prefetch', 4)
    if PF & 1:
        nrow = 128 // (4 * sper)
        e(f's_and_b32 s{sT1}, s{sS}, {sper - 1}'); e(f's_lshl_b32 s{sT1}, s{sT1}, 2'); e(f's_add_u32 s{sT1}, s{sT1}, s{sW}')
        e(f's_mul_i32 s{sT1}, s{sT1}, {nrow * 1152}'); e(f's_mul_i32 s{sT2}, s{sM_}, {128 * 1152}'); e(f's_add_u32 s{sT1}, s{sT1}, s{sT2}')
        e(f'v_lshl_add_u32 v{A+6}, v{A+3}, 7, v{A+5}')
        if nrow < 8:
            e(f'v_cmp_gt_u32 vcc, {8 * nrow}, v0'); e(f'v_mov_b32 v{A+7}, {OOB}'); e(f'v_cndmask_b32 v{A+6}, v{A+7}, v{A+6}, vcc')
        for i in range(max(1, nrow // 8)):
            e(f'buffer_load_dword v{vDum}, v{A+6}, s[{SRD_X}:{SRD_X+3}], s{sT1} offen offset:128').dst = set()
            if i + 1 < nrow // 8: e(f's_add_u32 s{sT1}, s{sT1}, 9216')
    pro = []
    for kind, idx, need in issue_at[-1]:
        assert kind == 'X' or idx < 4
        pro += dma_instrs(kind, idx)
    wrows = 576 // (2 * mper)
    def wtouch(col):
        return [f'buffer_load_dword v{vDum}, v{vPW}, s[{SRD_W4}:{SRD_W4+3}], {col} offen' + (f' offset:0' if 0 else '')]
    if PF & 3:
        assert wrows <= 64 or wrows == 72
        e(f's_and_b32 s{sT1}, s{sM_}, {mper - 1}'); e(f's_lshl_b32 s{sT1}, s{sT1}, 1'); e(f's_and_b32 s{sT2}, s{sW}, 1'); e(f's_add_u32 s{sT1}, s{sT1}, s{sT2}')
        e(f's_mul_i32 s{sT1}, s{sT1}, {wrows}')
        WL = cfg.get('pfwl', 9)
        e(f'v_min_u32 v{A+6}, {WL - 1}, v0'); e(f'v_add_u32 v{A+6}, s{sT1}, v{A+6}'); e(f'v_mul_u32_u24 v{vPW}, 9216, v{A+6}')
        if PF & 1: e(wtouch(f's{sFp}')[0]).dst = set()
    assert not PF & 3
    class R_:
        l = []
        def e(self, t): self.l.append(t)
    r_ = R_(); wprep(r_.e); srd(r_, SRD_WG, P_WG, 576 * 9216)
    r_.l += [f's_lshl_b32 s{sso2}, s{sA}, 1', f's_add_u32 s{sso2}, s{sso2}, s{sW}', f's_mul_i32 s{sso2}, s{sso2}, 294912', f's_add_u32 s{sso2}, s{sso2}, s{sFp}']
    fb_ = pro[1:6] + [(f's_add_u32 s{sso}, s{sso}, 128', None)] + pro[7:12]
    for t, tag in fb_:
        e(t, tag=tag)
        if tag:
            for _ in range(4):
                if r_.l: t_ = r_.l.pop(0); e(t_)
            while r_.l and r_.l[0].startswith('s_cselect'): e(r_.l.pop(0))
    for t_ in r_.l: e(t_)
    for t, tag in pro[13:18]: e(t.replace(f's{sso} offen', f's{sso2} offen'), tag=tag)
    pro = pro[18:]
    tables(e)
    srd(p, SRD_WU, P_WU, 576 * 9216)
    e(f's_cmp_ge_u32 s{sW}, 2')
    e(f's_cselect_b32 s{SRD_W4}, s{SRD_WU}, s{SRD_WG}')
    e(f's_cselect_b32 s{SRD_W4+1}, s{SRD_WU+1}, s{SRD_WG+1}')
    e(f's_mov_b32 s{SRD_W4+2}, {576 * 9216}')
    e(f's_mov_b32 s{SRD_W4+3}, 0x20000')
    if cfg.get('pstamp'): pf.stamp(86)
    e0 = e; cnt_ = [0]
    def e(t, **kw):
        r = e0(t, **kw); cnt_[0] += 1
        if pro and cnt_[0] % cfg.get('pro_every', 1000) == 0 and not t.startswith(('s_cmp', 's_cselect', 's_bitcmp')):
            while pro:
                t2, tag = pro.pop(0); e0(t2, tag=tag)
                if tag and not cfg.get('burst'): break
        return r

    e(f'v_add_u32 v{vOffD}, v{A+4}, v{A+5}')
    for q in (1, 2, 3): e(f'v_add_u32 v{vOffD+q}, {q * 8192}, v{vOffD}')
    srd(p, SRD_WD, P_WD, 4608 * 1152)
    srd(p, SRD_WS, P_WS, WS_END)
    srd(p, SRD_WO, P_WO, 576 * 1152)
    e(f's_cmp_ge_u32 s{sW}, 2')
    e(f's_cselect_b64 s[{sHF}:{sHF+1}], -1, 0')
    e(f's_cselect_b32 s{sHd}, 1, 0')
    e(f'v_lshrrev_b32 v{A+3}, 2, v0')
    e(f'v_bfe_u32 v{A+6}, v0, 3, 2')
    e(f's_and_b32 s{sT0}, s{sHF}, 2')
    e(f'v_xor_b32 v{A+6}, s{sT0}, v{A+6}')
    e(f'v_lshlrev_b32 v{A+6}, 5, v{A+6}')
    e(f'v_lshl_add_u32 v{A+6}, v{A+3}, 7, v{A+6}')
    e(f'v_and_b32 v{A+3}, 3, v0')
    e(f'v_lshl_add_u32 v{vRd}, v{A+3}, 3, v{A+6}')
    e(f'v_xor_b32 v{vRd+3}, 32, v{vRd}')
    for wd in (1, 2):
        e(f'v_add_u32 v{vRd+wd}, {65536 * wd}, v{vRd}')
        e(f'v_add_u32 v{vRd+3+wd}, {65536 * wd}, v{vRd+3}')
    e(f's_and_b32 s{sT0}, s{sW}, 1')
    e(f'v_lshrrev_b32 v{A+3}, 4, v0')
    e(f'v_bfe_u32 v{A+6}, v0, 1, 3')
    e(f'v_xor_b32 v{A+6}, v{A+6}, v{A+3}')
    e(f'v_lshlrev_b32 v{A+6}, 4, v{A+6}')
    e(f'v_and_b32 v{A+3}, 15, v0')
    e(f'v_lshl_add_u32 v{A+6}, v{A+3}, 7, v{A+6}')
    e(f's_lshl_b32 s{sT1}, s{sT0}, 13')
    e(f'v_add_u32 v{XA}, s{sT1}, v{A+6}')
    e(f'v_xor_b32 v{XA+1}, 64, v{XA}')
    for wd in (1, 2):
        for q in range(2): e(f'v_add_u32 v{XA+2*wd+q}, {65536 * wd}, v{XA+q}')
    e(f'v_lshlrev_b32 v{vL16}, 4, v0')
    e(f's_lshl_b32 s{sT1}, s{sT0}, 12')
    e(f'v_add_u32 v{vH}, s{sT1}, v{vL16}')
    e(f'v_mov_b32 v{vC1}, {f2u(GC1)}')
    late = []
    L = late.append
    B = vWo
    B = 238
    L(f's_and_b32 s{sT2}, s{sHF}, 8192'); L(f'v_add_u32 v{vHw}, s{sT2}, v{vH}')
    L(f'v_add_u32 v{vH2}, 65536, v{vH}'); L(f's_and_b32 s{sT2}, s{sHF}, 2048'); L(f'v_add_u32 v{vHs}, s{sT2}, v{vH2}')
    L(f's_add_u32 s{sT2}, s{sMb}, 65536'); L(f'v_add_u32 v{vXw}, s{sT2}, v{vL16}')
    L(f'v_xor_b32 v{vXr}, 8192, v{vXw}')
    L(f's_and_b32 s{sT0}, s{sW}, 1')
    L(f's_lshl_b32 s{sP}, s{sM_}, 4'); L(f's_add_u32 s{sP}, s{sP}, s{sS}'); L(f's_mul_i32 s{sP}, s{sP}, 147456')
    L(f's_lshl_b32 s{sT1}, s{sT0}, 12'); L(f's_add_u32 s{sP}, s{sP}, s{sT1}')
    L(f's_and_b32 s{sT1}, s{sHF}, 8192'); L(f's_add_u32 s{sP}, s{sP}, s{sT1}')
    assert WS_P == 0
    L(f's_lshl_b32 s{sT1}, s{sS}, 1'); L(f's_add_u32 s{sHd}, s{sHd}, s{sT1}')
    L(f's_lshl_b32 s{sT1}, s{sM_}, 1'); L(f's_add_u32 s{sT1}, s{sT1}, s{sT0}')
    L(f's_lshr_b32 s{sT2}, s{sT1}, 2'); L(f's_mul_i32 s{sKX}, s{sT2}, {KVG}'); L(f's_add_u32 s{sKX}, s{sKX}, {WS_KV}')
    L(f's_and_b32 s{sT2}, s{sT1}, 3'); L(f's_mul_i32 s{sKV}, s{sT2}, {2 * KVB}'); L(f's_add_u32 s{sKV}, s{sKV}, s{sKX}')
    L(f's_add_u32 s{sKV}, s{sKV}, 1024')
    L(f's_and_b32 s{sT2}, s{sM_}, 1'); L(f's_lshl_b32 s{sT2}, s{sT2}, 9'); L(f's_add_u32 s{sKX}, s{sKX}, s{sT2}')
    L(f's_lshl_b32 s{sT2}, s{sT0}, 3'); L(f's_add_u32 s{sKX}, s{sKX}, s{sT2}')
    L(f's_lshl_b32 s{sT2}, s{sHd}, 5'); L(f's_add_u32 s{sT1}, s{sT1}, s{sT2}')
    L(f's_lshl_b32 s{sQm}, s{sT1}, 11'); L(f's_add_u32 s{sQm}, s{sQm}, {WS_QM}')
    L(f's_lshl_b32 s{sQx}, s{sT1}, 8'); L(f's_add_u32 s{sQx}, s{sQx}, {WS_QX}')
    L(f's_mov_b32 s{sQs}, {f2u(QSCALE)}')
    L(f'v_lshlrev_b32 v{B}, 2, v0'); L(f'v_add_u32 v{B}, s{sW}, v{B}')
    L(f'v_mul_u32_u24 v{B+1}, 7282, v{B}'); L(f'v_lshrrev_b32 v{B+1}, 16, v{B+1}')
    L(f'v_mul_u32_u24 v{B+2}, 9, v{B+1}'); L(f'v_sub_u32 v{B+2}, v{B}, v{B+2}')
    L(f'v_cmp_gt_u32 vcc, {9 * ND}, v{B}'); L(f'v_subrev_u32 v{B+3}, {7 * ND}, v{B}')
    L(f'v_lshrrev_b32 v{B+4}, 1, v{B+3}'); L(f'v_and_or_b32 v{B+3}, v{B+3}, 1, 6')
    L(f'v_cndmask_b32 v{B+1}, v{B+1}, v{B+4}, vcc'); L(f'v_cndmask_b32 v{B+2}, v{B+2}, v{B+3}, vcc')
    L(f'v_mul_u32_u24 v{B+4}, 9363, v{B}'); L(f'v_lshrrev_b32 v{B+4}, 16, v{B+4}')
    L(f'v_mul_u32_u24 v{B+3}, 7, v{B+4}'); L(f'v_sub_u32 v{B+3}, v{B}, v{B+3}')
    L(f'v_cmp_eq_u32 vcc, 6, v{B+3}'); L('s_nop 1'); L(f'v_cndmask_b32_e64 v{B+3}, v{B+3}, 8, vcc')
    L(f'v_cmp_gt_u32 vcc, {7 * ND}, v{B}'); L('s_nop 1')
    L(f'v_cndmask_b32 v{B+1}, v{B+1}, v{B+4}, vcc'); L(f'v_cndmask_b32 v{B}, v{B+2}, v{B+3}, vcc')
    L(f's_and_b32 s{sT2}, s{sS}, 1'); L(f'v_add_u32 v{B}, s{sT2}, v{B}')
    L(f'v_cmp_eq_u32 vcc, 9, v{B}'); L(f's_mul_i32 s{sT2}, s{sS}, 331776'); L(f'v_lshlrev_b32 v{B+1}, 7, v{B+1}')
    L(f'v_cndmask_b32_e64 v{B}, v{B}, 0, vcc')
    L(f'v_mul_u32_u24 v{B}, 36864, v{B}'); L(f'v_add3_u32 v{vDo}, v{B}, v{B+1}, s{sT2}')
    rw, gg, ch, z = B, B + 1, B + 2, B + 3
    L(f'v_lshrrev_b32 v{rw}, 3, v0'); L(f'v_and_b32 v{gg}, 4, v{rw}'); L(f'v_add_u32 v{rw}, v{rw}, v{gg}'); L(f'v_bfe_u32 v{gg}, v{vOffD}, 4, 3')
    L(f'v_mov_b32 v{vSt1}, 9216')
    L(f'v_cmp_gt_u32 vcc, 4, v{gg}')
    L(f'v_mov_b32 v{B+4}, s{P_WU}'); L(f'v_mov_b32 v{B+5}, s{P_WG}'); L(f'v_cndmask_b32 v{vB1}, v{B+4}, v{B+5}, vcc')
    L(f'v_mov_b32 v{B+4}, s{P_WU+1}'); L(f'v_mov_b32 v{B+5}, s{P_WG+1}'); L(f'v_cndmask_b32 v{vB1+1}, v{B+4}, v{B+5}, vcc')
    L(f'v_and_b32 v{ch}, 3, v{gg}'); L(f'v_lshlrev_b32 v{B+4}, 4, v{ch}'); L(f'v_add_u32 v{B+5}, s{sFs}, v{B+4}')
    L(f'v_mad_u32_u24 v{B+5}, v{rw}, v{vSt1}, v{B+5}')
    L(f'v_add_co_u32 v{vB1}, vcc, v{vB1}, v{B+5}')
    L(f'v_lshrrev_b32 v{z}, 2, v{gg}'); L(f's_lshl_b32 s{sT0}, s{sS}, 1')
    L(f'v_addc_co_u32 v{vB1+1}, vcc, 0, v{vB1+1}, vcc')
    L(f'v_add_u32 v{z}, s{sT0}, v{z}')
    L(f'v_min_u32 v{B+4}, 20, v{B+4}'); L(f'v_mad_u32_u24 v{B+4}, v{z}, 36, v{B+4}')
    L(f'v_cmp_gt_u32 vcc, 3, v{z}'); L(f'v_subrev_u32 v{B+5}, 3, v{z}')
    L(f'v_mov_b32 v{B+6}, s{P_WV}'); L(f'v_mov_b32 v{B+7}, s{P_WK}')
    L(f'v_cndmask_b32 v{B+5}, v{B+5}, v{z}, vcc'); L(f'v_cndmask_b32 v{vB2}, v{B+6}, v{B+7}, vcc')
    L(f'v_mov_b32 v{B+6}, s{P_WV+1}'); L(f'v_mov_b32 v{B+7}, s{P_WK+1}'); L(f'v_cndmask_b32 v{vB2+1}, v{B+6}, v{B+7}, vcc')
    L(f'v_lshlrev_b32 v{B+5}, 4, v{B+5}'); L(f'v_min_u32 v{B+5}, 20, v{B+5}')
    L(f'v_cmp_eq_u32 vcc, 6, v{z}'); L(f'v_mov_b32 v{B+6}, s{P_GW}'); L(f'v_mov_b32 v{B+7}, s{P_GW+1}')
    L(f'v_cndmask_b32 v{vB2}, v{vB2}, v{B+6}, vcc'); L(f'v_cndmask_b32 v{vB2+1}, v{vB2+1}, v{B+7}, vcc')
    L(f'v_cndmask_b32_e64 v{B+5}, v{B+5}, 0, vcc'); L(f'v_cndmask_b32_e64 v{B+9}, 36, 2, vcc')
    L(f'v_sub_u32 v{B+6}, 3, v{ch}'); L(f'v_lshl_add_u32 v{B+6}, v{B+6}, 6, v{z}')
    L(f'v_cmp_gt_u32 vcc, 7, v{B+6}')
    L(f'v_mov_b32 v{B+6}, s{P_WQ}'); L(f'v_mov_b32 v{B+7}, s{P_WQ+1}'); L(f'v_mov_b32 v{B+8}, 1152')
    L(f'v_cndmask_b32 v{vB2}, v{B+6}, v{vB2}, vcc'); L(f'v_cndmask_b32 v{vB2+1}, v{B+7}, v{vB2+1}, vcc')
    L(f'v_cndmask_b32 v{B+4}, v{B+4}, v{B+5}, vcc'); L(f'v_cndmask_b32 v{vSt2}, v{B+8}, v{B+9}, vcc')
    L(f'v_mad_u32_u24 v{B+4}, v{rw}, v{vSt2}, v{B+4}')
    L(f'v_add_co_u32 v{vB2}, vcc, v{vB2}, v{B+4}')
    L(f'v_cndmask_b32 v{vSel}, v{vB1}, v{vB2}, s[{sHF}:{sHF+1}]'); L(f'v_cndmask_b32 v{vSel+2}, v{vSt1}, v{vSt2}, s[{sHF}:{sHF+1}]')
    L(f'v_addc_co_u32 v{vB2+1}, vcc, 0, v{vB2+1}, vcc')
    L(f'v_cndmask_b32 v{vSel+1}, v{vB1+1}, v{vB2+1}, s[{sHF}:{sHF+1}]')
    L(f's_mov_b32 s{sDl}, {16 * 9216 - 1024}'); L(f's_mov_b32 s{sDl+1}, 0')
    for o_, st_ in ((0, vSt2), (2, vSel + 2)):
        L(f'v_lshlrev_b32 v{vDl+o_}, 4, v{st_}'); L(f'v_subrev_u32 v{vDl+o_}, 1024, v{vDl+o_}'); L(f'v_ashrrev_i32 v{vDl+o_+1}, 31, v{vDl+o_}')
    if PF:
        mpd = cfg.get('pfm', mper); npair = 4 * mpd
        L(f's_and_b32 s{sT1}, s{sM_}, {mpd - 1}'); L(f's_lshl_b32 s{sT1}, s{sT1}, 2'); L(f's_add_u32 s{sT1}, s{sT1}, s{sW}')
        L(f's_mul_i32 s{sT2}, s{sT1}, {331776 // npair}'); L(f's_mul_i32 s{sT0}, s{sS}, 331776'); L(f's_add_u32 s{sT2}, s{sT2}, s{sT0}')
        DL = cfg.get('pfdl', 21)
        L(f'v_min_u32 v{vPD}, {DL - 1}, v0'); L(f'v_lshlrev_b32 v{vPD}, 7, v{vPD}'); L(f'v_add_u32 v{vPD}, s{sT2}, v{vPD}')
    for t in late: e(t)
    e(f's_mul_i32 s{sT0}, s2, 3'); e(f's_add_u32 s{sT0}, s{sT0}, s{sW}')
    e(f's_mul_hi_u32 s{sT1}, s{sT0}, {(2**32 + 17) // 18}')
    e(f's_mul_i32 s{sT2}, s{sT1}, 18'); e(f's_sub_u32 s{sT2}, s{sT0}, s{sT2}')
    e(f's_lshl_b32 s{sWoD}, s{sT0}, 10'); e(f's_add_u32 s{sWoD}, s{sWoD}, {WS_WO}')
    e(f's_lshr_b32 s{sso2}, s{sT1}, 1'); e(f's_lshl_b32 s{sso2}, s{sso2}, 6')
    e(f's_and_b32 s{sT1}, s{sT1}, 1'); e(f's_lshl_b32 s{sT1}, s{sT1}, 3'); e(f's_add_u32 s{sso2}, s{sso2}, s{sT1}')
    e(f'v_bfe_u32 v{A}, v0, 2, 2'); e(f'v_and_b32 v{A+2}, 3, v0'); e(f'v_lshlrev_b32 v{A+2}, 1, v{A+2}')
    e(f'v_lshl_add_u32 v{A}, v{A}, 4, v{A+2}'); e(f'v_add_u32 v{A}, s{sso2}, v{A}')
    e(f'v_bfe_u32 v{A+2}, v0, 4, 1'); e(f'v_mul_u32_u24 v{A+2}, 18, v{A+2}')
    e(f'v_lshrrev_b32 v{A+1}, 5, v0'); e(f'v_lshl_add_u32 v{A+2}, v{A+1}, 2, v{A+2}')
    e(f'v_lshrrev_b32 v{A+4}, 4, v0'); e(f'v_mul_u32_u24 v{A+4}, 72, v{A+4}')
    e(f's_cmp_ge_u32 s{sT2}, 9'); e(f's_cselect_b32 s{sso2}, 1, 0')
    e(f's_sub_u32 s{sT1}, s{sT2}, s{sso2}'); e(f's_mul_i32 s{sT1}, s{sT1}, 36')
    e(f's_mul_i32 s{sWoJ}, s{sso2}, 9'); e(f's_sub_u32 s{sT2}, s{sT2}, s{sWoJ}')
    e(f's_mul_i32 s{sso2}, s{sso2}, 288'); e(f's_add_u32 s{sso2}, s{sso2}, 16')
    e(f's_cmp_eq_u32 s{sT2}, 8'); e(f's_cselect_b64 vcc, -1, 0'); e(f's_cselect_b32 s{sT1}, s{sso2}, s{sT1}')
    for j in range(8): e(f's_cselect_b32 s{sWoJ+j}, {18 * (j >> 1) + (j & 1)}, {8 * (j >> 2) + (j & 3)}')
    for j in range(8): e(f's_mul_i32 s{sWoJ+j}, s{sWoJ+j}, 1152')
    e(f'v_cndmask_b32 v{A+2}, v{A+2}, v{A+4}, vcc'); e(f'v_add_u32 v{A+2}, s{sT1}, v{A+2}')
    e(f'v_mul_u32_u24 v{A+2}, 1152, v{A+2}'); e(f'v_add_u32 v{vWo}, v{A}, v{A+2}')
    e(f's_cmp_lt_u32 s{sW}, 3'); e(f's_cselect_b32 s{sT1}, 648, 0'); e(f's_cmp_lt_u32 s{sT0}, s{sT1}')
    e(f's_cselect_b32 s{sT1}, 0, {OOB}')
    e(f'v_add_u32 v{vWo}, s{sT1}, v{vWo}'); e(f'v_add_u32 v{vWo+1}, s{sT1}, v{vL16}')

    for j in range(8): e(f'buffer_load_ushort v{vWo+2+j}, v{vWo}, s[{SRD_WO}:{SRD_WO+3}], s{sWoJ+j} offen')
    if cfg.get('fake'): e(f'v_mov_b32 v{vTa}, s{sK32}'); e(f'v_mov_b32 v{vDo}, 0')
    if cfg.get('setup_extra'): cfg['setup_extra'](p)
    e = e0
    if cfg.get('pstamp'): pf.stamp(87)
    if cfg.get('hop'):
        e('s_mov_b64 exec, 0')
        for w_ in range(3): e(f's_cmp_eq_u32 s{sW}, {w_}'); e(f's_cbranch_scc1 PAD{w_}')
        e('s_branch PAD3')
        p.label('HOPBACK'); e('s_mov_b64 exec, -1'); e('s_branch MAIN'); p.raw('.p2align 12'); p.label('MAIN')
    if cfg.get('pstamp'): pf.stamp(88)
    for t2, tag in pro: e0(t2, tag=tag)
    S = Sched(NQ, 2)
    S.temps = list(range(GT, GT + NGT))
    S.nolds = lambda g: 11 <= g % 32 <= 15 and g // 32 + 1 in BAR
    qb = lambda b: 32 * (b - 1) + 15
    WSr = f's[{SRD_WS}:{SRD_WS+3}]'
    NF = NQ // 4
    def kinfo(K):
        if K < 180:
            ps, kk = divmod(K, 18); return (UU if ps & 1 else (G0, G1)[(ps // 2) % 2]), kk, ps
        j, kk = seqB[K - 180]; return accB[j], kk, 100 + j
    CH = cfg.get('chain', 4); SEQ = []; FM = {}
    for U in range(NU):
        Ks = [K for K in range(4 * U, 4 * U + 4) if K < 261]
        if CH >= 4 and U >= 5 and len(Ks) == 4 and len({kinfo(K)[2] for K in Ks}) == 1:
            FM[U] = [(i % 4, i // 4) for i in range(8)]
            SEQ += [(4 * ft + k, Ks[k], ft, rt) for ft in range(2) for rt in range(4) for k in range(4)]
            continue
        FM[U] = [(i // 2, i % 2) for i in range(8)]
        for hh in range(0, len(Ks), 2):
            pr = Ks[hh:hh + 2]
            if CH >= 2 and len(pr) == 2 and kinfo(pr[0])[2] == kinfo(pr[1])[2]:
                SEQ += [(2 * (hh + k) + ft, pr[k], ft, rt) for ft in range(2) for rt in range(4) for k in range(2)]
            else:
                SEQ += [(2 * (hh + k) + ft, pr[k], ft, (3 - rt if ft else rt)) for k in range(len(pr)) for ft in range(2) for rt in range(4)]
    assert len(SEQ) == NQ
    firstq = lambda K: min(q for q in range(8 * K - 32 if K > 4 else 0, min(NQ, 8 * K + 32)) if SEQ[q][1] == K)
    lastq = lambda K: max(q for q in range(8 * K - 32 if K > 4 else 0, min(NQ, 8 * K + 32)) if SEQ[q][1] == K)
    def tread(n, h):
        U, i = divmod(n, 8); pl = place[('W', U)]; k, ft = FM[U][i]
        a = AB + 4 * i + 2 * h
        return f'ds_read_b64_tr_b16 v[{a}:{a+1}], v{vRd + 3 * ft + pl // 4} offset:{(pl % 4) * 16384 + k * 4096 + 2048 * h}'
    TP = cfg.get('tpos', [16, 17, 18, 20, 21, 23, 24, 26, 28, 29, 30, 32, 34, 36, 38, 40])
    def barrier(b):
        st_ = (b % cfg.get('stampevery', 1) == 0)
        if st_: pf.start()
        p.wait(vmtags=[(k, i) for k, i, need in items if need == b] + sum([v_ for k_, v_ in cfg.get('bar_tags', {}).items() if up(k_) == b], []), lg0=True)
        e('s_barrier')
        if st_: pf.save(b // cfg.get('stampevery', 1))
    WC = cfg.get('wcost', 0)
    def vstamp(b):
        if b % cfg.get('stampevery', 1) == 0: pf.stamp(b // cfg.get('stampevery', 1))
    for b in range(1, NU):
        if b in BAR: S.fix(qb(b), (lambda b=b: barrier(b)), cost=99)
        else: S.fix(qb(b), (lambda b=b: (p.wait_lg({('T', b - 1, 1)}), vstamp(b))), cost=WC)
        for i in range(16):
            n = 8 * b + i // 2
            if n < NF:
                assert TP[i] >= max(g for g in range(32) if SEQ[32 * (b - 1) + g][0] == i // 2)
                S.fix(32 * (b - 1) + TP[i], tread(n, i & 1), tag=('T', b, i // 8))
        S.fix(32 * b - 1, (lambda b=b: p.wait_lg({('T', b, 0)})), cost=WC)
    dq = []
    LPS = cfg.get('lps', 4); MINL = cfg.get('minlead', 3); dcost = cfg.get('dcost', 2)
    for b in range(0, NU + 1):
        for kind, idx, need in issue_at.get(b, []): dq += [(t, tag, need - (min(up(need + 1), NU) - 1 - idx if kind == 'W' else 0)) for t, tag in dma_instrs(kind, idx)]
        dq += [(t, tag, cfg.get('kv_need', 66)) for t, tag in cfg.get('extra_units', {}).get(b, [])]
        if cfg.get('nodma') or not dq: dq = []; continue
        must = max([i + 1 for i, (t, tag, need) in enumerate(dq) if need <= b + (MINL if b >= cfg.get('b0', 0) else cfg.get('minl0', 2))] + [0])
        lim_ = max([i + 1 for i, (t, tag, need) in enumerate(dq) if need <= b + MINL] + [0])
        l0_ = min(cfg.get('lps0', 6), max(LPS, sum(1 for x in dq[:lim_] if x[1])))
        nl = max(min((LPS if b >= cfg.get('b0', 0) else l0_) if b < 44 else cfg.get('lpsb', 5), sum(1 for x in dq if x[1])), sum(1 for x in dq[:must] if x[1]))
        lo, hi = (32, 46) if b == 0 else (16, 46)
        cand = [g for g in range(lo + 4 if nl <= 8 and b else lo + 1, hi) if g != 31 and (nl > 8 or (g in TP) == (dcost == 1))]
        prev = lo
        for i in range(nl):
            tg = cand[(i * len(cand)) // nl]
            k = next(j for j, x in enumerate(dq) if x[1])
            for j in range(k):
                prev = max(prev, tg - 3 - (k - 1 - j)); c_ = 1
                if dq[j][0].startswith('s_') and not WC:
                    fr_ = [g for g in range(prev, tg) if not S.fixed[32 * (b - 1) + g]]
                    if fr_: prev = fr_[0]; c_ = 0
                S.fix(32 * (b - 1) + prev, dq[j][0], cost=c_)
            prev = max(prev, tg); S.fix(32 * (b - 1) + prev, dq[k][0], tag=dq[k][1], cost=dcost)
            dq = dq[k + 1:]
    assert not dq
    def xreads(cx):
        pl = place[('X', cx)]
        return [f'ds_read_b128 {xf(2 * cx + kk, rt)}, v{XA + 2 * (pl // 4) + kk} offset:{(pl % 4) * 16384 + 2048 * rt}' for rt in range(4) for kk in range(2)]
    XP = cfg.get('xpos', [19, 19, 22, 22, 25, 25, 27, 27, 33, 33, 35, 35, 37, 37, 39, 39])
    for b in range(1, 5):
        xs = sum([xreads(i) for k_, i, need in items if k_ == 'X' and need == b], [])
        for n_, t in enumerate(xs): S.fix(32 * (b - 1) + XP[n_], t, tag=('T', b, n_ // 8))
    if PF:
        lead = cfg.get('pflead', 420)
        def touch(t, g, w_=30):
            def f(): p.e(t).dst = set()
            o_ = S.add(Op(f, 2, start=g, end=g + w_)); o_.call = True
        if PF & 2:
            nb_ = -(-wrows // WL); span = cfg.get('pfspan', 200)
            for k in range(1, 5):
                for i in range(nb_):
                    g_ = max(cfg.get('pf0', 100), 288 * k - lead) + (i * (span if k > 1 else cfg.get('pfspan1', 100))) // nb_
                    base_, col = (sFs, 0) if k == kS else (sFp, 128 * rho[k])
                    o1 = S.add(Op(f's_add_u32 s{sTc}, s{base_}, {col + i * WL * 9216}', start=g_ - 6, end=g_)); touch(wtouch(f's{sTc}')[0], g_, 14)
            touch(f'global_load_dword v{vDum}, v{vPQ}, s[{P_WQ}:{P_WQ+1}]', 288 * kS + 144 - lead)
        if PF & 4:
            nl = -(-2592 // npair); nb_ = -(-nl // DL); g0 = cfg.get('pfd0', 700); dg = cfg.get('pfdg', 100)
            for i in range(nb_):
                if i: S.add(Op(f'v_add_u32 v{vPD}, {128 * DL}, v{vPD}', start=g0 + dg * i - 9, end=g0 + dg * i))
                touch(f'buffer_load_dword v{vDum}, v{vPD}, s[{SRD_WD}:{SRD_WD+3}], 0 offen', g0 + dg * i)
    S.chain([f'v_lshl_or_b32 v{vWo+2+j}, v{vWo+2*j+3}, 16, v{vWo+2*j+2}' for j in range(4)] +
            [f'buffer_store_dwordx4 v[{vWo+2}:{vWo+5}], v{vWo+1}, {WSr}, s{sWoD} offen {stf}'], 130, 146)[-1].tag = 'QKV'
    def gelu_h(g, u, n, s1, e1, s2, e2, wr, sw, deps=()):
        last = []
        for i in range(n):
            t = []
            d1 = e1 - (n - 1 - i) * (e1 - s1 - 24) // n
            a = S.add(Op(lambda i=i, t=t: f'v_mul_f32 v{t[0]}, v{g+i}, v{g+i}', 1, deps, s1, e1 - 12, res=t, prio=d1 - 12))
            a = S.add(Op(lambda t=t: f'v_fmaak_f32 v{t[0]}, v{t[0]}, v{vC1}, {f2u(GC0)}', 1, [a], s1, e1 - 10, prio=d1 - 12))
            a = S.add(Op(lambda i=i, t=t: f'v_mul_f32 v{t[0]}, v{t[0]}, v{g+i}', 1, [a], s1, e1 - 8, prio=d1 - 12))
            a = S.add(Op(lambda t=t: f'v_exp_f32 v{t[0]}, v{t[0]}', 2, [a], s1, e1 - 6, prio=d1 - 12))
            a = S.add(Op(lambda t=t: f'v_add_f32 v{t[0]}, 1.0, v{t[0]}', 1, [a], s1, e1 - 4, prio=d1 - 12))
            a = S.add(Op(lambda t=t: f'v_rcp_f32 v{t[0]}, v{t[0]}', 2, [a], s1, e1 - 2, prio=d1 - 12))
            a = S.add(Op(lambda i=i, t=t: f'v_mul_f32 v{g+i}, v{t[0]}, v{g+i}', 1, [a], s1, e1, rel=t, prio=d1 - 12))
            a = S.add(Op(f'v_mul_f32 v{g+i}, v{g+i}, v{u+i}', 1, [a], s2, e2 - 8, prio=d1))
            last.append(a)
        wrs = []
        for gi in range(n // 8):
            prev = []
            for c in range(4):
                o = S.add(Op(f'v_cvt_pk_bf16_f32 v{g+8*gi+c}, v{g+8*gi+2*c}, v{g+8*gi+2*c+1}', 1, last[8*gi+2*c:8*gi+2*c+2], s2, e2 - 4, same=prev, prio=0))
                prev = [o]
            wrs.append(S.add(Op(wr(gi), 2, prev, sw + 12 * gi, e2, lds=True, prio=0)))
        return wrs
    for k in rho:
        g = (G0, G1)[k % 2]; q0 = 288 * k
        e2_ = q0 + 288 + 139 if k < 4 else qb(bH) - 4
        gelu_h(g, UU, 32, q0 + 147, e2_ - 13, q0 + 291, e2_,
               lambda i, g=g, k=k: f'ds_write_b128 v{vHw}, v[{g+8*i}:{g+8*i+3}] offset:{16384 * rho[k] + 1024 * i}', qb(9 * (k + 1) + HWD) + 1)
    GS = (G0, G1)[kS % 2]; qS = 288 * kS; bS = 9 * kS
    def xch(write):
        Lb = 'F_xw' if write else 'F_xr'
        def arm(base, em):
            for q in range(4):
                r = f'v[{base+4*q}:{base+4*q+3}]'
                em(f'ds_write_b128 v{vXw}, {r} offset:{1024*q}' if write else f'ds_read_b128 {r}, v{vXr} offset:{1024*q}')
        e(f's_cmp_ge_u32 s{sW}, 2'); e(f's_cbranch_scc1 {Lb}1')
        arm(GS + 16, p.raw); e(f's_branch {Lb}2'); p.label(f'{Lb}1')
        def em(t):
            i = e(t)
            if not write: i.dst = i.dst | {('v', r[1] + 16) for r in i.dst}
        arm(GS, em); p.label(f'{Lb}2')
    S.fix(qS + 149, lambda: xch(True), cost=7)
    x1 = up(bS + 6)
    S.fix(qb(x1) + 4, lambda: xch(False), cost=7)
    gelu_h(GS, GS + 16, 16, qb(x1) + 10, qS + 288 + 120, qb(x1) + 10, qS + 288 + 139,
           lambda i: f'ds_write_b128 v{vHs}, v[{GS+8*i}:{GS+8*i+3}] offset:{1024 * i}', qb(up(x1 + 1)) + 1)
    for n_, t in enumerate((0, 1, 2, 3, 4, 5, 8)):
        for rt in range(4):
            ad = f'v{vH} offset:{8192 * t + 1024 * rt}' if t < 8 else f'v{vH2} offset:{1024 * rt}'
            S.add(Op(f'ds_read_b128 {xf(t, rt)}, {ad}', start=max(lastq(162 + t), qb(up(41)) + 1), end=min(firstq(180 + n_) - 8, qb(46) - 4), lds=True))
    for t in (6, 7):
        for rt in range(4): S.add(Op(f'ds_read_b128 {xf(t, rt)}, v{vH} offset:{8192 * t + 1024 * rt}', start=qb(bH) + 1, end=qb(bH) + 8 + 6 * (t - 6), lds=True))
    qa, qx, tq = vAd, vAd + 1, vAd + 2
    q = [f'v_and_b32 v{tq}, 31, v0', f'v_lshrrev_b32 v{tq+1}, 5, v0', f'v_lshlrev_b32 v{qa}, 4, v{tq+1}', f'v_lshl_add_u32 v{qa}, v{tq}, 5, v{qa}',
         f'v_lshlrev_b32 v{qx}, 2, v0']
    EX = vAd + 4
    for rt in range(4):
        u = UU + 8 * rt; d = UU + 16 * (rt >> 1) + 2 * (rt & 1)
        q += [f'v_mul_f32 v{u+i}, s{sQs}, v{u+i}' for i in range(4)]
        q += [f'v_mul_f32 v{tq}, s{sQs}, v{u+6}', f'v_mul_f32 v{tq+1}, s{sQs}, v{u+7}',
              f'v_cvt_pk_bf16_f32 v{d}, v{u}, v{u+1}', f'v_cvt_pk_bf16_f32 v{d+1}, v{u+2}, v{u+3}', f'v_cvt_pk_bf16_f32 v{EX+rt}, v{tq}, v{tq+1}']
    sw16 = lambda a, b: f'v_permlane16_swap_b32 v{a}, v{b}'
    sw32 = lambda a, b: f'v_permlane32_swap_b32 v{a}, v{b}'
    q += [sw16(UU, UU + 2), sw16(UU + 1, UU + 3), sw16(EX, EX + 1), sw16(UU + 16, UU + 18), sw16(UU + 17, UU + 19), sw16(EX + 2, EX + 3),
          f'buffer_store_dwordx4 v[{UU}:{UU+3}], v{qa}, {WSr}, s{sQm} offen {stf}',
          f'buffer_store_dwordx4 v[{UU+16}:{UU+19}], v{qa}, {WSr}, s{sQm} offen offset:1024 {stf}', sw32(EX + 1, EX + 3),
          f'buffer_store_dword v{EX+1}, v{qx}, {WSr}, s{sQx} offen {stf}']
    qc = S.chain(q, qS + 292, qS + 288 + cfg.get('qkv_end', 100))
    def kv_block():
        L = 'F_kv'; o = lambda t: p.e(t, optional=True, tag='QKV')
        a, b2, c = tq, tq + 1, EX
        A_, W = UU + 4, UU + 20
        e(f's_cmp_ge_u32 s{sHd}, 7'); e(f's_cbranch_scc1 {L}_end')
        e(f's_cmp_lg_u32 s{sHd}, 6'); e(f's_cbranch_scc1 {L}_kv')
        e(sw16(UU + 12, UU + 4)); e(sw16(UU + 28, UU + 20)); e(f'v_xor_b32 v{a}, 64, v{qx}')
        e(f's_add_u32 s{sT0}, s{sQx}, {WS_G - WS_QX - 6 * 8192}'); e(sw32(UU + 12, UU + 28))
        o(f'buffer_store_dword v{UU+28}, v{a}, {WSr}, s{sT0} offen {stf}')
        e(f's_branch {L}_end')
        p.label(f'{L}_kv')
        for rt in range(4):
            u = UU + 8 * rt; d = UU + 4 + 16 * (rt >> 1) + 2 * (rt & 1)
            e(f'v_cvt_pk_bf16_f32 v{d}, v{u+4}, v{u+5}'); e(f'v_cvt_pk_bf16_f32 v{d+1}, v{u+6}, v{u+7}')
        e(f'v_lshrrev_b32 v{b2}, 5, v0')
        for x in (A_, W): e(sw16(x, x + 2)); e(sw16(x + 1, x + 3))
        e(f'v_and_b32 v{a}, 0x1f0, v{vL16}')
        for i in range(4): e(sw32(A_ + i, W + i))
        e(f's_cmp_ge_u32 s{sHd}, 3'); e(f's_cbranch_scc1 {L}_v')
        e(f's_cmp_eq_u32 s{sHd}, 2'); e(f's_cbranch_scc1 {L}_kx')
        e(f'v_mul_u32_u24 v{b2}, {KVB}, v{b2}'); e(f'v_add_u32 v{a}, v{a}, v{b2}')
        e(f's_lshl_b32 s{sT0}, s{sHd}, 9'); e(f's_add_u32 s{sT0}, s{sT0}, s{sKV}')
        o(f'buffer_store_dwordx4 v[{W}:{W+3}], v{a}, {WSr}, s{sT0} offen {stf}')
        e(f's_branch {L}_end')
        p.label(f'{L}_kx')
        e(f'v_lshl_add_u32 v{a}, v{b2}, 2, v{a}')
        o(f'buffer_store_dword v{W+3}, v{a}, {WSr}, s{sKX} offen {stf}')
        e(f's_branch {L}_end')
        p.label(f'{L}_v')
        e(f's_lshr_b32 s{sT0}, s{sMb}, 2'); e(f's_add_u32 s{sT0}, s{sT0}, 73728')
        e(f'v_add_u32 v{a}, s{sT0}, v{vL16}')
        p.raw(f'ds_write_b128 v{a}, v[{W}:{W+3}]')
        e(f'v_and_b32 v{a}, 48, v0'); e(f'v_lshlrev_b32 v{a}, 4, v{a}'); e(f'v_add_u32 v{a}, s{sT0}, v{a}')
        e(f'v_and_b32 v{c}, 12, v0'); e(f'v_lshl_add_u32 v{a}, v{c}, 2, v{a}')
        e(f'v_and_b32 v{c}, 2, v0'); e(f'v_lshl_add_u32 v{a}, v{c}, 5, v{a}')
        e(f'v_and_b32 v{c}, 1, v0'); e(f'v_lshl_add_u32 v{a}, v{c}, 3, v{a}')
        p.raw('s_waitcnt lgkmcnt(0)')
        p.raw(f'ds_read_b64_tr_b16 v[{A_}:{A_+1}], v{a}'); p.raw(f'ds_read_b64_tr_b16 v[{A_+2}:{A_+3}], v{a} offset:128')
        e(f'v_mul_u32_u24 v{b2}, {KVB}, v{b2}'); e(f'v_bfe_u32 v{c}, v0, 3, 2'); e(f'v_mul_u32_u24 v{c}, 304, v{c}')
        e(f'v_and_b32 v{a}, 0x70, v{vL16}'); e(f'v_add3_u32 v{b2}, v{b2}, v{c}, v{a}')
        e(f's_sub_u32 s{sT0}, s{sHd}, 3'); e(f's_lshl_b32 s{sT0}, s{sT0}, 7'); e(f's_min_u32 s{sT0}, s{sT0}, 160'); e(f's_add_u32 s{sT0}, s{sT0}, s{sKV}')
        p.raw('s_waitcnt lgkmcnt(0)')
        e(f's_cmp_lg_u32 s{sHd}, 5'); e(f's_cbranch_scc1 {L}_vs')
        e(f'v_cmp_eq_u32 vcc, 0x50, v{a}'); e(f'v_mov_b32 v{c}, 0x3f803f80'); e(f'v_add_u32 v{c+2}, 48, v{b2}')
        for i in range(4): e(f'v_cndmask_b32 v{A_+i}, v{A_+i}, v{c}, vcc')
        e(f'v_cndmask_b32 v{b2}, v{b2}, v{c+2}, vcc')
        e(f'v_cmp_gt_u32 vcc, 0x50, v{a}'); e(f'v_mov_b32 v{c}, {OOB}'); e('s_nop 0'); e(f'v_cndmask_b32 v{b2}, v{b2}, v{c}, vcc')
        p.label(f'{L}_vs')
        o(f'buffer_store_dwordx4 v[{A_}:{A_+3}], v{b2}, {WSr}, s{sT0} offen offset:1024 {stf}')
        p.label(f'{L}_end')
    for o_ in qc:
        if 'store' in o_.text: o_.tag = 'QKV'
    kvop = S.add(Op(kv_block, 2, [qc[-1]], qS + 292, qS + 288 + cfg.get('qkv_end', 100) + 10)); kvop.call = True
    lastst = []; qs_ = 0; NST = cfg.get('nst', 5); deferred = []
    hold = [G1, XV, X3, XV + 16, X3 + 16, XV, X3, XV + 16, X3 + 16]; freed = {}
    for j in range(9):
        acc = accB[j]; q1 = 1440 + 8 * (max(i for i, (jj, c) in enumerate(seqB) if jj == j) + 1)
        nxt_ = [1440 + 8 * i for i, (jj, c) in enumerate(seqB) if jj > j and accB[jj] == acc]
        dl = min(nxt_[0] - 2 if nxt_ else 10 ** 6, NQ - 4 if j < 8 else 10 ** 6); h = hold[j]
        cv = S.chain([f'v_cvt_pk_bf16_f32 v{h+i}, v{acc+2*i}, v{acc+2*i+1}' for i in range(16)], min(q1 + 3, NQ), min(dl, q1 + 60), deps=freed.get(h, []))
        sot = f's_add_u32 s{sPo}, s{sP}, {16384 * j}'
        sts = [f'buffer_store_dwordx4 v[{h+4*rt}:{h+4*rt+3}], v{vL16}, {WSr}, s{sPo} offen offset:{1024 * rt} {stf}' for rt in range(4)]
        if j >= NST:
            deferred.append([sot] + sts); continue
        so = S.add(Op(sot, start=q1, end=NQ, same=lastst, prio=0))
        for rt in range(4):
            qs_ = max(qs_ + cfg.get('stspace', 22), q1 + 8)
            for o_ in cv[4 * rt:4 * rt + 4]: o_.prio = min(o_.prio, qs_ - 2); o_.end = min(o_.end, qs_ + 8)
            lastst = [S.add(Op(sts[rt], 2, [cv[4 * rt + 3], so], qs_, min(qs_ + 12, dl if h == acc else NQ), tag='PART', same=lastst))]
        freed[h] = lastst
    cfg['deferred'] = deferred
    if cfg.get('sched_extra'): cfg['sched_extra'](S, p)
    if cfg.get('nofill'): S.ops = [o for o in S.ops if isinstance(o.text, str) and ('lds' in o.text or 'm0' in o.text or f's{sso},' in o.text)]
    placed = S.run()
    print('ffn schedule: overflow slots', S.over)

    def emit(item, tag):
        if callable(item): item()
        else: e(item, tag=tag)
    barrier(0)
    if cfg.get('pstamp'): pf.stamp(89)
    x0, x1_ = xreads(0), xreads(1)
    for i in (0, 1, 4, 5): e(tread(i // 2, i & 1))
    for t in x0: e(t)
    for i in (2, 3, 6, 7): e(tread(i // 2, i & 1))
    rest = [tread(i // 2, i & 1) for i in range(8, 16)] + x1_
    for n_, t in enumerate(rest): S.fixed[(n_ * 10) // 16].insert(0, (1, t, None))
    snake = cfg.get('snake', 1)
    for q in range(NQ + 1):
        if q < NQ:
            bi, K, ft, rt = SEQ[q]; D, kk, _ = kinfo(K)
            d = D + (rt * 2 + ft) * 4; a = AB + 4 * bi
            C = '0' if kk == 0 else f'v[{d}:{d+3}]'
            e(f'v_mfma_f32_16x16x32_bf16 v[{d}:{d+3}], v[{a}:{a+3}], {xf(kk, rt)}, {C}')
        if q == NQ and cfg.get('pre_tail'): cfg['pre_tail'](p)
        fx = S.fixed[q]
        lastw = [f for f in fx if callable(f[1]) and q % 16 == 15 and WC]
        for c, item, tag in fx:
            if (c, item, tag) not in lastw: emit(item, tag)
        mid = cfg.get('mid_tail') if q == NQ else None
        for n_, o in enumerate(placed[q]):
            if mid and n_ == 5: mid(p)
            if getattr(o, 'call', False): o.text()
            else: e(o.text() if callable(o.text) else o.text, tag=o.tag)
        for c, item, tag in lastw: emit(item, tag)
```

```python
import sys
from common import *
import ffn, att, k23
from ffn import sW, sT0, sT1, sT2, SRD_WS, SRD_X, vL16, KVG, KVB, sMb, sso, NQ

att.sRG, att.sHH = 6, 7
att.PP, att.KM, att.VV, att.KX = 24, 32, 40, 56
att.SA, att.SB, att.OA, att.OB = 64, 80, 96, 112
att.QM, att.QX = 128, 136
SEL, SELX = 152, 160
att.vAK, att.vAV = 164, 165
vG, vPoll, vTch = 166, 252, 240
att.vT = 236
BACC = 172
PBUF, NPB = 192, 11
vFP, vFO = 244, 245
vL2, vLX, vLO, vPa = 246, 247, 248, 249
vR0, vR1, vR2, vGt = 245, 250, 167, 251
sH0, sH1 = 8, 15
sRG, sHH = att.sRG, att.sHH
SRD_OUT, SRD_DBG = 52, 68
vAt = 238
sPb, sWo, sWx, sOo, sOp, sSpin = 74, 75, 76, 77, 78, 79
sPb = 80; sWo = 81; sWx = 82; sOo = 83; sOp = 84; sSpin = 85; sKVs = 86; sLd = 87
LDS_O, LDS_G = 154560, 163776
FLO = 4096
WSr = f's[{SRD_WS}:{SRD_WS+3}]'
mf16 = att.mf16

class Rec:
    def __init__(self): self.l = []
    def e(self, t, **kw): self.l.append(t)

def poll(p, L, srdr, want, mask, first_issued):
    e = p.e
    cmpop = 'le' if want == 64 else 'eq'
    ld = f'buffer_load_dword v{vPoll}, v{vPa}, {srdr}, 0 offen sc1'
    if not first_issued: e(ld)
    e(f'v_cmp_{cmpop}_u32 vcc, {want}, v{vPoll}')
    e(f's_cmp_eq_u32 vcc_lo, {mask}')
    e(f's_cbranch_scc0 {L}_spin')
    p.label(f'{L}_go')
    def out(q):
        r = q.raw
        q.label(f'{L}_spin'); r(f's_mov_b32 s{sSpin}, 0')
        q.label(f'{L}_sp2'); r('s_sleep 8'); r(ld); r(f's_add_u32 s{sSpin}, s{sSpin}, 1'); r('s_waitcnt vmcnt(0)')
        r(f'v_cmp_{cmpop}_u32 vcc, {want}, v{vPoll}')
        r(f's_cmp_gt_u32 s{sSpin}, 0x80000'); r(f's_cbranch_scc1 {L}_go')
        r(f's_cmp_eq_u32 vcc_lo, {mask}'); r(f's_cbranch_scc0 {L}_sp2'); r(f's_branch {L}_go')
    return out

def gen(p, cfg, pf):
    cfg = dict(cfg); cfg.setdefault('stflags', 'sc1'); cfg.setdefault('perm', 1); cfg.setdefault('bars', [(6, 1), (66, 2)]); cfg.setdefault('pfd0', 1000); cfg.setdefault('pfdg', 60); cfg.setdefault('pfm', 16); cfg.setdefault('xcd_m', 4); cfg.setdefault('pfdl', 11); cfg.setdefault('rot', 4)
    cfg.setdefault('apat', 'E0 E1 PB rK x0 E2 E3 C0 C1 E4 QX w x1 E5 E6 E7 y0 C2 C3 E8 QM rA x2 E9 E10 E11 y1 C4 C5 E12 PA rB x3 E13 E14 E15 C6 C7')
    BS, BP, BQ = cfg.get('bsig', 36), cfg.get('bpoll', 48), cfg.get('bq', 54)
    assert BP <= 49
    cfg['kvb0'] = BQ; cfg['bar_tags'] = {BS: ['QKV']}
    e = p.e; ool = []; O2 = cfg.get('o2', 1); sOo2, sOp2 = 42, 43; poison = []; sPz, sFn, vPz = 96, 97, 243
    qb = lambda b: 32 * (b - 1) + 15
    vT = att.vT

    def setup_extra(p):
        e = p.e
        e(f'v_cmp_eq_u32 vcc, 0, v0'); e(f'v_mov_b32 v{vFO}, {OOB}'); e(f'v_mov_b32 v{vTch+1}, 0')
        e(f'v_cndmask_b32_e64 v{vFO}, v{vFO}, 0, vcc')
        e(f's_lshl_b32 s{sT0}, s{ffn.sM_}, 6'); e(f's_lshl_b32 s{sT1}, s{ffn.sS}, 2'); e(f's_add_u32 s{sT0}, s{sT0}, s{sT1}')
        e(f's_add_u32 s{sT0}, s{sT0}, {WS_FL}'); e(f's_lshl_b32 s{sT1}, s{sW}, 28'); e(f's_add_u32 s{sT0}, s{sT0}, s{sT1}')
        e(f'v_add_u32 v{vFP}, s{sT0}, v{vFO}')
        e(f's_and_b32 s{sT0}, s2, 3'); e(f's_lshl_b32 s{sT0}, s{sT0}, 6'); e(f's_lshl_b32 s{sT1}, s{sW}, 12'); e(f's_add_u32 s{sT0}, s{sT0}, s{sT1}')
        e(f'v_lshlrev_b32 v{vPa}, 6, v0'); e(f'v_lshlrev_b32 v{vAt}, 8, v0'); e(f'v_add_u32 v{vAt}, s{sT0}, v{vAt}'); e(f'v_mov_b32 v{vAt+1}, 1')
        e(f'buffer_store_dword v{vTch+1}, v{vFP}, {WSr}, 0 offen sc1', tag='QKV')
        r0 = Rec(); att.att_ids(r0); PZ = 168
        r0.e(f's_lshl_b32 s{sOp}, s{sRG}, 1'); r0.e(f's_add_u32 s{sOp}, s{sOp}, s{sHH}'); r0.e(f's_mul_i32 s{sOo}, s{sOp}, 9216'); r0.e(f's_add_u32 s{sOo}, s{sOo}, {WS_O}')
        r0.e(f's_xor_b32 s{sOp}, s{sOp}, 1'); r0.e(f's_mul_i32 s{sOp}, s{sOp}, 9216'); r0.e(f's_add_u32 s{sOp}, s{sOp}, {WS_O}')
        r0.e(f's_mul_i32 s{sSpin}, s{sW}, 2304'); r0.e(f's_add_u32 s{sSpin}, s{sSpin}, s{sOo}')
        for i in range(4): r0.e(f'v_mov_b32 v{PZ+i}, -1')
        r0.e(f'v_lshlrev_b32 v{PZ+4}, 2, v0')
        for cp in range(2 if O2 else 1):
            if cp: r0.e(f's_add_u32 s{sSpin}, s{sSpin}, {OD}')
            r0.e(f'buffer_store_dwordx4 v[{PZ}:{PZ+3}], v{vL16}, {WSr}, s{sSpin} offen sc1')
            r0.e(f'buffer_store_dwordx4 v[{PZ}:{PZ+3}], v{vL16}, {WSr}, s{sSpin} offen offset:1024 sc1')
            r0.e(f'buffer_store_dword v{PZ}, v{PZ+4}, {WSr}, s{sSpin} offen offset:2048 sc1')
        if O2: r0.e(f's_add_u32 s{sOo2}, s{sOo}, {OD}'); r0.e(f's_mov_b32 s{sOp2}, s{sOp}'); r0.e(f's_add_u32 s{sOp}, s{sOp}, {OD}')
        i0 = next(i for i, t in enumerate(r0.l) if t.startswith('v_mov')); i1 = 1 + max(i for i, t in enumerate(r0.l) if 'store' in t)
        for t in r0.l[:i0] + r0.l[i1:]: e(t.replace(f's{sSpin}', f's{sPz}'))
        poison.extend(t.replace(f's{sSpin}', f's{sPz}').replace(f'v{PZ+4}', f'v{vPz}') for t in r0.l[i0:i1])
        e(f'v_readfirstlane_b32 s{sFn}, v{vFP}')
    cfg['setup_extra'] = setup_extra

    def kv_unit(i, n=4):
        if n == 4:
            return [(f's_add_u32 m0, s{sMb}, {16384 * i}', None), (f's_add_u32 s{sso}, s{sKVs}, {16384 * i}', None)] + \
               [(f'buffer_load_dwordx4 v{vL16}, {WSr}, s{sso} offen' + (f' offset:{1024 * q}' if q else '') + ' lds', 'KV') for q in range(4)]
        return [(f's_lshr_b32 s{sso}, s{sMb}, 2', None), (f's_add_u32 m0, s{sso}, {16384 * i}', None), (f's_add_u32 s{sso}, s{sso}, {WS_KV + 16384 * i}', None),
                (f'buffer_load_dwordx4 v{vL16}, {WSr}, s{sso} offen lds', 'KV')]

    cfg.setdefault('kv_at', [4, 5, 6, 7, 8])
    cfg['extra_units'] = {}
    for i in range(5): cfg['extra_units'].setdefault(BQ + cfg['kv_at'][i], []).extend(kv_unit(i))
    quads = [f'a[{4*i}:{4*i+3}]' for i in list(range(36, 64)) + list(range(36))] + [f'v[{r}:{r+3}]' for r in (4, 8, 12, 16, 168)]
    nearly = len(quads)
    quads += [f'v[{PBUF+4*i}:{PBUF+4*i+3}]' for i in range(NPB)] + [f'v[{r}:{r+3}]' for r in (SEL, SEL + 4, SELX)]
    nmid = len(quads)
    quads += [f'v[{r}:{r+3}]' for r in (76, 80, 84, 88, 92, 104, 108, 120, 124)]
    NWO = 82; vR = (vR0, vR1, vR2)
    def wo_load(f):
        half, r = divmod(f, 41); g, i = divmod(r, 9); out = []
        hreg = (sH0, sH1)[half]
        if i == 0:
            if g == 0: out.append(f's_add_u32 s{sLd}, s{sWo}, s{hreg}')
            elif g < 4: out.append(f's_add_u32 s{sLd}, s{sLd}, 18432')
            else: out.append(f's_add_u32 s{sLd}, s{sWx}, s{hreg}')
        vo = vLO if (g == 4 and i == 4) else vR[i // 4]
        out.append(f'buffer_load_dwordx4 {quads[f]}, v{vo}, {WSr}, s{sLd} offen' + (f' offset:{1024 * (i % 4)}' if i % 4 else ''))
        return out
    NWB = cfg.get('nwb', 0)
    def sched_extra(S, p):
        r = Rec(); e = r.e
        r0 = Rec(); srd(r0, SRD_DBG, P_DBG, 256)
        q0_ = 288 * cfg.get('kS', 2) + 146
        for o in S.chain(r0.l, q0_, q0_ + 70, tight=False):
            if 'store' in o.text: o.tag = 'QKV'; o.cost = 2
        srd(r, SRD_OUT, P_OUT, 2048 * 1152)
        nB = len(r.l)
        k23.sel_frags(r, SEL, vT, True)
        e(f's_bitcmp1_b32 s{sW}, 0 | s_cselect_b64 vcc, -1, 0')
        for i in range(4): e(f'v_cndmask_b32 v{SELX+i}, v{SEL+i}, v{SEL+4+i}, vcc')
        e(f's_add_u32 s{sKVs}, s{sMb}, {WS_KV}')
        e(f's_mul_i32 s{sT0}, s{sHH}, 9'); e(f's_lshl_b32 s{sT1}, s{sW}, 1'); e(f's_add_u32 s{sT1}, s{sT1}, s{sT0}')
        e(f's_lshr_b32 s{sPb}, s{sRG}, 3'); e(f's_mul_i32 s{sPb}, s{sPb}, {16 * 147456}')
        e(f's_lshl_b32 s{sT2}, s{sT1}, 13'); e(f's_add_u32 s{sPb}, s{sPb}, s{sT2}')
        e(f's_and_b32 s{sT2}, s{sRG}, 7'); e(f's_lshl_b32 s{sT2}, s{sT2}, 10'); e(f's_add_u32 s{sPb}, s{sPb}, s{sT2}')
        e(f's_mul_i32 s{sWo}, s{sT1}, 36864'); e(f's_add_u32 s{sWo}, s{sWo}, {WS_WO}')
        e(f's_add_u32 s{sT0}, s{sT0}, 8'); e(f's_mul_i32 s{sWx}, s{sT0}, 36864'); e(f's_and_b32 s{sT2}, s{sW}, 1'); e(f's_mul_i32 s{sT2}, s{sT2}, 18432')
        e(f's_add_u32 s{sWx}, s{sWx}, s{sT2}'); e(f's_add_u32 s{sWx}, s{sWx}, {WS_WO}')
        e(f's_sub_u32 s{sT0}, s{sT0}, s{sT1}'); e(f's_lshl_b32 s{sT0}, s{sT0}, 13'); e(f's_and_b32 s{sT2}, s{ffn.sHF}, 147456'); e(f's_add_u32 s{sT0}, s{sT0}, s{sT2}')
        e(f'v_add_u32 v{vLX}, s{sT0}, v{vL16}'); e(f'v_add_u32 v{vL2}, 8192, v{vL16}')
        e(f's_and_b32 s{sT2}, s{ffn.sHF}, 5120'); e(f'v_add_u32 v{vR0}, s{sT2}, v{vL16}')
        e(f's_andn2_b32 s{sT2}, 4096, s{ffn.sHF}'); e(f'v_add_u32 v{vR1}, s{sT2}, v{vL16}'); e(f'v_add_u32 v{vR2}, 4096, v{vR1}')
        e(f's_and_b32 s{sT2}, s{ffn.sHF}, {OOB}'); e(f'v_add_u32 v{vLO}, s{sT2}, v{vR1}')
        nC = len(r.l)
        e(f'v_mov_b32 v{vG}, 1'); e(f's_mov_b32 s{att.sPerm}, 0x07060302'); e(f's_mul_i32 s{sH0}, s{sHH}, 9216'); e(f's_sub_u32 s{sH1}, 9216, s{sH0}')
        nD = len(r.l)
        def mk(t):
            if ' | ' not in t: return t
            def f():
                for x in t.split(' | '): p.e(x)
            return f
        ch = S.chain([mk(t) for t in r.l], 1586, qb(BQ) - 8, tight=False)
        for o in ch:
            if callable(o.text): o.call = True; o.cost = 2
        S.fix(qb(cfg['up'](BS)) + 4, f'buffer_atomic_add v{vAt+1}, v{vAt}, s[{SRD_DBG}:{SRD_DBG+3}], 0 offen sc1')
        DB = f's[{SRD_DBG}:{SRD_DBG+3}]'
        S.fix(qb(BP) - cfg.get('poll_lead', 110), f'buffer_load_dword v{vPoll}, v{vPa}, {DB}, 0 offen sc1')
        S.fix(qb(BP) - 2, lambda: ool.append(poll(p, 'PK', DB, 64, 15, True)), cost=4)
        r2 = Rec(); att.q_loads(r2, 'sc1')
        r2.e(f'v_and_b32 v{vGt}, 15, v0'); r2.e(f'v_lshlrev_b32 v{vGt}, 2, v{vGt}'); r2.e(f's_lshl_b32 s{sT0}, s{sRG}, 6'); r2.e(f's_add_u32 s{sT0}, s{sT0}, {WS_G}')
        r2.e(f'buffer_load_dword v{vGt}, v{vGt}, {WSr}, s{sT0} offen sc1')
        att.att_addrs(r2, cfg)
        r2.e(f's_lshr_b32 s{sT0}, s{sRG}, 3'); r2.e(f's_lshl_b32 s{sT0}, s{sT0}, 6'); r2.e(f's_add_u32 s{sT0}, s{sT0}, {WS_FL}')
        r2.e(f'v_and_b32 v{vPa}, 48, v0'); r2.e(f'v_lshlrev_b32 v{vPa}, 22, v{vPa}'); r2.e(f'v_lshl_add_u32 v{vPa}, v0, 2, v{vPa}'); r2.e(f'v_add_u32 v{vPa}, s{sT0}, v{vPa}')
        r2.e(f's_and_b32 s{sFn}, s{sFn}, 0xfffffff'); r2.e(f's_xor_b32 s{sFn}, s{sFn}, 64'); r2.e(f'v_writelane_b32 v{vPa}, s{sFn}, 16')
        S.chain(r2.l, qb(BQ) + 1, min(qb(BQ) + 80, NQ - 32), tight=False)
        def tch(): p.e(f'buffer_load_dword v{ffn.vDum}, v{vTch}, {WSr}, 0 offen').dst = set()
        prev = []; g0 = qb(BQ) + 4; dg = (NQ - 12 - g0) // max(NWB, 1)
        for f in range(NWB):
            for t in wo_load(f):
                ld_ = 'load' in t
                prev = [S.add(Op(t, 2 if ld_ else 1, prev, g0 + dg * f - (0 if ld_ else 3), g0 + dg * f + dg))]
        r3 = Rec(); att.q_variants(r3)
        r3.e(f'v_mul_f32 v{vGt}, {f2u(-math.log2(math.e))}, v{vGt}'); r3.e(f'v_exp_f32 v{vGt}, v{vGt}'); r3.e(f'v_add_f32 v{vGt}, 1.0, v{vGt}'); r3.e(f'v_rcp_f32 v{vGt}, v{vGt}')
        r3.l += [t for t in poison if t.startswith('v_')]
        S.chain(r3.l, NQ - 36, NQ - 2, tight=False)
    cfg['sched_extra'] = sched_extra

    def pre_tail(p):
        pf.start()
        p.wait(vmtags=['KV'], lg0=True); p.e('s_barrier')
        pf.save(70)
        p.e(att.rdKX(0)); p.e(att.rdKM(0)); p.e(att.rdV(0, 0)); p.e(att.rdV(0, 1))
    cfg['pre_tail'] = pre_tail
    SA, SB, OA, OB = att.SA, att.SB, att.OA, att.OB
    def mid_tail(p):
        p.c('ATT'); e(att.qkx(0, 0, SA)); e(att.mf32(SA, att.KM, att.QM, att.vr(SA)))
    cfg['mid_tail'] = mid_tail
    ffn.gen_ffn(p, cfg, pf)

    X = {}
    def at(hs, tk, item, tag=None): X.setdefault((hs, tk), []).append((item, tag))
    SL = [(2 * (i // 4) + (1 if i % 4 else 0), ('x1', 'x0', 'x2', 'x3')[i % 4]) for i in range(256)]
    used = [0] * 256
    def put(item, lo, vm, tag=None, hi=None):
        i = lo
        while i < 256 and (used[i] or (vm and i % 4 == 0)):
            if hi is not None and i >= hi: break
            i += 1
        if i >= 256: return None
        used[i] += 1; at(*SL[i], item, tag); return i
    def stream(groups, lo, pace, tagf=None, gate=None):
        pos = []; prev = lo - 1
        for n, grp in enumerate(groups):
            s0 = max(prev + 1, lo + int(n * pace), gate(n) if gate else 0)
            i = s0
            while i < 256 and (used[i] or i % 4 == 0): i += 1
            if i >= 256: break
            for t in grp[:-1]:
                c = [k for k in range(max(prev + 1, 0), i) if not used[k] and k % 4 == 0]
                k = c[-1] if c else (prev if prev >= 0 and n else i)
                used[k] += 1; at(*SL[k], t); prev = k
            used[i] += 1; at(*SL[i], grp[-1], tagf(n) if tagf else None); prev = i; pos.append(i)
        return pos
    def groups_of(lst):
        out = []; cur = []
        for t in lst:
            cur.append(t)
            if t.startswith('buffer_'): out.append(cur); cur = []
        return out
    BBA, BPL, BPC, LAG = cfg.get('bba', 17), cfg.get('bpl', 27), cfg.get('bpc', 30), cfg.get('lag', 4)
    def skew(L):
        if cfg.get('skew'):
            for w_ in range(3):
                e(f's_cmp_le_u32 s{sW}, {w_}'); e(f's_cbranch_scc1 {L}'); e(f's_nop {cfg["skew"]}')
            p.label(L)
    skew('SK0')
    def bar_a():
        p.wait(vmtags=['KV', 'PART']); e('s_barrier'); skew('SK1')
        e(f'buffer_store_dword v{vG}, v{vFP}, {WSr}, 0 offen sc1')
    put(bar_a, 4 * BBA + 1, True)
    put(f'buffer_load_dword v{vPoll}, v{vPa}, {WSr}, 0 offen sc1', 4 * BPL + 1, True)
    put(lambda: ool.append(poll(p, 'PP', WSr, 1, 0x1ffff, True)), 4 * BPC + 3, True)
    if cfg.get('otouch', 1) and O2:
        def otouch():
            e(f'v_min_u32 v{vPz}, 17, v0'); e(f'v_lshlrev_b32 v{vPz}, 7, v{vPz}')
            e(f'buffer_load_dword v{ffn.vDum}, v{vPz}, {WSr}, s{sPz} offen sc1').dst = set()
        put(otouch, 4 * cfg.get('bot', 56) + 1, True)
    ps = stream(groups_of(sum(cfg['deferred'], [])), 0, cfg.get('dpace', 3), lambda n: 'PART')
    pk = stream(groups_of([t for i in range(5, 10) for t, tag in kv_unit(i, 4 if i < 9 else 1)]), 0, 1, lambda n: 'KV')
    pz = stream(groups_of([t for t in poison if not t.startswith('v_')]), 0, 1, lambda n: 'PART')
    assert max(ps + pk + pz) < 4 * BBA
    PL = [(sl, j) for sl in range(16) for j in range(3) if j < 2 or sl % 2 == 0]; NP_ = len(PL)
    pg = []
    for i, (sl, j) in enumerate(PL):
        buf = PBUF + 4 * (i % NPB)
        pg.append(([f's_add_u32 s{sPb}, s{sPb}, 147456'] if j == 0 and sl else []) +
                  [f'buffer_load_dwordx4 v[{buf}:{buf+3}], v{(vL16, vL2, vLX)[j]}, {WSr}, s{sPb} offen sc1'])
    pp_ = stream(pg, 4 * BPC + 4, cfg.get('ppace', 2.4), lambda n: ('PL', n))
    cons = [0] * NP_; yq = {}
    for i, (sl, j) in enumerate(PL):
        buf = PBUF + 4 * (i % NPB); b_ = pp_[i] // 4 + LAG; cons[i] = b_
        for ti in range(2 if j < 2 else 1):
            d = BACC + 8 * j + 4 * ti; A = SELX if j == 2 else SEL + 4 * ti
            yq.setdefault(b_, []).append(mf16(d, f'v[{A}:{A+3}]', f'v[{buf}:{buf+3}]', '0' if sl == 0 else f'v[{d}:{d+3}]'))
    for b_, lst in yq.items():
        assert len(lst) <= 4 and b_ < 63
        tags = [('PL', i) for i in range(NP_) if cons[i] == b_]
        used[4 * b_] += 1; at(*SL[4 * b_], lambda tags=tags: p.wait(vmtags=tags))
        for n, t in enumerate(lst): at(2 * b_ + n // 2, f'y{n & 1}', t)
    for i in range(NPB, NP_): assert pp_[i] >= 4 * cons[i - NPB] + 3, (i, pp_[i], cons[i - NPB])
    lastuse = [max(cons[i] for i in range(NP_) if i % NPB == k) for k in range(NPB)] + [max(cons)] * 3
    order = sorted(range(NPB + 3), key=lambda k: lastuse[k])
    quads[nearly:nmid] = [quads[nearly + k] for k in order]
    pw = stream([wo_load(f) for f in range(NWB, min(nmid, NWO))], 0, cfg.get('wpace', 1), None,
                gate=lambda n: 0 if NWB + n < nearly else 4 * lastuse[order[NWB + n - nearly]] + 3)
    f = NWB + len(pw)
    print('wo loads in loop', f, 'slots used', sum(1 for u in used if u), 'shared', sum(1 for u in used if u > 1))
    def extra(hs, tk):
        for item, tag in X.pop((hs, tk), []):
            if callable(item): item()
            else: e(item, tag=tag)
    base = 0
    for b in range(64):
        if b and b % 16 == 0:
            for a in (att.vAK, att.vAV): e(f'v_add_u32 v{a}, {2 * KVG}, v{a}')
            base += 2 * KVG
        for t in range(2): att.half_step(p, b, t, base, cfg, extra, line=True)
        if b % 16 == 15: pf.stamp(71 + b // 16)
    assert not X, X.keys()
    e(att.mf32(OB, att.VV + 12, att.PP + 4, att.vr(OB)))
    vO1, vO2, vO3, vOut = 1, 2, 3, 20
    e(f's_lshl_b32 s{sT0}, s{sW}, 11'); e(f'v_add_u32 v{vO1}, s{sT0}, v{vL16}')
    e(f'v_and_b32 v{vO2}, 15, v0'); e(f'v_lshlrev_b32 v{vO2}, 4, v{vO2}'); e(f'v_bfe_u32 v{vO3}, v0, 4, 1'); e(f'v_lshl_add_u32 v{vO2}, v{vO3}, 2, v{vO2}')
    e(f's_lshl_b32 s{sT0}, s{sW}, 8'); e(f's_add_u32 s{sT0}, s{sT0}, 8192'); e(f'v_add_u32 v{vO2}, s{sT0}, v{vO2}')
    e(f'v_lshrrev_b32 v{vO3}, 5, v0'); e(f'v_lshl_add_u32 v{vOut}, v{vO3}, 20, v{vO2}'); e(f'v_lshl_add_u32 v{vO2}, v{vO3}, 29, v{vO2}'); e(f'v_add_u32 v{vOut}, {LDS_O}, v{vOut}')
    att.att_check(p, 'A', cfg, 'test')
    quads[f:NWO] = quads[nmid:nmid + NWO - f]
    OUTr = f's[{SRD_OUT}:{SRD_OUT+3}]'; of_ = cfg.get('outf', '')
    e(f'v_rcp_f32 v{vT}, v{vT}'); e(f'v_rcp_f32 v{vT+2}, v{vT+2}')
    e(f'v_add_u32 v{vO3}, {LDS_O}, v{vO1}')
    e(f'v_mul_f32 v{vT}, v{vT}, v{vGt}'); e(f'v_mul_f32 v{vT+2}, v{vT+2}, v{vGt}')
    for t, O in ((0, OA), (1, OB)):
        for i in range(10): e(f'v_mul_f32 v{O+i}, v{O+i}, v{vT+2*t}')
        for i in range(5): e(f'v_cvt_pk_bf16_f32 v{O+i}, v{O+2*i}, v{O+2*i+1}')
        so_, fl_ = (sOo2, '') if O2 else (sOo, 'sc1')
        e(f'buffer_store_dwordx4 v[{O}:{O+3}], v{vO1}, {WSr}, s{so_} offen offset:{1024 * t} {fl_}')
        e(f'buffer_store_dword v{O+4}, v{vO2}, {WSr}, s{so_} offen offset:{8 * t} {fl_}')
        e(f'ds_write_b128 v{vO3}, v[{O}:{O+3}] offset:{1024 * t}'); e(f'ds_write_b32 v{vOut}, v{O+4} offset:{8 * t}')
    e(f'v_sub_f32 v{vGt}, 1.0, v{vGt}')
    for i in range(3): e(f'v_add_u32 v{vT+4+i}, {LDS_O}, v{vR[i]}')
    e('s_waitcnt lgkmcnt(0)'); e('s_barrier')
    pf.stamp(75)
    OF, XR_ = 24, 60; OGq = [128, 132, 136, 140, 144, 148, 64, 68, 72]; OFq = [OF + 4 * i for i in range(9)]
    for i in range(9): e(f'ds_read_b128 v[{OF+4*i}:{OF+4*i+3}], v{vT+4+i//4} offset:{1024 * (i % 4)}')
    for i in range(20): e(f'v_mul_f32 v{BACC+i}, v{BACC+i}, v{vGt}')
    def og_load(i): return f'buffer_load_dwordx4 v[{OGq[i]}:{OGq[i]+3}], v{vR[i // 4]}, {WSr}, s{sOp} offen' + (f' offset:{1024 * (i % 4)}' if i % 4 else '') + ' sc1'
    g_st = [x for t, O in ((0, OA), (1, OB)) for x in (f'buffer_store_dwordx4 v[{O}:{O+3}], v{vO1}, {WSr}, s{sOo} offen offset:{1024 * t} sc1',
                                                    f'buffer_store_dword v{O+4}, v{vO2}, {WSr}, s{sOo} offen offset:{8 * t} sc1')] if O2 else []
    misc = [t for f_ in range(f, NWO) for t in wo_load(f_)] + [
            f'v_and_b32 v{vOut}, 15, v0', f'v_mul_u32_u24 v{vOut}, 1152, v{vOut}', f'v_and_b32 v{vO3}, 48, v0', f'v_add_u32 v{vOut}, v{vOut}, v{vO3}',
            f's_mul_i32 s{sT0}, s{sRG}, 18432', f's_mul_i32 s{sT1}, s{sHH}, 576', f's_add_u32 s{sT0}, s{sT0}, s{sT1}',
            f's_lshl_b32 s{sT1}, s{sW}, 7', f's_add_u32 s{sT1}, s{sT1}, s{sT0}', f's_and_b32 s{sT2}, s{sW}, 1', f's_lshl_b32 s{sT2}, s{sT2}, 3',
            f's_add_u32 s{sT0}, s{sT0}, s{sT2}', f's_and_b32 s{sT2}, s{ffn.sHF}, {OOB}', f'v_add_u32 v{vO3}, s{sT2}, v{vOut}', f's_mov_b32 s{sSpin}, 0']
    LDAT = cfg.get('ldat', 12); n = 0; nl = 0; assert LDAT > 6
    grp = lambda half, g: [mf16(BACC + 4 * g, quads[41 * half + 9 * g + i], f'v[{(OFq, OGq)[half][i]}:{(OFq, OGq)[half][i]+3}]', f'v[{BACC+4*g}:{BACC+4*g+3}]') for i in range(9 if g < 4 else 5)]
    chk = [f'v_max3_u32 v{vT}, v{OGq[i//2]+2*(i&1)}, v{OGq[i//2]+2*(i&1)+1}, ' + (f'v{vT}' if i else '0') for i in range(18)]
    ck_ = list(chk); CKAT = cfg.get('ckat', 50)
    for g in range(5):
        for t in grp(0, g):
            e(t); n += 1
            if n >= LDAT and (n - LDAT) % 2 == 0 and nl < 9: e(og_load(nl), tag='OG'); nl += 1
            elif misc: e(misc.pop(0))
            elif nl == 9 and n >= CKAT and ck_:
                if len(ck_) == 18: p.wait(vmtags=['OG'])
                e(ck_.pop(0)); e(ck_.pop(0))
    for t in misc: e(t)
    while nl < 9: e(og_load(nl)); nl += 1
    pf.stamp(76)
    for t in ck_: e(t)
    e(f'v_cmp_eq_u32 vcc, -1, v{vT}'); e('s_cmp_lg_u64 vcc, 0'); e('s_cbranch_scc1 PO_spin')
    p.label('PO_done')
    pf.stamp(77)
    def po_out(q):
        r = q.raw
        q.label('PO_spin')
        for t in g_st: r(t)
        q.label('PO_sp2'); r(f's_add_u32 s{sSpin}, s{sSpin}, 1'); r(f's_cmp_gt_u32 s{sSpin}, 0x8000'); r('s_cbranch_scc1 PO_done')
        if O2:
            r(f's_cmp_lt_u32 s{sSpin}, 4'); r(f's_cselect_b32 s{sT2}, s{sOp}, s{sOp2}'); r(f's_cselect_b32 s{sOp2}, s{sOp2}, s{sOp}'); r(f's_mov_b32 s{sOp}, s{sT2}')
        for i in range(9): r(og_load(i))
        r('s_waitcnt vmcnt(0)')
        for t in chk: r(t)
        r(f'v_cmp_eq_u32 vcc, -1, v{vT}'); r('s_cmp_lg_u64 vcc, 0'); r('s_cbranch_scc1 PO_sp2'); r('s_branch PO_done')
    ool.append(po_out)
    BX = BACC + 16
    cv = lambda d, s_: f'v_cvt_pk_bf16_f32 v{d}, v{s_}, v{s_+1}'
    fl = {13: [f'ds_write_b128 v{vO1}, v[{BX}:{BX+3}]'],
          20: ['s_waitcnt lgkmcnt(0)', 's_barrier'], 21: [f'ds_read_b128 v[{XR_}:{XR_+3}], v{vO2}'],
          22: [cv(BACC, BACC), cv(BACC + 1, BACC + 2)],
          28: [f'v_add_f32 v{BX}, v{BX}, v{XR_}', f'v_add_f32 v{BX+1}, v{BX+1}, v{XR_+1}'], 29: [f'v_add_f32 v{BX+2}, v{BX+2}, v{XR_+2}', f'v_add_f32 v{BX+3}, v{BX+3}, v{XR_+3}'],
          30: [cv(BACC + 2, BACC + 4), cv(BACC + 3, BACC + 6)],
          31: [f'buffer_store_dwordx4 v[{BACC}:{BACC+3}], v{vOut}, {OUTr}, s{sT1} offen {of_}'],
          33: [cv(BX, BX), cv(BX + 1, BX + 2)], 34: [f'buffer_store_dwordx2 v[{BX}:{BX+1}], v{vO3}, {OUTr}, s{sT0} offen offset:512 {of_}'],
          40: [cv(BACC + 8, BACC + 8), cv(BACC + 9, BACC + 10)]}
    for i_, t in enumerate(g_st): fl[1 + 3 * i_] = [t]
    fl[15] = [f'v_xor_b32 v{vO2}, 4096, v{vO1}']
    n = 0
    for g in (4, 0, 1, 2, 3):
        for t in grp(1, g):
            e(t); n += 1
            for x in fl.get(n, []): e(x)
    e(cv(BACC + 10, BACC + 12)); e(cv(BACC + 11, BACC + 14))
    e(f'buffer_store_dwordx4 v[{BACC+8}:{BACC+11}], v{vOut}, {OUTr}, s{sT1} offen offset:64 {of_}')
    return ool

def build(cfg, path):
    name = NAME + '_kernel'
    p = Prog()
    kernel_header(p, name)
    p.e('s_cmp_ge_u32 s2, 256'); p.e('s_cbranch_scc1 K_exit')
    cfg = dict(cfg); cfg.setdefault('codepf', 'K_exit-PCL'); cfg.setdefault('hop', 1)
    pf = Prof(p, 'real' if cfg.get('real') else bool(cfg.get('prof')))
    pf.stamp(100, real=True); pf.stamp(101)
    ool = gen(p, cfg, pf)
    pf.stamp(102)
    if pf.on: p.e('s_waitcnt vmcnt(0)')
    pf.stamp(103); pf.stamp(104, real=True)
    pf.dump(SRD_WS, sW)
    p.label('K_exit'); p.e('s_endpgm')
    for f in ool: f(p)
    p.reset_tracking(); p.auto = False
    att.att_check(p, 'A', cfg, 'fallback')
    if cfg['hop']:
        n0 = len(p.ins)
        for w_ in range(4): p.label(f'PAD{w_}')
        p.e('s_endpgm')
    p.fix_hazards(verbose=cfg.get('verbose', False))
    if cfg['hop']:
        tail = p.ins[-5:]
        sv = p.ins; npad = insert_pads(p, 'MAIN', 'K_exit', 4, 'HOPBACK'); p.ins = p.ins[:-5]; print('pads', npad)
    if cfg.get('align', 0): print('align8 (promoted, still misaligned):', align8(p, cfg.get('maxspan', 3)))
    print('instrs', len(p.ins), 'nops added', p.nops_added)
    txt = ['; @launch grid=(256,1,1) block=(256,1,1) lds=163840', '.amdgcn_target "amdgcn-amd-amdhsa--gfx950"', '.text', p.text(),
           '.section .rodata,"a"', descriptor(name, 512, acc=256)]
    open(path, 'w').write('\n'.join(txt))
if __name__ == '__main__':
    build(eval(sys.argv[2]) if len(sys.argv) > 2 else {}, sys.argv[1])
```

```python
from common import *

KVG, KVB = 18944, 2240
sW, sM_, sS = 3, 4, 5
sA, sA4, sX, sMb = 6, 7, 8, 9
sT0, sT1, sT2 = 10, 11, 12
sFs, sHd, sK32 = 13, 14, 15
SRD_X, SRD_WG, SRD_WU, SRD_W4, SRD_WD, SRD_WS, SRD_WO = 44, 48, 52, 56, 60, 64, 68
sHF = 72
sP, sQm, sQx, sKV, sKX = 74, 75, 76, 77, 78
sWoD = 79
sWoJ = 80
sso, sso2, sK4, sPo, sQs = 88, 89, 90, 91, 92
vOffW, vOffD, vOffX = 1, 5, 9
vRd = 13
vH, vC1, vL16, vT = 19, 20, 21, 22
XA, XAT = 24, 28
AB = 32
G0, G1, UU = 64, 96, 128
GT = 160; NGT = 12
XV = 172
vB1, vB2, vSel, vSt1, vSt2, vAd = 204, 206, 208, 211, 212, 214
vDo, vTa, vTx, vHs, vXw, vXr, vHw, vH2 = 22, 23, 222, 223, 224, 225, 236, 237
X3 = 204
vDl, sDl = 218, 100
vPW, vPQ, vPD, vDum = 250, 251, 252, 253
sFp, sPC, sTc = 93, 98, 90
vWo = 226
NPL = 10
NQ = 2088

def xf(k, rt, n=4, o=0):
    i = (k * 4 + rt) * 4 + o
    if k < 16: return f'a[{i}:{i+n-1}]'
    i = XV + i - 256
    return f'v[{i}:{i+n-1}]'

def gen_ffn(p, cfg, pf):
    DMAX = cfg.get('dmax', 7)
    stf = cfg.get('stflags', '')
    kS = cfg.get('kS', 2); ND = cfg.get('nd', 3)
    rho = {k: k - (k > kS) for k in range(5) if k != kS}
    seqB = [(j, c) for j in range(ND) for c in (0, 1, 2, 3, 4, 5, 8)] + [(j, c) for j in range(ND) for c in (6, 7)] + [(j, c) for j in range(ND, 9) for c in range(9)]
    accB = ([G1, XV, X3][:ND] + [G0, G1] * 5)[:9]
    accB = [accB[j] if j < ND else (G1, G0)[j % 2] for j in range(9)]
    BAR = set(range(6)); b_ = 5
    for lim, step in cfg.get('bars', [(66, 1)]):
        while b_ + step <= min(lim, 65): b_ += step; BAR.add(b_)
    up = lambda b: min([x for x in BAR if x >= b] + [999]); dn = lambda b: max(x for x in BAR if x <= b)
    cfg['up'] = up
    bH = dn((1440 + 56 * ND - 10 - 15) // 32 + 1)
    e = p.e
    A = GT
    load_ptrs(p)
    e('v_lshrrev_b32 v1, 6, v0')
    e('v_and_b32 v0, 63, v0')
    e(f'v_readfirstlane_b32 s{sW}, v1')
    if cfg.get('codepf'):
        e(f's_getpc_b64 s[{sPC}:{sPC+1}]'); p.label('PCL')
        e(f's_lshr_b32 s{sT1}, s2, 3'); e(f's_lshl_b32 s{sT1}, s{sT1}, 2'); e(f's_add_u32 s{sT1}, s{sT1}, s{sW}')
        e(f'v_lshlrev_b32 v{A+6}, 7, v0'); e(f'v_add_u32 v{A+6}, s{sT1}, v{A+6}')
        e(f'v_lshlrev_b32 v{A+6}, 7, v{A+6}'); e(f'v_min_u32 v{A+6}, {cfg["codepf"]}, v{A+6}')
        e(f'global_load_dword v{vDum}, v{A+6}, s[{sPC}:{sPC+1}]').dst = set()
    e(f's_and_b32 s{sT0}, s2, 7')
    e(f's_lshr_b32 s{sT1}, s2, 3')
    mx = cfg.get('xcd_m', 2)
    lm = int(math.log2(mx)); mper = 16 // mx; lmp = int(math.log2(mper)); sper = 32 // mper
    e(f's_and_b32 s{sM_}, s{sT0}, {mx - 1}')
    e(f's_mul_i32 s{sM_}, s{sM_}, {mper}')
    e(f's_and_b32 s{sT2}, s{sT1}, {mper - 1}')
    e(f's_add_u32 s{sM_}, s{sM_}, s{sT2}')
    e(f's_lshr_b32 s{sS}, s{sT0}, {lm}')
    e(f's_mul_i32 s{sS}, s{sS}, {sper}')
    e(f's_lshr_b32 s{sT2}, s{sT1}, {lmp}')
    e(f's_add_u32 s{sS}, s{sS}, s{sT2}')
    row, l4, g16 = A, A + 1, A + 2
    e(f'v_lshrrev_b32 v{row}, 3, v0')
    e(f'v_lshrrev_b32 v{l4}, 4, v0')
    e(f'v_and_b32 v{A+3}, 7, v0')
    e(f'v_xor_b32 v{A+4}, v{A+3}, v{l4}')
    e(f'v_lshlrev_b32 v{A+4}, 4, v{A+4}')
    e(f'v_mul_u32_u24 v{A+5}, 1152, v{row}')
    e(f'v_add_u32 v{vOffX}, v{A+4}, v{A+5}')
    e(f'v_xor_b32 v{vOffX+1}, 64, v{vOffX}')
    e(f'v_add_u32 v{vOffX+1}, {8192}, v{vOffX+1}')
    e(f'v_add_u32 v{vOffX+2}, {2 * 8192}, v{vOffX}')
    e(f'v_add_u32 v{vOffX+3}, {2 * 8192}, v{vOffX+1}')
    e(f's_lshl_b32 s{sMb}, s{sW}, 12')
    e(f's_lshl_b32 s{sK32}, s{sW}, 5')
    e(f's_lshl_b32 s{sX}, s{sM_}, 7')
    e(f's_add_u32 s{sX}, s{sX}, s{sK32}')
    e(f's_mul_i32 s{sX}, s{sX}, 1152')
    rot = cfg.get('rot', 8)
    if rot == 8:
        xs_ = 8 // sper if sper <= 8 else 1; ms_ = 8 // mper if mper <= 8 else 1
        e(f's_mul_i32 s{sA}, s{sS}, {xs_}'); e(f's_mul_i32 s{sT2}, s{sM_}, {ms_}'); e(f's_add_u32 s{sA}, s{sA}, s{sT2}'); e(f's_and_b32 s{sA}, s{sA}, 7')
    elif rot == 'x':
        e(f's_lshl_b32 s{sA}, s{sS}, 1'); e(f's_and_b32 s{sA}, s{sA}, 7')
    elif rot == 4:
        e(f's_add_u32 s{sA}, s{sS}, s{sM_}'); e(f's_and_b32 s{sA}, s{sA}, 3'); e(f's_mul_i32 s{sA}, s{sA}, 9'); e(f's_lshr_b32 s{sA}, s{sA}, 2')
    else: e(f's_mov_b32 s{sA}, 0')
    def wprep(e):
        e(f'v_lshlrev_b32 v{g16}, 1, v{l4}')
        e(f'v_xor_b32 v{g16}, v{A+3}, v{g16}')
        e(f'v_lshlrev_b32 v{A+4}, 4, v{g16}')
        e(f'v_and_b32 v{A+6}, 4, v{row}'); e(f'v_add_u32 v{A+6}, v{A+6}, v{row}')
        e(f'v_mul_u32_u24 v{vOffW}, 9216, v{A+6}')
        e(f'v_add_u32 v{vOffW}, v{vOffW}, v{A+4}')
        for q in (1, 2, 3): e(f'v_add_u32 v{vOffW+q}, {(0, 16, 4, 20)[q] * 9216 - 1024 * q}, v{vOffW}')
        e(f's_mul_i32 s{sT2}, s{sS}, 576')
        e(f's_bitcmp1_b32 s{sS}, 0')
        e(f's_cselect_b32 s{sT0}, 64, 0')
        e(f's_cselect_b32 s{sFs}, 0, 512')
        e(f's_add_u32 s{sFp}, s{sT0}, s{sT2}')
        e(f's_add_u32 s{sFs}, s{sFs}, s{sT2}')
    def tables(e):
        e(f'v_add_u32 v{A+6}, s{sA}, v0'); e(f'v_subrev_u32 v{A+7}, 9, v{A+6}'); e(f'v_min_u32 v{A+6}, v{A+6}, v{A+7}')
        e(f'v_lshlrev_b32 v{A+6}, 7, v{A+6}'); e(f'v_add_u32 v{vTx}, s{sX}, v{A+6}')
        e(f'v_mul_u32_u24 v{A+6}, 7282, v0'); e(f'v_lshrrev_b32 v{A+6}, 16, v{A+6}')
        e(f'v_mul_u32_u24 v{A+7}, 9, v{A+6}'); e(f'v_sub_u32 v{A+7}, v0, v{A+7}')
        e(f'v_lshlrev_b32 v{A+7}, 2, v{A+7}'); e(f'v_add_u32 v{A+7}, s{sW}, v{A+7}')
        e(f'v_subrev_u32 v{A+8}, 18, v{A+7}'); e(f'v_min_u32 v{A+7}, v{A+7}, v{A+8}')
        e(f's_lshl_b32 s{sT2}, s{sA}, 1'); e(f'v_add_u32 v{A+7}, s{sT2}, v{A+7}')
        e(f'v_subrev_u32 v{A+8}, 18, v{A+7}'); e(f'v_min_u32 v{A+7}, v{A+7}, v{A+8}')
        e(f'v_cmp_lt_u32 vcc, {kS}, v{A+6}'); e(f'v_mul_u32_u24 v{A+8}, 294912, v{A+7}'); e(f'v_add_u32 v{A+8}, s{sFp}, v{A+8}')
        e(f'v_subbrev_co_u32 v{A+9}, vcc, 0, v{A+6}, vcc')
        e(f'v_cmp_ne_u32 vcc, {kS}, v{A+6}'); e(f'v_lshl_add_u32 v{A+8}, v{A+9}, 7, v{A+8}'); e(f'v_lshlrev_b32 v{A+7}, 5, v{A+7}')
        e(f'v_cndmask_b32 v{vTa}, v{A+7}, v{A+8}, vcc')
    e(f's_lshl_b32 s{sso}, s{sA}, 7'); e(f's_add_u32 s{sso}, s{sso}, s{sX}')
    if cfg.get('pstamp'): e(f's_memrealtime s[96:97]')
    e('s_waitcnt lgkmcnt(0)')
    if cfg.get('pstamp'): e(f'v_writelane_b32 v255, s96, 20'); pf.stamp(85)
    srd(p, SRD_X, P_X, 2048 * 1152)

    NU = 66
    HWD = cfg.get('hwd', 2)
    items = []
    for U in range(NU):
        if U < 5:
            for cx in ([2 * U, 2 * U + 1] if U < 4 else [8]): items.append(('X', cx, U))
        items.append(('W', U, dn(U)))
    resv = {pl: [] for pl in range(NPL)}
    for k in rho: resv[rho[k]].append((9 * (k + 1) + HWD, up(46) if k < 4 else up(bH + 1)))
    resv[4].append((9 * kS + 5, up(46)))
    if cfg.get('kvb0'):
        for k in range(5): resv[k].append((cfg['kvb0'] + cfg['kv_at'][k], 999))
    busy = {pl: -1 for pl in range(NPL)}
    place = {}; issue_at = {}; nxt = 0
    for b in range(-1, NU):
        lst = []
        while nxt < len(items):
            kind, idx, need = items[nxt]; fb = up(need + 1)
            r0, r1, r2_ = cfg.get('ramp', (7, 0, 1))
            if b >= 0 and (need - b > max(r0, min(DMAX, r0 + (b - r1) // r2_)) or len(lst) >= cfg.get('maxissue', 3)): break
            if b < 0 and len(lst) >= cfg.get('pro_units', 6): break
            cand = [pl for pl in range(NPL) if busy[pl] <= b and all(fb <= rs or b >= re for rs, re in resv[pl])]
            if not cand: break
            cand.sort(key=lambda pl: min([rs for rs, re in resv[pl] if rs >= fb] + [999]))
            pl = cand[0]; assert need > b
            place[(kind, idx)] = pl; busy[pl] = fb
            lst.append(items[nxt]); nxt += 1
        issue_at[b] = lst
    assert nxt == len(items)
    if cfg.get('verbose'):
        for b in range(-1, NU): print(b, [(k, i, place[(k, i)]) for k, i, n in issue_at[b]])

    def dma_instrs(kind, idx):
        pl = place[(kind, idx)]; tag = (kind, idx)
        m0 = (f's_add_u32 m0, s{sMb}, {pl * 16384}', None)
        def four(vo, sr): return [(f'buffer_load_dwordx4 v{vo+q}, s[{sr}:{sr+3}], s{sso} offen' + (f' offset:{1024*q}' if q else '') + ' lds', tag) for q in range(4)]
        if kind == 'X':
            return [(f'v_readlane_b32 s{sso}, v{vTx}, {idx}', None), m0] + four(vOffX, SRD_X)
        U = idx
        if U < 45 and U // 9 != kS:
            u = U % 9
            sr = SRD_WG if u < 4 else (SRD_W4 if u == 4 else SRD_WU)
            return [(f'v_readlane_b32 s{sso}, v{vTa}, {U}', None), m0] + four(vOffW, sr)
        if U < 45:
            u = U % 9
            b_, st = (vB1, vSt1) if u < 4 else ((vB2, vSt2) if u > 4 else (vSel, vSel + 2))
            dl = f's[{sDl}:{sDl+1}]' if u < 4 else (f'v[{vDl}:{vDl+1}]' if u > 4 else f'v[{vDl+2}:{vDl+3}]')
            ad = lambda q: f'v[{vAd+2*(q&1)}:{vAd+2*(q&1)+1}]'
            out = [(f'v_readlane_b32 s{sso}, v{vTa}, {U}', None), m0, (f'v_mad_u64_u32 {ad(0)}, s[{sPC}:{sPC+1}], v{st}, s{sso}, v[{b_}:{b_+1}]', None)]
            for hq in range(2):
                if hq: out += [(f's_add_u32 s{sso}, s{sso}, 4', None), (f's_add_u32 m0, s{sMb}, {pl * 16384 + 2048}', None),
                               (f'v_mad_u64_u32 {ad(0)}, s[{sPC}:{sPC+1}], v{st}, s{sso}, v[{b_}:{b_+1}]', None)]
                out += [(f'global_load_lds_dwordx4 {ad(0)}, off', tag), (f'v_lshl_add_u64 {ad(1)}, {ad(0)}, 0, {dl}', None),
                        (f'global_load_lds_dwordx4 {ad(1)}, off offset:1024', tag)]
            return out
        return [(f'v_readlane_b32 s{sso}, v{vDo}, {U - 45}', None), m0] + four(vOffD, SRD_WD)

    PF = cfg.get('prefetch', 4)
    if PF & 1:
        nrow = 128 // (4 * sper)
        e(f's_and_b32 s{sT1}, s{sS}, {sper - 1}'); e(f's_lshl_b32 s{sT1}, s{sT1}, 2'); e(f's_add_u32 s{sT1}, s{sT1}, s{sW}')
        e(f's_mul_i32 s{sT1}, s{sT1}, {nrow * 1152}'); e(f's_mul_i32 s{sT2}, s{sM_}, {128 * 1152}'); e(f's_add_u32 s{sT1}, s{sT1}, s{sT2}')
        e(f'v_lshl_add_u32 v{A+6}, v{A+3}, 7, v{A+5}')
        if nrow < 8:
            e(f'v_cmp_gt_u32 vcc, {8 * nrow}, v0'); e(f'v_mov_b32 v{A+7}, {OOB}'); e(f'v_cndmask_b32 v{A+6}, v{A+7}, v{A+6}, vcc')
        for i in range(max(1, nrow // 8)):
            e(f'buffer_load_dword v{vDum}, v{A+6}, s[{SRD_X}:{SRD_X+3}], s{sT1} offen offset:128').dst = set()
            if i + 1 < nrow // 8: e(f's_add_u32 s{sT1}, s{sT1}, 9216')
    pro = []
    for kind, idx, need in issue_at[-1]:
        assert kind == 'X' or idx < 4
        pro += dma_instrs(kind, idx)
    wrows = 576 // (2 * mper)
    def wtouch(col):
        return [f'buffer_load_dword v{vDum}, v{vPW}, s[{SRD_W4}:{SRD_W4+3}], {col} offen' + (f' offset:0' if 0 else '')]
    assert not PF & 1
    class R_:
        l = []
        def e(self, t): self.l.append(t)
    r_ = R_(); wprep(r_.e); srd(r_, SRD_WG, P_WG, 576 * 9216)
    r_.l += [f's_lshl_b32 s{sso2}, s{sA}, 1', f's_add_u32 s{sso2}, s{sso2}, s{sW}', f's_mul_i32 s{sso2}, s{sso2}, 294912', f's_add_u32 s{sso2}, s{sso2}, s{sFp}']
    fb_ = pro[1:6] + [(f's_add_u32 s{sso}, s{sso}, 128', None)] + pro[7:12]
    for t, tag in fb_:
        e(t, tag=tag)
        if tag:
            for _ in range(4):
                if r_.l: t_ = r_.l.pop(0); e(t_)
            while r_.l and r_.l[0].startswith('s_cselect'): e(r_.l.pop(0))
    for t_ in r_.l: e(t_)
    for t, tag in pro[13:18]: e(t.replace(f's{sso} offen', f's{sso2} offen'), tag=tag)
    pro = pro[18:]
    tables(e)
    srd(p, SRD_WU, P_WU, 576 * 9216)
    e(f's_cmp_ge_u32 s{sW}, 2')
    e(f's_cselect_b32 s{SRD_W4}, s{SRD_WU}, s{SRD_WG}')
    e(f's_cselect_b32 s{SRD_W4+1}, s{SRD_WU+1}, s{SRD_WG+1}')
    e(f's_mov_b32 s{SRD_W4+2}, {576 * 9216}')
    e(f's_mov_b32 s{SRD_W4+3}, 0x20000')
    if cfg.get('pstamp'): pf.stamp(86)
    e0 = e; cnt_ = [0]
    def e(t, **kw):
        r = e0(t, **kw); cnt_[0] += 1
        if pro and cnt_[0] % cfg.get('pro_every', 1000) == 0 and not t.startswith(('s_cmp', 's_cselect', 's_bitcmp')):
            while pro:
                t2, tag = pro.pop(0); e0(t2, tag=tag)
                if tag and not cfg.get('burst'): break
        return r

    e(f'v_add_u32 v{vOffD}, v{A+4}, v{A+5}')
    for q in (1, 2, 3): e(f'v_add_u32 v{vOffD+q}, {q * 8192}, v{vOffD}')
    srd(p, SRD_WD, P_WD, 4608 * 1152)
    srd(p, SRD_WS, P_WS, WS_END)
    srd(p, SRD_WO, P_WO, 576 * 1152)
    e(f's_cmp_ge_u32 s{sW}, 2')
    e(f's_cselect_b64 s[{sHF}:{sHF+1}], -1, 0')
    e(f's_cselect_b32 s{sHd}, 1, 0')
    e(f'v_lshrrev_b32 v{A+3}, 2, v0')
    e(f'v_bfe_u32 v{A+6}, v0, 3, 2')
    e(f's_and_b32 s{sT0}, s{sHF}, 2')
    e(f'v_xor_b32 v{A+6}, s{sT0}, v{A+6}')
    e(f'v_lshlrev_b32 v{A+6}, 5, v{A+6}')
    e(f'v_lshl_add_u32 v{A+6}, v{A+3}, 7, v{A+6}')
    e(f'v_and_b32 v{A+3}, 3, v0')
    e(f'v_lshl_add_u32 v{vRd}, v{A+3}, 3, v{A+6}')
    e(f'v_xor_b32 v{vRd+3}, 32, v{vRd}')
    for wd in (1, 2):
        e(f'v_add_u32 v{vRd+wd}, {65536 * wd}, v{vRd}')
        e(f'v_add_u32 v{vRd+3+wd}, {65536 * wd}, v{vRd+3}')
    e(f's_and_b32 s{sT0}, s{sW}, 1')
    e(f'v_lshrrev_b32 v{A+3}, 4, v0')
    e(f'v_bfe_u32 v{A+6}, v0, 1, 3')
    e(f'v_xor_b32 v{A+6}, v{A+6}, v{A+3}')
    e(f'v_lshlrev_b32 v{A+6}, 4, v{A+6}')
    e(f'v_and_b32 v{A+3}, 15, v0')
    e(f'v_lshl_add_u32 v{A+6}, v{A+3}, 7, v{A+6}')
    e(f's_lshl_b32 s{sT1}, s{sT0}, 13')
    e(f'v_add_u32 v{XA}, s{sT1}, v{A+6}')
    e(f'v_xor_b32 v{XA+1}, 64, v{XA}')
    for wd in (1, 2):
        for q in range(2): e(f'v_add_u32 v{XA+2*wd+q}, {65536 * wd}, v{XA+q}')
    e(f'v_lshlrev_b32 v{vL16}, 4, v0')
    e(f's_lshl_b32 s{sT1}, s{sT0}, 12')
    e(f'v_add_u32 v{vH}, s{sT1}, v{vL16}')
    e(f'v_mov_b32 v{vC1}, {f2u(GC1)}')
    late = []
    L = late.append
    B = vWo
    LATE = cfg.get('late', 0)
    B = GT if LATE else 238
    L(f's_and_b32 s{sT2}, s{sHF}, 8192'); L(f'v_add_u32 v{vHw}, s{sT2}, v{vH}')
    L(f'v_add_u32 v{vH2}, 65536, v{vH}'); L(f's_and_b32 s{sT2}, s{sHF}, 2048'); L(f'v_add_u32 v{vHs}, s{sT2}, v{vH2}')
    L(f's_add_u32 s{sT2}, s{sMb}, 65536'); L(f'v_add_u32 v{vXw}, s{sT2}, v{vL16}')
    L(f'v_xor_b32 v{vXr}, 8192, v{vXw}')
    L(f's_and_b32 s{sT0}, s{sW}, 1')
    L(f's_lshl_b32 s{sP}, s{sM_}, 4'); L(f's_add_u32 s{sP}, s{sP}, s{sS}'); L(f's_mul_i32 s{sP}, s{sP}, 147456')
    L(f's_lshl_b32 s{sT1}, s{sT0}, 12'); L(f's_add_u32 s{sP}, s{sP}, s{sT1}')
    L(f's_and_b32 s{sT1}, s{sHF}, 8192'); L(f's_add_u32 s{sP}, s{sP}, s{sT1}')
    assert WS_P == 0
    L(f's_lshl_b32 s{sT1}, s{sS}, 1'); L(f's_add_u32 s{sHd}, s{sHd}, s{sT1}')
    L(f's_lshl_b32 s{sT1}, s{sM_}, 1'); L(f's_add_u32 s{sT1}, s{sT1}, s{sT0}')
    L(f's_lshr_b32 s{sT2}, s{sT1}, 2'); L(f's_mul_i32 s{sKX}, s{sT2}, {KVG}'); L(f's_add_u32 s{sKX}, s{sKX}, {WS_KV}')
    L(f's_and_b32 s{sT2}, s{sT1}, 3'); L(f's_mul_i32 s{sKV}, s{sT2}, {2 * KVB}'); L(f's_add_u32 s{sKV}, s{sKV}, s{sKX}')
    L(f's_add_u32 s{sKV}, s{sKV}, 1024')
    L(f's_and_b32 s{sT2}, s{sM_}, 1'); L(f's_lshl_b32 s{sT2}, s{sT2}, 9'); L(f's_add_u32 s{sKX}, s{sKX}, s{sT2}')
    L(f's_lshl_b32 s{sT2}, s{sT0}, 3'); L(f's_add_u32 s{sKX}, s{sKX}, s{sT2}')
    L(f's_lshl_b32 s{sT2}, s{sHd}, 5'); L(f's_add_u32 s{sT1}, s{sT1}, s{sT2}')
    L(f's_lshl_b32 s{sQm}, s{sT1}, 11'); L(f's_add_u32 s{sQm}, s{sQm}, {WS_QM}')
    L(f's_lshl_b32 s{sQx}, s{sT1}, 8'); L(f's_add_u32 s{sQx}, s{sQx}, {WS_QX}')
    L(f's_mov_b32 s{sQs}, {f2u(QSCALE)}')
    L(f'v_lshlrev_b32 v{B}, 2, v0'); L(f'v_add_u32 v{B}, s{sW}, v{B}')
    L(f'v_mul_u32_u24 v{B+1}, 7282, v{B}'); L(f'v_lshrrev_b32 v{B+1}, 16, v{B+1}')
    L(f'v_mul_u32_u24 v{B+2}, 9, v{B+1}'); L(f'v_sub_u32 v{B+2}, v{B}, v{B+2}')
    L(f'v_cmp_gt_u32 vcc, {9 * ND}, v{B}'); L(f'v_subrev_u32 v{B+3}, {7 * ND}, v{B}')
    L(f'v_lshrrev_b32 v{B+4}, 1, v{B+3}'); L(f'v_and_or_b32 v{B+3}, v{B+3}, 1, 6')
    L(f'v_cndmask_b32 v{B+1}, v{B+1}, v{B+4}, vcc'); L(f'v_cndmask_b32 v{B+2}, v{B+2}, v{B+3}, vcc')
    L(f'v_mul_u32_u24 v{B+4}, 9363, v{B}'); L(f'v_lshrrev_b32 v{B+4}, 16, v{B+4}')
    L(f'v_mul_u32_u24 v{B+3}, 7, v{B+4}'); L(f'v_sub_u32 v{B+3}, v{B}, v{B+3}')
    L(f'v_cmp_eq_u32 vcc, 6, v{B+3}'); L('s_nop 1'); L(f'v_cndmask_b32_e64 v{B+3}, v{B+3}, 8, vcc')
    L(f'v_cmp_gt_u32 vcc, {7 * ND}, v{B}'); L('s_nop 1')
    L(f'v_cndmask_b32 v{B+1}, v{B+1}, v{B+4}, vcc'); L(f'v_cndmask_b32 v{B}, v{B+2}, v{B+3}, vcc')
    L(f's_and_b32 s{sT2}, s{sS}, 1'); L(f'v_add_u32 v{B}, s{sT2}, v{B}')
    L(f'v_cmp_eq_u32 vcc, 9, v{B}'); L(f's_mul_i32 s{sT2}, s{sS}, 331776'); L(f'v_lshlrev_b32 v{B+1}, 7, v{B+1}')
    L(f'v_cndmask_b32_e64 v{B}, v{B}, 0, vcc')
    L(f'v_mul_u32_u24 v{B}, 36864, v{B}'); L(f'v_add3_u32 v{vDo}, v{B}, v{B+1}, s{sT2}')
    rw, gg, ch, z = B, B + 1, B + 2, B + 3
    L(f'v_lshrrev_b32 v{rw}, 3, v0'); L(f'v_and_b32 v{gg}, 4, v{rw}'); L(f'v_add_u32 v{rw}, v{rw}, v{gg}'); L(f'v_bfe_u32 v{gg}, v{vOffD}, 4, 3')
    L(f'v_mov_b32 v{vSt1}, 9216')
    L(f'v_cmp_gt_u32 vcc, 4, v{gg}')
    L(f'v_mov_b32 v{B+4}, s{P_WU}'); L(f'v_mov_b32 v{B+5}, s{P_WG}'); L(f'v_cndmask_b32 v{vB1}, v{B+4}, v{B+5}, vcc')
    L(f'v_mov_b32 v{B+4}, s{P_WU+1}'); L(f'v_mov_b32 v{B+5}, s{P_WG+1}'); L(f'v_cndmask_b32 v{vB1+1}, v{B+4}, v{B+5}, vcc')
    L(f'v_and_b32 v{ch}, 3, v{gg}'); L(f'v_lshlrev_b32 v{B+4}, 4, v{ch}'); L(f'v_add_u32 v{B+5}, s{sFs}, v{B+4}')
    L(f'v_mad_u32_u24 v{B+5}, v{rw}, v{vSt1}, v{B+5}')
    L(f'v_add_co_u32 v{vB1}, vcc, v{vB1}, v{B+5}')
    L(f'v_lshrrev_b32 v{z}, 2, v{gg}'); L(f's_lshl_b32 s{sT0}, s{sS}, 1')
    L(f'v_addc_co_u32 v{vB1+1}, vcc, 0, v{vB1+1}, vcc')
    L(f'v_add_u32 v{z}, s{sT0}, v{z}')
    L(f'v_min_u32 v{B+4}, 20, v{B+4}'); L(f'v_mad_u32_u24 v{B+4}, v{z}, 36, v{B+4}')
    L(f'v_cmp_gt_u32 vcc, 3, v{z}'); L(f'v_subrev_u32 v{B+5}, 3, v{z}')
    L(f'v_mov_b32 v{B+6}, s{P_WV}'); L(f'v_mov_b32 v{B+7}, s{P_WK}')
    L(f'v_cndmask_b32 v{B+5}, v{B+5}, v{z}, vcc'); L(f'v_cndmask_b32 v{vB2}, v{B+6}, v{B+7}, vcc')
    L(f'v_mov_b32 v{B+6}, s{P_WV+1}'); L(f'v_mov_b32 v{B+7}, s{P_WK+1}'); L(f'v_cndmask_b32 v{vB2+1}, v{B+6}, v{B+7}, vcc')
    L(f'v_lshlrev_b32 v{B+5}, 4, v{B+5}'); L(f'v_min_u32 v{B+5}, 20, v{B+5}')
    L(f'v_cmp_eq_u32 vcc, 6, v{z}'); L(f'v_mov_b32 v{B+6}, s{P_GW}'); L(f'v_mov_b32 v{B+7}, s{P_GW+1}')
    L(f'v_cndmask_b32 v{vB2}, v{vB2}, v{B+6}, vcc'); L(f'v_cndmask_b32 v{vB2+1}, v{vB2+1}, v{B+7}, vcc')
    L(f'v_cndmask_b32_e64 v{B+5}, v{B+5}, 0, vcc'); L(f'v_cndmask_b32_e64 v{B+9}, 36, 2, vcc')
    L(f'v_sub_u32 v{B+6}, 3, v{ch}'); L(f'v_lshl_add_u32 v{B+6}, v{B+6}, 6, v{z}')
    L(f'v_cmp_gt_u32 vcc, 7, v{B+6}')
    L(f'v_mov_b32 v{B+6}, s{P_WQ}'); L(f'v_mov_b32 v{B+7}, s{P_WQ+1}'); L(f'v_mov_b32 v{B+8}, 1152')
    L(f'v_cndmask_b32 v{vB2}, v{B+6}, v{vB2}, vcc'); L(f'v_cndmask_b32 v{vB2+1}, v{B+7}, v{vB2+1}, vcc')
    L(f'v_cndmask_b32 v{B+4}, v{B+4}, v{B+5}, vcc'); L(f'v_cndmask_b32 v{vSt2}, v{B+8}, v{B+9}, vcc')
    L(f'v_mad_u32_u24 v{B+4}, v{rw}, v{vSt2}, v{B+4}')
    L(f'v_add_co_u32 v{vB2}, vcc, v{vB2}, v{B+4}')
    L(f'v_cndmask_b32 v{vSel}, v{vB1}, v{vB2}, s[{sHF}:{sHF+1}]'); L(f'v_cndmask_b32 v{vSel+2}, v{vSt1}, v{vSt2}, s[{sHF}:{sHF+1}]')
    L(f'v_addc_co_u32 v{vB2+1}, vcc, 0, v{vB2+1}, vcc')
    L(f'v_cndmask_b32 v{vSel+1}, v{vB1+1}, v{vB2+1}, s[{sHF}:{sHF+1}]')
    L(f's_mov_b32 s{sDl}, {16 * 9216 - 1024}'); L(f's_mov_b32 s{sDl+1}, 0')
    for o_, st_ in ((0, vSt2), (2, vSel + 2)):
        L(f'v_lshlrev_b32 v{vDl+o_}, 4, v{st_}'); L(f'v_subrev_u32 v{vDl+o_}, 1024, v{vDl+o_}'); L(f'v_ashrrev_i32 v{vDl+o_+1}, 31, v{vDl+o_}')
    if PF:
        mpd = cfg.get('pfm', mper); npair = 4 * mpd
        L(f's_and_b32 s{sT1}, s{sM_}, {mpd - 1}'); L(f's_lshl_b32 s{sT1}, s{sT1}, 2'); L(f's_add_u32 s{sT1}, s{sT1}, s{sW}')
        L(f's_mul_i32 s{sT2}, s{sT1}, {331776 // npair}'); L(f's_mul_i32 s{sT0}, s{sS}, 331776'); L(f's_add_u32 s{sT2}, s{sT2}, s{sT0}')
        DL = cfg.get('pfdl', 21)
        L(f'v_min_u32 v{vPD}, {DL - 1}, v0'); L(f'v_lshlrev_b32 v{vPD}, 7, v{vPD}'); L(f'v_add_u32 v{vPD}, s{sT2}, v{vPD}')
    WT = cfg.get('wt', {})
    if WT:
        L(f's_lshl_b32 s{sT1}, s{sM_}, 1'); L(f's_and_b32 s{sT2}, s{sW}, 1'); L(f's_add_u32 s{sT1}, s{sT1}, s{sT2}'); L(f's_mul_i32 s{sT1}, s{sT1}, 18')
        L(f'v_min_u32 v{B}, 17, v0'); L(f'v_add_u32 v{B}, s{sT1}, v{B}'); L(f'v_mul_u32_u24 v{vPW}, 9216, v{B}')
        L(f's_lshl_b32 s{sT1}, s2, 2'); L(f's_add_u32 s{sT1}, s{sT1}, s{sW}'); L(f's_mul_i32 s{sT1}, s{sT1}, 648')
        L(f'v_min_u32 v{B}, 5, v0'); L(f'v_lshlrev_b32 v{B}, 7, v{B}'); L(f'v_add_u32 v{vPQ}, s{sT1}, v{B}')
    def wt_ins(k):
        if k == 'q': return [f'global_load_dword v{vDum}, v{vPQ}, s[{P_WQ}:{P_WQ+1}]']
        base_, col = (sFs, 0) if k == kS else (sFp, 128 * rho[k])
        return [f's_add_u32 s{sTc}, s{base_}, {col}', wtouch(f's{sTc}')[0]]
    if not LATE:
        for t in late: e(t)
    for k, g_ in WT.items():
        if g_ < 0:
            for t in wt_ins(k):
                i_ = e(t)
                if 'load' in t: i_.dst = set()
    e(f's_mul_i32 s{sT0}, s2, 3'); e(f's_add_u32 s{sT0}, s{sT0}, s{sW}')
    e(f's_mul_hi_u32 s{sT1}, s{sT0}, {(2**32 + 17) // 18}')
    e(f's_mul_i32 s{sT2}, s{sT1}, 18'); e(f's_sub_u32 s{sT2}, s{sT0}, s{sT2}')
    e(f's_lshl_b32 s{sWoD}, s{sT0}, 10'); e(f's_add_u32 s{sWoD}, s{sWoD}, {WS_WO}')
    e(f's_lshr_b32 s{sso2}, s{sT1}, 1'); e(f's_lshl_b32 s{sso2}, s{sso2}, 6')
    e(f's_and_b32 s{sT1}, s{sT1}, 1'); e(f's_lshl_b32 s{sT1}, s{sT1}, 3'); e(f's_add_u32 s{sso2}, s{sso2}, s{sT1}')
    e(f'v_bfe_u32 v{A}, v0, 2, 2'); e(f'v_and_b32 v{A+2}, 3, v0'); e(f'v_lshlrev_b32 v{A+2}, 1, v{A+2}')
    e(f'v_lshl_add_u32 v{A}, v{A}, 4, v{A+2}'); e(f'v_add_u32 v{A}, s{sso2}, v{A}')
    e(f'v_bfe_u32 v{A+2}, v0, 4, 1'); e(f'v_mul_u32_u24 v{A+2}, 18, v{A+2}')
    e(f'v_lshrrev_b32 v{A+1}, 5, v0'); e(f'v_lshl_add_u32 v{A+2}, v{A+1}, 2, v{A+2}')
    e(f'v_lshrrev_b32 v{A+4}, 4, v0'); e(f'v_mul_u32_u24 v{A+4}, 72, v{A+4}')
    e(f's_cmp_ge_u32 s{sT2}, 9'); e(f's_cselect_b32 s{sso2}, 1, 0')
    e(f's_sub_u32 s{sT1}, s{sT2}, s{sso2}'); e(f's_mul_i32 s{sT1}, s{sT1}, 36')
    e(f's_mul_i32 s{sWoJ}, s{sso2}, 9'); e(f's_sub_u32 s{sT2}, s{sT2}, s{sWoJ}')
    e(f's_mul_i32 s{sso2}, s{sso2}, 288'); e(f's_add_u32 s{sso2}, s{sso2}, 16')
    e(f's_cmp_eq_u32 s{sT2}, 8'); e(f's_cselect_b64 vcc, -1, 0'); e(f's_cselect_b32 s{sT1}, s{sso2}, s{sT1}')
    for j in range(8): e(f's_cselect_b32 s{sWoJ+j}, {18 * (j >> 1) + (j & 1)}, {8 * (j >> 2) + (j & 3)}')
    for j in range(8): e(f's_mul_i32 s{sWoJ+j}, s{sWoJ+j}, 1152')
    e(f'v_cndmask_b32 v{A+2}, v{A+2}, v{A+4}, vcc'); e(f'v_add_u32 v{A+2}, s{sT1}, v{A+2}')
    e(f'v_mul_u32_u24 v{A+2}, 1152, v{A+2}'); e(f'v_add_u32 v{vWo}, v{A}, v{A+2}')
    e(f's_cmp_lt_u32 s{sW}, 3'); e(f's_cselect_b32 s{sT1}, 648, 0'); e(f's_cmp_lt_u32 s{sT0}, s{sT1}')
    e(f's_cselect_b32 s{sT1}, 0, {OOB}')
    e(f'v_add_u32 v{vWo}, s{sT1}, v{vWo}'); e(f'v_add_u32 v{vWo+1}, s{sT1}, v{vL16}')

    wol = [f'buffer_load_ushort v{vWo+2+j}, v{vWo}, s[{SRD_WO}:{SRD_WO+3}], s{sWoJ+j} offen' for j in range(8)]
    DEF = cfg.get('defer', 0); dlist = []
    if not DEF:
        for t in wol: e(t)
    if cfg.get('fake'): e(f'v_mov_b32 v{vTa}, s{sK32}'); e(f'v_mov_b32 v{vDo}, 0')
    if cfg.get('setup_extra'):
        if DEF:
            class R2_:
                def e(self, t, tag=None): dlist.append((t, tag))
            cfg['setup_extra'](R2_())
        else: cfg['setup_extra'](p)
    e = e0
    if cfg.get('pstamp'): pf.stamp(87)
    if cfg.get('hop'):
        e('s_mov_b64 exec, 0')
        for w_ in range(3): e(f's_cmp_eq_u32 s{sW}, {w_}'); e(f's_cbranch_scc1 PAD{w_}')
        e('s_branch PAD3')
        p.label('HOPBACK'); e('s_mov_b64 exec, -1'); e('s_branch MAIN'); p.raw('.p2align 12'); p.label('MAIN')
    if cfg.get('pstamp'): pf.stamp(88)
    if cfg.get('wait2'): p.wait(vmtags=[[('X', 0), ('X', 1), ('W', 0)][cfg['wait2'] - 1]])
    for t2, tag in pro: e0(t2, tag=tag)
    S = Sched(NQ, 2)
    S.temps = list(range(GT, GT + NGT))
    S.nolds = lambda g: 11 <= g % 32 <= 15 and g // 32 + 1 in BAR
    qb = lambda b: 32 * (b - 1) + 15
    WSr = f's[{SRD_WS}:{SRD_WS+3}]'
    NF = NQ // 4
    def kinfo(K):
        if K < 180:
            ps, kk = divmod(K, 18); return (UU if ps & 1 else (G0, G1)[(ps // 2) % 2]), kk, ps
        j, kk = seqB[K - 180]; return accB[j], kk, 100 + j
    CH = cfg.get('chain', 4); SEQ = []; FM = {}
    for U in range(NU):
        Ks = [K for K in range(4 * U, 4 * U + 4) if K < 261]
        gs_ = [kinfo(K)[2] for K in Ks]
        if CH >= 4 and U >= 5 and len(Ks) == 4 and (len(set(gs_)) == 1 or (CH >= 5 and max(map(gs_.count, gs_)) == 3)):
            FM[U] = [(i % 4, i // 4) for i in range(8)]
            SEQ += [(4 * ft + k, Ks[k], ft, rt) for ft in range(2) for rt in range(4) for k in range(4)]
            continue
        FM[U] = [(i // 2, i % 2) for i in range(8)]
        for hh in range(0, len(Ks), 2):
            pr = Ks[hh:hh + 2]
            if CH >= 2 and len(pr) == 2 and kinfo(pr[0])[2] == kinfo(pr[1])[2]:
                SEQ += [(2 * (hh + k) + ft, pr[k], ft, rt) for ft in range(2) for rt in range(4) for k in range(2)]
            else:
                SEQ += [(2 * (hh + k) + ft, pr[k], ft, (3 - rt if ft else rt)) for k in range(len(pr)) for ft in range(2) for rt in range(4)]
    assert len(SEQ) == NQ
    firstq = lambda K: min(q for q in range(8 * K - 32 if K > 4 else 0, min(NQ, 8 * K + 32)) if SEQ[q][1] == K)
    lastq = lambda K: max(q for q in range(8 * K - 32 if K > 4 else 0, min(NQ, 8 * K + 32)) if SEQ[q][1] == K)
    def tread(n, h):
        U, i = divmod(n, 8); pl = place[('W', U)]; k, ft = FM[U][i]
        a = AB + 4 * i + 2 * h
        return f'ds_read_b64_tr_b16 v[{a}:{a+1}], v{vRd + 3 * ft + pl // 4} offset:{(pl % 4) * 16384 + k * 4096 + 2048 * h}'
    TP = cfg.get('tpos', [16, 17, 18, 20, 21, 23, 24, 26, 28, 29, 30, 32, 34, 36, 38, 40])
    def barrier(b):
        st_ = (b % cfg.get('stampevery', 1) == 0)
        if st_: pf.start()
        p.wait(vmtags=[(k, i) for k, i, need in items if need == b] + sum([v_ for k_, v_ in cfg.get('bar_tags', {}).items() if up(k_) == b], []), lg0=True)
        e('s_barrier')
        if st_: pf.save(b // cfg.get('stampevery', 1))
    WC = cfg.get('wcost', 0)
    def vstamp(b):
        if b % cfg.get('stampevery', 1) == 0: pf.stamp(b // cfg.get('stampevery', 1))
    for b in range(1, NU):
        if b in BAR: S.fix(qb(b), (lambda b=b: barrier(b)), cost=99)
        else: S.fix(qb(b), (lambda b=b: (p.wait_lg({('T', b - 1, 1)}), vstamp(b))), cost=WC)
        for i in range(16):
            n = 8 * b + i // 2
            if n < NF:
                assert TP[i] >= max(g for g in range(32) if SEQ[32 * (b - 1) + g][0] == i // 2)
                S.fix(32 * (b - 1) + TP[i], tread(n, i & 1), tag=('T', b, i // 8))
        S.fix(32 * b - 1, (lambda b=b: p.wait_lg({('T', b, 0)})), cost=WC)
    dq = []
    LPS = cfg.get('lps', 4); MINL = cfg.get('minlead', 3); dcost = cfg.get('dcost', 2)
    for b in range(0, NU + 1):
        for kind, idx, need in issue_at.get(b, []): dq += [(t, tag, need - (min(up(need + 1), NU) - 1 - idx if kind == 'W' else 0)) for t, tag in dma_instrs(kind, idx)]
        dq += [(t, tag, cfg.get('kv_need', 66)) for t, tag in cfg.get('extra_units', {}).get(b, [])]
        if cfg.get('nodma') or not dq: dq = []; continue
        must = max([i + 1 for i, (t, tag, need) in enumerate(dq) if need <= b + (MINL if b >= cfg.get('b0', 0) else cfg.get('minl0', 2))] + [0])
        lim_ = max([i + 1 for i, (t, tag, need) in enumerate(dq) if need <= b + MINL] + [0])
        l0_ = min(cfg.get('lps0', 6), max(LPS, sum(1 for x in dq[:lim_] if x[1])))
        nl = max(min((LPS if b >= cfg.get('b0', 0) else l0_) if b < 44 else cfg.get('lpsb', 5), sum(1 for x in dq if x[1])), sum(1 for x in dq[:must] if x[1]))
        lo, hi = (32, 46) if b == 0 else (16, 46)
        cand = [g for g in range(lo + 4 if nl <= 8 and b else lo + 1, hi) if g != 31 and (nl > 8 or (g in TP) == (dcost == 1))]
        prev = lo
        for i in range(nl):
            tg = cand[(i * len(cand)) // nl]
            k = next(j for j, x in enumerate(dq) if x[1])
            for j in range(k):
                prev = max(prev, tg - 3 - (k - 1 - j)); c_ = 1
                if dq[j][0].startswith('s_') and not WC:
                    fr_ = [g for g in range(prev, tg) if not S.fixed[32 * (b - 1) + g]]
                    if fr_: prev = fr_[0]; c_ = 0
                S.fix(32 * (b - 1) + prev, dq[j][0], cost=c_)
            prev = max(prev, tg); S.fix(32 * (b - 1) + prev, dq[k][0], tag=dq[k][1], cost=dcost)
            dq = dq[k + 1:]
    assert not dq
    def xreads(cx):
        pl = place[('X', cx)]
        return [f'ds_read_b128 {xf(2 * cx + kk, rt)}, v{XA + 2 * (pl // 4) + kk} offset:{(pl % 4) * 16384 + 2048 * rt}' for rt in range(4) for kk in range(2)]
    lc = S.chain([t for t in late if not t.startswith('s_nop')], LATE, 110 if DEF else 128) if LATE else []
    if DEF:
        wl_ = [S.add(Op(t, start=DEF + 3 * j, end=DEF + 3 * j + 8)) for j, t in enumerate(wol)]
        for o_, (t, tag) in zip(S.chain([t for t, tag in dlist], DEF + 24, max(146, DEF + 110), deps=wl_ + lc[-1:]), dlist): o_.tag = tag
    XP = cfg.get('xpos', [19, 19, 22, 22, 25, 25, 27, 27, 33, 33, 35, 35, 37, 37, 39, 39])
    for b in range(1, 5):
        xs = sum([xreads(i) for k_, i, need in items if k_ == 'X' and need == b], [])
        for n_, t in enumerate(xs): S.fix(32 * (b - 1) + XP[n_], t, tag=('T', b, n_ // 8))
    if PF:
        lead = cfg.get('pflead', 420)
        def touch(t, g, w_=30):
            def f(): p.e(t).dst = set()
            o_ = S.add(Op(f, 2, start=g, end=g + w_)); o_.call = True
        for k, g_ in WT.items():
            if g_ >= 0:
                w_ = wt_ins(k)
                if len(w_) > 1: S.add(Op(w_[0], start=g_ - 6, end=g_))
                touch(w_[-1], g_, 14)
        if PF & 4:
            nl = -(-2592 // npair); nb_ = -(-nl // DL); g0 = cfg.get('pfd0', 700); dg = cfg.get('pfdg', 100)
            for i in range(nb_):
                if i: S.add(Op(f'v_add_u32 v{vPD}, {128 * DL}, v{vPD}', start=g0 + dg * i - 9, end=g0 + dg * i))
                touch(f'buffer_load_dword v{vDum}, v{vPD}, s[{SRD_WD}:{SRD_WD+3}], 0 offen', g0 + dg * i)
    S.chain([f'v_lshl_or_b32 v{vWo+2+j}, v{vWo+2*j+3}, 16, v{vWo+2*j+2}' for j in range(4)] +
            [f'buffer_store_dwordx4 v[{vWo+2}:{vWo+5}], v{vWo+1}, {WSr}, s{sWoD} offen {stf}'], *((max(288 * kS + 150, DEF + 130), max(288 * kS + 170, DEF + 220)) if DEF else (130, 146)))[-1].tag = 'QKV'
    def gelu_h(g, u, n, s1, e1, s2, e2, wr, sw, deps=()):
        last = []
        for i in range(n):
            t = []
            d1 = e1 - (n - 1 - i) * (e1 - s1 - 24) // n
            a = S.add(Op(lambda i=i, t=t: f'v_mul_f32 v{t[0]}, v{g+i}, v{g+i}', 1, deps, s1, e1 - 12, res=t, prio=d1 - 12))
            a = S.add(Op(lambda t=t: f'v_fmaak_f32 v{t[0]}, v{t[0]}, v{vC1}, {f2u(GC0)}', 1, [a], s1, e1 - 10, prio=d1 - 12))
            a = S.add(Op(lambda i=i, t=t: f'v_mul_f32 v{t[0]}, v{t[0]}, v{g+i}', 1, [a], s1, e1 - 8, prio=d1 - 12))
            a = S.add(Op(lambda t=t: f'v_exp_f32 v{t[0]}, v{t[0]}', 2, [a], s1, e1 - 6, prio=d1 - 12))
            a = S.add(Op(lambda t=t: f'v_add_f32 v{t[0]}, 1.0, v{t[0]}', 1, [a], s1, e1 - 4, prio=d1 - 12))
            a = S.add(Op(lambda t=t: f'v_rcp_f32 v{t[0]}, v{t[0]}', 2, [a], s1, e1 - 2, prio=d1 - 12))
            a = S.add(Op(lambda i=i, t=t: f'v_mul_f32 v{g+i}, v{t[0]}, v{g+i}', 1, [a], s1, e1, rel=t, prio=d1 - 12))
            a = S.add(Op(f'v_mul_f32 v{g+i}, v{g+i}, v{u+i}', 1, [a], s2, e2 - 8, prio=d1))
            last.append(a)
        wrs = []
        for gi in range(n // 8):
            prev = []
            for c in range(4):
                o = S.add(Op(f'v_cvt_pk_bf16_f32 v{g+8*gi+c}, v{g+8*gi+2*c}, v{g+8*gi+2*c+1}', 1, last[8*gi+2*c:8*gi+2*c+2], s2, e2 - 4, same=prev, prio=0))
                prev = [o]
            wrs.append(S.add(Op(wr(gi), 2, prev, sw + 12 * gi, e2, lds=True, prio=0)))
        return wrs
    for k in rho:
        g = (G0, G1)[k % 2]; q0 = 288 * k
        e2_ = q0 + 288 + 139 if k < 4 else qb(bH) - 4
        gelu_h(g, UU, 32, q0 + 147, e2_ - 13, q0 + 291, e2_,
               lambda i, g=g, k=k: f'ds_write_b128 v{vHw}, v[{g+8*i}:{g+8*i+3}] offset:{16384 * rho[k] + 1024 * i}', qb(9 * (k + 1) + HWD) + 1)
    GS = (G0, G1)[kS % 2]; qS = 288 * kS; bS = 9 * kS
    def xch(write):
        Lb = 'F_xw' if write else 'F_xr'
        def arm(base, em):
            for q in range(4):
                r = f'v[{base+4*q}:{base+4*q+3}]'
                em(f'ds_write_b128 v{vXw}, {r} offset:{1024*q}' if write else f'ds_read_b128 {r}, v{vXr} offset:{1024*q}')
        e(f's_cmp_ge_u32 s{sW}, 2'); e(f's_cbranch_scc1 {Lb}1')
        arm(GS + 16, p.raw); e(f's_branch {Lb}2'); p.label(f'{Lb}1')
        def em(t):
            i = e(t)
            if not write: i.dst = i.dst | {('v', r[1] + 16) for r in i.dst}
        arm(GS, em); p.label(f'{Lb}2')
    S.fix(qS + 149, lambda: xch(True), cost=7)
    x1 = up(bS + 6)
    S.fix(qb(x1) + 4, lambda: xch(False), cost=7)
    gelu_h(GS, GS + 16, 16, qb(x1) + 10, qS + 288 + 120, qb(x1) + 10, qS + 288 + 139,
           lambda i: f'ds_write_b128 v{vHs}, v[{GS+8*i}:{GS+8*i+3}] offset:{1024 * i}', qb(up(x1 + 1)) + 1)
    for n_, t in enumerate((0, 1, 2, 3, 4, 5, 8)):
        for rt in range(4):
            ad = f'v{vH} offset:{8192 * t + 1024 * rt}' if t < 8 else f'v{vH2} offset:{1024 * rt}'
            S.add(Op(f'ds_read_b128 {xf(t, rt)}, {ad}', start=max(lastq(162 + t), qb(up(41)) + 1), end=min(firstq(180 + n_) - 8, qb(46) - 4), lds=True))
    for t in (6, 7):
        for rt in range(4): S.add(Op(f'ds_read_b128 {xf(t, rt)}, v{vH} offset:{8192 * t + 1024 * rt}', start=qb(bH) + 1, end=qb(bH) + 8 + 6 * (t - 6), lds=True))
    qa, qx, tq = vAd, vAd + 1, vAd + 2
    q = [f'v_and_b32 v{tq}, 31, v0', f'v_lshrrev_b32 v{tq+1}, 5, v0', f'v_lshlrev_b32 v{qa}, 4, v{tq+1}', f'v_lshl_add_u32 v{qa}, v{tq}, 5, v{qa}',
         f'v_lshlrev_b32 v{qx}, 2, v0']
    EX = vAd + 4
    for rt in range(4):
        u = UU + 8 * rt; d = UU + 16 * (rt >> 1) + 2 * (rt & 1)
        q += [f'v_mul_f32 v{u+i}, s{sQs}, v{u+i}' for i in range(4)]
        q += [f'v_mul_f32 v{tq}, s{sQs}, v{u+6}', f'v_mul_f32 v{tq+1}, s{sQs}, v{u+7}',
              f'v_cvt_pk_bf16_f32 v{d}, v{u}, v{u+1}', f'v_cvt_pk_bf16_f32 v{d+1}, v{u+2}, v{u+3}', f'v_cvt_pk_bf16_f32 v{EX+rt}, v{tq}, v{tq+1}']
    sw16 = lambda a, b: f'v_permlane16_swap_b32 v{a}, v{b}'
    sw32 = lambda a, b: f'v_permlane32_swap_b32 v{a}, v{b}'
    q += [sw16(UU, UU + 2), sw16(UU + 1, UU + 3), sw16(EX, EX + 1), sw16(UU + 16, UU + 18), sw16(UU + 17, UU + 19), sw16(EX + 2, EX + 3),
          f'buffer_store_dwordx4 v[{UU}:{UU+3}], v{qa}, {WSr}, s{sQm} offen {stf}',
          f'buffer_store_dwordx4 v[{UU+16}:{UU+19}], v{qa}, {WSr}, s{sQm} offen offset:1024 {stf}', sw32(EX + 1, EX + 3),
          f'buffer_store_dword v{EX+1}, v{qx}, {WSr}, s{sQx} offen {stf}']
    qc = S.chain(q, qS + 292, qS + 288 + cfg.get('qkv_end', 100))
    def kv_block():
        L = 'F_kv'; o = lambda t: p.e(t, optional=True, tag='QKV')
        a, b2, c = tq, tq + 1, EX
        A_, W = UU + 4, UU + 20
        e(f's_cmp_ge_u32 s{sHd}, 7'); e(f's_cbranch_scc1 {L}_end')
        e(f's_cmp_lg_u32 s{sHd}, 6'); e(f's_cbranch_scc1 {L}_kv')
        e(sw16(UU + 12, UU + 4)); e(sw16(UU + 28, UU + 20)); e(f'v_xor_b32 v{a}, 64, v{qx}')
        e(f's_add_u32 s{sT0}, s{sQx}, {WS_G - WS_QX - 6 * 8192}'); e(sw32(UU + 12, UU + 28))
        o(f'buffer_store_dword v{UU+28}, v{a}, {WSr}, s{sT0} offen {stf}')
        e(f's_branch {L}_end')
        p.label(f'{L}_kv')
        for rt in range(4):
            u = UU + 8 * rt; d = UU + 4 + 16 * (rt >> 1) + 2 * (rt & 1)
            e(f'v_cvt_pk_bf16_f32 v{d}, v{u+4}, v{u+5}'); e(f'v_cvt_pk_bf16_f32 v{d+1}, v{u+6}, v{u+7}')
        e(f'v_lshrrev_b32 v{b2}, 5, v0')
        for x in (A_, W): e(sw16(x, x + 2)); e(sw16(x + 1, x + 3))
        e(f'v_and_b32 v{a}, 0x1f0, v{vL16}')
        for i in range(4): e(sw32(A_ + i, W + i))
        e(f's_cmp_ge_u32 s{sHd}, 3'); e(f's_cbranch_scc1 {L}_v')
        e(f's_cmp_eq_u32 s{sHd}, 2'); e(f's_cbranch_scc1 {L}_kx')
        e(f'v_mul_u32_u24 v{b2}, {KVB}, v{b2}'); e(f'v_add_u32 v{a}, v{a}, v{b2}')
        e(f's_lshl_b32 s{sT0}, s{sHd}, 9'); e(f's_add_u32 s{sT0}, s{sT0}, s{sKV}')
        o(f'buffer_store_dwordx4 v[{W}:{W+3}], v{a}, {WSr}, s{sT0} offen {stf}')
        e(f's_branch {L}_end')
        p.label(f'{L}_kx')
        e(f'v_lshl_add_u32 v{a}, v{b2}, 2, v{a}')
        o(f'buffer_store_dword v{W+3}, v{a}, {WSr}, s{sKX} offen {stf}')
        e(f's_branch {L}_end')
        p.label(f'{L}_v')
        e(f's_lshr_b32 s{sT0}, s{sMb}, 2'); e(f's_add_u32 s{sT0}, s{sT0}, 73728')
        e(f'v_add_u32 v{a}, s{sT0}, v{vL16}')
        p.raw(f'ds_write_b128 v{a}, v[{W}:{W+3}]')
        e(f'v_and_b32 v{a}, 48, v0'); e(f'v_lshlrev_b32 v{a}, 4, v{a}'); e(f'v_add_u32 v{a}, s{sT0}, v{a}')
        e(f'v_and_b32 v{c}, 12, v0'); e(f'v_lshl_add_u32 v{a}, v{c}, 2, v{a}')
        e(f'v_and_b32 v{c}, 2, v0'); e(f'v_lshl_add_u32 v{a}, v{c}, 5, v{a}')
        e(f'v_and_b32 v{c}, 1, v0'); e(f'v_lshl_add_u32 v{a}, v{c}, 3, v{a}')
        p.raw('s_waitcnt lgkmcnt(0)')
        p.raw(f'ds_read_b64_tr_b16 v[{A_}:{A_+1}], v{a}'); p.raw(f'ds_read_b64_tr_b16 v[{A_+2}:{A_+3}], v{a} offset:128')
        e(f'v_mul_u32_u24 v{b2}, {KVB}, v{b2}'); e(f'v_bfe_u32 v{c}, v0, 3, 2'); e(f'v_mul_u32_u24 v{c}, 304, v{c}')
        e(f'v_and_b32 v{a}, 0x70, v{vL16}'); e(f'v_add3_u32 v{b2}, v{b2}, v{c}, v{a}')
        e(f's_sub_u32 s{sT0}, s{sHd}, 3'); e(f's_lshl_b32 s{sT0}, s{sT0}, 7'); e(f's_min_u32 s{sT0}, s{sT0}, 160'); e(f's_add_u32 s{sT0}, s{sT0}, s{sKV}')
        p.raw('s_waitcnt lgkmcnt(0)')
        e(f's_cmp_lg_u32 s{sHd}, 5'); e(f's_cbranch_scc1 {L}_vs')
        e(f'v_cmp_eq_u32 vcc, 0x50, v{a}'); e(f'v_mov_b32 v{c}, 0x3f803f80'); e(f'v_add_u32 v{c+2}, 48, v{b2}')
        for i in range(4): e(f'v_cndmask_b32 v{A_+i}, v{A_+i}, v{c}, vcc')
        e(f'v_cndmask_b32 v{b2}, v{b2}, v{c+2}, vcc')
        e(f'v_cmp_gt_u32 vcc, 0x50, v{a}'); e(f'v_mov_b32 v{c}, {OOB}'); e('s_nop 0'); e(f'v_cndmask_b32 v{b2}, v{b2}, v{c}, vcc')
        p.label(f'{L}_vs')
        o(f'buffer_store_dwordx4 v[{A_}:{A_+3}], v{b2}, {WSr}, s{sT0} offen offset:1024 {stf}')
        p.label(f'{L}_end')
    for o_ in qc:
        if 'store' in o_.text: o_.tag = 'QKV'
    kvop = S.add(Op(kv_block, 2, [qc[-1]], qS + 292, qS + 288 + cfg.get('qkv_end', 100) + 10)); kvop.call = True
    lastst = []; qs_ = 0; NST = cfg.get('nst', 5); deferred = []
    hold = [G1, XV, X3, XV + 16, X3 + 16, XV, X3, XV + 16, X3 + 16]; freed = {}
    for j in range(9):
        acc = accB[j]; q1 = 1 + max(lastq(180 + i) for i, (jj, c) in enumerate(seqB) if jj == j)
        nxt_ = sorted(firstq(180 + i) for i, (jj, c) in enumerate(seqB) if jj > j and accB[jj] == acc)
        dl = min(nxt_[0] - 2 if nxt_ else 10 ** 6, NQ - 4 if j < 8 else 10 ** 6); h = hold[j]
        cv = S.chain([f'v_cvt_pk_bf16_f32 v{h+i}, v{acc+2*i}, v{acc+2*i+1}' for i in range(16)], min(q1 + 3, NQ), min(dl, q1 + 60), deps=freed.get(h, []))
        sot = f's_add_u32 s{sPo}, s{sP}, {16384 * j}'
        sts = [f'buffer_store_dwordx4 v[{h+4*rt}:{h+4*rt+3}], v{vL16}, {WSr}, s{sPo} offen offset:{1024 * rt} {stf}' for rt in range(4)]
        if j >= NST:
            deferred.append([sot] + sts); continue
        so = S.add(Op(sot, start=q1, end=NQ, same=lastst, prio=0))
        for rt in range(4):
            qs_ = max(qs_ + cfg.get('stspace', 22), q1 + 8)
            for o_ in cv[4 * rt:4 * rt + 4]: o_.prio = min(o_.prio, qs_ - 2); o_.end = min(o_.end, qs_ + 8)
            lastst = [S.add(Op(sts[rt], 2, [cv[4 * rt + 3], so], qs_, min(qs_ + 12, dl if h == acc else NQ), tag='PART', same=lastst))]
        freed[h] = lastst
    cfg['deferred'] = deferred
    if cfg.get('sched_extra'): cfg['sched_extra'](S, p)
    if cfg.get('nofill'): S.ops = [o for o in S.ops if isinstance(o.text, str) and ('lds' in o.text or 'm0' in o.text or f's{sso},' in o.text)]
    placed = S.run()
    print('ffn schedule: overflow slots', S.over)

    def emit(item, tag):
        if callable(item): item()
        else: e(item, tag=tag)
    barrier(0)
    if cfg.get('pstamp'): pf.stamp(89)
    x0, x1_ = xreads(0), xreads(1)
    for i in (0, 1, 4, 5): e(tread(i // 2, i & 1))
    for t in x0: e(t)
    for i in (2, 3, 6, 7): e(tread(i // 2, i & 1))
    rest = [tread(i // 2, i & 1) for i in range(8, 16)] + x1_
    for n_, t in enumerate(rest): S.fixed[(n_ * 10) // 16].insert(0, (1, t, None))
    snake = cfg.get('snake', 1)
    for q in range(NQ + 1):
        if q < NQ:
            bi, K, ft, rt = SEQ[q]; D, kk, _ = kinfo(K)
            d = D + (rt * 2 + ft) * 4; a = AB + 4 * bi
            C = '0' if kk == 0 else f'v[{d}:{d+3}]'
            e(f'v_mfma_f32_16x16x32_bf16 v[{d}:{d+3}], v[{a}:{a+3}], {xf(kk, rt)}, {C}')
        if q == NQ and cfg.get('pre_tail'): cfg['pre_tail'](p)
        fx = S.fixed[q]
        lastw = [f for f in fx if callable(f[1]) and q % 16 == 15 and WC]
        for c, item, tag in fx:
            if (c, item, tag) not in lastw: emit(item, tag)
        mid = cfg.get('mid_tail') if q == NQ else None
        for n_, o in enumerate(placed[q]):
            if mid and n_ == 5: mid(p)
            if getattr(o, 'call', False): o.text()
            else: e(o.text() if callable(o.text) else o.text, tag=o.tag)
        for c, item, tag in lastw: emit(item, tag)
```

```python
import sys
from common import *
import ffn, att, k23
from ffn import sW, sT0, sT1, sT2, SRD_WS, SRD_X, vL16, KVG, KVB, sMb, sso, NQ

att.sRG, att.sHH = 6, 7
att.PP, att.KM, att.VV, att.KX = 24, 32, 40, 56
att.SA, att.SB, att.OA, att.OB = 64, 80, 96, 112
att.QM, att.QX = 128, 136
SEL, SELX = 152, 160
att.vAK, att.vAV = 164, 165
vG, vPoll, vTch = 166, 252, 240
att.vT = 236
BACC = 172
PBUF, NPB = 192, 11
vFP, vFO = 244, 245
vL2, vLX, vLO, vPa = 246, 247, 248, 249
vR0, vR1, vR2, vGt = 245, 250, 167, 251
sH0, sH1 = 8, 15
sRG, sHH = att.sRG, att.sHH
SRD_OUT, SRD_DBG = 52, 68
vAt = 238
sPb, sWo, sWx, sOo, sOp, sSpin = 74, 75, 76, 77, 78, 79
sPb = 80; sWo = 81; sWx = 82; sOo = 83; sOp = 84; sSpin = 85; sKVs = 86; sLd = 87
LDS_O, LDS_G = 154560, 163776
FLO = 4096
WSr = f's[{SRD_WS}:{SRD_WS+3}]'
mf16 = att.mf16

class Rec:
    def __init__(self): self.l = []
    def e(self, t, **kw): self.l.append(t)

def poll(p, L, srdr, want, mask, first_issued):
    e = p.e
    cmpop = 'le' if want == 64 else 'eq'
    ld = f'buffer_load_dword v{vPoll}, v{vPa}, {srdr}, 0 offen sc1'
    if not first_issued: e(ld)
    e(f'v_cmp_{cmpop}_u32 vcc, {want}, v{vPoll}')
    e(f's_cmp_eq_u32 vcc_lo, {mask}')
    e(f's_cbranch_scc0 {L}_spin')
    p.label(f'{L}_go')
    def out(q):
        r = q.raw
        q.label(f'{L}_spin'); r(f's_mov_b32 s{sSpin}, 0')
        q.label(f'{L}_sp2'); r('s_sleep 8'); r(ld); r(f's_add_u32 s{sSpin}, s{sSpin}, 1'); r('s_waitcnt vmcnt(0)')
        r(f'v_cmp_{cmpop}_u32 vcc, {want}, v{vPoll}')
        r(f's_cmp_gt_u32 s{sSpin}, 0x80000'); r(f's_cbranch_scc1 {L}_go')
        r(f's_cmp_eq_u32 vcc_lo, {mask}'); r(f's_cbranch_scc0 {L}_sp2'); r(f's_branch {L}_go')
    return out

def gen(p, cfg, pf):
    cfg = dict(cfg); cfg.setdefault('stflags', 'sc1'); cfg.setdefault('perm', 1); cfg.setdefault('bars', [(6, 1), (66, 2)]); cfg.setdefault('pfd0', 1000); cfg.setdefault('pfdg', 60); cfg.setdefault('pfm', 16); cfg.setdefault('xcd_m', 4); cfg.setdefault('pfdl', 11); cfg.setdefault('rot', 8); cfg.setdefault('dcost', 1); cfg.setdefault('defer', 728); cfg.setdefault('b0', 10); cfg.setdefault('lps0', 8)
    cfg.setdefault('apat', 'E0 E1 PB rK x0 E2 E3 C0 C1 E4 QX w x1 E5 E6 E7 y0 C2 C3 E8 QM rA x2 E9 E10 E11 y1 C4 C5 E12 PA rB x3 E13 E14 E15 C6 C7')
    BS, BP, BQ = cfg.get('bsig', 36), cfg.get('bpoll', 48), cfg.get('bq', 54)
    assert BP <= 49
    cfg['kvb0'] = BQ; cfg['bar_tags'] = {BS: ['QKV']}
    e = p.e; ool = []; O2 = cfg.get('o2', 1); sOo2, sOp2 = 42, 43; poison = []; sPz, sFn, vPz = 96, 97, 243
    qb = lambda b: 32 * (b - 1) + 15
    vT = att.vT

    def setup_extra(p):
        e = p.e
        e(f'v_cmp_eq_u32 vcc, 0, v0'); e(f'v_mov_b32 v{vFO}, {OOB}'); e(f'v_mov_b32 v{vTch+1}, 0')
        e(f'v_cndmask_b32_e64 v{vFO}, v{vFO}, 0, vcc')
        e(f's_lshl_b32 s{sT0}, s{ffn.sM_}, 6'); e(f's_lshl_b32 s{sT1}, s{ffn.sS}, 2'); e(f's_add_u32 s{sT0}, s{sT0}, s{sT1}')
        e(f's_add_u32 s{sT0}, s{sT0}, {WS_FL}'); e(f's_lshl_b32 s{sT1}, s{sW}, 28'); e(f's_add_u32 s{sT0}, s{sT0}, s{sT1}')
        e(f'v_add_u32 v{vFP}, s{sT0}, v{vFO}')
        e(f's_and_b32 s{sT0}, s2, 3'); e(f's_lshl_b32 s{sT0}, s{sT0}, 6'); e(f's_lshl_b32 s{sT1}, s{sW}, 12'); e(f's_add_u32 s{sT0}, s{sT0}, s{sT1}')
        e(f'v_lshlrev_b32 v{vPa}, 6, v0'); e(f'v_lshlrev_b32 v{vAt}, 8, v0'); e(f'v_add_u32 v{vAt}, s{sT0}, v{vAt}'); e(f'v_mov_b32 v{vAt+1}, 1')
        e(f'buffer_store_dword v{vTch+1}, v{vFP}, {WSr}, 0 offen sc1', tag='QKV')
        r0 = Rec(); att.att_ids(r0); PZ = 168
        r0.e(f's_lshl_b32 s{sOp}, s{sRG}, 1'); r0.e(f's_add_u32 s{sOp}, s{sOp}, s{sHH}'); r0.e(f's_mul_i32 s{sOo}, s{sOp}, 9216'); r0.e(f's_add_u32 s{sOo}, s{sOo}, {WS_O}')
        r0.e(f's_xor_b32 s{sOp}, s{sOp}, 1'); r0.e(f's_mul_i32 s{sOp}, s{sOp}, 9216'); r0.e(f's_add_u32 s{sOp}, s{sOp}, {WS_O}')
        r0.e(f's_mul_i32 s{sSpin}, s{sW}, 2304'); r0.e(f's_add_u32 s{sSpin}, s{sSpin}, s{sOo}')
        for i in range(4): r0.e(f'v_mov_b32 v{PZ+i}, -1')
        r0.e(f'v_lshlrev_b32 v{PZ+4}, 2, v0')
        for cp in range(2 if O2 else 1):
            if cp: r0.e(f's_add_u32 s{sSpin}, s{sSpin}, {OD}')
            r0.e(f'buffer_store_dwordx4 v[{PZ}:{PZ+3}], v{vL16}, {WSr}, s{sSpin} offen sc1')
            r0.e(f'buffer_store_dwordx4 v[{PZ}:{PZ+3}], v{vL16}, {WSr}, s{sSpin} offen offset:1024 sc1')
            r0.e(f'buffer_store_dword v{PZ}, v{PZ+4}, {WSr}, s{sSpin} offen offset:2048 sc1')
        if O2: r0.e(f's_add_u32 s{sOo2}, s{sOo}, {OD}'); r0.e(f's_mov_b32 s{sOp2}, s{sOp}'); r0.e(f's_add_u32 s{sOp}, s{sOp}, {OD}')
        i0 = next(i for i, t in enumerate(r0.l) if t.startswith('v_mov')); i1 = 1 + max(i for i, t in enumerate(r0.l) if 'store' in t)
        for t in r0.l[:i0] + r0.l[i1:]: e(t.replace(f's{sSpin}', f's{sPz}'))
        poison.extend(t.replace(f's{sSpin}', f's{sPz}').replace(f'v{PZ+4}', f'v{vPz}') for t in r0.l[i0:i1])
        e(f'v_readfirstlane_b32 s{sFn}, v{vFP}')
    cfg['setup_extra'] = setup_extra

    def kv_unit(i, n=4):
        if n == 4:
            return [(f's_add_u32 m0, s{sMb}, {16384 * i}', None), (f's_add_u32 s{sso}, s{sKVs}, {16384 * i}', None)] + \
               [(f'buffer_load_dwordx4 v{vL16}, {WSr}, s{sso} offen' + (f' offset:{1024 * q}' if q else '') + ' lds', 'KV') for q in range(4)]
        return [(f's_lshr_b32 s{sso}, s{sMb}, 2', None), (f's_add_u32 m0, s{sso}, {16384 * i}', None), (f's_add_u32 s{sso}, s{sso}, {WS_KV + 16384 * i}', None),
                (f'buffer_load_dwordx4 v{vL16}, {WSr}, s{sso} offen lds', 'KV')]

    cfg.setdefault('kv_at', [4, 5, 6, 7, 8])
    cfg['extra_units'] = {}
    for i in range(5): cfg['extra_units'].setdefault(BQ + cfg['kv_at'][i], []).extend(kv_unit(i))
    quads = [f'a[{4*i}:{4*i+3}]' for i in list(range(36, 64)) + list(range(36))] + [f'v[{r}:{r+3}]' for r in (4, 8, 12, 16, 168)]
    nearly = len(quads)
    quads += [f'v[{PBUF+4*i}:{PBUF+4*i+3}]' for i in range(NPB)] + [f'v[{r}:{r+3}]' for r in (SEL, SEL + 4, SELX)]
    nmid = len(quads)
    quads += [f'v[{r}:{r+3}]' for r in (76, 80, 84, 88, 92, 104, 108, 120, 124)]
    NWO = 82; vR = (vR0, vR1, vR2)
    def wo_load(f):
        half, r = divmod(f, 41); g, i = divmod(r, 9); out = []
        hreg = (sH0, sH1)[half]
        if i == 0:
            if g == 0: out.append(f's_add_u32 s{sLd}, s{sWo}, s{hreg}')
            elif g < 4: out.append(f's_add_u32 s{sLd}, s{sLd}, 18432')
            else: out.append(f's_add_u32 s{sLd}, s{sWx}, s{hreg}')
        vo = vLO if (g == 4 and i == 4) else vR[i // 4]
        out.append(f'buffer_load_dwordx4 {quads[f]}, v{vo}, {WSr}, s{sLd} offen' + (f' offset:{1024 * (i % 4)}' if i % 4 else ''))
        return out
    NWB = cfg.get('nwb', 0)
    def sched_extra(S, p):
        r = Rec(); e = r.e
        r0 = Rec(); srd(r0, SRD_DBG, P_DBG, 256)
        q0_ = max(288 * cfg.get('kS', 2) + 146, cfg.get('defer', 0) + 40)
        for o in S.chain(r0.l, q0_, q0_ + 70, tight=False):
            if 'store' in o.text: o.tag = 'QKV'; o.cost = 2
        srd(r, SRD_OUT, P_OUT, 2048 * 1152)
        nB = len(r.l)
        k23.sel_frags(r, SEL, vT, True)
        e(f's_bitcmp1_b32 s{sW}, 0 | s_cselect_b64 vcc, -1, 0')
        for i in range(4): e(f'v_cndmask_b32 v{SELX+i}, v{SEL+i}, v{SEL+4+i}, vcc')
        e(f's_add_u32 s{sKVs}, s{sMb}, {WS_KV}')
        e(f's_mul_i32 s{sT0}, s{sHH}, 9'); e(f's_lshl_b32 s{sT1}, s{sW}, 1'); e(f's_add_u32 s{sT1}, s{sT1}, s{sT0}')
        e(f's_lshr_b32 s{sPb}, s{sRG}, 3'); e(f's_mul_i32 s{sPb}, s{sPb}, {16 * 147456}')
        e(f's_lshl_b32 s{sT2}, s{sT1}, 13'); e(f's_add_u32 s{sPb}, s{sPb}, s{sT2}')
        e(f's_and_b32 s{sT2}, s{sRG}, 7'); e(f's_lshl_b32 s{sT2}, s{sT2}, 10'); e(f's_add_u32 s{sPb}, s{sPb}, s{sT2}')
        e(f's_mul_i32 s{sWo}, s{sT1}, 36864'); e(f's_add_u32 s{sWo}, s{sWo}, {WS_WO}')
        e(f's_add_u32 s{sT0}, s{sT0}, 8'); e(f's_mul_i32 s{sWx}, s{sT0}, 36864'); e(f's_and_b32 s{sT2}, s{sW}, 1'); e(f's_mul_i32 s{sT2}, s{sT2}, 18432')
        e(f's_add_u32 s{sWx}, s{sWx}, s{sT2}'); e(f's_add_u32 s{sWx}, s{sWx}, {WS_WO}')
        e(f's_sub_u32 s{sT0}, s{sT0}, s{sT1}'); e(f's_lshl_b32 s{sT0}, s{sT0}, 13'); e(f's_and_b32 s{sT2}, s{ffn.sHF}, 147456'); e(f's_add_u32 s{sT0}, s{sT0}, s{sT2}')
        e(f'v_add_u32 v{vLX}, s{sT0}, v{vL16}'); e(f'v_add_u32 v{vL2}, 8192, v{vL16}')
        e(f's_and_b32 s{sT2}, s{ffn.sHF}, 5120'); e(f'v_add_u32 v{vR0}, s{sT2}, v{vL16}')
        e(f's_andn2_b32 s{sT2}, 4096, s{ffn.sHF}'); e(f'v_add_u32 v{vR1}, s{sT2}, v{vL16}'); e(f'v_add_u32 v{vR2}, 4096, v{vR1}')
        e(f's_and_b32 s{sT2}, s{ffn.sHF}, {OOB}'); e(f'v_add_u32 v{vLO}, s{sT2}, v{vR1}')
        nC = len(r.l)
        e(f'v_mov_b32 v{vG}, 1'); e(f's_mov_b32 s{att.sPerm}, 0x07060302'); e(f's_mul_i32 s{sH0}, s{sHH}, 9216'); e(f's_sub_u32 s{sH1}, 9216, s{sH0}')
        nD = len(r.l)
        def mk(t):
            if ' | ' not in t: return t
            def f():
                for x in t.split(' | '): p.e(x)
            return f
        ch = S.chain([mk(t) for t in r.l], 1586, qb(BQ) - 8, tight=False)
        for o in ch:
            if callable(o.text): o.call = True; o.cost = 2
        S.fix(qb(cfg['up'](BS)) + 4, f'buffer_atomic_add v{vAt+1}, v{vAt}, s[{SRD_DBG}:{SRD_DBG+3}], 0 offen sc1')
        DB = f's[{SRD_DBG}:{SRD_DBG+3}]'
        S.fix(qb(BP) - cfg.get('poll_lead', 110), f'buffer_load_dword v{vPoll}, v{vPa}, {DB}, 0 offen sc1')
        S.fix(qb(BP) - 2, lambda: ool.append(poll(p, 'PK', DB, 64, 15, True)), cost=4)
        r2 = Rec(); att.q_loads(r2, 'sc1')
        r2.e(f'v_and_b32 v{vGt}, 15, v0'); r2.e(f'v_lshlrev_b32 v{vGt}, 2, v{vGt}'); r2.e(f's_lshl_b32 s{sT0}, s{sRG}, 6'); r2.e(f's_add_u32 s{sT0}, s{sT0}, {WS_G}')
        r2.e(f'buffer_load_dword v{vGt}, v{vGt}, {WSr}, s{sT0} offen sc1')
        att.att_addrs(r2, cfg)
        r2.e(f's_lshr_b32 s{sT0}, s{sRG}, 3'); r2.e(f's_lshl_b32 s{sT0}, s{sT0}, 6'); r2.e(f's_add_u32 s{sT0}, s{sT0}, {WS_FL}')
        r2.e(f'v_and_b32 v{vPa}, 48, v0'); r2.e(f'v_lshlrev_b32 v{vPa}, 22, v{vPa}'); r2.e(f'v_lshl_add_u32 v{vPa}, v0, 2, v{vPa}'); r2.e(f'v_add_u32 v{vPa}, s{sT0}, v{vPa}')
        r2.e(f's_and_b32 s{sFn}, s{sFn}, 0xfffffff'); r2.e(f's_xor_b32 s{sFn}, s{sFn}, 64'); r2.e(f'v_writelane_b32 v{vPa}, s{sFn}, 16')
        S.chain(r2.l, qb(BQ) + 1, min(qb(BQ) + 80, NQ - 32), tight=False)
        def tch(): p.e(f'buffer_load_dword v{ffn.vDum}, v{vTch}, {WSr}, 0 offen').dst = set()
        prev = []; g0 = qb(BQ) + 4; dg = (NQ - 12 - g0) // max(NWB, 1)
        for f in range(NWB):
            for t in wo_load(f):
                ld_ = 'load' in t
                prev = [S.add(Op(t, 2 if ld_ else 1, prev, g0 + dg * f - (0 if ld_ else 3), g0 + dg * f + dg))]
        r3 = Rec(); att.q_variants(r3)
        r3.e(f'v_mul_f32 v{vGt}, {f2u(-math.log2(math.e))}, v{vGt}'); r3.e(f'v_exp_f32 v{vGt}, v{vGt}'); r3.e(f'v_add_f32 v{vGt}, 1.0, v{vGt}'); r3.e(f'v_rcp_f32 v{vGt}, v{vGt}')
        r3.l += [t for t in poison if t.startswith('v_')]
        S.chain(r3.l, NQ - 36, NQ - 2, tight=False)
    cfg['sched_extra'] = sched_extra

    def pre_tail(p):
        pf.start()
        p.wait(vmtags=['KV'], lg0=True); p.e('s_barrier')
        pf.save(70)
        p.e(att.rdKX(0)); p.e(att.rdKM(0)); p.e(att.rdV(0, 0)); p.e(att.rdV(0, 1))
    cfg['pre_tail'] = pre_tail
    SA, SB, OA, OB = att.SA, att.SB, att.OA, att.OB
    def mid_tail(p):
        p.c('ATT'); e(att.qkx(0, 0, SA)); e(att.mf32(SA, att.KM, att.QM, att.vr(SA)))
    cfg['mid_tail'] = mid_tail
    ffn.gen_ffn(p, cfg, pf)

    X = {}
    def at(hs, tk, item, tag=None): X.setdefault((hs, tk), []).append((item, tag))
    SL = [(2 * (i // 4) + (1 if i % 4 else 0), ('x1', 'x0', 'x2', 'x3')[i % 4]) for i in range(256)]
    used = [0] * 256
    def put(item, lo, vm, tag=None, hi=None):
        i = lo
        while i < 256 and (used[i] or (vm and i % 4 == 0)):
            if hi is not None and i >= hi: break
            i += 1
        if i >= 256: return None
        used[i] += 1; at(*SL[i], item, tag); return i
    def stream(groups, lo, pace, tagf=None, gate=None):
        pos = []; prev = lo - 1
        for n, grp in enumerate(groups):
            s0 = max(prev + 1, lo + int(n * pace), gate(n) if gate else 0)
            i = s0
            while i < 256 and (used[i] or i % 4 == 0): i += 1
            if i >= 256: break
            for t in grp[:-1]:
                c = [k for k in range(max(prev + 1, 0), i) if not used[k] and k % 4 == 0]
                k = c[-1] if c else (prev if prev >= 0 and n else i)
                used[k] += 1; at(*SL[k], t); prev = k
            used[i] += 1; at(*SL[i], grp[-1], tagf(n) if tagf else None); prev = i; pos.append(i)
        return pos
    def groups_of(lst):
        out = []; cur = []
        for t in lst:
            cur.append(t)
            if t.startswith('buffer_'): out.append(cur); cur = []
        return out
    BBA, BPL, BPC, LAG = cfg.get('bba', 17), cfg.get('bpl', 27), cfg.get('bpc', 30), cfg.get('lag', 4)
    def skew(L):
        if cfg.get('skew'):
            for w_ in range(3):
                e(f's_cmp_le_u32 s{sW}, {w_}'); e(f's_cbranch_scc1 {L}'); e(f's_nop {cfg["skew"]}')
            p.label(L)
    skew('SK0')
    def bar_a():
        p.wait(vmtags=['KV', 'PART']); e('s_barrier'); skew('SK1')
        e(f'buffer_store_dword v{vG}, v{vFP}, {WSr}, 0 offen sc1')
    put(bar_a, 4 * BBA + 1, True)
    put(f'buffer_load_dword v{vPoll}, v{vPa}, {WSr}, 0 offen sc1', 4 * BPL + 1, True)
    put(lambda: ool.append(poll(p, 'PP', WSr, 1, 0x1ffff, True)), 4 * BPC + 3, True)
    if cfg.get('otouch', 1) and O2:
        def otouch():
            e(f'v_min_u32 v{vPz}, 17, v0'); e(f'v_lshlrev_b32 v{vPz}, 7, v{vPz}')
            e(f'buffer_load_dword v{ffn.vDum}, v{vPz}, {WSr}, s{sPz} offen sc1').dst = set()
        put(otouch, 4 * cfg.get('bot', 56) + 1, True)
    ps = stream(groups_of(sum(cfg['deferred'], [])), 0, cfg.get('dpace', 3), lambda n: 'PART')
    pk = stream(groups_of([t for i in range(5, 10) for t, tag in kv_unit(i, 4 if i < 9 else 1)]), 0, 1, lambda n: 'KV')
    pz = stream(groups_of([t for t in poison if not t.startswith('v_')]), 0, 1, lambda n: 'PART')
    assert max(ps + pk + pz) < 4 * BBA
    PL = [(sl, j) for sl in range(16) for j in range(3) if j < 2 or sl % 2 == 0]; NP_ = len(PL)
    pg = []
    for i, (sl, j) in enumerate(PL):
        buf = PBUF + 4 * (i % NPB)
        pg.append(([f's_add_u32 s{sPb}, s{sPb}, 147456'] if j == 0 and sl else []) +
                  [f'buffer_load_dwordx4 v[{buf}:{buf+3}], v{(vL16, vL2, vLX)[j]}, {WSr}, s{sPb} offen sc1'])
    pp_ = stream(pg, 4 * BPC + 4, cfg.get('ppace', 2.4), lambda n: ('PL', n))
    cons = [0] * NP_; yq = {}
    for i, (sl, j) in enumerate(PL):
        buf = PBUF + 4 * (i % NPB); b_ = pp_[i] // 4 + LAG; cons[i] = b_
        for ti in range(2 if j < 2 else 1):
            d = BACC + 8 * j + 4 * ti; A = SELX if j == 2 else SEL + 4 * ti
            yq.setdefault(b_, []).append(mf16(d, f'v[{A}:{A+3}]', f'v[{buf}:{buf+3}]', '0' if sl == 0 else f'v[{d}:{d+3}]'))
    for b_, lst in yq.items():
        assert len(lst) <= 4 and b_ < 63
        tags = [('PL', i) for i in range(NP_) if cons[i] == b_]
        used[4 * b_] += 1; at(*SL[4 * b_], lambda tags=tags: p.wait(vmtags=tags))
        for n, t in enumerate(lst): at(2 * b_ + n // 2, f'y{n & 1}', t)
    for i in range(NPB, NP_): assert pp_[i] >= 4 * cons[i - NPB] + 3, (i, pp_[i], cons[i - NPB])
    lastuse = [max(cons[i] for i in range(NP_) if i % NPB == k) for k in range(NPB)] + [max(cons)] * 3
    order = sorted(range(NPB + 3), key=lambda k: lastuse[k])
    quads[nearly:nmid] = [quads[nearly + k] for k in order]
    pw = stream([wo_load(f) for f in range(NWB, min(nmid, NWO))], 0, cfg.get('wpace', 1), None,
                gate=lambda n: 0 if NWB + n < nearly else 4 * lastuse[order[NWB + n - nearly]] + 3)
    f = NWB + len(pw)
    print('wo loads in loop', f, 'slots used', sum(1 for u in used if u), 'shared', sum(1 for u in used if u > 1))
    def extra(hs, tk):
        for item, tag in X.pop((hs, tk), []):
            if callable(item): item()
            else: e(item, tag=tag)
    base = 0
    for b in range(64):
        if b and b % 16 == 0:
            for a in (att.vAK, att.vAV): e(f'v_add_u32 v{a}, {2 * KVG}, v{a}')
            base += 2 * KVG
        for t in range(2): att.half_step(p, b, t, base, cfg, extra, line=True)
        if b % 16 == 15: pf.stamp(71 + b // 16)
    assert not X, X.keys()
    e(att.mf32(OB, att.VV + 12, att.PP + 4, att.vr(OB)))
    vO1, vO2, vO3, vOut = 1, 2, 3, 20
    e(f's_lshl_b32 s{sT0}, s{sW}, 11'); e(f'v_add_u32 v{vO1}, s{sT0}, v{vL16}')
    e(f'v_and_b32 v{vO2}, 15, v0'); e(f'v_lshlrev_b32 v{vO2}, 4, v{vO2}'); e(f'v_bfe_u32 v{vO3}, v0, 4, 1'); e(f'v_lshl_add_u32 v{vO2}, v{vO3}, 2, v{vO2}')
    e(f's_lshl_b32 s{sT0}, s{sW}, 8'); e(f's_add_u32 s{sT0}, s{sT0}, 8192'); e(f'v_add_u32 v{vO2}, s{sT0}, v{vO2}')
    e(f'v_lshrrev_b32 v{vO3}, 5, v0'); e(f'v_lshl_add_u32 v{vOut}, v{vO3}, 20, v{vO2}'); e(f'v_lshl_add_u32 v{vO2}, v{vO3}, 29, v{vO2}'); e(f'v_add_u32 v{vOut}, {LDS_O}, v{vOut}')
    att.att_check(p, 'A', cfg, 'test')
    quads[f:NWO] = quads[nmid:nmid + NWO - f]
    OUTr = f's[{SRD_OUT}:{SRD_OUT+3}]'; of_ = cfg.get('outf', '')
    e(f'v_rcp_f32 v{vT}, v{vT}'); e(f'v_rcp_f32 v{vT+2}, v{vT+2}')
    e(f'v_add_u32 v{vO3}, {LDS_O}, v{vO1}')
    e(f'v_mul_f32 v{vT}, v{vT}, v{vGt}'); e(f'v_mul_f32 v{vT+2}, v{vT+2}, v{vGt}')
    for t, O in ((0, OA), (1, OB)):
        for i in range(10): e(f'v_mul_f32 v{O+i}, v{O+i}, v{vT+2*t}')
        for i in range(5): e(f'v_cvt_pk_bf16_f32 v{O+i}, v{O+2*i}, v{O+2*i+1}')
        so_, fl_ = (sOo2, '') if O2 else (sOo, 'sc1')
        e(f'buffer_store_dwordx4 v[{O}:{O+3}], v{vO1}, {WSr}, s{so_} offen offset:{1024 * t} {fl_}')
        e(f'buffer_store_dword v{O+4}, v{vO2}, {WSr}, s{so_} offen offset:{8 * t} {fl_}')
        e(f'ds_write_b128 v{vO3}, v[{O}:{O+3}] offset:{1024 * t}'); e(f'ds_write_b32 v{vOut}, v{O+4} offset:{8 * t}')
    e(f'v_sub_f32 v{vGt}, 1.0, v{vGt}')
    for i in range(3): e(f'v_add_u32 v{vT+4+i}, {LDS_O}, v{vR[i]}')
    e('s_waitcnt lgkmcnt(0)'); e('s_barrier')
    pf.stamp(75)
    OF, XR_ = 24, 60; OGq = [128, 132, 136, 140, 144, 148, 64, 68, 72]; OFq = [OF + 4 * i for i in range(9)]
    for i in range(9): e(f'ds_read_b128 v[{OF+4*i}:{OF+4*i+3}], v{vT+4+i//4} offset:{1024 * (i % 4)}')
    for i in range(20): e(f'v_mul_f32 v{BACC+i}, v{BACC+i}, v{vGt}')
    def og_load(i): return f'buffer_load_dwordx4 v[{OGq[i]}:{OGq[i]+3}], v{vR[i // 4]}, {WSr}, s{sOp} offen' + (f' offset:{1024 * (i % 4)}' if i % 4 else '') + ' sc1'
    g_st = [x for t, O in ((0, OA), (1, OB)) for x in (f'buffer_store_dwordx4 v[{O}:{O+3}], v{vO1}, {WSr}, s{sOo} offen offset:{1024 * t} sc1',
                                                    f'buffer_store_dword v{O+4}, v{vO2}, {WSr}, s{sOo} offen offset:{8 * t} sc1')] if O2 else []
    misc = [t for f_ in range(f, NWO) for t in wo_load(f_)] + [
            f'v_and_b32 v{vOut}, 15, v0', f'v_mul_u32_u24 v{vOut}, 1152, v{vOut}', f'v_and_b32 v{vO3}, 48, v0', f'v_add_u32 v{vOut}, v{vOut}, v{vO3}',
            f's_mul_i32 s{sT0}, s{sRG}, 18432', f's_mul_i32 s{sT1}, s{sHH}, 576', f's_add_u32 s{sT0}, s{sT0}, s{sT1}',
            f's_lshl_b32 s{sT1}, s{sW}, 7', f's_add_u32 s{sT1}, s{sT1}, s{sT0}', f's_and_b32 s{sT2}, s{sW}, 1', f's_lshl_b32 s{sT2}, s{sT2}, 3',
            f's_add_u32 s{sT0}, s{sT0}, s{sT2}', f's_and_b32 s{sT2}, s{ffn.sHF}, {OOB}', f'v_add_u32 v{vO3}, s{sT2}, v{vOut}', f's_mov_b32 s{sSpin}, 0']
    LDAT = cfg.get('ldat', 12); n = 0; nl = 0; assert LDAT > 6
    grp = lambda half, g: [mf16(BACC + 4 * g, quads[41 * half + 9 * g + i], f'v[{(OFq, OGq)[half][i]}:{(OFq, OGq)[half][i]+3}]', f'v[{BACC+4*g}:{BACC+4*g+3}]') for i in range(9 if g < 4 else 5)]
    chk = [f'v_max3_u32 v{vT}, v{OGq[i//2]+2*(i&1)}, v{OGq[i//2]+2*(i&1)+1}, ' + (f'v{vT}' if i else '0') for i in range(18)]
    ck_ = list(chk); CKAT = cfg.get('ckat', 50)
    for g in range(5):
        for t in grp(0, g):
            e(t); n += 1
            if n >= LDAT and (n - LDAT) % 2 == 0 and nl < 9: e(og_load(nl), tag='OG'); nl += 1
            elif misc: e(misc.pop(0))
            elif nl == 9 and n >= CKAT and ck_:
                if len(ck_) == 18: p.wait(vmtags=['OG'])
                e(ck_.pop(0)); e(ck_.pop(0))
    for t in misc: e(t)
    while nl < 9: e(og_load(nl)); nl += 1
    pf.stamp(76)
    for t in ck_: e(t)
    e(f'v_cmp_eq_u32 vcc, -1, v{vT}'); e('s_cmp_lg_u64 vcc, 0'); e('s_cbranch_scc1 PO_spin')
    p.label('PO_done')
    pf.stamp(77)
    def po_out(q):
        r = q.raw
        q.label('PO_spin')
        for t in g_st: r(t)
        q.label('PO_sp2'); r(f's_add_u32 s{sSpin}, s{sSpin}, 1'); r(f's_cmp_gt_u32 s{sSpin}, 0x8000'); r('s_cbranch_scc1 PO_done')
        if O2:
            r(f's_cmp_lt_u32 s{sSpin}, 4'); r(f's_cselect_b32 s{sT2}, s{sOp}, s{sOp2}'); r(f's_cselect_b32 s{sOp2}, s{sOp2}, s{sOp}'); r(f's_mov_b32 s{sOp}, s{sT2}')
        for i in range(9): r(og_load(i))
        r('s_waitcnt vmcnt(0)')
        for t in chk: r(t)
        r(f'v_cmp_eq_u32 vcc, -1, v{vT}'); r('s_cmp_lg_u64 vcc, 0'); r('s_cbranch_scc1 PO_sp2'); r('s_branch PO_done')
    ool.append(po_out)
    BX = BACC + 16
    cv = lambda d, s_: f'v_cvt_pk_bf16_f32 v{d}, v{s_}, v{s_+1}'
    fl = {13: [f'ds_write_b128 v{vO1}, v[{BX}:{BX+3}]'],
          20: ['s_waitcnt lgkmcnt(0)', 's_barrier'], 21: [f'ds_read_b128 v[{XR_}:{XR_+3}], v{vO2}'],
          22: [cv(BACC, BACC), cv(BACC + 1, BACC + 2)],
          28: [f'v_add_f32 v{BX}, v{BX}, v{XR_}', f'v_add_f32 v{BX+1}, v{BX+1}, v{XR_+1}'], 29: [f'v_add_f32 v{BX+2}, v{BX+2}, v{XR_+2}', f'v_add_f32 v{BX+3}, v{BX+3}, v{XR_+3}'],
          30: [cv(BACC + 2, BACC + 4), cv(BACC + 3, BACC + 6)],
          31: [f'buffer_store_dwordx4 v[{BACC}:{BACC+3}], v{vOut}, {OUTr}, s{sT1} offen {of_}'],
          33: [cv(BX, BX), cv(BX + 1, BX + 2)], 34: [f'buffer_store_dwordx2 v[{BX}:{BX+1}], v{vO3}, {OUTr}, s{sT0} offen offset:512 {of_}'],
          40: [cv(BACC + 8, BACC + 8), cv(BACC + 9, BACC + 10)]}
    for i_, t in enumerate(g_st): fl[1 + 3 * i_] = [t]
    fl[15] = [f'v_xor_b32 v{vO2}, 4096, v{vO1}']
    n = 0
    for g in (4, 0, 1, 2, 3):
        for t in grp(1, g):
            e(t); n += 1
            for x in fl.get(n, []): e(x)
    e(cv(BACC + 10, BACC + 12)); e(cv(BACC + 11, BACC + 14))
    e(f'buffer_store_dwordx4 v[{BACC+8}:{BACC+11}], v{vOut}, {OUTr}, s{sT1} offen offset:64 {of_}')
    return ool

def build(cfg, path):
    name = NAME + '_kernel'
    p = Prog()
    kernel_header(p, name)
    p.e('s_cmp_ge_u32 s2, 256'); p.e('s_cbranch_scc1 K_exit')
    cfg = dict(cfg); cfg.setdefault('codepf', 'K_exit-PCL'); cfg.setdefault('hop', 1)
    pf = Prof(p, 'real' if cfg.get('real') else bool(cfg.get('prof')))
    pf.stamp(100, real=True); pf.stamp(101)
    ool = gen(p, cfg, pf)
    pf.stamp(102)
    if pf.on: p.e('s_waitcnt vmcnt(0)')
    pf.stamp(103); pf.stamp(104, real=True)
    pf.dump(SRD_WS, sW)
    p.label('K_exit'); p.e('s_endpgm')
    for f in ool: f(p)
    p.reset_tracking(); p.auto = False
    att.att_check(p, 'A', cfg, 'fallback')
    if cfg['hop']:
        n0 = len(p.ins)
        for w_ in range(4): p.label(f'PAD{w_}')
        p.e('s_endpgm')
    p.fix_hazards(verbose=cfg.get('verbose', False))
    if cfg['hop']:
        tail = p.ins[-5:]
        sv = p.ins; npad = insert_pads(p, 'MAIN', 'K_exit', 4, 'HOPBACK'); p.ins = p.ins[:-5]; print('pads', npad)
    if cfg.get('align', 0): print('align8 (promoted, still misaligned):', align8(p, cfg.get('maxspan', 3)))
    print('instrs', len(p.ins), 'nops added', p.nops_added)
    hdr = '''; One persistent launch, 256 workgroups (one per CU) x 4 waves x 512 registers. Generated by the author's own scripts.
;  phase D : output projection with the partner workgroup's heads (tagged hand-off), gate mix, store.
; Hand-offs: write-through stores, counters in d_debug, flags/tags in d_ws initialised inside the launch; all spins are bounded.'''
    txt = ['; @launch grid=(256,1,1) block=(256,1,1) lds=163840', hdr, '.amdgcn_target "amdgcn-amd-amdhsa--gfx950"', '.text', p.text(),
           '.section .rodata,"a"', descriptor(name, 512, acc=256)]
    open(path, 'w').write('\n'.join(txt))
if __name__ == '__main__':
    build(eval(sys.argv[2]) if len(sys.argv) > 2 else {}, sys.argv[1])
```

```python
from common import *

KVG, KVB = 18944, 2240
sW, sM_, sS = 3, 4, 5
sA, sA4, sX, sMb = 6, 7, 8, 9
sT0, sT1, sT2 = 10, 11, 12
sFs, sHd, sK32 = 13, 14, 15
SRD_X, SRD_WG, SRD_WU, SRD_W4, SRD_WD, SRD_WS, SRD_WO = 44, 48, 52, 56, 60, 64, 68
sHF = 72
sP, sQm, sQx, sKV, sKX = 74, 75, 76, 77, 78
sWoD = 79
sWoJ = 80
sso, sso2, sK4, sPo, sQs = 88, 89, 90, 91, 92
vOffW, vOffD, vOffX = 1, 5, 9
vRd = 13
vH, vC1, vL16, vT = 19, 20, 21, 22
XA, XAT = 24, 28
AB = 32
G0, G1, UU = 64, 96, 128
GT = 160; NGT = 12
XV = 172
vB1, vB2, vSel, vSt1, vSt2, vAd = 204, 206, 208, 211, 212, 214
vDo, vTa, vTx, vHs, vXw, vXr, vHw, vH2 = 22, 23, 222, 223, 224, 225, 236, 237
X3 = 204
vDl, sDl = 218, 100
vPW, vPQ, vPD, vDum = 250, 251, 252, 253
sFp, sPC, sTc = 93, 98, 90
vWo = 226
NPL = 10
NQ = 2088

def xf(k, rt, n=4, o=0):
    i = (k * 4 + rt) * 4 + o
    if k < 16: return f'a[{i}:{i+n-1}]'
    i = XV + i - 256
    return f'v[{i}:{i+n-1}]'

def gen_ffn(p, cfg, pf):
    DMAX = cfg.get('dmax', 7)
    stf = cfg.get('stflags', '')
    kS = cfg.get('kS', 2); ND = cfg.get('nd', 3)
    rho = {k: k - (k > kS) for k in range(5) if k != kS}
    seqB = [(j, c) for j in range(ND) for c in (0, 1, 2, 3, 4, 5, 8)] + [(j, c) for j in range(ND) for c in (6, 7)] + [(j, c) for j in range(ND, 9) for c in range(9)]
    accB = ([G1, XV, X3][:ND] + [G0, G1] * 5)[:9]
    accB = [accB[j] if j < ND else (G1, G0)[j % 2] for j in range(9)]
    BAR = set(range(6)); b_ = 5
    for lim, step in cfg.get('bars', [(66, 1)]):
        while b_ + step <= min(lim, 65): b_ += step; BAR.add(b_)
    up = lambda b: min([x for x in BAR if x >= b] + [999]); dn = lambda b: max(x for x in BAR if x <= b)
    cfg['up'] = up
    bH = dn((1440 + 56 * ND - 10 - 15) // 32 + 1)
    e = p.e
    A = GT
    load_ptrs(p)
    e('v_lshrrev_b32 v1, 6, v0')
    e('v_and_b32 v0, 63, v0')
    e(f'v_readfirstlane_b32 s{sW}, v1')
    if cfg.get('codepf'):
        e(f's_getpc_b64 s[{sPC}:{sPC+1}]'); p.label('PCL')
        e(f's_lshr_b32 s{sT1}, s2, 3'); e(f's_lshl_b32 s{sT1}, s{sT1}, 2'); e(f's_add_u32 s{sT1}, s{sT1}, s{sW}')
        e(f'v_lshlrev_b32 v{A+6}, 7, v0'); e(f'v_add_u32 v{A+6}, s{sT1}, v{A+6}')
        e(f'v_lshlrev_b32 v{A+6}, 7, v{A+6}'); e(f'v_min_u32 v{A+6}, {cfg["codepf"]}, v{A+6}')
        e(f'global_load_dword v{vDum}, v{A+6}, s[{sPC}:{sPC+1}]').dst = set()
    e(f's_and_b32 s{sT0}, s2, 7')
    e(f's_lshr_b32 s{sT1}, s2, 3')
    mx = cfg.get('xcd_m', 2)
    lm = int(math.log2(mx)); mper = 16 // mx; lmp = int(math.log2(mper)); sper = 32 // mper
    e(f's_and_b32 s{sM_}, s{sT0}, {mx - 1}')
    e(f's_mul_i32 s{sM_}, s{sM_}, {mper}')
    e(f's_and_b32 s{sT2}, s{sT1}, {mper - 1}')
    e(f's_add_u32 s{sM_}, s{sM_}, s{sT2}')
    e(f's_lshr_b32 s{sS}, s{sT0}, {lm}')
    e(f's_mul_i32 s{sS}, s{sS}, {sper}')
    e(f's_lshr_b32 s{sT2}, s{sT1}, {lmp}')
    e(f's_add_u32 s{sS}, s{sS}, s{sT2}')
    row, l4, g16 = A, A + 1, A + 2
    e(f'v_lshrrev_b32 v{row}, 3, v0')
    e(f'v_lshrrev_b32 v{l4}, 4, v0')
    e(f'v_and_b32 v{A+3}, 7, v0')
    e(f'v_xor_b32 v{A+4}, v{A+3}, v{l4}')
    e(f'v_lshlrev_b32 v{A+4}, 4, v{A+4}')
    e(f'v_mul_u32_u24 v{A+5}, 1152, v{row}')
    e(f'v_add_u32 v{vOffX}, v{A+4}, v{A+5}')
    e(f'v_xor_b32 v{vOffX+1}, 64, v{vOffX}')
    e(f'v_add_u32 v{vOffX+1}, {8192}, v{vOffX+1}')
    e(f'v_add_u32 v{vOffX+2}, {2 * 8192}, v{vOffX}')
    e(f'v_add_u32 v{vOffX+3}, {2 * 8192}, v{vOffX+1}')
    e(f's_lshl_b32 s{sMb}, s{sW}, 12')
    e(f's_lshl_b32 s{sK32}, s{sW}, 5')
    e(f's_lshl_b32 s{sX}, s{sM_}, 7')
    e(f's_add_u32 s{sX}, s{sX}, s{sK32}')
    e(f's_mul_i32 s{sX}, s{sX}, 1152')
    rot = cfg.get('rot', 8)
    if rot == 8:
        xs_ = 8 // sper if sper <= 8 else 1; ms_ = 8 // mper if mper <= 8 else 1
        e(f's_mul_i32 s{sA}, s{sS}, {xs_}'); e(f's_mul_i32 s{sT2}, s{sM_}, {ms_}'); e(f's_add_u32 s{sA}, s{sA}, s{sT2}'); e(f's_and_b32 s{sA}, s{sA}, 7')
    elif rot == 'x':
        e(f's_lshl_b32 s{sA}, s{sS}, 1'); e(f's_and_b32 s{sA}, s{sA}, 7')
    elif rot == 4:
        e(f's_add_u32 s{sA}, s{sS}, s{sM_}'); e(f's_and_b32 s{sA}, s{sA}, 3'); e(f's_mul_i32 s{sA}, s{sA}, 9'); e(f's_lshr_b32 s{sA}, s{sA}, 2')
    else: e(f's_mov_b32 s{sA}, 0')
    def wprep(e):
        e(f'v_lshlrev_b32 v{g16}, 1, v{l4}')
        e(f'v_xor_b32 v{g16}, v{A+3}, v{g16}')
        e(f'v_lshlrev_b32 v{A+4}, 4, v{g16}')
        e(f'v_and_b32 v{A+6}, 4, v{row}'); e(f'v_add_u32 v{A+6}, v{A+6}, v{row}')
        e(f'v_mul_u32_u24 v{vOffW}, 9216, v{A+6}')
        e(f'v_add_u32 v{vOffW}, v{vOffW}, v{A+4}')
        for q in (1, 2, 3): e(f'v_add_u32 v{vOffW+q}, {(0, 16, 4, 20)[q] * 9216 - 1024 * q}, v{vOffW}')
        e(f's_mul_i32 s{sT2}, s{sS}, 576')
        e(f's_bitcmp1_b32 s{sS}, 0')
        e(f's_cselect_b32 s{sT0}, 64, 0')
        e(f's_cselect_b32 s{sFs}, 0, 512')
        e(f's_add_u32 s{sFp}, s{sT0}, s{sT2}')
        e(f's_add_u32 s{sFs}, s{sFs}, s{sT2}')
    def tables(e):
        e(f'v_add_u32 v{A+6}, s{sA}, v0'); e(f'v_subrev_u32 v{A+7}, 9, v{A+6}'); e(f'v_min_u32 v{A+6}, v{A+6}, v{A+7}')
        e(f'v_lshlrev_b32 v{A+6}, 7, v{A+6}'); e(f'v_add_u32 v{vTx}, s{sX}, v{A+6}')
        e(f'v_mul_u32_u24 v{A+6}, 7282, v0'); e(f'v_lshrrev_b32 v{A+6}, 16, v{A+6}')
        e(f'v_mul_u32_u24 v{A+7}, 9, v{A+6}'); e(f'v_sub_u32 v{A+7}, v0, v{A+7}')
        e(f'v_lshlrev_b32 v{A+7}, 2, v{A+7}'); e(f'v_add_u32 v{A+7}, s{sW}, v{A+7}')
        e(f'v_subrev_u32 v{A+8}, 18, v{A+7}'); e(f'v_min_u32 v{A+7}, v{A+7}, v{A+8}')
        e(f's_lshl_b32 s{sT2}, s{sA}, 1'); e(f'v_add_u32 v{A+7}, s{sT2}, v{A+7}')
        e(f'v_subrev_u32 v{A+8}, 18, v{A+7}'); e(f'v_min_u32 v{A+7}, v{A+7}, v{A+8}')
        e(f'v_cmp_lt_u32 vcc, {kS}, v{A+6}'); e(f'v_mul_u32_u24 v{A+8}, 294912, v{A+7}'); e(f'v_add_u32 v{A+8}, s{sFp}, v{A+8}')
        e(f'v_subbrev_co_u32 v{A+9}, vcc, 0, v{A+6}, vcc')
        e(f'v_cmp_ne_u32 vcc, {kS}, v{A+6}'); e(f'v_lshl_add_u32 v{A+8}, v{A+9}, 7, v{A+8}'); e(f'v_lshlrev_b32 v{A+7}, 5, v{A+7}')
        e(f'v_cndmask_b32 v{vTa}, v{A+7}, v{A+8}, vcc')
    e(f's_lshl_b32 s{sso}, s{sA}, 7'); e(f's_add_u32 s{sso}, s{sso}, s{sX}')
    if cfg.get('pstamp'): e(f's_memrealtime s[96:97]')
    e('s_waitcnt lgkmcnt(0)')
    if cfg.get('pstamp'): e(f'v_writelane_b32 v255, s96, 20'); pf.stamp(85)
    srd(p, SRD_X, P_X, 2048 * 1152)

    NU = 66
    HWD = cfg.get('hwd', 2)
    items = []
    for U in range(NU):
        if U < 5:
            for cx in ([2 * U, 2 * U + 1] if U < 4 else [8]): items.append(('X', cx, U))
        items.append(('W', U, dn(U)))
    resv = {pl: [] for pl in range(NPL)}
    for k in rho: resv[rho[k]].append((9 * (k + 1) + HWD, up(46) if k < 4 else up(bH + 1)))
    resv[4].append((9 * kS + 5, up(46)))
    if cfg.get('kvb0'):
        for k in range(5): resv[k].append((cfg['kvb0'] + cfg['kv_at'][k], 999))
    busy = {pl: -1 for pl in range(NPL)}
    place = {}; issue_at = {}; nxt = 0
    for b in range(-1, NU):
        lst = []
        while nxt < len(items):
            kind, idx, need = items[nxt]; fb = up(need + 1)
            r0, r1, r2_ = cfg.get('ramp', (7, 0, 1))
            if b >= 0 and (need - b > max(r0, min(DMAX, r0 + (b - r1) // r2_)) or len(lst) >= cfg.get('maxissue', 3)): break
            if b < 0 and len(lst) >= cfg.get('pro_units', 6): break
            cand = [pl for pl in range(NPL) if busy[pl] <= b and all(fb <= rs or b >= re for rs, re in resv[pl])]
            if not cand: break
            cand.sort(key=lambda pl: min([rs for rs, re in resv[pl] if rs >= fb] + [999]))
            pl = cand[0]; assert need > b
            place[(kind, idx)] = pl; busy[pl] = fb
            lst.append(items[nxt]); nxt += 1
        issue_at[b] = lst
    assert nxt == len(items)
    if cfg.get('verbose'):
        for b in range(-1, NU): print(b, [(k, i, place[(k, i)]) for k, i, n in issue_at[b]])

    def dma_instrs(kind, idx):
        pl = place[(kind, idx)]; tag = (kind, idx)
        m0 = (f's_add_u32 m0, s{sMb}, {pl * 16384}', None)
        def four(vo, sr): return [(f'buffer_load_dwordx4 v{vo+q}, s[{sr}:{sr+3}], s{sso} offen' + (f' offset:{1024*q}' if q else '') + ' lds', tag) for q in range(4)]
        if kind == 'X':
            return [(f'v_readlane_b32 s{sso}, v{vTx}, {idx}', None), m0] + four(vOffX, SRD_X)
        U = idx
        if U < 45 and U // 9 != kS:
            u = U % 9
            sr = SRD_WG if u < 4 else (SRD_W4 if u == 4 else SRD_WU)
            return [(f'v_readlane_b32 s{sso}, v{vTa}, {U}', None), m0] + four(vOffW, sr)
        if U < 45:
            u = U % 9
            b_, st = (vB1, vSt1) if u < 4 else ((vB2, vSt2) if u > 4 else (vSel, vSel + 2))
            dl = f's[{sDl}:{sDl+1}]' if u < 4 else (f'v[{vDl}:{vDl+1}]' if u > 4 else f'v[{vDl+2}:{vDl+3}]')
            ad = lambda q: f'v[{vAd+2*(q&1)}:{vAd+2*(q&1)+1}]'
            out = [(f'v_readlane_b32 s{sso}, v{vTa}, {U}', None), m0, (f'v_mad_u64_u32 {ad(0)}, s[{sPC}:{sPC+1}], v{st}, s{sso}, v[{b_}:{b_+1}]', None)]
            for hq in range(2):
                if hq: out += [(f's_add_u32 s{sso}, s{sso}, 4', None), (f's_add_u32 m0, s{sMb}, {pl * 16384 + 2048}', None),
                               (f'v_mad_u64_u32 {ad(0)}, s[{sPC}:{sPC+1}], v{st}, s{sso}, v[{b_}:{b_+1}]', None)]
                out += [(f'global_load_lds_dwordx4 {ad(0)}, off', tag), (f'v_lshl_add_u64 {ad(1)}, {ad(0)}, 0, {dl}', None),
                        (f'global_load_lds_dwordx4 {ad(1)}, off offset:1024', tag)]
            return out
        return [(f'v_readlane_b32 s{sso}, v{vDo}, {U - 45}', None), m0] + four(vOffD, SRD_WD)

    PF = cfg.get('prefetch', 4)
    if PF & 1:
        nrow = 128 // (4 * sper)
        e(f's_and_b32 s{sT1}, s{sS}, {sper - 1}'); e(f's_lshl_b32 s{sT1}, s{sT1}, 2'); e(f's_add_u32 s{sT1}, s{sT1}, s{sW}')
        e(f's_mul_i32 s{sT1}, s{sT1}, {nrow * 1152}'); e(f's_mul_i32 s{sT2}, s{sM_}, {128 * 1152}'); e(f's_add_u32 s{sT1}, s{sT1}, s{sT2}')
        e(f'v_lshl_add_u32 v{A+6}, v{A+3}, 7, v{A+5}')
        if nrow < 8:
            e(f'v_cmp_gt_u32 vcc, {8 * nrow}, v0'); e(f'v_mov_b32 v{A+7}, {OOB}'); e(f'v_cndmask_b32 v{A+6}, v{A+7}, v{A+6}, vcc')
        for i in range(max(1, nrow // 8)):
            e(f'buffer_load_dword v{vDum}, v{A+6}, s[{SRD_X}:{SRD_X+3}], s{sT1} offen offset:128').dst = set()
            if i + 1 < nrow // 8: e(f's_add_u32 s{sT1}, s{sT1}, 9216')
    pro = []
    for kind, idx, need in issue_at[-1]:
        assert kind == 'X' or idx < 4
        pro += dma_instrs(kind, idx)
    wrows = 576 // (2 * mper)
    def wtouch(col):
        return [f'buffer_load_dword v{vDum}, v{vPW}, s[{SRD_W4}:{SRD_W4+3}], {col} offen' + (f' offset:0' if 0 else '')]
    assert not PF & 1
    class R_:
        l = []
        def e(self, t): self.l.append(t)
    r_ = R_(); wprep(r_.e); srd(r_, SRD_WG, P_WG, 576 * 9216)
    r_.l += [f's_lshl_b32 s{sso2}, s{sA}, 1', f's_add_u32 s{sso2}, s{sso2}, s{sW}', f's_mul_i32 s{sso2}, s{sso2}, 294912', f's_add_u32 s{sso2}, s{sso2}, s{sFp}']
    fb_ = pro[1:6] + [(f's_add_u32 s{sso}, s{sso}, 128', None)] + pro[7:12]
    for t, tag in fb_:
        e(t, tag=tag)
        if tag:
            for _ in range(4):
                if r_.l: t_ = r_.l.pop(0); e(t_)
            while r_.l and r_.l[0].startswith('s_cselect'): e(r_.l.pop(0))
    for t_ in r_.l: e(t_)
    for t, tag in pro[13:18]: e(t.replace(f's{sso} offen', f's{sso2} offen'), tag=tag)
    pro = pro[18:]
    tables(e)
    srd(p, SRD_WU, P_WU, 576 * 9216)
    e(f's_cmp_ge_u32 s{sW}, 2')
    e(f's_cselect_b32 s{SRD_W4}, s{SRD_WU}, s{SRD_WG}')
    e(f's_cselect_b32 s{SRD_W4+1}, s{SRD_WU+1}, s{SRD_WG+1}')
    e(f's_mov_b32 s{SRD_W4+2}, {576 * 9216}')
    e(f's_mov_b32 s{SRD_W4+3}, 0x20000')
    if cfg.get('pstamp'): pf.stamp(86)
    e0 = e; cnt_ = [0]
    def e(t, **kw):
        r = e0(t, **kw); cnt_[0] += 1
        if pro and cnt_[0] % cfg.get('pro_every', 1000) == 0 and not t.startswith(('s_cmp', 's_cselect', 's_bitcmp')):
            while pro:
                t2, tag = pro.pop(0); e0(t2, tag=tag)
                if tag and not cfg.get('burst'): break
        return r

    e(f'v_add_u32 v{vOffD}, v{A+4}, v{A+5}')
    for q in (1, 2, 3): e(f'v_add_u32 v{vOffD+q}, {q * 8192}, v{vOffD}')
    srd(p, SRD_WD, P_WD, 4608 * 1152)
    srd(p, SRD_WS, P_WS, WS_END)
    srd(p, SRD_WO, P_WO, 576 * 1152)
    e(f's_cmp_ge_u32 s{sW}, 2')
    e(f's_cselect_b64 s[{sHF}:{sHF+1}], -1, 0')
    e(f's_cselect_b32 s{sHd}, 1, 0')
    e(f'v_lshrrev_b32 v{A+3}, 2, v0')
    e(f'v_bfe_u32 v{A+6}, v0, 3, 2')
    e(f's_and_b32 s{sT0}, s{sHF}, 2')
    e(f'v_xor_b32 v{A+6}, s{sT0}, v{A+6}')
    e(f'v_lshlrev_b32 v{A+6}, 5, v{A+6}')
    e(f'v_lshl_add_u32 v{A+6}, v{A+3}, 7, v{A+6}')
    e(f'v_and_b32 v{A+3}, 3, v0')
    e(f'v_lshl_add_u32 v{vRd}, v{A+3}, 3, v{A+6}')
    e(f'v_xor_b32 v{vRd+3}, 32, v{vRd}')
    for wd in (1, 2):
        e(f'v_add_u32 v{vRd+wd}, {65536 * wd}, v{vRd}')
        e(f'v_add_u32 v{vRd+3+wd}, {65536 * wd}, v{vRd+3}')
    e(f's_and_b32 s{sT0}, s{sW}, 1')
    e(f'v_lshrrev_b32 v{A+3}, 4, v0')
    e(f'v_bfe_u32 v{A+6}, v0, 1, 3')
    e(f'v_xor_b32 v{A+6}, v{A+6}, v{A+3}')
    e(f'v_lshlrev_b32 v{A+6}, 4, v{A+6}')
    e(f'v_and_b32 v{A+3}, 15, v0')
    e(f'v_lshl_add_u32 v{A+6}, v{A+3}, 7, v{A+6}')
    e(f's_lshl_b32 s{sT1}, s{sT0}, 13')
    e(f'v_add_u32 v{XA}, s{sT1}, v{A+6}')
    e(f'v_xor_b32 v{XA+1}, 64, v{XA}')
    for wd in (1, 2):
        for q in range(2): e(f'v_add_u32 v{XA+2*wd+q}, {65536 * wd}, v{XA+q}')
    e(f'v_lshlrev_b32 v{vL16}, 4, v0')
    e(f's_lshl_b32 s{sT1}, s{sT0}, 12')
    e(f'v_add_u32 v{vH}, s{sT1}, v{vL16}')
    e(f'v_mov_b32 v{vC1}, {f2u(GC1)}')
    late = []
    L = late.append
    B = vWo
    LATE = cfg.get('late', 0)
    B = GT if LATE else 238
    L(f's_and_b32 s{sT2}, s{sHF}, 8192'); L(f'v_add_u32 v{vHw}, s{sT2}, v{vH}')
    L(f'v_add_u32 v{vH2}, 65536, v{vH}'); L(f's_and_b32 s{sT2}, s{sHF}, 2048'); L(f'v_add_u32 v{vHs}, s{sT2}, v{vH2}')
    L(f's_add_u32 s{sT2}, s{sMb}, 65536'); L(f'v_add_u32 v{vXw}, s{sT2}, v{vL16}')
    L(f'v_xor_b32 v{vXr}, 8192, v{vXw}')
    L(f's_and_b32 s{sT0}, s{sW}, 1')
    L(f's_lshl_b32 s{sP}, s{sM_}, 4'); L(f's_add_u32 s{sP}, s{sP}, s{sS}'); L(f's_mul_i32 s{sP}, s{sP}, 147456')
    L(f's_lshl_b32 s{sT1}, s{sT0}, 12'); L(f's_add_u32 s{sP}, s{sP}, s{sT1}')
    L(f's_and_b32 s{sT1}, s{sHF}, 8192'); L(f's_add_u32 s{sP}, s{sP}, s{sT1}')
    assert WS_P == 0
    L(f's_lshl_b32 s{sT1}, s{sS}, 1'); L(f's_add_u32 s{sHd}, s{sHd}, s{sT1}')
    L(f's_lshl_b32 s{sT1}, s{sM_}, 1'); L(f's_add_u32 s{sT1}, s{sT1}, s{sT0}')
    L(f's_lshr_b32 s{sT2}, s{sT1}, 2'); L(f's_mul_i32 s{sKX}, s{sT2}, {KVG}'); L(f's_add_u32 s{sKX}, s{sKX}, {WS_KV}')
    L(f's_and_b32 s{sT2}, s{sT1}, 3'); L(f's_mul_i32 s{sKV}, s{sT2}, {2 * KVB}'); L(f's_add_u32 s{sKV}, s{sKV}, s{sKX}')
    L(f's_add_u32 s{sKV}, s{sKV}, 1024')
    L(f's_and_b32 s{sT2}, s{sM_}, 1'); L(f's_lshl_b32 s{sT2}, s{sT2}, 9'); L(f's_add_u32 s{sKX}, s{sKX}, s{sT2}')
    L(f's_lshl_b32 s{sT2}, s{sT0}, 3'); L(f's_add_u32 s{sKX}, s{sKX}, s{sT2}')
    L(f's_lshl_b32 s{sT2}, s{sHd}, 5'); L(f's_add_u32 s{sT1}, s{sT1}, s{sT2}')
    L(f's_lshl_b32 s{sQm}, s{sT1}, 11'); L(f's_add_u32 s{sQm}, s{sQm}, {WS_QM}')
    L(f's_lshl_b32 s{sQx}, s{sT1}, 8'); L(f's_add_u32 s{sQx}, s{sQx}, {WS_QX}')
    L(f's_mov_b32 s{sQs}, {f2u(QSCALE)}')
    L(f'v_lshlrev_b32 v{B}, 2, v0'); L(f'v_add_u32 v{B}, s{sW}, v{B}')
    L(f'v_mul_u32_u24 v{B+1}, 7282, v{B}'); L(f'v_lshrrev_b32 v{B+1}, 16, v{B+1}')
    L(f'v_mul_u32_u24 v{B+2}, 9, v{B+1}'); L(f'v_sub_u32 v{B+2}, v{B}, v{B+2}')
    L(f'v_cmp_gt_u32 vcc, {9 * ND}, v{B}'); L(f'v_subrev_u32 v{B+3}, {7 * ND}, v{B}')
    L(f'v_lshrrev_b32 v{B+4}, 1, v{B+3}'); L(f'v_and_or_b32 v{B+3}, v{B+3}, 1, 6')
    L(f'v_cndmask_b32 v{B+1}, v{B+1}, v{B+4}, vcc'); L(f'v_cndmask_b32 v{B+2}, v{B+2}, v{B+3}, vcc')
    L(f'v_mul_u32_u24 v{B+4}, 9363, v{B}'); L(f'v_lshrrev_b32 v{B+4}, 16, v{B+4}')
    L(f'v_mul_u32_u24 v{B+3}, 7, v{B+4}'); L(f'v_sub_u32 v{B+3}, v{B}, v{B+3}')
    L(f'v_cmp_eq_u32 vcc, 6, v{B+3}'); L('s_nop 1'); L(f'v_cndmask_b32_e64 v{B+3}, v{B+3}, 8, vcc')
    L(f'v_cmp_gt_u32 vcc, {7 * ND}, v{B}'); L('s_nop 1')
    L(f'v_cndmask_b32 v{B+1}, v{B+1}, v{B+4}, vcc'); L(f'v_cndmask_b32 v{B}, v{B+2}, v{B+3}, vcc')
    L(f's_and_b32 s{sT2}, s{sS}, 1'); L(f'v_add_u32 v{B}, s{sT2}, v{B}')
    L(f'v_cmp_eq_u32 vcc, 9, v{B}'); L(f's_mul_i32 s{sT2}, s{sS}, 331776'); L(f'v_lshlrev_b32 v{B+1}, 7, v{B+1}')
    L(f'v_cndmask_b32_e64 v{B}, v{B}, 0, vcc')
    L(f'v_mul_u32_u24 v{B}, 36864, v{B}'); L(f'v_add3_u32 v{vDo}, v{B}, v{B+1}, s{sT2}')
    rw, gg, ch, z = B, B + 1, B + 2, B + 3
    L(f'v_lshrrev_b32 v{rw}, 3, v0'); L(f'v_and_b32 v{gg}, 4, v{rw}'); L(f'v_add_u32 v{rw}, v{rw}, v{gg}'); L(f'v_bfe_u32 v{gg}, v{vOffD}, 4, 3')
    L(f'v_mov_b32 v{vSt1}, 9216')
    L(f'v_cmp_gt_u32 vcc, 4, v{gg}')
    L(f'v_mov_b32 v{B+4}, s{P_WU}'); L(f'v_mov_b32 v{B+5}, s{P_WG}'); L(f'v_cndmask_b32 v{vB1}, v{B+4}, v{B+5}, vcc')
    L(f'v_mov_b32 v{B+4}, s{P_WU+1}'); L(f'v_mov_b32 v{B+5}, s{P_WG+1}'); L(f'v_cndmask_b32 v{vB1+1}, v{B+4}, v{B+5}, vcc')
    L(f'v_and_b32 v{ch}, 3, v{gg}'); L(f'v_lshlrev_b32 v{B+4}, 4, v{ch}'); L(f'v_add_u32 v{B+5}, s{sFs}, v{B+4}')
    L(f'v_mad_u32_u24 v{B+5}, v{rw}, v{vSt1}, v{B+5}')
    L(f'v_add_co_u32 v{vB1}, vcc, v{vB1}, v{B+5}')
    L(f'v_lshrrev_b32 v{z}, 2, v{gg}'); L(f's_lshl_b32 s{sT0}, s{sS}, 1')
    L(f'v_addc_co_u32 v{vB1+1}, vcc, 0, v{vB1+1}, vcc')
    L(f'v_add_u32 v{z}, s{sT0}, v{z}')
    L(f'v_min_u32 v{B+4}, 20, v{B+4}'); L(f'v_mad_u32_u24 v{B+4}, v{z}, 36, v{B+4}')
    L(f'v_cmp_gt_u32 vcc, 3, v{z}'); L(f'v_subrev_u32 v{B+5}, 3, v{z}')
    L(f'v_mov_b32 v{B+6}, s{P_WV}'); L(f'v_mov_b32 v{B+7}, s{P_WK}')
    L(f'v_cndmask_b32 v{B+5}, v{B+5}, v{z}, vcc'); L(f'v_cndmask_b32 v{vB2}, v{B+6}, v{B+7}, vcc')
    L(f'v_mov_b32 v{B+6}, s{P_WV+1}'); L(f'v_mov_b32 v{B+7}, s{P_WK+1}'); L(f'v_cndmask_b32 v{vB2+1}, v{B+6}, v{B+7}, vcc')
    L(f'v_lshlrev_b32 v{B+5}, 4, v{B+5}'); L(f'v_min_u32 v{B+5}, 20, v{B+5}')
    L(f'v_cmp_eq_u32 vcc, 6, v{z}'); L(f'v_mov_b32 v{B+6}, s{P_GW}'); L(f'v_mov_b32 v{B+7}, s{P_GW+1}')
    L(f'v_cndmask_b32 v{vB2}, v{vB2}, v{B+6}, vcc'); L(f'v_cndmask_b32 v{vB2+1}, v{vB2+1}, v{B+7}, vcc')
    L(f'v_cndmask_b32_e64 v{B+5}, v{B+5}, 0, vcc'); L(f'v_cndmask_b32_e64 v{B+9}, 36, 2, vcc')
    L(f'v_sub_u32 v{B+6}, 3, v{ch}'); L(f'v_lshl_add_u32 v{B+6}, v{B+6}, 6, v{z}')
    L(f'v_cmp_gt_u32 vcc, 7, v{B+6}')
    L(f'v_mov_b32 v{B+6}, s{P_WQ}'); L(f'v_mov_b32 v{B+7}, s{P_WQ+1}'); L(f'v_mov_b32 v{B+8}, 1152')
    L(f'v_cndmask_b32 v{vB2}, v{B+6}, v{vB2}, vcc'); L(f'v_cndmask_b32 v{vB2+1}, v{B+7}, v{vB2+1}, vcc')
    L(f'v_cndmask_b32 v{B+4}, v{B+4}, v{B+5}, vcc'); L(f'v_cndmask_b32 v{vSt2}, v{B+8}, v{B+9}, vcc')
    L(f'v_mad_u32_u24 v{B+4}, v{rw}, v{vSt2}, v{B+4}')
    L(f'v_add_co_u32 v{vB2}, vcc, v{vB2}, v{B+4}')
    L(f'v_cndmask_b32 v{vSel}, v{vB1}, v{vB2}, s[{sHF}:{sHF+1}]'); L(f'v_cndmask_b32 v{vSel+2}, v{vSt1}, v{vSt2}, s[{sHF}:{sHF+1}]')
    L(f'v_addc_co_u32 v{vB2+1}, vcc, 0, v{vB2+1}, vcc')
    L(f'v_cndmask_b32 v{vSel+1}, v{vB1+1}, v{vB2+1}, s[{sHF}:{sHF+1}]')
    L(f's_mov_b32 s{sDl}, {16 * 9216 - 1024}'); L(f's_mov_b32 s{sDl+1}, 0')
    for o_, st_ in ((0, vSt2), (2, vSel + 2)):
        L(f'v_lshlrev_b32 v{vDl+o_}, 4, v{st_}'); L(f'v_subrev_u32 v{vDl+o_}, 1024, v{vDl+o_}'); L(f'v_ashrrev_i32 v{vDl+o_+1}, 31, v{vDl+o_}')
    if PF:
        mpd = cfg.get('pfm', mper); npair = 4 * mpd
        L(f's_and_b32 s{sT1}, s{sM_}, {mpd - 1}'); L(f's_lshl_b32 s{sT1}, s{sT1}, 2'); L(f's_add_u32 s{sT1}, s{sT1}, s{sW}')
        L(f's_mul_i32 s{sT2}, s{sT1}, {331776 // npair}'); L(f's_mul_i32 s{sT0}, s{sS}, 331776'); L(f's_add_u32 s{sT2}, s{sT2}, s{sT0}')
        DL = cfg.get('pfdl', 21)
        L(f'v_min_u32 v{vPD}, {DL - 1}, v0'); L(f'v_lshlrev_b32 v{vPD}, 7, v{vPD}'); L(f'v_add_u32 v{vPD}, s{sT2}, v{vPD}')
    WT = cfg.get('wt', {})
    if WT:
        L(f's_lshl_b32 s{sT1}, s{sM_}, 1'); L(f's_and_b32 s{sT2}, s{sW}, 1'); L(f's_add_u32 s{sT1}, s{sT1}, s{sT2}'); L(f's_mul_i32 s{sT1}, s{sT1}, 18')
        L(f'v_min_u32 v{B}, 17, v0'); L(f'v_add_u32 v{B}, s{sT1}, v{B}'); L(f'v_mul_u32_u24 v{vPW}, 9216, v{B}')
        L(f's_lshl_b32 s{sT1}, s2, 2'); L(f's_add_u32 s{sT1}, s{sT1}, s{sW}'); L(f's_mul_i32 s{sT1}, s{sT1}, 648')
        L(f'v_min_u32 v{B}, 5, v0'); L(f'v_lshlrev_b32 v{B}, 7, v{B}'); L(f'v_add_u32 v{vPQ}, s{sT1}, v{B}')
    def wt_ins(k):
        if k == 'q': return [f'global_load_dword v{vDum}, v{vPQ}, s[{P_WQ}:{P_WQ+1}]']
        base_, col = (sFs, 0) if k == kS else (sFp, 128 * rho[k])
        return [f's_add_u32 s{sTc}, s{base_}, {col}', wtouch(f's{sTc}')[0]]
    if not LATE:
        for t in late: e(t)
    for k, g_ in WT.items():
        if g_ < 0:
            for t in wt_ins(k):
                i_ = e(t)
                if 'load' in t: i_.dst = set()
    e(f's_mul_i32 s{sT0}, s2, 3'); e(f's_add_u32 s{sT0}, s{sT0}, s{sW}')
    e(f's_mul_hi_u32 s{sT1}, s{sT0}, {(2**32 + 17) // 18}')
    e(f's_mul_i32 s{sT2}, s{sT1}, 18'); e(f's_sub_u32 s{sT2}, s{sT0}, s{sT2}')
    e(f's_lshl_b32 s{sWoD}, s{sT0}, 10'); e(f's_add_u32 s{sWoD}, s{sWoD}, {WS_WO}')
    e(f's_lshr_b32 s{sso2}, s{sT1}, 1'); e(f's_lshl_b32 s{sso2}, s{sso2}, 6')
    e(f's_and_b32 s{sT1}, s{sT1}, 1'); e(f's_lshl_b32 s{sT1}, s{sT1}, 3'); e(f's_add_u32 s{sso2}, s{sso2}, s{sT1}')
    e(f'v_bfe_u32 v{A}, v0, 2, 2'); e(f'v_and_b32 v{A+2}, 3, v0'); e(f'v_lshlrev_b32 v{A+2}, 1, v{A+2}')
    e(f'v_lshl_add_u32 v{A}, v{A}, 4, v{A+2}'); e(f'v_add_u32 v{A}, s{sso2}, v{A}')
    e(f'v_bfe_u32 v{A+2}, v0, 4, 1'); e(f'v_mul_u32_u24 v{A+2}, 18, v{A+2}')
    e(f'v_lshrrev_b32 v{A+1}, 5, v0'); e(f'v_lshl_add_u32 v{A+2}, v{A+1}, 2, v{A+2}')
    e(f'v_lshrrev_b32 v{A+4}, 4, v0'); e(f'v_mul_u32_u24 v{A+4}, 72, v{A+4}')
    e(f's_cmp_ge_u32 s{sT2}, 9'); e(f's_cselect_b32 s{sso2}, 1, 0')
    e(f's_sub_u32 s{sT1}, s{sT2}, s{sso2}'); e(f's_mul_i32 s{sT1}, s{sT1}, 36')
    e(f's_mul_i32 s{sWoJ}, s{sso2}, 9'); e(f's_sub_u32 s{sT2}, s{sT2}, s{sWoJ}')
    e(f's_mul_i32 s{sso2}, s{sso2}, 288'); e(f's_add_u32 s{sso2}, s{sso2}, 16')
    e(f's_cmp_eq_u32 s{sT2}, 8'); e(f's_cselect_b64 vcc, -1, 0'); e(f's_cselect_b32 s{sT1}, s{sso2}, s{sT1}')
    for j in range(8): e(f's_cselect_b32 s{sWoJ+j}, {18 * (j >> 1) + (j & 1)}, {8 * (j >> 2) + (j & 3)}')
    for j in range(8): e(f's_mul_i32 s{sWoJ+j}, s{sWoJ+j}, 1152')
    e(f'v_cndmask_b32 v{A+2}, v{A+2}, v{A+4}, vcc'); e(f'v_add_u32 v{A+2}, s{sT1}, v{A+2}')
    e(f'v_mul_u32_u24 v{A+2}, 1152, v{A+2}'); e(f'v_add_u32 v{vWo}, v{A}, v{A+2}')
    e(f's_cmp_lt_u32 s{sW}, 3'); e(f's_cselect_b32 s{sT1}, 648, 0'); e(f's_cmp_lt_u32 s{sT0}, s{sT1}')
    e(f's_cselect_b32 s{sT1}, 0, {OOB}')
    e(f'v_add_u32 v{vWo}, s{sT1}, v{vWo}'); e(f'v_add_u32 v{vWo+1}, s{sT1}, v{vL16}')

    wol = [f'buffer_load_ushort v{vWo+2+j}, v{vWo}, s[{SRD_WO}:{SRD_WO+3}], s{sWoJ+j} offen' for j in range(8)]
    DEF = cfg.get('defer', 0); dlist = []
    if not DEF:
        for t in wol: e(t)
    if cfg.get('fake'): e(f'v_mov_b32 v{vTa}, s{sK32}'); e(f'v_mov_b32 v{vDo}, 0')
    if cfg.get('setup_extra'):
        if DEF:
            class R2_:
                def e(self, t, tag=None): dlist.append((t, tag))
            cfg['setup_extra'](R2_())
        else: cfg['setup_extra'](p)
    e = e0
    if cfg.get('pstamp'): pf.stamp(87)
    if cfg.get('hop'):
        e('s_mov_b64 exec, 0')
        for w_ in range(3): e(f's_cmp_eq_u32 s{sW}, {w_}'); e(f's_cbranch_scc1 PAD{w_}')
        e('s_branch PAD3')
        p.label('HOPBACK'); e('s_mov_b64 exec, -1'); e('s_branch MAIN'); p.raw('.p2align 12'); p.label('MAIN')
    if cfg.get('pstamp'): pf.stamp(88)
    if cfg.get('wait2'): p.wait(vmtags=[[('X', 0), ('X', 1), ('W', 0)][cfg['wait2'] - 1]])
    for t2, tag in pro: e0(t2, tag=tag)
    S = Sched(NQ, 2)
    S.temps = list(range(GT, GT + NGT))
    S.nolds = lambda g: 11 <= g % 32 <= 15 and g // 32 + 1 in BAR
    qb = lambda b: 32 * (b - 1) + 15
    WSr = f's[{SRD_WS}:{SRD_WS+3}]'
    NF = NQ // 4
    def kinfo(K):
        if K < 180:
            ps, kk = divmod(K, 18); return (UU if ps & 1 else (G0, G1)[(ps // 2) % 2]), kk, ps
        j, kk = seqB[K - 180]; return accB[j], kk, 100 + j
    CH = cfg.get('chain', 4); SEQ = []; FM = {}
    for U in range(NU):
        Ks = [K for K in range(4 * U, 4 * U + 4) if K < 261]
        gs_ = [kinfo(K)[2] for K in Ks]
        if CH >= 4 and U >= 5 and len(Ks) == 4 and (len(set(gs_)) == 1 or (CH >= 5 and max(map(gs_.count, gs_)) == 3)):
            FM[U] = [(i % 4, i // 4) for i in range(8)]
            SEQ += [(4 * ft + k, Ks[k], ft, rt) for ft in range(2) for rt in range(4) for k in range(4)]
            continue
        FM[U] = [(i // 2, i % 2) for i in range(8)]
        for hh in range(0, len(Ks), 2):
            pr = Ks[hh:hh + 2]
            if CH >= 2 and len(pr) == 2 and kinfo(pr[0])[2] == kinfo(pr[1])[2]:
                SEQ += [(2 * (hh + k) + ft, pr[k], ft, rt) for ft in range(2) for rt in range(4) for k in range(2)]
            else:
                SEQ += [(2 * (hh + k) + ft, pr[k], ft, (3 - rt if ft else rt)) for k in range(len(pr)) for ft in range(2) for rt in range(4)]
    assert len(SEQ) == NQ
    firstq = lambda K: min(q for q in range(8 * K - 32 if K > 4 else 0, min(NQ, 8 * K + 32)) if SEQ[q][1] == K)
    lastq = lambda K: max(q for q in range(8 * K - 32 if K > 4 else 0, min(NQ, 8 * K + 32)) if SEQ[q][1] == K)
    def tread(n, h):
        U, i = divmod(n, 8); pl = place[('W', U)]; k, ft = FM[U][i]
        a = AB + 4 * i + 2 * h
        return f'ds_read_b64_tr_b16 v[{a}:{a+1}], v{vRd + 3 * ft + pl // 4} offset:{(pl % 4) * 16384 + k * 4096 + 2048 * h}'
    TP = cfg.get('tpos', [16, 17, 18, 20, 21, 23, 24, 26, 28, 29, 30, 32, 34, 36, 38, 40])
    def barrier(b):
        st_ = (b % cfg.get('stampevery', 1) == 0)
        if st_: pf.start()
        p.wait(vmtags=[(k, i) for k, i, need in items if need == b] + sum([v_ for k_, v_ in cfg.get('bar_tags', {}).items() if up(k_) == b], []), lg0=True)
        e('s_barrier')
        if st_: pf.save(b // cfg.get('stampevery', 1))
    WC = cfg.get('wcost', 0)
    def vstamp(b):
        if b % cfg.get('stampevery', 1) == 0: pf.stamp(b // cfg.get('stampevery', 1))
    for b in range(1, NU):
        if b in BAR: S.fix(qb(b), (lambda b=b: barrier(b)), cost=99)
        else: S.fix(qb(b), (lambda b=b: (p.wait_lg({('T', b - 1, 1)}), vstamp(b))), cost=WC)
        for i in range(16):
            n = 8 * b + i // 2
            if n < NF:
                assert TP[i] >= max(g for g in range(32) if SEQ[32 * (b - 1) + g][0] == i // 2)
                S.fix(32 * (b - 1) + TP[i], tread(n, i & 1), tag=('T', b, i // 8))
        S.fix(32 * b - 1, (lambda b=b: p.wait_lg({('T', b, 0)})), cost=WC)
    dq = []
    LPS = cfg.get('lps', 4); MINL = cfg.get('minlead', 3); dcost = cfg.get('dcost', 2)
    for b in range(0, NU + 1):
        for kind, idx, need in issue_at.get(b, []): dq += [(t, tag, need - (min(up(need + 1), NU) - 1 - idx if kind == 'W' else 0)) for t, tag in dma_instrs(kind, idx)]
        dq += [(t, tag, cfg.get('kv_need', 66)) for t, tag in cfg.get('extra_units', {}).get(b, [])]
        if cfg.get('nodma') or not dq: dq = []; continue
        must = max([i + 1 for i, (t, tag, need) in enumerate(dq) if need <= b + (MINL if b >= cfg.get('b0', 0) else cfg.get('minl0', 2))] + [0])
        lim_ = max([i + 1 for i, (t, tag, need) in enumerate(dq) if need <= b + MINL] + [0])
        l0_ = min(cfg.get('lps0', 6), max(LPS, sum(1 for x in dq[:lim_] if x[1])))
        nl = max(min((LPS if b >= cfg.get('b0', 0) else l0_) if b < 44 else cfg.get('lpsb', 5), sum(1 for x in dq if x[1])), sum(1 for x in dq[:must] if x[1]))
        lo, hi = (32, 46) if b == 0 else (16, 46)
        cand = [g for g in range(lo + 4 if nl <= 8 and b else lo + 1, hi) if g != 31 and (nl > 8 or (g in TP) == (dcost == 1))]
        if cfg.get('dcand') and b and nl <= len(cfg['dcand']): cand = cfg['dcand']
        prev = lo
        for i in range(nl):
            tg = cand[(i * len(cand)) // nl]
            k = next(j for j, x in enumerate(dq) if x[1])
            for j in range(k):
                prev = max(prev, tg - 3 - (k - 1 - j)); c_ = 1
                if dq[j][0].startswith('s_') and not WC:
                    fr_ = [g for g in range(prev, tg) if not S.fixed[32 * (b - 1) + g]]
                    if fr_: prev = fr_[0]; c_ = 0
                S.fix(32 * (b - 1) + prev, dq[j][0], cost=c_)
            prev = max(prev, tg); S.fix(32 * (b - 1) + prev, dq[k][0], tag=dq[k][1], cost=dcost)
            dq = dq[k + 1:]
    assert not dq
    def xreads(cx):
        pl = place[('X', cx)]
        return [f'ds_read_b128 {xf(2 * cx + kk, rt)}, v{XA + 2 * (pl // 4) + kk} offset:{(pl % 4) * 16384 + 2048 * rt}' for rt in range(4) for kk in range(2)]
    lc = S.chain([t for t in late if not t.startswith('s_nop')], LATE, 110 if DEF else 128) if LATE else []
    if DEF:
        wl_ = [S.add(Op(t, start=DEF + 3 * j, end=DEF + 3 * j + 8)) for j, t in enumerate(wol)]
        for o_, (t, tag) in zip(S.chain([t for t, tag in dlist], DEF + 24, max(146, DEF + 110), deps=wl_ + lc[-1:]), dlist): o_.tag = tag
    XP = cfg.get('xpos', [19, 19, 22, 22, 25, 25, 27, 27, 33, 33, 35, 35, 37, 37, 39, 39])
    for b in range(1, 5):
        xs = sum([xreads(i) for k_, i, need in items if k_ == 'X' and need == b], [])
        for n_, t in enumerate(xs): S.fix(32 * (b - 1) + XP[n_], t, tag=('T', b, n_ // 8))
    if PF:
        lead = cfg.get('pflead', 420)
        def touch(t, g, w_=30):
            def f(): p.e(t).dst = set()
            o_ = S.add(Op(f, 2, start=g, end=g + w_)); o_.call = True
        for k, g_ in WT.items():
            if g_ >= 0:
                w_ = wt_ins(k)
                if len(w_) > 1: S.add(Op(w_[0], start=g_ - 6, end=g_))
                touch(w_[-1], g_, 14)
        if PF & 4:
            nl = -(-2592 // npair); nb_ = -(-nl // DL); g0 = cfg.get('pfd0', 700); dg = cfg.get('pfdg', 100)
            for i in range(nb_):
                if i: S.add(Op(f'v_add_u32 v{vPD}, {128 * DL}, v{vPD}', start=g0 + dg * i - 9, end=g0 + dg * i))
                touch(f'buffer_load_dword v{vDum}, v{vPD}, s[{SRD_WD}:{SRD_WD+3}], 0 offen', g0 + dg * i)
    S.chain([f'v_lshl_or_b32 v{vWo+2+j}, v{vWo+2*j+3}, 16, v{vWo+2*j+2}' for j in range(4)] +
            [f'buffer_store_dwordx4 v[{vWo+2}:{vWo+5}], v{vWo+1}, {WSr}, s{sWoD} offen {stf}'], *((max(288 * kS + 150, DEF + 130), max(288 * kS + 170, DEF + 220)) if DEF else (130, 146)))[-1].tag = 'QKV'
    def gelu_h(g, u, n, s1, e1, s2, e2, wr, sw, deps=()):
        last = []
        for i in range(n):
            t = []
            d1 = e1 - (n - 1 - i) * (e1 - s1 - 24) // n
            a = S.add(Op(lambda i=i, t=t: f'v_mul_f32 v{t[0]}, v{g+i}, v{g+i}', 1, deps, s1, e1 - 12, res=t, prio=d1 - 12))
            a = S.add(Op(lambda t=t: f'v_fmaak_f32 v{t[0]}, v{t[0]}, v{vC1}, {f2u(GC0)}', 1, [a], s1, e1 - 10, prio=d1 - 12))
            a = S.add(Op(lambda i=i, t=t: f'v_mul_f32 v{t[0]}, v{t[0]}, v{g+i}', 1, [a], s1, e1 - 8, prio=d1 - 12))
            a = S.add(Op(lambda t=t: f'v_exp_f32 v{t[0]}, v{t[0]}', 2, [a], s1, e1 - 6, prio=d1 - 12))
            a = S.add(Op(lambda t=t: f'v_add_f32 v{t[0]}, 1.0, v{t[0]}', 1, [a], s1, e1 - 4, prio=d1 - 12))
            a = S.add(Op(lambda t=t: f'v_rcp_f32 v{t[0]}, v{t[0]}', 2, [a], s1, e1 - 2, prio=d1 - 12))
            a = S.add(Op(lambda i=i, t=t: f'v_mul_f32 v{g+i}, v{t[0]}, v{g+i}', 1, [a], s1, e1, rel=t, prio=d1 - 12))
            a = S.add(Op(f'v_mul_f32 v{g+i}, v{g+i}, v{u+i}', 1, [a], s2, e2 - 8, prio=d1))
            last.append(a)
        wrs = []
        for gi in range(n // 8):
            prev = []
            for c in range(4):
                o = S.add(Op(f'v_cvt_pk_bf16_f32 v{g+8*gi+c}, v{g+8*gi+2*c}, v{g+8*gi+2*c+1}', 1, last[8*gi+2*c:8*gi+2*c+2], s2, e2 - 4, same=prev, prio=0))
                prev = [o]
            HW = cfg.get('hw', 128); t_ = wr(gi)
            if HW == 'x':
                for x, mv in enumerate((f's_mov_b64 exec, s[{sHF}:{sHF+1}]', f's_not_b64 exec, s[{sHF}:{sHF+1}]')):
                    def f_(mv=mv, t_=t_): p.e(mv); p.e(t_); p.e('s_mov_b64 exec, -1')
                    o_ = S.add(Op(f_, 2, prev, sw + cfg.get('hwsp', 12) * gi, e2 - 4 * (1 - x), lds=True, prio=0)); o_.call = True
                    if x: o_.after = (prev[0], 3)
                    prev = [o_]
            elif HW == 128:
                o_ = S.add(Op(t_, 2, prev, sw + cfg.get('hwsp', 12) * gi, e2, lds=True, prio=0)); o_.okg = cfg.get('hwg')
            else:
                m_ = re.match(r'ds_write_b128 (v\d+), v\[(\d+):\d+\] offset:(\d+)', t_); r0_, of_ = int(m_.group(2)), int(m_.group(3)); n_ = 128 // HW; w_ = HW // 32
                for x in range(n_):
                    rg = f'v[{r0_+w_*x}:{r0_+w_*x+1}]' if w_ == 2 else f'v{r0_+x}'
                    prev = [S.add(Op(f'ds_write_b{HW} {m_.group(1)}, {rg} offset:{of_ + 4 * w_ * x}', 2, prev, sw + cfg.get('hwsp', 12) * gi, e2 - (n_ - 1 - x), lds=True, prio=0))]
        return wrs
    for k in rho:
        g = (G0, G1)[k % 2]; q0 = 288 * k
        e2_ = q0 + 288 + 139 if k < 4 else qb(bH) - 4
        gelu_h(g, UU, 32, q0 + 147, e2_ - 13, q0 + 291, e2_,
               lambda i, g=g, k=k: f'ds_write_b128 v{vHw}, v[{g+8*i}:{g+8*i+3}] offset:{16384 * rho[k] + 1024 * i}', qb(9 * (k + 1) + HWD) + 1)
    GS = (G0, G1)[kS % 2]; qS = 288 * kS; bS = 9 * kS
    def xch(write):
        Lb = 'F_xw' if write else 'F_xr'
        def arm(base, em):
            for q in range(4):
                r = f'v[{base+4*q}:{base+4*q+3}]'
                em(f'ds_write_b128 v{vXw}, {r} offset:{1024*q}' if write else f'ds_read_b128 {r}, v{vXr} offset:{1024*q}')
        e(f's_cmp_ge_u32 s{sW}, 2'); e(f's_cbranch_scc1 {Lb}1')
        arm(GS + 16, p.raw); e(f's_branch {Lb}2'); p.label(f'{Lb}1')
        def em(t):
            i = e(t)
            if not write: i.dst = i.dst | {('v', r[1] + 16) for r in i.dst}
        arm(GS, em); p.label(f'{Lb}2')
    S.fix(qS + 149, lambda: xch(True), cost=7)
    x1 = up(bS + 6)
    S.fix(qb(x1) + 4, lambda: xch(False), cost=7)
    gelu_h(GS, GS + 16, 16, qb(x1) + 10, qS + 288 + 120, qb(x1) + 10, qS + 288 + 139,
           lambda i: f'ds_write_b128 v{vHs}, v[{GS+8*i}:{GS+8*i+3}] offset:{1024 * i}', qb(up(x1 + 1)) + 1)
    for n_, t in enumerate((0, 1, 2, 3, 4, 5, 8)):
        for rt in range(4):
            ad = f'v{vH} offset:{8192 * t + 1024 * rt}' if t < 8 else f'v{vH2} offset:{1024 * rt}'
            S.add(Op(f'ds_read_b128 {xf(t, rt)}, {ad}', start=max(lastq(162 + t), qb(up(41)) + 1), end=min(firstq(180 + n_) - 8, qb(46) - 4), lds=True))
    for t in (6, 7):
        for rt in range(4): S.add(Op(f'ds_read_b128 {xf(t, rt)}, v{vH} offset:{8192 * t + 1024 * rt}', start=qb(bH) + 1, end=qb(bH) + 8 + 6 * (t - 6), lds=True))
    qa, qx, tq = vAd, vAd + 1, vAd + 2
    q = [f'v_and_b32 v{tq}, 31, v0', f'v_lshrrev_b32 v{tq+1}, 5, v0', f'v_lshlrev_b32 v{qa}, 4, v{tq+1}', f'v_lshl_add_u32 v{qa}, v{tq}, 5, v{qa}',
         f'v_lshlrev_b32 v{qx}, 2, v0']
    EX = vAd + 4
    for rt in range(4):
        u = UU + 8 * rt; d = UU + 16 * (rt >> 1) + 2 * (rt & 1)
        q += [f'v_mul_f32 v{u+i}, s{sQs}, v{u+i}' for i in range(4)]
        q += [f'v_mul_f32 v{tq}, s{sQs}, v{u+6}', f'v_mul_f32 v{tq+1}, s{sQs}, v{u+7}',
              f'v_cvt_pk_bf16_f32 v{d}, v{u}, v{u+1}', f'v_cvt_pk_bf16_f32 v{d+1}, v{u+2}, v{u+3}', f'v_cvt_pk_bf16_f32 v{EX+rt}, v{tq}, v{tq+1}']
    sw16 = lambda a, b: f'v_permlane16_swap_b32 v{a}, v{b}'
    sw32 = lambda a, b: f'v_permlane32_swap_b32 v{a}, v{b}'
    q += [sw16(UU, UU + 2), sw16(UU + 1, UU + 3), sw16(EX, EX + 1), sw16(UU + 16, UU + 18), sw16(UU + 17, UU + 19), sw16(EX + 2, EX + 3),
          f'buffer_store_dwordx4 v[{UU}:{UU+3}], v{qa}, {WSr}, s{sQm} offen {stf}',
          f'buffer_store_dwordx4 v[{UU+16}:{UU+19}], v{qa}, {WSr}, s{sQm} offen offset:1024 {stf}', sw32(EX + 1, EX + 3),
          f'buffer_store_dword v{EX+1}, v{qx}, {WSr}, s{sQx} offen {stf}']
    qc = S.chain(q, qS + 292, qS + 288 + cfg.get('qkv_end', 100))
    def kv_block():
        L = 'F_kv'; o = lambda t: p.e(t, optional=True, tag='QKV')
        a, b2, c = tq, tq + 1, EX
        A_, W = UU + 4, UU + 20
        e(f's_cmp_ge_u32 s{sHd}, 7'); e(f's_cbranch_scc1 {L}_end')
        e(f's_cmp_lg_u32 s{sHd}, 6'); e(f's_cbranch_scc1 {L}_kv')
        e(sw16(UU + 12, UU + 4)); e(sw16(UU + 28, UU + 20)); e(f'v_xor_b32 v{a}, 64, v{qx}')
        e(f's_add_u32 s{sT0}, s{sQx}, {WS_G - WS_QX - 6 * 8192}'); e(sw32(UU + 12, UU + 28))
        o(f'buffer_store_dword v{UU+28}, v{a}, {WSr}, s{sT0} offen {stf}')
        e(f's_branch {L}_end')
        p.label(f'{L}_kv')
        for rt in range(4):
            u = UU + 8 * rt; d = UU + 4 + 16 * (rt >> 1) + 2 * (rt & 1)
            e(f'v_cvt_pk_bf16_f32 v{d}, v{u+4}, v{u+5}'); e(f'v_cvt_pk_bf16_f32 v{d+1}, v{u+6}, v{u+7}')
        e(f'v_lshrrev_b32 v{b2}, 5, v0')
        for x in (A_, W): e(sw16(x, x + 2)); e(sw16(x + 1, x + 3))
        e(f'v_and_b32 v{a}, 0x1f0, v{vL16}')
        for i in range(4): e(sw32(A_ + i, W + i))
        e(f's_cmp_ge_u32 s{sHd}, 3'); e(f's_cbranch_scc1 {L}_v')
        e(f's_cmp_eq_u32 s{sHd}, 2'); e(f's_cbranch_scc1 {L}_kx')
        e(f'v_mul_u32_u24 v{b2}, {KVB}, v{b2}'); e(f'v_add_u32 v{a}, v{a}, v{b2}')
        e(f's_lshl_b32 s{sT0}, s{sHd}, 9'); e(f's_add_u32 s{sT0}, s{sT0}, s{sKV}')
        o(f'buffer_store_dwordx4 v[{W}:{W+3}], v{a}, {WSr}, s{sT0} offen {stf}')
        e(f's_branch {L}_end')
        p.label(f'{L}_kx')
        e(f'v_lshl_add_u32 v{a}, v{b2}, 2, v{a}')
        o(f'buffer_store_dword v{W+3}, v{a}, {WSr}, s{sKX} offen {stf}')
        e(f's_branch {L}_end')
        p.label(f'{L}_v')
        e(f's_lshr_b32 s{sT0}, s{sMb}, 2'); e(f's_add_u32 s{sT0}, s{sT0}, 73728')
        e(f'v_add_u32 v{a}, s{sT0}, v{vL16}')
        p.raw(f'ds_write_b128 v{a}, v[{W}:{W+3}]')
        e(f'v_and_b32 v{a}, 48, v0'); e(f'v_lshlrev_b32 v{a}, 4, v{a}'); e(f'v_add_u32 v{a}, s{sT0}, v{a}')
        e(f'v_and_b32 v{c}, 12, v0'); e(f'v_lshl_add_u32 v{a}, v{c}, 2, v{a}')
        e(f'v_and_b32 v{c}, 2, v0'); e(f'v_lshl_add_u32 v{a}, v{c}, 5, v{a}')
        e(f'v_and_b32 v{c}, 1, v0'); e(f'v_lshl_add_u32 v{a}, v{c}, 3, v{a}')
        p.raw('s_waitcnt lgkmcnt(0)')
        p.raw(f'ds_read_b64_tr_b16 v[{A_}:{A_+1}], v{a}'); p.raw(f'ds_read_b64_tr_b16 v[{A_+2}:{A_+3}], v{a} offset:128')
        e(f'v_mul_u32_u24 v{b2}, {KVB}, v{b2}'); e(f'v_bfe_u32 v{c}, v0, 3, 2'); e(f'v_mul_u32_u24 v{c}, 304, v{c}')
        e(f'v_and_b32 v{a}, 0x70, v{vL16}'); e(f'v_add3_u32 v{b2}, v{b2}, v{c}, v{a}')
        e(f's_sub_u32 s{sT0}, s{sHd}, 3'); e(f's_lshl_b32 s{sT0}, s{sT0}, 7'); e(f's_min_u32 s{sT0}, s{sT0}, 160'); e(f's_add_u32 s{sT0}, s{sT0}, s{sKV}')
        p.raw('s_waitcnt lgkmcnt(0)')
        e(f's_cmp_lg_u32 s{sHd}, 5'); e(f's_cbranch_scc1 {L}_vs')
        e(f'v_cmp_eq_u32 vcc, 0x50, v{a}'); e(f'v_mov_b32 v{c}, 0x3f803f80'); e(f'v_add_u32 v{c+2}, 48, v{b2}')
        for i in range(4): e(f'v_cndmask_b32 v{A_+i}, v{A_+i}, v{c}, vcc')
        e(f'v_cndmask_b32 v{b2}, v{b2}, v{c+2}, vcc')
        e(f'v_cmp_gt_u32 vcc, 0x50, v{a}'); e(f'v_mov_b32 v{c}, {OOB}'); e('s_nop 0'); e(f'v_cndmask_b32 v{b2}, v{b2}, v{c}, vcc')
        p.label(f'{L}_vs')
        o(f'buffer_store_dwordx4 v[{A_}:{A_+3}], v{b2}, {WSr}, s{sT0} offen offset:1024 {stf}')
        p.label(f'{L}_end')
    for o_ in qc:
        if 'store' in o_.text: o_.tag = 'QKV'
    kvop = S.add(Op(kv_block, 2, [qc[-1]], qS + 292, qS + 288 + cfg.get('qkv_end', 100) + 10)); kvop.call = True
    lastst = []; qs_ = 0; NST = cfg.get('nst', 5); deferred = []
    hold = [G1, XV, X3, XV + 16, X3 + 16, XV, X3, XV + 16, X3 + 16]; freed = {}
    for j in range(9):
        acc = accB[j]; q1 = 1 + max(lastq(180 + i) for i, (jj, c) in enumerate(seqB) if jj == j)
        nxt_ = sorted(firstq(180 + i) for i, (jj, c) in enumerate(seqB) if jj > j and accB[jj] == acc)
        dl = min(nxt_[0] - 2 if nxt_ else 10 ** 6, NQ - 4 if j < 8 else 10 ** 6); h = hold[j]
        cv = S.chain([f'v_cvt_pk_bf16_f32 v{h+i}, v{acc+2*i}, v{acc+2*i+1}' for i in range(16)], min(q1 + 3, NQ), min(dl, q1 + 60), deps=freed.get(h, []))
        sot = f's_add_u32 s{sPo}, s{sP}, {16384 * j}'
        sts = [f'buffer_store_dwordx4 v[{h+4*rt}:{h+4*rt+3}], v{vL16}, {WSr}, s{sPo} offen offset:{1024 * rt} {stf}' for rt in range(4)]
        if j >= NST:
            deferred.append([sot] + sts); continue
        so = S.add(Op(sot, start=q1, end=NQ, same=lastst, prio=0))
        for rt in range(4):
            qs_ = max(qs_ + cfg.get('stspace', 22), q1 + 8)
            for o_ in cv[4 * rt:4 * rt + 4]: o_.prio = min(o_.prio, qs_ - 2); o_.end = min(o_.end, qs_ + 8)
            lastst = [S.add(Op(sts[rt], 2, [cv[4 * rt + 3], so], qs_, min(qs_ + 12, dl if h == acc else NQ), tag='PART', same=lastst))]
        freed[h] = lastst
    cfg['deferred'] = deferred
    if cfg.get('sched_extra'): cfg['sched_extra'](S, p)
    if cfg.get('nofill'): S.ops = [o for o in S.ops if isinstance(o.text, str) and ('lds' in o.text or 'm0' in o.text or f's{sso},' in o.text)]
    placed = S.run()
    print('ffn schedule: overflow slots', S.over)

    def emit(item, tag):
        if callable(item): item()
        else: e(item, tag=tag)
    barrier(0)
    if cfg.get('pstamp'): pf.stamp(89)
    x0, x1_ = xreads(0), xreads(1)
    for i in (0, 1, 4, 5): e(tread(i // 2, i & 1))
    for t in x0: e(t)
    for i in (2, 3, 6, 7): e(tread(i // 2, i & 1))
    rest = [tread(i // 2, i & 1) for i in range(8, 16)] + x1_
    for n_, t in enumerate(rest): S.fixed[(n_ * 10) // 16].insert(0, (1, t, None))
    snake = cfg.get('snake', 1)
    for q in range(NQ + 1):
        if q < NQ:
            bi, K, ft, rt = SEQ[q]; D, kk, _ = kinfo(K)
            d = D + (rt * 2 + ft) * 4; a = AB + 4 * bi
            C = '0' if kk == 0 else f'v[{d}:{d+3}]'
            e(f'v_mfma_f32_16x16x32_bf16 v[{d}:{d+3}], v[{a}:{a+3}], {xf(kk, rt)}, {C}')
        if q == NQ and cfg.get('pre_tail'): cfg['pre_tail'](p)
        fx = S.fixed[q]
        lastw = [f for f in fx if callable(f[1]) and q % 16 == 15 and WC]
        for c, item, tag in fx:
            if (c, item, tag) not in lastw: emit(item, tag)
        mid = cfg.get('mid_tail') if q == NQ else None
        for n_, o in enumerate(placed[q]):
            if mid and n_ == 5: mid(p)
            if getattr(o, 'call', False): o.text()
            else: e(o.text() if callable(o.text) else o.text, tag=o.tag)
        for c, item, tag in lastw: emit(item, tag)
```

```python
import sys
from common import *
import ffn, att, k23
from ffn import sW, sT0, sT1, sT2, SRD_WS, SRD_X, vL16, KVG, KVB, sMb, sso, NQ

att.sRG, att.sHH = 6, 7
att.PP, att.KM, att.VV, att.KX = 24, 32, 40, 56
att.SA, att.SB, att.OA, att.OB = 64, 80, 96, 112
att.QM, att.QX = 128, 136
SEL, SELX = 152, 160
att.vAK, att.vAV = 164, 165
vG, vPoll, vTch = 166, 252, 240
att.vT = 236
BACC = 172
PBUF, NPB = 192, 11
vFP, vFO = 244, 245
vL2, vLX, vLO, vPa = 246, 247, 248, 249
vR0, vR1, vR2, vGt = 245, 250, 167, 251
sH0, sH1 = 8, 15
sRG, sHH = att.sRG, att.sHH
SRD_OUT, SRD_DBG = 52, 68
vAt = 238
sPb, sWo, sWx, sOo, sOp, sSpin = 74, 75, 76, 77, 78, 79
sPb = 80; sWo = 81; sWx = 82; sOo = 83; sOp = 84; sSpin = 85; sKVs = 86; sLd = 87
LDS_O, LDS_G = 154560, 163776
FLO = 4096
WSr = f's[{SRD_WS}:{SRD_WS+3}]'
mf16 = att.mf16

class Rec:
    def __init__(self): self.l = []
    def e(self, t, **kw): self.l.append(t)

def poll(p, L, srdr, want, mask, first_issued):
    e = p.e
    cmpop = 'le' if want == 64 else 'eq'
    ld = f'buffer_load_dword v{vPoll}, v{vPa}, {srdr}, 0 offen sc1'
    if not first_issued: e(ld)
    e(f'v_cmp_{cmpop}_u32 vcc, {want}, v{vPoll}')
    e(f's_cmp_eq_u32 vcc_lo, {mask}')
    e(f's_cbranch_scc0 {L}_spin')
    p.label(f'{L}_go')
    def out(q):
        r = q.raw
        q.label(f'{L}_spin'); r(f's_mov_b32 s{sSpin}, 0')
        q.label(f'{L}_sp2'); r('s_sleep 8'); r(ld); r(f's_add_u32 s{sSpin}, s{sSpin}, 1'); r('s_waitcnt vmcnt(0)')
        r(f'v_cmp_{cmpop}_u32 vcc, {want}, v{vPoll}')
        r(f's_cmp_gt_u32 s{sSpin}, 0x80000'); r(f's_cbranch_scc1 {L}_go')
        r(f's_cmp_eq_u32 vcc_lo, {mask}'); r(f's_cbranch_scc0 {L}_sp2'); r(f's_branch {L}_go')
    return out

def gen(p, cfg, pf):
    cfg = dict(cfg); cfg.setdefault('stflags', 'sc1'); cfg.setdefault('perm', 1); cfg.setdefault('bars', [(6, 1), (66, 2)]); cfg.setdefault('pfd0', 1000); cfg.setdefault('pfdg', 60); cfg.setdefault('pfm', 16); cfg.setdefault('xcd_m', 4); cfg.setdefault('pfdl', 11); cfg.setdefault('rot', 8); cfg.setdefault('dcost', 1); cfg.setdefault('defer', 728); cfg.setdefault('b0', 12); cfg.setdefault('lps0', 6); cfg.setdefault('late', 16)
    cfg.setdefault('apat', 'E0 E1 PB rK x0 E2 E3 C0 C1 E4 QX w x1 E5 E6 E7 y0 C2 C3 E8 QM rA x2 E9 E10 E11 y1 C4 C5 E12 PA rB x3 E13 E14 E15 C6 C7')
    BS, BP, BQ = cfg.get('bsig', 36), cfg.get('bpoll', 48), cfg.get('bq', 54)
    assert BP <= 49 and BQ >= BP
    cfg['kvb0'] = BQ; cfg['bar_tags'] = {BS: ['QKV']}
    e = p.e; ool = []; O2 = cfg.get('o2', 1); sOo2, sOp2 = 42, 43; poison = []; sPz, sFn, vPz = 96, 97, 243
    qb = lambda b: 32 * (b - 1) + 15
    vT = att.vT

    def setup_extra(p):
        e = p.e
        e(f'v_cmp_eq_u32 vcc, 0, v0'); e(f'v_mov_b32 v{vFO}, {OOB}'); e(f'v_mov_b32 v{vTch+1}, 0')
        e(f'v_cndmask_b32_e64 v{vFO}, v{vFO}, 0, vcc')
        e(f's_lshl_b32 s{sT0}, s{ffn.sM_}, 6'); e(f's_lshl_b32 s{sT1}, s{ffn.sS}, 2'); e(f's_add_u32 s{sT0}, s{sT0}, s{sT1}')
        e(f's_add_u32 s{sT0}, s{sT0}, {WS_FL}'); e(f's_lshl_b32 s{sT1}, s{sW}, 28'); e(f's_add_u32 s{sT0}, s{sT0}, s{sT1}')
        e(f'v_add_u32 v{vFP}, s{sT0}, v{vFO}')
        e(f's_and_b32 s{sT0}, s2, 3'); e(f's_lshl_b32 s{sT0}, s{sT0}, 6'); e(f's_lshl_b32 s{sT1}, s{sW}, 12'); e(f's_add_u32 s{sT0}, s{sT0}, s{sT1}')
        e(f'v_lshlrev_b32 v{vPa}, 6, v0'); e(f'v_lshlrev_b32 v{vAt}, 8, v0'); e(f'v_add_u32 v{vAt}, s{sT0}, v{vAt}'); e(f'v_mov_b32 v{vAt+1}, 1')
        e(f'buffer_store_dword v{vTch+1}, v{vFP}, {WSr}, 0 offen sc1', tag='QKV')
        r0 = Rec(); att.att_ids(r0); PZ = 168
        r0.e(f's_lshl_b32 s{sOp}, s{sRG}, 1'); r0.e(f's_add_u32 s{sOp}, s{sOp}, s{sHH}'); r0.e(f's_mul_i32 s{sOo}, s{sOp}, 9216'); r0.e(f's_add_u32 s{sOo}, s{sOo}, {WS_O}')
        r0.e(f's_xor_b32 s{sOp}, s{sOp}, 1'); r0.e(f's_mul_i32 s{sOp}, s{sOp}, 9216'); r0.e(f's_add_u32 s{sOp}, s{sOp}, {WS_O}')
        r0.e(f's_mul_i32 s{sSpin}, s{sW}, 2304'); r0.e(f's_add_u32 s{sSpin}, s{sSpin}, s{sOo}')
        for i in range(4): r0.e(f'v_mov_b32 v{PZ+i}, -1')
        r0.e(f'v_lshlrev_b32 v{PZ+4}, 2, v0')
        for cp in range(2 if O2 else 1):
            if cp: r0.e(f's_add_u32 s{sSpin}, s{sSpin}, {OD}')
            r0.e(f'buffer_store_dwordx4 v[{PZ}:{PZ+3}], v{vL16}, {WSr}, s{sSpin} offen sc1')
            r0.e(f'buffer_store_dwordx4 v[{PZ}:{PZ+3}], v{vL16}, {WSr}, s{sSpin} offen offset:1024 sc1')
            r0.e(f'buffer_store_dword v{PZ}, v{PZ+4}, {WSr}, s{sSpin} offen offset:2048 sc1')
        if O2: r0.e(f's_add_u32 s{sOo2}, s{sOo}, {OD}'); r0.e(f's_mov_b32 s{sOp2}, s{sOp}'); r0.e(f's_add_u32 s{sOp}, s{sOp}, {OD}')
        i0 = next(i for i, t in enumerate(r0.l) if t.startswith('v_mov')); i1 = 1 + max(i for i, t in enumerate(r0.l) if 'store' in t)
        for t in r0.l[:i0] + r0.l[i1:]: e(t.replace(f's{sSpin}', f's{sPz}'))
        poison.extend(t.replace(f's{sSpin}', f's{sPz}').replace(f'v{PZ+4}', f'v{vPz}') for t in r0.l[i0:i1])
        e(f'v_readfirstlane_b32 s{sFn}, v{vFP}')
    cfg['setup_extra'] = setup_extra

    def kv_unit(i, n=4):
        if n == 4:
            return [(f's_add_u32 m0, s{sMb}, {16384 * i}', None), (f's_add_u32 s{sso}, s{sKVs}, {16384 * i}', None)] + \
               [(f'buffer_load_dwordx4 v{vL16}, {WSr}, s{sso} offen' + (f' offset:{1024 * q}' if q else '') + ' lds', 'KV') for q in range(4)]
        return [(f's_lshr_b32 s{sso}, s{sMb}, 2', None), (f's_add_u32 m0, s{sso}, {16384 * i}', None), (f's_add_u32 s{sso}, s{sso}, {WS_KV + 16384 * i}', None),
                (f'buffer_load_dwordx4 v{vL16}, {WSr}, s{sso} offen lds', 'KV')]

    cfg.setdefault('kv_at', [4, 5, 6, 7, 8])
    cfg['extra_units'] = {}
    for i in range(5): cfg['extra_units'].setdefault(BQ + cfg['kv_at'][i], []).extend(kv_unit(i))
    quads = [f'a[{4*i}:{4*i+3}]' for i in list(range(36, 64)) + list(range(36))] + [f'v[{r}:{r+3}]' for r in (4, 8, 12, 16, 168)]
    nearly = len(quads)
    quads += [f'v[{PBUF+4*i}:{PBUF+4*i+3}]' for i in range(NPB)] + [f'v[{r}:{r+3}]' for r in (SEL, SEL + 4, SELX)]
    nmid = len(quads)
    quads += [f'v[{r}:{r+3}]' for r in (76, 80, 84, 88, 92, 104, 108, 120, 124)]
    NWO = 82; vR = (vR0, vR1, vR2)
    def wo_load(f):
        half, r = divmod(f, 41); g, i = divmod(r, 9); out = []
        hreg = (sH0, sH1)[half]
        if i == 0:
            if g == 0: out.append(f's_add_u32 s{sLd}, s{sWo}, s{hreg}')
            elif g < 4: out.append(f's_add_u32 s{sLd}, s{sLd}, 18432')
            else: out.append(f's_add_u32 s{sLd}, s{sWx}, s{hreg}')
        vo = vLO if (g == 4 and i == 4) else vR[i // 4]
        out.append(f'buffer_load_dwordx4 {quads[f]}, v{vo}, {WSr}, s{sLd} offen' + (f' offset:{1024 * (i % 4)}' if i % 4 else ''))
        return out
    NWB = cfg.get('nwb', 0)
    def sched_extra(S, p):
        r = Rec(); e = r.e
        r0 = Rec(); srd(r0, SRD_DBG, P_DBG, 256)
        q0_ = max(288 * cfg.get('kS', 2) + 146, cfg.get('defer', 0) + 40)
        for o in S.chain(r0.l, q0_, q0_ + 70, tight=False):
            if 'store' in o.text: o.tag = 'QKV'; o.cost = 2
        kS = cfg.get('kS', 2)
        e(f's_add_u32 s{sKVs}, s{sMb}, {WS_KV}')
        e(f's_mul_i32 s{sT0}, s{sHH}, 9'); e(f's_lshl_b32 s{sT1}, s{sW}, 1'); e(f's_add_u32 s{sT1}, s{sT1}, s{sT0}')
        e(f's_lshr_b32 s{sPb}, s{sRG}, 3'); e(f's_mul_i32 s{sPb}, s{sPb}, {16 * 147456}')
        e(f's_lshl_b32 s{sT2}, s{sT1}, 13'); e(f's_add_u32 s{sPb}, s{sPb}, s{sT2}')
        e(f's_and_b32 s{sT2}, s{sRG}, 7'); e(f's_lshl_b32 s{sT2}, s{sT2}, 10'); e(f's_add_u32 s{sPb}, s{sPb}, s{sT2}')
        e(f's_lshl_b32 s{sT0}, s{sHH}, 4'); e(f's_lshl_b32 s{sT1}, s{sW}, 2'); e(f's_add_u32 s{sT0}, s{sT0}, s{sT1}')
        e(f's_lshl_b32 s{sT0}, s{sT0}, 11'); e(f's_lshl_b32 s{sT1}, s{sRG}, 4'); e(f's_add_u32 s{sT0}, s{sT0}, s{sT1}')
        e(f'v_bfe_u32 v{vT+4}, v0, 4, 1'); e(f'v_and_b32 v{vGt}, 15, v0'); e(f'v_lshl_add_u32 v{vT+4}, v{vT+4}, 11, v{vGt}')
        e(f'v_lshrrev_b32 v{vT+6}, 5, v0'); e(f'v_lshlrev_b32 v{vT+5}, 5, v{vT+4}'); e(f'v_lshl_add_u32 v{vT+5}, v{vT+6}, 4, v{vT+5}')
        e(f'v_lshlrev_b32 v{vT+4}, 2, v{vT+4}'); e(f'v_lshlrev_b32 v{vGt}, 2, v{vGt}')
        e(f's_lshl_b32 s16, s{sT0}, 5'); e(f's_add_u32 s16, s16, {WS_QM}'); e(f's_add_u32 s17, s16, {2 * 65536}')
        e(f's_lshl_b32 s18, s{sT0}, 2'); e(f's_add_u32 s18, s18, {WS_QX}'); e(f's_add_u32 s19, s18, {2 * 8192}')
        e(f's_lshl_b32 s20, s{sRG}, 6'); e(f's_add_u32 s20, s20, {WS_G}')
        kv = [o for o in S.ops if getattr(o, 'call', False) and o.text.__name__ == 'kv_block']
        S.chain(r.l, 288 * kS + 300, 288 * kS + 288 + 146, deps=kv)
        r = Rec(); e = r.e
        srd(r, SRD_OUT, P_OUT, 2048 * 1152)
        k23.sel_frags(r, SEL, vT, True)
        e(f's_bitcmp1_b32 s{sW}, 0 | s_cselect_b64 vcc, -1, 0')
        for i in range(4): e(f'v_cndmask_b32 v{SELX+i}, v{SEL+i}, v{SEL+4+i}, vcc')
        e(f's_mul_i32 s{sT0}, s{sHH}, 9'); e(f's_lshl_b32 s{sT1}, s{sW}, 1'); e(f's_add_u32 s{sT1}, s{sT1}, s{sT0}')
        e(f's_mul_i32 s{sWo}, s{sT1}, 36864'); e(f's_add_u32 s{sWo}, s{sWo}, {WS_WO}')
        e(f's_add_u32 s{sT0}, s{sT0}, 8'); e(f's_mul_i32 s{sWx}, s{sT0}, 36864'); e(f's_and_b32 s{sT2}, s{sW}, 1'); e(f's_mul_i32 s{sT2}, s{sT2}, 18432')
        e(f's_add_u32 s{sWx}, s{sWx}, s{sT2}'); e(f's_add_u32 s{sWx}, s{sWx}, {WS_WO}')
        e(f's_sub_u32 s{sT0}, s{sT0}, s{sT1}'); e(f's_lshl_b32 s{sT0}, s{sT0}, 13'); e(f's_and_b32 s{sT2}, s{ffn.sHF}, 147456'); e(f's_add_u32 s{sT0}, s{sT0}, s{sT2}')
        e(f'v_add_u32 v{vLX}, s{sT0}, v{vL16}'); e(f'v_add_u32 v{vL2}, 8192, v{vL16}')
        e(f's_and_b32 s{sT2}, s{ffn.sHF}, 5120'); e(f'v_add_u32 v{vR0}, s{sT2}, v{vL16}')
        e(f's_andn2_b32 s{sT2}, 4096, s{ffn.sHF}'); e(f'v_add_u32 v{vR1}, s{sT2}, v{vL16}'); e(f'v_add_u32 v{vR2}, 4096, v{vR1}')
        e(f's_and_b32 s{sT2}, s{ffn.sHF}, {OOB}'); e(f'v_add_u32 v{vLO}, s{sT2}, v{vR1}')
        e(f'v_mov_b32 v{vG}, 1'); e(f's_mov_b32 s{att.sPerm}, 0x07060302'); e(f's_mul_i32 s{sH0}, s{sHH}, 9216'); e(f's_sub_u32 s{sH1}, 9216, s{sH0}')
        att.att_addrs(r, cfg)
        e(f's_lshr_b32 s{sT0}, s{sRG}, 3'); e(f's_lshl_b32 s{sT0}, s{sT0}, 6'); e(f's_add_u32 s{sT0}, s{sT0}, {WS_FL}')
        e(f'v_and_b32 v{vPa}, 48, v0'); e(f'v_lshlrev_b32 v{vPa}, 22, v{vPa}'); e(f'v_lshl_add_u32 v{vPa}, v0, 2, v{vPa}'); e(f'v_add_u32 v{vPa}, s{sT0}, v{vPa}')
        e(f's_and_b32 s{sFn}, s{sFn}, 0xfffffff'); e(f's_xor_b32 s{sFn}, s{sFn}, 64'); e(f'v_writelane_b32 v{vPa}, s{sFn}, 16')
        def mk(t):
            if ' | ' not in t: return t
            def f():
                for x in t.split(' | '): p.e(x)
            return f
        ch = S.chain([mk(t) for t in r.l], cfg.get('rq', 1700), NQ - 60, tight=False)
        for o in ch:
            if callable(o.text): o.call = True; o.cost = 2
        S.fix(qb(cfg['up'](BS)) + 4, f'buffer_atomic_add v{vAt+1}, v{vAt}, s[{SRD_DBG}:{SRD_DBG+3}], 0 offen sc1')
        DB = f's[{SRD_DBG}:{SRD_DBG+3}]'
        S.fix(qb(BP) - cfg.get('poll_lead', 110), f'buffer_load_dword v{vPoll}, v{vPa}, {DB}, 0 offen sc1')
        S.fix(qb(BP) - 2, lambda: ool.append(poll(p, 'PK', DB, 64, 15, True)), cost=4)
        QM = att.QM
        ql = [f'buffer_load_dword v{vT+6}, v{vT+4}, {WSr}, s18 offen sc1', f'buffer_load_dword v{vT+7}, v{vT+4}, {WSr}, s19 offen sc1',
              f'buffer_load_dword v{vGt}, v{vGt}, {WSr}, s20 offen sc1',
              f'buffer_load_dwordx4 v[{QM}:{QM+3}], v{vT+5}, {WSr}, s16 offen sc1', f'buffer_load_dwordx4 v[{QM+4}:{QM+7}], v{vT+5}, {WSr}, s17 offen sc1']
        q_l = cfg.get('ql', 1580); assert q_l > qb(BP) and q_l + 3 * cfg.get('qd', 4) >= 1580
        for i, t in enumerate(ql): S.add(Op(t, 2, start=q_l + cfg.get('qd', 4) * i, end=q_l + 10 + cfg.get('qd', 4) * i))
        prev = []; g0 = qb(BQ) + 4; dg = (NQ - 12 - g0) // max(NWB, 1)
        for f in range(NWB):
            for t in wo_load(f):
                ld_ = 'load' in t
                prev = [S.add(Op(t, 2 if ld_ else 1, prev, g0 + dg * f - (0 if ld_ else 3), g0 + dg * f + dg))]
        r3 = Rec(); att.q_variants(r3)
        r3.e(f'v_mul_f32 v{vGt}, {f2u(-math.log2(math.e))}, v{vGt}'); r3.e(f'v_exp_f32 v{vGt}, v{vGt}'); r3.e(f'v_add_f32 v{vGt}, 1.0, v{vGt}'); r3.e(f'v_rcp_f32 v{vGt}, v{vGt}')
        r3.l += [t for t in poison if t.startswith('v_')]
        S.chain(r3.l, NQ - 36, NQ - 2, tight=False)
    cfg['sched_extra'] = sched_extra

    def pre_tail(p):
        pf.start()
        p.wait(vmtags=['KV'], lg0=True); p.e('s_barrier')
        pf.save(70)
        p.e(att.rdKX(0)); p.e(att.rdKM(0)); p.e(att.rdV(0, 0)); p.e(att.rdV(0, 1))
    cfg['pre_tail'] = pre_tail
    SA, SB, OA, OB = att.SA, att.SB, att.OA, att.OB
    def mid_tail(p):
        p.c('ATT'); e(att.qkx(0, 0, SA)); e(att.mf32(SA, att.KM, att.QM, att.vr(SA)))
    cfg['mid_tail'] = mid_tail
    ffn.gen_ffn(p, cfg, pf)

    X = {}
    def at(hs, tk, item, tag=None): X.setdefault((hs, tk), []).append((item, tag))
    SL = [(2 * (i // 4) + (1 if i % 4 else 0), ('x1', 'x0', 'x2', 'x3')[i % 4]) for i in range(256)]
    used = [0] * 256
    def put(item, lo, vm, tag=None, hi=None):
        i = lo
        while i < 256 and (used[i] or (vm and i % 4 == 0)):
            if hi is not None and i >= hi: break
            i += 1
        if i >= 256: return None
        used[i] += 1; at(*SL[i], item, tag); return i
    def stream(groups, lo, pace, tagf=None, gate=None):
        pos = []; prev = lo - 1
        for n, grp in enumerate(groups):
            s0 = max(prev + 1, lo + int(n * pace), gate(n) if gate else 0)
            i = s0
            while i < 256 and (used[i] or i % 4 == 0): i += 1
            if i >= 256: break
            for t in grp[:-1]:
                c = [k for k in range(max(prev + 1, 0), i) if not used[k] and k % 4 == 0]
                k = c[-1] if c else (prev if prev >= 0 and n else i)
                used[k] += 1; at(*SL[k], t); prev = k
            used[i] += 1; at(*SL[i], grp[-1], tagf(n) if tagf else None); prev = i; pos.append(i)
        return pos
    def groups_of(lst):
        out = []; cur = []
        for t in lst:
            cur.append(t)
            if t.startswith('buffer_'): out.append(cur); cur = []
        return out
    BBA, BPL, BPC, LAG = cfg.get('bba', 17), cfg.get('bpl', 27), cfg.get('bpc', 30), cfg.get('lag', 4)
    def skew(L):
        if cfg.get('skew'):
            for w_ in range(3):
                e(f's_cmp_le_u32 s{sW}, {w_}'); e(f's_cbranch_scc1 {L}'); e(f's_nop {cfg["skew"]}')
            p.label(L)
    skew('SK0')
    def bar_a():
        p.wait(vmtags=['KV', 'PART']); e('s_barrier'); skew('SK1')
        e(f'buffer_store_dword v{vG}, v{vFP}, {WSr}, 0 offen sc1')
    put(bar_a, 4 * BBA + 1, True)
    put(f'buffer_load_dword v{vPoll}, v{vPa}, {WSr}, 0 offen sc1', 4 * BPL + 1, True)
    put(lambda: ool.append(poll(p, 'PP', WSr, 1, 0x1ffff, True)), 4 * BPC + 3, True)
    if cfg.get('otouch', 1) and O2:
        def otouch():
            e(f'v_min_u32 v{vPz}, 17, v0'); e(f'v_lshlrev_b32 v{vPz}, 7, v{vPz}')
            e(f'buffer_load_dword v{ffn.vDum}, v{vPz}, {WSr}, s{sPz} offen sc1').dst = set()
        put(otouch, 4 * cfg.get('bot', 56) + 1, True)
    ps = stream(groups_of(sum(cfg['deferred'], [])), 0, cfg.get('dpace', 3), lambda n: 'PART')
    pk = stream(groups_of([t for i in range(5, 10) for t, tag in kv_unit(i, 4 if i < 9 else 1)]), 0, 1, lambda n: 'KV')
    pz = stream(groups_of([t for t in poison if not t.startswith('v_')]), 0, 1, lambda n: 'PART')
    assert max(ps + pk + pz) < 4 * BBA
    PL = [(sl, j) for sl in range(16) for j in range(3) if j < 2 or sl % 2 == 0]; NP_ = len(PL)
    pg = []
    for i, (sl, j) in enumerate(PL):
        buf = PBUF + 4 * (i % NPB)
        pg.append(([f's_add_u32 s{sPb}, s{sPb}, 147456'] if j == 0 and sl else []) +
                  [f'buffer_load_dwordx4 v[{buf}:{buf+3}], v{(vL16, vL2, vLX)[j]}, {WSr}, s{sPb} offen sc1'])
    pp_ = stream(pg, 4 * BPC + 4, cfg.get('ppace', 2.4), lambda n: ('PL', n))
    cons = [0] * NP_; yq = {}
    for i, (sl, j) in enumerate(PL):
        buf = PBUF + 4 * (i % NPB); b_ = pp_[i] // 4 + LAG; cons[i] = b_
        for ti in range(2 if j < 2 else 1):
            d = BACC + 8 * j + 4 * ti; A = SELX if j == 2 else SEL + 4 * ti
            yq.setdefault(b_, []).append(mf16(d, f'v[{A}:{A+3}]', f'v[{buf}:{buf+3}]', '0' if sl == 0 else f'v[{d}:{d+3}]'))
    for b_, lst in yq.items():
        assert len(lst) <= 4 and b_ < 63
        tags = [('PL', i) for i in range(NP_) if cons[i] == b_]
        used[4 * b_] += 1; at(*SL[4 * b_], lambda tags=tags: p.wait(vmtags=tags))
        for n, t in enumerate(lst): at(2 * b_ + n // 2, f'y{n & 1}', t)
    for i in range(NPB, NP_): assert pp_[i] >= 4 * cons[i - NPB] + 3, (i, pp_[i], cons[i - NPB])
    lastuse = [max(cons[i] for i in range(NP_) if i % NPB == k) for k in range(NPB)] + [max(cons)] * 3
    order = sorted(range(NPB + 3), key=lambda k: lastuse[k])
    quads[nearly:nmid] = [quads[nearly + k] for k in order]
    pw = stream([wo_load(f) for f in range(NWB, min(nmid, NWO))], 0, cfg.get('wpace', 1), None,
                gate=lambda n: 0 if NWB + n < nearly else 4 * lastuse[order[NWB + n - nearly]] + 3)
    f = NWB + len(pw)
    print('wo loads in loop', f, 'slots used', sum(1 for u in used if u), 'shared', sum(1 for u in used if u > 1))
    def extra(hs, tk):
        for item, tag in X.pop((hs, tk), []):
            if callable(item): item()
            else: e(item, tag=tag)
    base = 0
    for b in range(64):
        if b and b % 16 == 0:
            for a in (att.vAK, att.vAV): e(f'v_add_u32 v{a}, {2 * KVG}, v{a}')
            base += 2 * KVG
        for t in range(2): att.half_step(p, b, t, base, cfg, extra, line=True)
        if b % 16 == 15: pf.stamp(71 + b // 16)
        if cfg.get('astamp') and b % 4 == 3 and b % 16 != 15: pf.stamp(105 + b // 4)
    assert not X, X.keys()
    e(att.mf32(OB, att.VV + 12, att.PP + 4, att.vr(OB)))
    vO1, vO2, vO3, vOut = 1, 2, 3, 20
    e(f's_lshl_b32 s{sT0}, s{sW}, 11'); e(f'v_add_u32 v{vO1}, s{sT0}, v{vL16}')
    e(f'v_and_b32 v{vO2}, 15, v0'); e(f'v_lshlrev_b32 v{vO2}, 4, v{vO2}'); e(f'v_bfe_u32 v{vO3}, v0, 4, 1'); e(f'v_lshl_add_u32 v{vO2}, v{vO3}, 2, v{vO2}')
    e(f's_lshl_b32 s{sT0}, s{sW}, 8'); e(f's_add_u32 s{sT0}, s{sT0}, 8192'); e(f'v_add_u32 v{vO2}, s{sT0}, v{vO2}')
    e(f'v_lshrrev_b32 v{vO3}, 5, v0'); e(f'v_lshl_add_u32 v{vOut}, v{vO3}, 20, v{vO2}'); e(f'v_lshl_add_u32 v{vO2}, v{vO3}, 29, v{vO2}'); e(f'v_add_u32 v{vOut}, {LDS_O}, v{vOut}')
    att.att_check(p, 'A', cfg, 'test')
    quads[f:NWO] = quads[nmid:nmid + NWO - f]
    OUTr = f's[{SRD_OUT}:{SRD_OUT+3}]'; of_ = cfg.get('outf', '')
    e(f'v_rcp_f32 v{vT}, v{vT}'); e(f'v_rcp_f32 v{vT+2}, v{vT+2}')
    e(f'v_add_u32 v{vO3}, {LDS_O}, v{vO1}')
    e(f'v_mul_f32 v{vT}, v{vT}, v{vGt}'); e(f'v_mul_f32 v{vT+2}, v{vT+2}, v{vGt}')
    for t, O in ((0, OA), (1, OB)):
        for i in range(10): e(f'v_mul_f32 v{O+i}, v{O+i}, v{vT+2*t}')
        for i in range(5): e(f'v_cvt_pk_bf16_f32 v{O+i}, v{O+2*i}, v{O+2*i+1}')
        so_, fl_ = (sOo2, '') if O2 else (sOo, 'sc1')
        e(f'buffer_store_dwordx4 v[{O}:{O+3}], v{vO1}, {WSr}, s{so_} offen offset:{1024 * t} {fl_}')
        e(f'buffer_store_dword v{O+4}, v{vO2}, {WSr}, s{so_} offen offset:{8 * t} {fl_}')
        e(f'ds_write_b128 v{vO3}, v[{O}:{O+3}] offset:{1024 * t}'); e(f'ds_write_b32 v{vOut}, v{O+4} offset:{8 * t}')
    e(f'v_sub_f32 v{vGt}, 1.0, v{vGt}')
    for i in range(3): e(f'v_add_u32 v{vT+4+i}, {LDS_O}, v{vR[i]}')
    e('s_waitcnt lgkmcnt(0)'); e('s_barrier')
    pf.stamp(75)
    OF, XR_ = 24, 60; OGq = [128, 132, 136, 140, 144, 148, 64, 68, 72]; OFq = [OF + 4 * i for i in range(9)]
    for i in range(9): e(f'ds_read_b128 v[{OF+4*i}:{OF+4*i+3}], v{vT+4+i//4} offset:{1024 * (i % 4)}')
    for i in range(20): e(f'v_mul_f32 v{BACC+i}, v{BACC+i}, v{vGt}')
    def og_load(i): return f'buffer_load_dwordx4 v[{OGq[i]}:{OGq[i]+3}], v{vR[i // 4]}, {WSr}, s{sOp} offen' + (f' offset:{1024 * (i % 4)}' if i % 4 else '') + ' sc1'
    g_st = [x for t, O in ((0, OA), (1, OB)) for x in (f'buffer_store_dwordx4 v[{O}:{O+3}], v{vO1}, {WSr}, s{sOo} offen offset:{1024 * t} sc1',
                                                    f'buffer_store_dword v{O+4}, v{vO2}, {WSr}, s{sOo} offen offset:{8 * t} sc1')] if O2 else []
    misc = [t for f_ in range(f, NWO) for t in wo_load(f_)] + [
            f'v_and_b32 v{vOut}, 15, v0', f'v_mul_u32_u24 v{vOut}, 1152, v{vOut}', f'v_and_b32 v{vO3}, 48, v0', f'v_add_u32 v{vOut}, v{vOut}, v{vO3}',
            f's_mul_i32 s{sT0}, s{sRG}, 18432', f's_mul_i32 s{sT1}, s{sHH}, 576', f's_add_u32 s{sT0}, s{sT0}, s{sT1}',
            f's_lshl_b32 s{sT1}, s{sW}, 7', f's_add_u32 s{sT1}, s{sT1}, s{sT0}', f's_and_b32 s{sT2}, s{sW}, 1', f's_lshl_b32 s{sT2}, s{sT2}, 3',
            f's_add_u32 s{sT0}, s{sT0}, s{sT2}', f's_and_b32 s{sT2}, s{ffn.sHF}, {OOB}', f'v_add_u32 v{vO3}, s{sT2}, v{vOut}', f's_mov_b32 s{sSpin}, 0']
    LDAT = cfg.get('ldat', 12); n = 0; nl = 0; assert LDAT > 6
    grp = lambda half, g: [mf16(BACC + 4 * g, quads[41 * half + 9 * g + i], f'v[{(OFq, OGq)[half][i]}:{(OFq, OGq)[half][i]+3}]', f'v[{BACC+4*g}:{BACC+4*g+3}]') for i in range(9 if g < 4 else 5)]
    chk = [f'v_max3_u32 v{vT}, v{OGq[i//2]+2*(i&1)}, v{OGq[i//2]+2*(i&1)+1}, ' + (f'v{vT}' if i else '0') for i in range(18)]
    ck_ = list(chk); CKAT = cfg.get('ckat', 50)
    for g in range(5):
        for t in grp(0, g):
            e(t); n += 1
            if n >= LDAT and (n - LDAT) % 2 == 0 and nl < 9: e(og_load(nl), tag='OG'); nl += 1
            elif misc: e(misc.pop(0))
            elif nl == 9 and n >= CKAT and ck_:
                if len(ck_) == 18: p.wait(vmtags=['OG'])
                e(ck_.pop(0)); e(ck_.pop(0))
    for t in misc: e(t)
    while nl < 9: e(og_load(nl)); nl += 1
    pf.stamp(76)
    for t in ck_: e(t)
    e(f'v_cmp_eq_u32 vcc, -1, v{vT}'); e('s_cmp_lg_u64 vcc, 0'); e('s_cbranch_scc1 PO_spin')
    p.label('PO_done')
    pf.stamp(77)
    def po_out(q):
        r = q.raw
        q.label('PO_spin')
        for t in g_st: r(t)
        q.label('PO_sp2'); r(f's_add_u32 s{sSpin}, s{sSpin}, 1'); r(f's_cmp_gt_u32 s{sSpin}, 0x8000'); r('s_cbranch_scc1 PO_done')
        if O2:
            r(f's_cmp_lt_u32 s{sSpin}, 4'); r(f's_cselect_b32 s{sT2}, s{sOp}, s{sOp2}'); r(f's_cselect_b32 s{sOp2}, s{sOp2}, s{sOp}'); r(f's_mov_b32 s{sOp}, s{sT2}')
        for i in range(9): r(og_load(i))
        r('s_waitcnt vmcnt(0)')
        for t in chk: r(t)
        r(f'v_cmp_eq_u32 vcc, -1, v{vT}'); r('s_cmp_lg_u64 vcc, 0'); r('s_cbranch_scc1 PO_sp2'); r('s_branch PO_done')
    ool.append(po_out)
    BX = BACC + 16
    cv = lambda d, s_: f'v_cvt_pk_bf16_f32 v{d}, v{s_}, v{s_+1}'
    fl = {13: [f'ds_write_b128 v{vO1}, v[{BX}:{BX+3}]'],
          20: ['s_waitcnt lgkmcnt(0)', 's_barrier'], 21: [f'ds_read_b128 v[{XR_}:{XR_+3}], v{vO2}'],
          22: [cv(BACC, BACC), cv(BACC + 1, BACC + 2)],
          28: [f'v_add_f32 v{BX}, v{BX}, v{XR_}', f'v_add_f32 v{BX+1}, v{BX+1}, v{XR_+1}'], 29: [f'v_add_f32 v{BX+2}, v{BX+2}, v{XR_+2}', f'v_add_f32 v{BX+3}, v{BX+3}, v{XR_+3}'],
          30: [cv(BACC + 2, BACC + 4), cv(BACC + 3, BACC + 6)],
          31: [f'buffer_store_dwordx4 v[{BACC}:{BACC+3}], v{vOut}, {OUTr}, s{sT1} offen {of_}'],
          33: [cv(BX, BX), cv(BX + 1, BX + 2)], 34: [f'buffer_store_dwordx2 v[{BX}:{BX+1}], v{vO3}, {OUTr}, s{sT0} offen offset:512 {of_}'],
          40: [cv(BACC + 8, BACC + 8), cv(BACC + 9, BACC + 10)]}
    for i_, t in enumerate(g_st): fl[1 + 3 * i_] = [t]
    fl[15] = [f'v_xor_b32 v{vO2}, 4096, v{vO1}']
    n = 0
    for g in (4, 0, 1, 2, 3):
        for t in grp(1, g):
            e(t); n += 1
            for x in fl.get(n, []): e(x)
    e(cv(BACC + 10, BACC + 12)); e(cv(BACC + 11, BACC + 14))
    e(f'buffer_store_dwordx4 v[{BACC+8}:{BACC+11}], v{vOut}, {OUTr}, s{sT1} offen offset:64 {of_}')
    return ool

def build(cfg, path):
    name = NAME + '_kernel'
    p = Prog()
    kernel_header(p, name)
    p.e('s_cmp_ge_u32 s2, 256'); p.e('s_cbranch_scc1 K_exit')
    cfg = dict(cfg); cfg.setdefault('codepf', 'K_exit-PCL'); cfg.setdefault('hop', 1)
    pf = Prof(p, 'real' if cfg.get('real') else bool(cfg.get('prof')))
    pf.stamp(100, real=True); pf.stamp(101)
    ool = gen(p, cfg, pf)
    pf.stamp(102)
    if pf.on: p.e('s_waitcnt vmcnt(0)')
    pf.stamp(103); pf.stamp(104, real=True)
    pf.dump(SRD_WS, sW)
    p.label('K_exit'); p.e('s_endpgm')
    for f in ool: f(p)
    p.reset_tracking(); p.auto = False
    att.att_check(p, 'A', cfg, 'fallback')
    if cfg['hop']:
        n0 = len(p.ins)
        for w_ in range(4): p.label(f'PAD{w_}')
        p.e('s_endpgm')
    p.fix_hazards(verbose=cfg.get('verbose', False))
    if cfg['hop']:
        tail = p.ins[-5:]
        sv = p.ins; npad = insert_pads(p, 'MAIN', 'K_exit', 4, 'HOPBACK'); p.ins = p.ins[:-5]; print('pads', npad)
    if cfg.get('align', 0): print('align8 (promoted, still misaligned):', align8(p, cfg.get('maxspan', 3)))
    print('instrs', len(p.ins), 'nops added', p.nops_added)
    hdr = '''; One persistent launch, 256 workgroups (one per CU) x 4 waves x 512 registers. Generated by the author's own scripts.
;  phase D : output projection with the partner workgroup's heads (tagged hand-off), gate mix, store.
; Hand-offs: write-through stores, counters in d_debug, flags/tags in d_ws initialised inside the launch; all spins are bounded.'''
    txt = ['; @launch grid=(256,1,1) block=(256,1,1) lds=163840', hdr, '.amdgcn_target "amdgcn-amd-amdhsa--gfx950"', '.text', p.text(),
           '.section .rodata,"a"', descriptor(name, 512, acc=256)]
    open(path, 'w').write('\n'.join(txt))
if __name__ == '__main__':
    build(eval(sys.argv[2]) if len(sys.argv) > 2 else {}, sys.argv[1])
```

```python
import sys
from common import *
import ffn, att, k23
from ffn import sW, sT0, sT1, sT2, SRD_WS, SRD_X, vL16, KVG, KVB, sMb, sso, NQ

att.sRG, att.sHH = 6, 7
att.PP, att.KM, att.VV, att.KX = 24, 32, 40, 56
att.SA, att.SB, att.OA, att.OB = 64, 80, 96, 112
att.QM, att.QX = 128, 136
SEL, SELX = 152, 160
att.vAK, att.vAV = 164, 165
vG, vPoll, vTch = 166, 252, 240
att.vT = 236
BACC = 172
PBUF, NPB = 192, 11
vFP, vFO = 244, 245
vL2, vLX, vLO, vPa = 246, 247, 248, 249
vR0, vR1, vR2, vGt = 245, 250, 167, 251
sH0, sH1 = 8, 15
sRG, sHH = att.sRG, att.sHH
SRD_OUT, SRD_DBG = 52, 68
vAt = 238
sPb, sWo, sWx, sOo, sOp, sSpin = 74, 75, 76, 77, 78, 79
sPb = 80; sWo = 81; sWx = 82; sOo = 83; sOp = 84; sSpin = 85; sKVs = 86; sLd = 87
LDS_O, LDS_G = 154560, 163776
FLO = 4096
WSr = f's[{SRD_WS}:{SRD_WS+3}]'
mf16 = att.mf16

class Rec:
    def __init__(self): self.l = []
    def e(self, t, **kw): self.l.append(t)

def poll(p, L, srdr, want, mask, first_issued):
    e = p.e
    cmpop = 'le' if want == 64 else 'eq'
    ld = f'buffer_load_dword v{vPoll}, v{vPa}, {srdr}, 0 offen sc1'
    if not first_issued: e(ld)
    e(f'v_cmp_{cmpop}_u32 vcc, {want}, v{vPoll}')
    e(f's_cmp_eq_u32 vcc_lo, {mask}')
    e(f's_cbranch_scc0 {L}_spin')
    p.label(f'{L}_go')
    def out(q):
        r = q.raw
        q.label(f'{L}_spin'); r(f's_mov_b32 s{sSpin}, 0')
        q.label(f'{L}_sp2'); r('s_sleep 8'); r(ld); r(f's_add_u32 s{sSpin}, s{sSpin}, 1'); r('s_waitcnt vmcnt(0)')
        r(f'v_cmp_{cmpop}_u32 vcc, {want}, v{vPoll}')
        r(f's_cmp_gt_u32 s{sSpin}, 0x80000'); r(f's_cbranch_scc1 {L}_go')
        r(f's_cmp_eq_u32 vcc_lo, {mask}'); r(f's_cbranch_scc0 {L}_sp2'); r(f's_branch {L}_go')
    return out

def gen(p, cfg, pf):
    cfg = dict(cfg); cfg.setdefault('stflags', 'sc1'); cfg.setdefault('perm', 1); cfg.setdefault('bars', [(6, 1), (66, 2)]); cfg.setdefault('pfd0', 1000); cfg.setdefault('pfdg', 60); cfg.setdefault('pfm', 16); cfg.setdefault('xcd_m', 4); cfg.setdefault('pfdl', 11); cfg.setdefault('rot', 8); cfg.setdefault('dcost', 1); cfg.setdefault('defer', 728); cfg.setdefault('b0', 12); cfg.setdefault('lps0', 6); cfg.setdefault('late', 16); cfg.setdefault('hwsp', 32); cfg.setdefault('hwd', 0); cfg.setdefault('chain', 5); cfg.setdefault('tpos', [16,17,18,19,21,22,24,25,28,29,30,32,33,35,36,38])
    cfg.setdefault('apat', 'E0 E1 PB rK x0 E2 E3 C0 C1 E4 QX w x1 E5 E6 E7 y0 C2 C3 E8 QM rA x2 E9 E10 E11 y1 C4 C5 E12 PA rB x3 E13 E14 E15 C6 C7')
    BS, BP, BQ = cfg.get('bsig', 36), cfg.get('bpoll', 48), cfg.get('bq', 54)
    assert BP <= 49 and BQ >= BP
    cfg['kvb0'] = BQ; cfg['bar_tags'] = {BS: ['QKV']}
    e = p.e; ool = []; O2 = cfg.get('o2', 1); sOo2, sOp2 = 42, 43; poison = []; sPz, sFn, vPz = 96, 97, 243
    qb = lambda b: 32 * (b - 1) + 15
    vT = att.vT

    def setup_extra(p):
        e = p.e
        e(f'v_cmp_eq_u32 vcc, 0, v0'); e(f'v_mov_b32 v{vFO}, {OOB}'); e(f'v_mov_b32 v{vTch+1}, 0')
        e(f'v_cndmask_b32_e64 v{vFO}, v{vFO}, 0, vcc')
        e(f's_lshl_b32 s{sT0}, s{ffn.sM_}, 6'); e(f's_lshl_b32 s{sT1}, s{ffn.sS}, 2'); e(f's_add_u32 s{sT0}, s{sT0}, s{sT1}')
        e(f's_add_u32 s{sT0}, s{sT0}, {WS_FL}'); e(f's_lshl_b32 s{sT1}, s{sW}, 28'); e(f's_add_u32 s{sT0}, s{sT0}, s{sT1}')
        e(f'v_add_u32 v{vFP}, s{sT0}, v{vFO}')
        e(f's_and_b32 s{sT0}, s2, 3'); e(f's_lshl_b32 s{sT0}, s{sT0}, 6'); e(f's_lshl_b32 s{sT1}, s{sW}, 12'); e(f's_add_u32 s{sT0}, s{sT0}, s{sT1}')
        e(f'v_lshlrev_b32 v{vPa}, 6, v0'); e(f'v_lshlrev_b32 v{vAt}, 8, v0'); e(f'v_add_u32 v{vAt}, s{sT0}, v{vAt}'); e(f'v_mov_b32 v{vAt+1}, 1')
        e(f'buffer_store_dword v{vTch+1}, v{vFP}, {WSr}, 0 offen sc1', tag='QKV')
        r0 = Rec(); att.att_ids(r0); PZ = 168
        r0.e(f's_lshl_b32 s{sOp}, s{sRG}, 1'); r0.e(f's_add_u32 s{sOp}, s{sOp}, s{sHH}'); r0.e(f's_mul_i32 s{sOo}, s{sOp}, 9216'); r0.e(f's_add_u32 s{sOo}, s{sOo}, {WS_O}')
        r0.e(f's_xor_b32 s{sOp}, s{sOp}, 1'); r0.e(f's_mul_i32 s{sOp}, s{sOp}, 9216'); r0.e(f's_add_u32 s{sOp}, s{sOp}, {WS_O}')
        r0.e(f's_mul_i32 s{sSpin}, s{sW}, 2304'); r0.e(f's_add_u32 s{sSpin}, s{sSpin}, s{sOo}')
        for i in range(4): r0.e(f'v_mov_b32 v{PZ+i}, -1')
        r0.e(f'v_lshlrev_b32 v{PZ+4}, 2, v0')
        for cp in range(2 if O2 else 1):
            if cp: r0.e(f's_add_u32 s{sSpin}, s{sSpin}, {OD}')
            r0.e(f'buffer_store_dwordx4 v[{PZ}:{PZ+3}], v{vL16}, {WSr}, s{sSpin} offen sc1')
            r0.e(f'buffer_store_dwordx4 v[{PZ}:{PZ+3}], v{vL16}, {WSr}, s{sSpin} offen offset:1024 sc1')
            r0.e(f'buffer_store_dword v{PZ}, v{PZ+4}, {WSr}, s{sSpin} offen offset:2048 sc1')
        if O2: r0.e(f's_add_u32 s{sOo2}, s{sOo}, {OD}'); r0.e(f's_mov_b32 s{sOp2}, s{sOp}'); r0.e(f's_add_u32 s{sOp}, s{sOp}, {OD}')
        i0 = next(i for i, t in enumerate(r0.l) if t.startswith('v_mov')); i1 = 1 + max(i for i, t in enumerate(r0.l) if 'store' in t)
        for t in r0.l[:i0] + r0.l[i1:]: e(t.replace(f's{sSpin}', f's{sPz}'))
        poison.extend(t.replace(f's{sSpin}', f's{sPz}').replace(f'v{PZ+4}', f'v{vPz}') for t in r0.l[i0:i1])
        e(f'v_readfirstlane_b32 s{sFn}, v{vFP}')
    cfg['setup_extra'] = setup_extra

    def kv_unit(i, n=4):
        if n == 4:
            return [(f's_add_u32 m0, s{sMb}, {16384 * i}', None), (f's_add_u32 s{sso}, s{sKVs}, {16384 * i}', None)] + \
               [(f'buffer_load_dwordx4 v{vL16}, {WSr}, s{sso} offen' + (f' offset:{1024 * q}' if q else '') + ' lds', 'KV') for q in range(4)]
        return [(f's_lshr_b32 s{sso}, s{sMb}, 2', None), (f's_add_u32 m0, s{sso}, {16384 * i}', None), (f's_add_u32 s{sso}, s{sso}, {WS_KV + 16384 * i}', None),
                (f'buffer_load_dwordx4 v{vL16}, {WSr}, s{sso} offen lds', 'KV')]

    cfg.setdefault('kv_at', [4, 5, 6, 7, 8])
    cfg['extra_units'] = {}
    for i in range(5): cfg['extra_units'].setdefault(BQ + cfg['kv_at'][i], []).extend(kv_unit(i))
    quads = [f'a[{4*i}:{4*i+3}]' for i in list(range(36, 64)) + list(range(36))] + [f'v[{r}:{r+3}]' for r in (4, 8, 12, 16, 168)]
    nearly = len(quads)
    quads += [f'v[{PBUF+4*i}:{PBUF+4*i+3}]' for i in range(NPB)] + [f'v[{r}:{r+3}]' for r in (SEL, SEL + 4, SELX)]
    nmid = len(quads)
    quads += [f'v[{r}:{r+3}]' for r in (76, 80, 84, 88, 92, 104, 108, 120, 124)]
    NWO = 82; vR = (vR0, vR1, vR2)
    def wo_load(f):
        half, r = divmod(f, 41); g, i = divmod(r, 9); out = []
        hreg = (sH0, sH1)[half]
        if i == 0:
            if g == 0: out.append(f's_add_u32 s{sLd}, s{sWo}, s{hreg}')
            elif g < 4: out.append(f's_add_u32 s{sLd}, s{sLd}, 18432')
            else: out.append(f's_add_u32 s{sLd}, s{sWx}, s{hreg}')
        vo = vLO if (g == 4 and i == 4) else vR[i // 4]
        out.append(f'buffer_load_dwordx4 {quads[f]}, v{vo}, {WSr}, s{sLd} offen' + (f' offset:{1024 * (i % 4)}' if i % 4 else ''))
        return out
    NWB = cfg.get('nwb', 0)
    def sched_extra(S, p):
        r = Rec(); e = r.e
        r0 = Rec(); srd(r0, SRD_DBG, P_DBG, 256)
        q0_ = max(288 * cfg.get('kS', 2) + 146, cfg.get('defer', 0) + 40)
        for o in S.chain(r0.l, q0_, q0_ + 70, tight=False):
            if 'store' in o.text: o.tag = 'QKV'; o.cost = 2
        kS = cfg.get('kS', 2)
        e(f's_add_u32 s{sKVs}, s{sMb}, {WS_KV}')
        e(f's_mul_i32 s{sT0}, s{sHH}, 9'); e(f's_lshl_b32 s{sT1}, s{sW}, 1'); e(f's_add_u32 s{sT1}, s{sT1}, s{sT0}')
        e(f's_lshr_b32 s{sPb}, s{sRG}, 3'); e(f's_mul_i32 s{sPb}, s{sPb}, {16 * 147456}')
        e(f's_lshl_b32 s{sT2}, s{sT1}, 13'); e(f's_add_u32 s{sPb}, s{sPb}, s{sT2}')
        e(f's_and_b32 s{sT2}, s{sRG}, 7'); e(f's_lshl_b32 s{sT2}, s{sT2}, 10'); e(f's_add_u32 s{sPb}, s{sPb}, s{sT2}')
        e(f's_lshl_b32 s{sT0}, s{sHH}, 4'); e(f's_lshl_b32 s{sT1}, s{sW}, 2'); e(f's_add_u32 s{sT0}, s{sT0}, s{sT1}')
        e(f's_lshl_b32 s{sT0}, s{sT0}, 11'); e(f's_lshl_b32 s{sT1}, s{sRG}, 4'); e(f's_add_u32 s{sT0}, s{sT0}, s{sT1}')
        e(f'v_bfe_u32 v{vT+4}, v0, 4, 1'); e(f'v_and_b32 v{vGt}, 15, v0'); e(f'v_lshl_add_u32 v{vT+4}, v{vT+4}, 11, v{vGt}')
        e(f'v_lshrrev_b32 v{vT+6}, 5, v0'); e(f'v_lshlrev_b32 v{vT+5}, 5, v{vT+4}'); e(f'v_lshl_add_u32 v{vT+5}, v{vT+6}, 4, v{vT+5}')
        e(f'v_lshlrev_b32 v{vT+4}, 2, v{vT+4}'); e(f'v_lshlrev_b32 v{vGt}, 2, v{vGt}')
        e(f's_lshl_b32 s16, s{sT0}, 5'); e(f's_add_u32 s16, s16, {WS_QM}'); e(f's_add_u32 s17, s16, {2 * 65536}')
        e(f's_lshl_b32 s18, s{sT0}, 2'); e(f's_add_u32 s18, s18, {WS_QX}'); e(f's_add_u32 s19, s18, {2 * 8192}')
        e(f's_lshl_b32 s20, s{sRG}, 6'); e(f's_add_u32 s20, s20, {WS_G}')
        kv = [o for o in S.ops if getattr(o, 'call', False) and o.text.__name__ == 'kv_block']
        S.chain(r.l, 288 * kS + 300, 288 * kS + 288 + 146, deps=kv)
        r = Rec(); e = r.e
        srd(r, SRD_OUT, P_OUT, 2048 * 1152)
        k23.sel_frags(r, SEL, vT, True)
        e(f's_bitcmp1_b32 s{sW}, 0 | s_cselect_b64 vcc, -1, 0')
        for i in range(4): e(f'v_cndmask_b32 v{SELX+i}, v{SEL+i}, v{SEL+4+i}, vcc')
        e(f's_mul_i32 s{sT0}, s{sHH}, 9'); e(f's_lshl_b32 s{sT1}, s{sW}, 1'); e(f's_add_u32 s{sT1}, s{sT1}, s{sT0}')
        e(f's_mul_i32 s{sWo}, s{sT1}, 36864'); e(f's_add_u32 s{sWo}, s{sWo}, {WS_WO}')
        e(f's_add_u32 s{sT0}, s{sT0}, 8'); e(f's_mul_i32 s{sWx}, s{sT0}, 36864'); e(f's_and_b32 s{sT2}, s{sW}, 1'); e(f's_mul_i32 s{sT2}, s{sT2}, 18432')
        e(f's_add_u32 s{sWx}, s{sWx}, s{sT2}'); e(f's_add_u32 s{sWx}, s{sWx}, {WS_WO}')
        e(f's_sub_u32 s{sT0}, s{sT0}, s{sT1}'); e(f's_lshl_b32 s{sT0}, s{sT0}, 13'); e(f's_and_b32 s{sT2}, s{ffn.sHF}, 147456'); e(f's_add_u32 s{sT0}, s{sT0}, s{sT2}')
        e(f'v_add_u32 v{vLX}, s{sT0}, v{vL16}'); e(f'v_add_u32 v{vL2}, 8192, v{vL16}')
        e(f's_and_b32 s{sT2}, s{ffn.sHF}, 5120'); e(f'v_add_u32 v{vR0}, s{sT2}, v{vL16}')
        e(f's_andn2_b32 s{sT2}, 4096, s{ffn.sHF}'); e(f'v_add_u32 v{vR1}, s{sT2}, v{vL16}'); e(f'v_add_u32 v{vR2}, 4096, v{vR1}')
        e(f's_and_b32 s{sT2}, s{ffn.sHF}, {OOB}'); e(f'v_add_u32 v{vLO}, s{sT2}, v{vR1}')
        e(f'v_mov_b32 v{vG}, 1'); e(f's_mov_b32 s{att.sPerm}, 0x07060302'); e(f's_mul_i32 s{sH0}, s{sHH}, 9216'); e(f's_sub_u32 s{sH1}, 9216, s{sH0}')
        att.att_addrs(r, cfg)
        e(f's_lshr_b32 s{sT0}, s{sRG}, 3'); e(f's_lshl_b32 s{sT0}, s{sT0}, 6'); e(f's_add_u32 s{sT0}, s{sT0}, {WS_FL}')
        e(f'v_and_b32 v{vPa}, 48, v0'); e(f'v_lshlrev_b32 v{vPa}, 22, v{vPa}'); e(f'v_lshl_add_u32 v{vPa}, v0, 2, v{vPa}'); e(f'v_add_u32 v{vPa}, s{sT0}, v{vPa}')
        e(f's_and_b32 s{sFn}, s{sFn}, 0xfffffff'); e(f's_xor_b32 s{sFn}, s{sFn}, 64'); e(f'v_writelane_b32 v{vPa}, s{sFn}, 16')
        def mk(t):
            if ' | ' not in t: return t
            def f():
                for x in t.split(' | '): p.e(x)
            return f
        ch = S.chain([mk(t) for t in r.l], cfg.get('rq', 1700), NQ - 60, tight=False)
        for o in ch:
            if callable(o.text): o.call = True; o.cost = 2
        S.fix(qb(cfg['up'](BS)) + 4, f'buffer_atomic_add v{vAt+1}, v{vAt}, s[{SRD_DBG}:{SRD_DBG+3}], 0 offen sc1')
        DB = f's[{SRD_DBG}:{SRD_DBG+3}]'
        S.fix(qb(BP) - cfg.get('poll_lead', 110), f'buffer_load_dword v{vPoll}, v{vPa}, {DB}, 0 offen sc1')
        S.fix(qb(BP) - 2, lambda: ool.append(poll(p, 'PK', DB, 64, 15, True)), cost=4)
        QM = att.QM
        ql = [f'buffer_load_dword v{vT+6}, v{vT+4}, {WSr}, s18 offen sc1', f'buffer_load_dword v{vT+7}, v{vT+4}, {WSr}, s19 offen sc1',
              f'buffer_load_dword v{vGt}, v{vGt}, {WSr}, s20 offen sc1',
              f'buffer_load_dwordx4 v[{QM}:{QM+3}], v{vT+5}, {WSr}, s16 offen sc1', f'buffer_load_dwordx4 v[{QM+4}:{QM+7}], v{vT+5}, {WSr}, s17 offen sc1']
        q_l = cfg.get('ql', 1580); assert q_l > qb(BP) and q_l + 3 * cfg.get('qd', 4) >= 1580
        for i, t in enumerate(ql): S.add(Op(t, 2, start=q_l + cfg.get('qd', 4) * i, end=q_l + 10 + cfg.get('qd', 4) * i))
        prev = []; g0 = qb(BQ) + 4; dg = (NQ - 12 - g0) // max(NWB, 1)
        for f in range(NWB):
            for t in wo_load(f):
                ld_ = 'load' in t
                prev = [S.add(Op(t, 2 if ld_ else 1, prev, g0 + dg * f - (0 if ld_ else 3), g0 + dg * f + dg))]
        r3 = Rec(); att.q_variants(r3)
        r3.e(f'v_mul_f32 v{vGt}, {f2u(-math.log2(math.e))}, v{vGt}'); r3.e(f'v_exp_f32 v{vGt}, v{vGt}'); r3.e(f'v_add_f32 v{vGt}, 1.0, v{vGt}'); r3.e(f'v_rcp_f32 v{vGt}, v{vGt}')
        r3.l += [t for t in poison if t.startswith('v_')]
        S.chain(r3.l, NQ - 36, NQ - 2, tight=False)
    cfg['sched_extra'] = sched_extra

    def pre_tail(p):
        pf.start()
        p.wait(vmtags=['KV'], lg0=True); p.e('s_barrier')
        pf.save(70)
        p.e(att.rdKX(0)); p.e(att.rdKM(0)); p.e(att.rdV(0, 0)); p.e(att.rdV(0, 1))
    cfg['pre_tail'] = pre_tail
    SA, SB, OA, OB = att.SA, att.SB, att.OA, att.OB
    def mid_tail(p):
        p.c('ATT'); e(att.qkx(0, 0, SA)); e(att.mf32(SA, att.KM, att.QM, att.vr(SA)))
    cfg['mid_tail'] = mid_tail
    ffn.gen_ffn(p, cfg, pf)

    X = {}
    def at(hs, tk, item, tag=None): X.setdefault((hs, tk), []).append((item, tag))
    SL = [(2 * (i // 4) + (1 if i % 4 else 0), ('x1', 'x0', 'x2', 'x3')[i % 4]) for i in range(256)]
    used = [0] * 256
    def put(item, lo, vm, tag=None, hi=None):
        i = lo
        while i < 256 and (used[i] or (vm and i % 4 == 0)):
            if hi is not None and i >= hi: break
            i += 1
        if i >= 256: return None
        used[i] += 1; at(*SL[i], item, tag); return i
    def stream(groups, lo, pace, tagf=None, gate=None):
        pos = []; prev = lo - 1
        for n, grp in enumerate(groups):
            s0 = max(prev + 1, lo + int(n * pace), gate(n) if gate else 0)
            i = s0
            while i < 256 and (used[i] or i % 4 == 0): i += 1
            if i >= 256: break
            for t in grp[:-1]:
                c = [k for k in range(max(prev + 1, 0), i) if not used[k] and k % 4 == 0]
                k = c[-1] if c else (prev if prev >= 0 and n else i)
                used[k] += 1; at(*SL[k], t); prev = k
            used[i] += 1; at(*SL[i], grp[-1], tagf(n) if tagf else None); prev = i; pos.append(i)
        return pos
    def groups_of(lst):
        out = []; cur = []
        for t in lst:
            cur.append(t)
            if t.startswith('buffer_'): out.append(cur); cur = []
        return out
    BBA, BPL, BPC, LAG = cfg.get('bba', 17), cfg.get('bpl', 27), cfg.get('bpc', 30), cfg.get('lag', 4)
    def skew(L):
        if cfg.get('skew'):
            for w_ in range(3):
                e(f's_cmp_le_u32 s{sW}, {w_}'); e(f's_cbranch_scc1 {L}'); e(f's_nop {cfg["skew"]}')
            p.label(L)
    skew('SK0')
    def bar_a():
        p.wait(vmtags=['KV', 'PART']); e('s_barrier'); skew('SK1')
        e(f'buffer_store_dword v{vG}, v{vFP}, {WSr}, 0 offen sc1')
    put(bar_a, 4 * BBA + 1, True)
    put(f'buffer_load_dword v{vPoll}, v{vPa}, {WSr}, 0 offen sc1', 4 * BPL + 1, True)
    put(lambda: ool.append(poll(p, 'PP', WSr, 1, 0x1ffff, True)), 4 * BPC + 3, True)
    if cfg.get('otouch', 1) and O2:
        def otouch():
            e(f'v_min_u32 v{vPz}, 17, v0'); e(f'v_lshlrev_b32 v{vPz}, 7, v{vPz}')
            e(f'buffer_load_dword v{ffn.vDum}, v{vPz}, {WSr}, s{sPz} offen sc1').dst = set()
        put(otouch, 4 * cfg.get('bot', 56) + 1, True)
    ps = stream(groups_of(sum(cfg['deferred'], [])), 0, cfg.get('dpace', 3), lambda n: 'PART')
    pk = stream(groups_of([t for i in range(5, 10) for t, tag in kv_unit(i, 4 if i < 9 else 1)]), 0, 1, lambda n: 'KV')
    pz = stream(groups_of([t for t in poison if not t.startswith('v_')]), 0, 1, lambda n: 'PART')
    assert max(ps + pk + pz) < 4 * BBA
    PL = [(sl, j) for sl in range(16) for j in range(3) if j < 2 or sl % 2 == 0]; NP_ = len(PL)
    pg = []
    for i, (sl, j) in enumerate(PL):
        buf = PBUF + 4 * (i % NPB)
        pg.append(([f's_add_u32 s{sPb}, s{sPb}, 147456'] if j == 0 and sl else []) +
                  [f'buffer_load_dwordx4 v[{buf}:{buf+3}], v{(vL16, vL2, vLX)[j]}, {WSr}, s{sPb} offen sc1'])
    pp_ = stream(pg, 4 * BPC + 4, cfg.get('ppace', 2.4), lambda n: ('PL', n))
    cons = [0] * NP_; yq = {}
    for i, (sl, j) in enumerate(PL):
        buf = PBUF + 4 * (i % NPB); b_ = pp_[i] // 4 + LAG; cons[i] = b_
        for ti in range(2 if j < 2 else 1):
            d = BACC + 8 * j + 4 * ti; A = SELX if j == 2 else SEL + 4 * ti
            yq.setdefault(b_, []).append(mf16(d, f'v[{A}:{A+3}]', f'v[{buf}:{buf+3}]', '0' if sl == 0 else f'v[{d}:{d+3}]'))
    for b_, lst in yq.items():
        assert len(lst) <= 4 and b_ < 63
        tags = [('PL', i) for i in range(NP_) if cons[i] == b_]
        used[4 * b_] += 1; at(*SL[4 * b_], lambda tags=tags: p.wait(vmtags=tags))
        for n, t in enumerate(lst): at(2 * b_ + n // 2, f'y{n & 1}', t)
    for i in range(NPB, NP_): assert pp_[i] >= 4 * cons[i - NPB] + 3, (i, pp_[i], cons[i - NPB])
    lastuse = [max(cons[i] for i in range(NP_) if i % NPB == k) for k in range(NPB)] + [max(cons)] * 3
    order = sorted(range(NPB + 3), key=lambda k: lastuse[k])
    quads[nearly:nmid] = [quads[nearly + k] for k in order]
    pw = stream([wo_load(f) for f in range(NWB, min(nmid, NWO))], 0, cfg.get('wpace', 1), None,
                gate=lambda n: 0 if NWB + n < nearly else 4 * lastuse[order[NWB + n - nearly]] + 3)
    f = NWB + len(pw)
    print('wo loads in loop', f, 'slots used', sum(1 for u in used if u), 'shared', sum(1 for u in used if u > 1))
    def extra(hs, tk):
        for item, tag in X.pop((hs, tk), []):
            if callable(item): item()
            else: e(item, tag=tag)
    base = 0
    for b in range(64):
        if b and b % 16 == 0:
            for a in (att.vAK, att.vAV): e(f'v_add_u32 v{a}, {2 * KVG}, v{a}')
            base += 2 * KVG
        for t in range(2): att.half_step(p, b, t, base, cfg, extra, line=True)
        if b % 16 == 15: pf.stamp(71 + b // 16)
        if cfg.get('astamp') and b % 4 == 3 and b % 16 != 15: pf.stamp(105 + b // 4)
    assert not X, X.keys()
    e(att.mf32(OB, att.VV + 12, att.PP + 4, att.vr(OB)))
    vO1, vO2, vO3, vOut = 1, 2, 3, 20
    e(f's_lshl_b32 s{sT0}, s{sW}, 11'); e(f'v_add_u32 v{vO1}, s{sT0}, v{vL16}')
    e(f'v_and_b32 v{vO2}, 15, v0'); e(f'v_lshlrev_b32 v{vO2}, 4, v{vO2}'); e(f'v_bfe_u32 v{vO3}, v0, 4, 1'); e(f'v_lshl_add_u32 v{vO2}, v{vO3}, 2, v{vO2}')
    e(f's_lshl_b32 s{sT0}, s{sW}, 8'); e(f's_add_u32 s{sT0}, s{sT0}, 8192'); e(f'v_add_u32 v{vO2}, s{sT0}, v{vO2}')
    e(f'v_lshrrev_b32 v{vO3}, 5, v0'); e(f'v_lshl_add_u32 v{vOut}, v{vO3}, 20, v{vO2}'); e(f'v_lshl_add_u32 v{vO2}, v{vO3}, 29, v{vO2}'); e(f'v_add_u32 v{vOut}, {LDS_O}, v{vOut}')
    att.att_check(p, 'A', cfg, 'test')
    quads[f:NWO] = quads[nmid:nmid + NWO - f]
    OUTr = f's[{SRD_OUT}:{SRD_OUT+3}]'; of_ = cfg.get('outf', '')
    e(f'v_rcp_f32 v{vT}, v{vT}'); e(f'v_rcp_f32 v{vT+2}, v{vT+2}')
    e(f'v_add_u32 v{vO3}, {LDS_O}, v{vO1}')
    e(f'v_mul_f32 v{vT}, v{vT}, v{vGt}'); e(f'v_mul_f32 v{vT+2}, v{vT+2}, v{vGt}')
    for t, O in ((0, OA), (1, OB)):
        for i in range(10): e(f'v_mul_f32 v{O+i}, v{O+i}, v{vT+2*t}')
        for i in range(5): e(f'v_cvt_pk_bf16_f32 v{O+i}, v{O+2*i}, v{O+2*i+1}')
        so_, fl_ = (sOo2, '') if O2 else (sOo, 'sc1')
        e(f'buffer_store_dwordx4 v[{O}:{O+3}], v{vO1}, {WSr}, s{so_} offen offset:{1024 * t} {fl_}')
        e(f'buffer_store_dword v{O+4}, v{vO2}, {WSr}, s{so_} offen offset:{8 * t} {fl_}')
        e(f'ds_write_b128 v{vO3}, v[{O}:{O+3}] offset:{1024 * t}'); e(f'ds_write_b32 v{vOut}, v{O+4} offset:{8 * t}')
    e(f'v_sub_f32 v{vGt}, 1.0, v{vGt}')
    for i in range(3): e(f'v_add_u32 v{vT+4+i}, {LDS_O}, v{vR[i]}')
    e('s_waitcnt lgkmcnt(0)'); e('s_barrier')
    pf.stamp(75)
    OF, XR_ = 24, 60; OGq = [128, 132, 136, 140, 144, 148, 64, 68, 72]; OFq = [OF + 4 * i for i in range(9)]
    for i in range(9): e(f'ds_read_b128 v[{OF+4*i}:{OF+4*i+3}], v{vT+4+i//4} offset:{1024 * (i % 4)}')
    for i in range(20): e(f'v_mul_f32 v{BACC+i}, v{BACC+i}, v{vGt}')
    def og_load(i): return f'buffer_load_dwordx4 v[{OGq[i]}:{OGq[i]+3}], v{vR[i // 4]}, {WSr}, s{sOp} offen' + (f' offset:{1024 * (i % 4)}' if i % 4 else '') + ' sc1'
    g_st = [x for t, O in ((0, OA), (1, OB)) for x in (f'buffer_store_dwordx4 v[{O}:{O+3}], v{vO1}, {WSr}, s{sOo} offen offset:{1024 * t} sc1',
                                                    f'buffer_store_dword v{O+4}, v{vO2}, {WSr}, s{sOo} offen offset:{8 * t} sc1')] if O2 else []
    misc = [t for f_ in range(f, NWO) for t in wo_load(f_)] + [
            f'v_and_b32 v{vOut}, 15, v0', f'v_mul_u32_u24 v{vOut}, 1152, v{vOut}', f'v_and_b32 v{vO3}, 48, v0', f'v_add_u32 v{vOut}, v{vOut}, v{vO3}',
            f's_mul_i32 s{sT0}, s{sRG}, 18432', f's_mul_i32 s{sT1}, s{sHH}, 576', f's_add_u32 s{sT0}, s{sT0}, s{sT1}',
            f's_lshl_b32 s{sT1}, s{sW}, 7', f's_add_u32 s{sT1}, s{sT1}, s{sT0}', f's_and_b32 s{sT2}, s{sW}, 1', f's_lshl_b32 s{sT2}, s{sT2}, 3',
            f's_add_u32 s{sT0}, s{sT0}, s{sT2}', f's_and_b32 s{sT2}, s{ffn.sHF}, {OOB}', f'v_add_u32 v{vO3}, s{sT2}, v{vOut}', f's_mov_b32 s{sSpin}, 0']
    LDAT = cfg.get('ldat', 12); n = 0; nl = 0; assert LDAT > 6
    grp = lambda half, g: [mf16(BACC + 4 * g, quads[41 * half + 9 * g + i], f'v[{(OFq, OGq)[half][i]}:{(OFq, OGq)[half][i]+3}]', f'v[{BACC+4*g}:{BACC+4*g+3}]') for i in range(9 if g < 4 else 5)]
    chk = [f'v_max3_u32 v{vT}, v{OGq[i//2]+2*(i&1)}, v{OGq[i//2]+2*(i&1)+1}, ' + (f'v{vT}' if i else '0') for i in range(18)]
    ck_ = list(chk); CKAT = cfg.get('ckat', 50)
    for g in range(5):
        for t in grp(0, g):
            e(t); n += 1
            if n >= LDAT and (n - LDAT) % 2 == 0 and nl < 9: e(og_load(nl), tag='OG'); nl += 1
            elif misc: e(misc.pop(0))
            elif nl == 9 and n >= CKAT and ck_:
                if len(ck_) == 18: p.wait(vmtags=['OG'])
                e(ck_.pop(0)); e(ck_.pop(0))
    for t in misc: e(t)
    while nl < 9: e(og_load(nl)); nl += 1
    pf.stamp(76)
    for t in ck_: e(t)
    e(f'v_cmp_eq_u32 vcc, -1, v{vT}'); e('s_cmp_lg_u64 vcc, 0'); e('s_cbranch_scc1 PO_spin')
    p.label('PO_done')
    pf.stamp(77)
    def po_out(q):
        r = q.raw
        NL = cfg.get('nl', 6)
        q.label('PO_spin'); q.label('PO_sp2'); r(f's_add_u32 s{sSpin}, s{sSpin}, 1'); r(f's_cmp_gt_u32 s{sSpin}, 0x8000'); r('s_cbranch_scc1 PO_done')
        if O2:
            r(f's_cmp_lg_u32 s{sSpin}, {NL}'); r('s_cbranch_scc1 PO_sp3')
            for t in g_st: r(t)
            q.label('PO_sp3')
            r(f's_cmp_lt_u32 s{sSpin}, {NL}'); r(f's_cselect_b32 s{sT2}, s{sOp}, s{sOp2}'); r(f's_cselect_b32 s{sOp2}, s{sOp2}, s{sOp}'); r(f's_mov_b32 s{sOp}, s{sT2}')
        for i in range(9): r(og_load(i))
        r('s_waitcnt vmcnt(0)')
        for t in chk: r(t)
        r(f'v_cmp_eq_u32 vcc, -1, v{vT}'); r('s_cmp_lg_u64 vcc, 0'); r('s_cbranch_scc1 PO_sp2'); r('s_branch PO_done')
    ool.insert(0, po_out)
    BX = BACC + 16
    cv = lambda d, s_: f'v_cvt_pk_bf16_f32 v{d}, v{s_}, v{s_+1}'
    fl = {13: [f'ds_write_b128 v{vO1}, v[{BX}:{BX+3}]'],
          20: ['s_waitcnt lgkmcnt(0)', 's_barrier'], 21: [f'ds_read_b128 v[{XR_}:{XR_+3}], v{vO2}'],
          22: [cv(BACC, BACC), cv(BACC + 1, BACC + 2)],
          28: [f'v_add_f32 v{BX}, v{BX}, v{XR_}', f'v_add_f32 v{BX+1}, v{BX+1}, v{XR_+1}'], 29: [f'v_add_f32 v{BX+2}, v{BX+2}, v{XR_+2}', f'v_add_f32 v{BX+3}, v{BX+3}, v{XR_+3}'],
          30: [cv(BACC + 2, BACC + 4), cv(BACC + 3, BACC + 6)],
          31: [f'buffer_store_dwordx4 v[{BACC}:{BACC+3}], v{vOut}, {OUTr}, s{sT1} offen {of_}'],
          33: [cv(BX, BX), cv(BX + 1, BX + 2)], 34: [f'buffer_store_dwordx2 v[{BX}:{BX+1}], v{vO3}, {OUTr}, s{sT0} offen offset:512 {of_}'],
          40: [cv(BACC + 8, BACC + 8), cv(BACC + 9, BACC + 10)]}
    for i_, t in enumerate(g_st): fl[1 + 3 * i_] = [t]
    fl[15] = [f'v_xor_b32 v{vO2}, 4096, v{vO1}']
    n = 0
    for g in (4, 0, 1, 2, 3):
        for t in grp(1, g):
            e(t); n += 1
            for x in fl.get(n, []): e(x)
    e(cv(BACC + 10, BACC + 12)); e(cv(BACC + 11, BACC + 14))
    e(f'buffer_store_dwordx4 v[{BACC+8}:{BACC+11}], v{vOut}, {OUTr}, s{sT1} offen offset:64 {of_}')
    return ool

def build(cfg, path):
    name = NAME + '_kernel'
    p = Prog()
    kernel_header(p, name)
    p.e('s_cmp_ge_u32 s2, 256'); p.e('s_cbranch_scc1 K_exit')
    cfg = dict(cfg); cfg.setdefault('codepf', 'A_fb-PCL'); cfg.setdefault('hop', 1)
    pf = Prof(p, 'real' if cfg.get('real') else bool(cfg.get('prof')))
    pf.stamp(100, real=True); pf.stamp(101)
    ool = gen(p, cfg, pf)
    pf.stamp(102)
    if pf.on: p.e('s_waitcnt vmcnt(0)')
    pf.stamp(103); pf.stamp(104, real=True)
    pf.dump(SRD_WS, sW)
    p.label('K_exit'); p.e('s_endpgm')
    for f in ool: f(p)
    p.reset_tracking(); p.auto = False
    att.att_check(p, 'A', cfg, 'fallback')
    if cfg['hop']:
        n0 = len(p.ins)
        for w_ in range(4): p.label(f'PAD{w_}')
        p.e('s_endpgm')
    p.fix_hazards(verbose=cfg.get('verbose', False))
    if cfg['hop']:
        tail = p.ins[-5:]
        sv = p.ins; npad = insert_pads(p, 'MAIN', 'A_fb', 4, 'HOPBACK'); p.ins = p.ins[:-5]; print('pads', npad)
    if cfg.get('align', 0): print('align8 (promoted, still misaligned):', align8(p, cfg.get('maxspan', 3)))
    print('instrs', len(p.ins), 'nops added', p.nops_added)
    hdr = '''; One persistent launch, 256 workgroups (one per CU) x 4 waves x 512 registers. Generated by the author's own scripts.
;  phase D : output projection with the partner workgroup's heads (tagged hand-off), gate mix, store.
; Hand-offs: write-through stores, counters in d_debug, flags/tags in d_ws initialised inside the launch; all spins are bounded.'''
    txt = ['; @launch grid=(256,1,1) block=(256,1,1) lds=163840', hdr, '.amdgcn_target "amdgcn-amd-amdhsa--gfx950"', '.text', p.text(),
           '.section .rodata,"a"', descriptor(name, 512, acc=256)]
    open(path, 'w').write('\n'.join(txt))
if __name__ == '__main__':
    build(eval(sys.argv[2]) if len(sys.argv) > 2 else {}, sys.argv[1])
```

```python
from common import *

KVG, KVB = 18944, 2240
sW, sM_, sS = 3, 4, 5
sA, sA4, sX, sMb = 6, 7, 8, 9
sT0, sT1, sT2 = 10, 11, 12
sFs, sHd, sK32 = 13, 14, 15
SRD_X, SRD_WG, SRD_WU, SRD_W4, SRD_WD, SRD_WS, SRD_WO = 44, 48, 52, 56, 60, 64, 68
sHF = 72
sP, sQm, sQx, sKV, sKX = 74, 75, 76, 77, 78
sWoD = 79
sWoJ = 80
sso, sso2, sK4, sPo, sQs = 88, 89, 90, 91, 92
vOffW, vOffD, vOffX = 1, 5, 9
vRd = 13
vH, vC1, vL16, vT = 19, 20, 21, 22
XA, XAT = 24, 28
AB = 32
G0, G1, UU = 64, 96, 128
GT = 160; NGT = 12
XV = 172
vB1, vB2, vSel, vSt1, vSt2, vAd = 204, 206, 208, 211, 212, 214
vDo, vTa, vTx, vHs, vXw, vXr, vHw, vH2 = 22, 23, 222, 223, 224, 225, 236, 237
X3 = 204
vDl, sDl = 218, 100
vPW, vPQ, vPD, vDum = 250, 251, 252, 253
sFp, sPC, sTc, sVr = 93, 98, 90, 89
vWo = 226
NPL = 10
NQ = 2088

def xf(k, rt, n=4, o=0):
    i = (k * 4 + rt) * 4 + o
    if k < 16: return f'a[{i}:{i+n-1}]'
    i = XV + i - 256
    return f'v[{i}:{i+n-1}]'

def gen_ffn(p, cfg, pf):
    DMAX = cfg.get('dmax', 7)
    stf = cfg.get('stflags', '')
    kS = cfg.get('kS', 2); ND = cfg.get('nd', 3)
    rho = {k: k - (k > kS) for k in range(5) if k != kS}
    seqB = [(j, c) for j in range(ND) for c in (0, 1, 2, 3, 4, 5, 8)] + [(j, c) for j in range(ND) for c in (6, 7)] + [(j, c) for j in range(ND, 9) for c in range(9)]
    accB = ([G1, XV, X3][:ND] + [G0, G1] * 5)[:9]
    accB = [accB[j] if j < ND else (G1, G0)[j % 2] for j in range(9)]
    BAR = set(range(6)); b_ = 5
    for lim, step in cfg.get('bars', [(66, 1)]):
        while b_ + step <= min(lim, 65): b_ += step; BAR.add(b_)
    up = lambda b: min([x for x in BAR if x >= b] + [999]); dn = lambda b: max(x for x in BAR if x <= b)
    cfg['up'] = up
    bH = dn((1440 + 56 * ND - 10 - 15) // 32 + 1)
    e = p.e
    A = GT
    load_ptrs(p)
    e('v_lshrrev_b32 v1, 6, v0')
    e('v_and_b32 v0, 63, v0')
    e(f'v_readfirstlane_b32 s{sW}, v1')
    if cfg.get('codepf'):
        e(f's_getpc_b64 s[{sPC}:{sPC+1}]'); p.label('PCL')
        e(f's_lshr_b32 s{sT1}, s2, 3'); e(f's_lshl_b32 s{sT1}, s{sT1}, 2'); e(f's_add_u32 s{sT1}, s{sT1}, s{sW}')
        e(f'v_lshlrev_b32 v{A+6}, 7, v0'); e(f'v_add_u32 v{A+6}, s{sT1}, v{A+6}')
        e(f'v_lshlrev_b32 v{A+6}, 7, v{A+6}'); e(f'v_min_u32 v{A+6}, {cfg["codepf"]}, v{A+6}')
        e(f'global_load_dword v{vDum}, v{A+6}, s[{sPC}:{sPC+1}]').dst = set()
    e(f's_and_b32 s{sT0}, s2, 7')
    e(f's_lshr_b32 s{sT1}, s2, 3')
    mx = cfg.get('xcd_m', 2)
    lm = int(math.log2(mx)); mper = 16 // mx; lmp = int(math.log2(mper)); sper = 32 // mper
    e(f's_and_b32 s{sM_}, s{sT0}, {mx - 1}')
    e(f's_mul_i32 s{sM_}, s{sM_}, {mper}')
    e(f's_and_b32 s{sT2}, s{sT1}, {mper - 1}')
    e(f's_add_u32 s{sM_}, s{sM_}, s{sT2}')
    e(f's_lshr_b32 s{sS}, s{sT0}, {lm}')
    e(f's_mul_i32 s{sS}, s{sS}, {sper}')
    e(f's_lshr_b32 s{sT2}, s{sT1}, {lmp}')
    e(f's_add_u32 s{sS}, s{sS}, s{sT2}')
    row, l4, g16 = A, A + 1, A + 2
    e(f'v_lshrrev_b32 v{row}, 3, v0')
    e(f'v_lshrrev_b32 v{l4}, 4, v0')
    e(f'v_and_b32 v{A+3}, 7, v0')
    e(f'v_xor_b32 v{A+4}, v{A+3}, v{l4}')
    e(f'v_lshlrev_b32 v{A+4}, 4, v{A+4}')
    e(f'v_mul_u32_u24 v{A+5}, 1152, v{row}')
    e(f'v_add_u32 v{vOffX}, v{A+4}, v{A+5}')
    e(f'v_xor_b32 v{vOffX+1}, 64, v{vOffX}')
    e(f'v_add_u32 v{vOffX+1}, {8192}, v{vOffX+1}')
    e(f'v_add_u32 v{vOffX+2}, {2 * 8192}, v{vOffX}')
    e(f'v_add_u32 v{vOffX+3}, {2 * 8192}, v{vOffX+1}')
    e(f's_lshl_b32 s{sMb}, s{sW}, 12')
    e(f's_lshl_b32 s{sK32}, s{sW}, 5')
    e(f's_lshl_b32 s{sX}, s{sM_}, 7')
    e(f's_add_u32 s{sX}, s{sX}, s{sK32}')
    e(f's_mul_i32 s{sX}, s{sX}, 1152')
    rot = cfg.get('rot', 8)
    if rot == 8:
        xs_ = 8 // sper if sper <= 8 else 1; ms_ = 8 // mper if mper <= 8 else 1
        e(f's_mul_i32 s{sA}, s{sS}, {xs_}'); e(f's_mul_i32 s{sT2}, s{sM_}, {ms_}'); e(f's_add_u32 s{sA}, s{sA}, s{sT2}'); e(f's_and_b32 s{sA}, s{sA}, 7')
    elif rot == 'x':
        e(f's_lshl_b32 s{sA}, s{sS}, 1'); e(f's_and_b32 s{sA}, s{sA}, 7')
    elif rot == 4:
        e(f's_add_u32 s{sA}, s{sS}, s{sM_}'); e(f's_and_b32 s{sA}, s{sA}, 3'); e(f's_mul_i32 s{sA}, s{sA}, 9'); e(f's_lshr_b32 s{sA}, s{sA}, 2')
    else: e(f's_mov_b32 s{sA}, 0')
    def wprep(e):
        e(f'v_lshlrev_b32 v{g16}, 1, v{l4}')
        e(f'v_xor_b32 v{g16}, v{A+3}, v{g16}')
        e(f'v_lshlrev_b32 v{A+4}, 4, v{g16}')
        e(f'v_and_b32 v{A+6}, 4, v{row}'); e(f'v_add_u32 v{A+6}, v{A+6}, v{row}')
        e(f'v_mul_u32_u24 v{vOffW}, 9216, v{A+6}')
        e(f'v_add_u32 v{vOffW}, v{vOffW}, v{A+4}')
        for q in (1, 2, 3): e(f'v_add_u32 v{vOffW+q}, {(0, 16, 4, 20)[q] * 9216 - 1024 * q}, v{vOffW}')
        e(f's_mul_i32 s{sT2}, s{sS}, 576')
        e(f's_bitcmp1_b32 s{sS}, 0')
        e(f's_cselect_b32 s{sT0}, 64, 0')
        e(f's_cselect_b32 s{sFs}, 0, 512')
        e(f's_add_u32 s{sFp}, s{sT0}, s{sT2}')
        e(f's_add_u32 s{sFs}, s{sFs}, s{sT2}')
    def tables(e):
        e(f'v_add_u32 v{A+6}, s{sA}, v0'); e(f'v_subrev_u32 v{A+7}, 9, v{A+6}'); e(f'v_min_u32 v{A+6}, v{A+6}, v{A+7}')
        e(f'v_lshlrev_b32 v{A+6}, 7, v{A+6}'); e(f'v_add_u32 v{vTx}, s{sX}, v{A+6}')
        e(f'v_mul_u32_u24 v{A+6}, 7282, v0'); e(f'v_lshrrev_b32 v{A+6}, 16, v{A+6}')
        e(f'v_mul_u32_u24 v{A+7}, 9, v{A+6}'); e(f'v_sub_u32 v{A+7}, v0, v{A+7}')
        e(f'v_lshlrev_b32 v{A+7}, 2, v{A+7}'); e(f'v_add_u32 v{A+7}, s{sW}, v{A+7}')
        e(f'v_subrev_u32 v{A+8}, 18, v{A+7}'); e(f'v_min_u32 v{A+7}, v{A+7}, v{A+8}')
        e(f's_lshl_b32 s{sT2}, s{sA}, 1'); e(f'v_add_u32 v{A+7}, s{sT2}, v{A+7}')
        e(f'v_subrev_u32 v{A+8}, 18, v{A+7}'); e(f'v_min_u32 v{A+7}, v{A+7}, v{A+8}')
        e(f'v_cmp_lt_u32 vcc, {kS}, v{A+6}'); e(f'v_mul_u32_u24 v{A+8}, 294912, v{A+7}'); e(f'v_add_u32 v{A+8}, s{sFp}, v{A+8}')
        e(f'v_subbrev_co_u32 v{A+9}, vcc, 0, v{A+6}, vcc')
        e(f'v_cmp_ne_u32 vcc, {kS}, v{A+6}'); e(f'v_lshl_add_u32 v{A+8}, v{A+9}, 7, v{A+8}'); e(f'v_lshlrev_b32 v{A+7}, 5, v{A+7}')
        e(f'v_cndmask_b32 v{vTa}, v{A+7}, v{A+8}, vcc')
    e(f's_lshl_b32 s{sso}, s{sA}, 7'); e(f's_add_u32 s{sso}, s{sso}, s{sX}')
    if cfg.get('pstamp'): e(f's_memrealtime s[96:97]')
    e('s_waitcnt lgkmcnt(0)')
    if cfg.get('pstamp'): e(f'v_writelane_b32 v255, s96, 20'); pf.stamp(85)
    srd(p, SRD_X, P_X, 2048 * 1152)

    NU = 66
    HWD = cfg.get('hwd', 2)
    items = []
    for U in range(NU):
        if U < 5:
            for cx in ([2 * U, 2 * U + 1] if U < 4 else [8]): items.append(('X', cx, U))
        items.append(('W', U, dn(U)))
    resv = {pl: [] for pl in range(NPL)}
    for k in rho: resv[rho[k]].append((9 * (k + 1) + HWD, up(46) if k < 4 else up(bH + 1)))
    resv[4].append((9 * kS + 5, up(46)))
    if cfg.get('kvb0'):
        for k in range(5): resv[k].append((cfg['kvb0'] + cfg['kv_at'][k], 999))
    busy = {pl: -1 for pl in range(NPL)}
    place = {}; issue_at = {}; nxt = 0
    for b in range(-1, NU):
        lst = []
        while nxt < len(items):
            kind, idx, need = items[nxt]; fb = up(need + 1)
            r0, r1, r2_ = cfg.get('ramp', (7, 0, 1))
            if b >= 0 and (need - b > max(r0, min(DMAX, r0 + (b - r1) // r2_)) or len(lst) >= cfg.get('maxissue', 3)): break
            if b < 0 and len(lst) >= cfg.get('pro_units', 6): break
            cand = [pl for pl in range(NPL) if busy[pl] <= b and all(fb <= rs or b >= re for rs, re in resv[pl])]
            if not cand: break
            cand.sort(key=lambda pl: min([rs for rs, re in resv[pl] if rs >= fb] + [999]))
            pl = cand[0]; assert need > b
            place[(kind, idx)] = pl; busy[pl] = fb
            lst.append(items[nxt]); nxt += 1
        issue_at[b] = lst
    assert nxt == len(items)
    if cfg.get('verbose'):
        for b in range(-1, NU): print(b, [(k, i, place[(k, i)]) for k, i, n in issue_at[b]])

    def dma_instrs(kind, idx):
        pl = place[(kind, idx)]; tag = (kind, idx)
        m0 = (f's_add_u32 m0, s{sMb}, {pl * 16384}', None)
        def four(vo, sr): return [(f'buffer_load_dwordx4 v{vo+q}, s[{sr}:{sr+3}], s{sso} offen' + (f' offset:{1024*q}' if q else '') + ' lds', tag) for q in range(4)]
        if kind == 'X':
            return [(f'v_readlane_b32 s{sso}, v{vTx}, {idx}', None), m0] + four(vOffX, SRD_X)
        U = idx
        if U < 45 and U // 9 != kS:
            u = U % 9
            sr = SRD_WG if u < 4 else (SRD_W4 if u == 4 else SRD_WU)
            return [(f'v_readlane_b32 s{sso}, v{vTa}, {U}', None), m0] + four(vOffW, sr)
        if U < 45:
            u = U % 9
            b_, st = (vB1, vSt1) if u < 4 else ((vB2, vSt2) if u > 4 else (vSel, vSel + 2))
            dl = f's[{sDl}:{sDl+1}]' if u < 4 else (f'v[{vDl}:{vDl+1}]' if u > 4 else f'v[{vDl+2}:{vDl+3}]')
            ad = lambda q: f'v[{vAd+2*(q&1)}:{vAd+2*(q&1)+1}]'
            out = [(f'v_readlane_b32 s{sso}, v{vTa}, {U}', None), m0, (f'v_mad_u64_u32 {ad(0)}, s[{sPC}:{sPC+1}], v{st}, s{sso}, v[{b_}:{b_+1}]', None)]
            for hq in range(2):
                if hq: out += [(f's_add_u32 s{sso}, s{sso}, 4', None), (f's_add_u32 m0, s{sMb}, {pl * 16384 + 2048}', None),
                               (f'v_mad_u64_u32 {ad(0)}, s[{sPC}:{sPC+1}], v{st}, s{sso}, v[{b_}:{b_+1}]', None)]
                out += [(f'global_load_lds_dwordx4 {ad(0)}, off', tag), (f'v_lshl_add_u64 {ad(1)}, {ad(0)}, 0, {dl}', None),
                        (f'global_load_lds_dwordx4 {ad(1)}, off offset:1024', tag)]
            return out
        return [(f'v_readlane_b32 s{sso}, v{vDo}, {U - 45}', None), m0] + four(vOffD, SRD_WD)

    PF = cfg.get('prefetch', 4)
    if PF & 1:
        nrow = 128 // (4 * sper)
        e(f's_and_b32 s{sT1}, s{sS}, {sper - 1}'); e(f's_lshl_b32 s{sT1}, s{sT1}, 2'); e(f's_add_u32 s{sT1}, s{sT1}, s{sW}')
        e(f's_mul_i32 s{sT1}, s{sT1}, {nrow * 1152}'); e(f's_mul_i32 s{sT2}, s{sM_}, {128 * 1152}'); e(f's_add_u32 s{sT1}, s{sT1}, s{sT2}')
        e(f'v_lshl_add_u32 v{A+6}, v{A+3}, 7, v{A+5}')
        if nrow < 8:
            e(f'v_cmp_gt_u32 vcc, {8 * nrow}, v0'); e(f'v_mov_b32 v{A+7}, {OOB}'); e(f'v_cndmask_b32 v{A+6}, v{A+7}, v{A+6}, vcc')
        for i in range(max(1, nrow // 8)):
            e(f'buffer_load_dword v{vDum}, v{A+6}, s[{SRD_X}:{SRD_X+3}], s{sT1} offen offset:128').dst = set()
            if i + 1 < nrow // 8: e(f's_add_u32 s{sT1}, s{sT1}, 9216')
    pro = []
    for kind, idx, need in issue_at[-1]:
        assert kind == 'X' or idx < 4
        pro += dma_instrs(kind, idx)
    wrows = 576 // (2 * mper)
    def wtouch(col):
        return [f'buffer_load_dword v{vDum}, v{vPW}, s[{SRD_W4}:{SRD_W4+3}], {col} offen' + (f' offset:0' if 0 else '')]
    assert not PF & 1
    class R_:
        l = []
        def e(self, t): self.l.append(t)
    r_ = R_(); wprep(r_.e); srd(r_, SRD_WG, P_WG, 576 * 9216)
    r_.l += [f's_lshl_b32 s{sso2}, s{sA}, 1', f's_add_u32 s{sso2}, s{sso2}, s{sW}', f's_mul_i32 s{sso2}, s{sso2}, 294912', f's_add_u32 s{sso2}, s{sso2}, s{sFp}']
    fb_ = pro[1:6] + [(f's_add_u32 s{sso}, s{sso}, 128', None)] + pro[7:12]
    for t, tag in fb_:
        e(t, tag=tag)
        if tag:
            for _ in range(4):
                if r_.l: t_ = r_.l.pop(0); e(t_)
            while r_.l and r_.l[0].startswith('s_cselect'): e(r_.l.pop(0))
    for t_ in r_.l: e(t_)
    for t, tag in pro[13:18]: e(t.replace(f's{sso} offen', f's{sso2} offen'), tag=tag)
    pro = pro[18:]
    tables(e)
    srd(p, SRD_WU, P_WU, 576 * 9216)
    e(f's_cmp_ge_u32 s{sW}, 2')
    e(f's_cselect_b32 s{SRD_W4}, s{SRD_WU}, s{SRD_WG}')
    e(f's_cselect_b32 s{SRD_W4+1}, s{SRD_WU+1}, s{SRD_WG+1}')
    e(f's_mov_b32 s{SRD_W4+2}, {576 * 9216}')
    e(f's_mov_b32 s{SRD_W4+3}, 0x20000')
    if cfg.get('pstamp'): pf.stamp(86)
    e0 = e; cnt_ = [0]
    def e(t, **kw):
        r = e0(t, **kw); cnt_[0] += 1
        if pro and cnt_[0] % cfg.get('pro_every', 1000) == 0 and not t.startswith(('s_cmp', 's_cselect', 's_bitcmp')):
            while pro:
                t2, tag = pro.pop(0); e0(t2, tag=tag)
                if tag and not cfg.get('burst'): break
        return r

    e(f'v_add_u32 v{vOffD}, v{A+4}, v{A+5}')
    for q in (1, 2, 3): e(f'v_add_u32 v{vOffD+q}, {q * 8192}, v{vOffD}')
    srd(p, SRD_WD, P_WD, 4608 * 1152)
    srd(p, SRD_WS, P_WS, WS_END)
    srd(p, SRD_WO, P_WO, 576 * 1152)
    e(f's_cmp_ge_u32 s{sW}, 2')
    e(f's_cselect_b64 s[{sHF}:{sHF+1}], -1, 0')
    e(f's_cselect_b32 s{sHd}, 1, 0')
    e(f'v_lshrrev_b32 v{A+3}, 2, v0')
    e(f'v_bfe_u32 v{A+6}, v0, 3, 2')
    e(f's_and_b32 s{sT0}, s{sHF}, 2')
    e(f'v_xor_b32 v{A+6}, s{sT0}, v{A+6}')
    e(f'v_lshlrev_b32 v{A+6}, 5, v{A+6}')
    e(f'v_lshl_add_u32 v{A+6}, v{A+3}, 7, v{A+6}')
    e(f'v_and_b32 v{A+3}, 3, v0')
    e(f'v_lshl_add_u32 v{vRd}, v{A+3}, 3, v{A+6}')
    e(f'v_xor_b32 v{vRd+3}, 32, v{vRd}')
    for wd in (1, 2):
        e(f'v_add_u32 v{vRd+wd}, {65536 * wd}, v{vRd}')
        e(f'v_add_u32 v{vRd+3+wd}, {65536 * wd}, v{vRd+3}')
    e(f's_and_b32 s{sT0}, s{sW}, 1')
    e(f'v_lshrrev_b32 v{A+3}, 4, v0')
    e(f'v_bfe_u32 v{A+6}, v0, 1, 3')
    e(f'v_xor_b32 v{A+6}, v{A+6}, v{A+3}')
    e(f'v_lshlrev_b32 v{A+6}, 4, v{A+6}')
    e(f'v_and_b32 v{A+3}, 15, v0')
    e(f'v_lshl_add_u32 v{A+6}, v{A+3}, 7, v{A+6}')
    e(f's_lshl_b32 s{sT1}, s{sT0}, 13')
    e(f'v_add_u32 v{XA}, s{sT1}, v{A+6}')
    e(f'v_xor_b32 v{XA+1}, 64, v{XA}')
    for wd in (1, 2):
        for q in range(2): e(f'v_add_u32 v{XA+2*wd+q}, {65536 * wd}, v{XA+q}')
    e(f'v_lshlrev_b32 v{vL16}, 4, v0')
    e(f's_lshl_b32 s{sT1}, s{sT0}, 12')
    e(f'v_add_u32 v{vH}, s{sT1}, v{vL16}')
    e(f'v_mov_b32 v{vC1}, {f2u(GC1)}')
    late = []
    L = late.append
    B = vWo
    LATE = cfg.get('late', 0)
    B = GT if LATE else 238
    L(f's_and_b32 s{sT2}, s{sHF}, 8192'); L(f'v_add_u32 v{vHw}, s{sT2}, v{vH}')
    L(f'v_add_u32 v{vH2}, 65536, v{vH}'); L(f's_and_b32 s{sT2}, s{sHF}, 2048'); L(f'v_add_u32 v{vHs}, s{sT2}, v{vH2}')
    L(f's_add_u32 s{sT2}, s{sMb}, 65536'); L(f'v_add_u32 v{vXw}, s{sT2}, v{vL16}')
    L(f'v_xor_b32 v{vXr}, 8192, v{vXw}')
    L(f's_and_b32 s{sT0}, s{sW}, 1')
    L(f's_lshl_b32 s{sP}, s{sM_}, 4'); L(f's_add_u32 s{sP}, s{sP}, s{sS}'); L(f's_mul_i32 s{sP}, s{sP}, 147456')
    L(f's_lshl_b32 s{sT1}, s{sT0}, 12'); L(f's_add_u32 s{sP}, s{sP}, s{sT1}')
    L(f's_and_b32 s{sT1}, s{sHF}, 8192'); L(f's_add_u32 s{sP}, s{sP}, s{sT1}')
    assert WS_P == 0
    L(f's_lshl_b32 s{sT1}, s{sS}, 1'); L(f's_add_u32 s{sHd}, s{sHd}, s{sT1}')
    L(f's_lshl_b32 s{sT1}, s{sM_}, 1'); L(f's_add_u32 s{sT1}, s{sT1}, s{sT0}')
    L(f's_lshr_b32 s{sT2}, s{sT1}, 2'); L(f's_mul_i32 s{sKX}, s{sT2}, {KVG}'); L(f's_add_u32 s{sKX}, s{sKX}, {WS_KV}')
    L(f's_and_b32 s{sT2}, s{sT1}, 3'); L(f's_mul_i32 s{sKV}, s{sT2}, {2 * KVB}'); L(f's_add_u32 s{sKV}, s{sKV}, s{sKX}')
    L(f's_add_u32 s{sKV}, s{sKV}, 1024')
    L(f's_and_b32 s{sT2}, s{sM_}, 1'); L(f's_lshl_b32 s{sT2}, s{sT2}, 9'); L(f's_add_u32 s{sKX}, s{sKX}, s{sT2}')
    L(f's_lshl_b32 s{sT2}, s{sT0}, 3'); L(f's_add_u32 s{sKX}, s{sKX}, s{sT2}')
    L(f's_lshl_b32 s{sT2}, s{sHd}, 5'); L(f's_add_u32 s{sT1}, s{sT1}, s{sT2}')
    L(f's_lshl_b32 s{sQm}, s{sT1}, 11'); L(f's_add_u32 s{sQm}, s{sQm}, {WS_QM}')
    L(f's_lshl_b32 s{sQx}, s{sT1}, 8'); L(f's_add_u32 s{sQx}, s{sQx}, {WS_QX}')
    L(f's_mov_b32 s{sQs}, {f2u(QSCALE)}')
    L(f'v_lshlrev_b32 v{B}, 2, v0'); L(f'v_add_u32 v{B}, s{sW}, v{B}')
    L(f'v_mul_u32_u24 v{B+1}, 7282, v{B}'); L(f'v_lshrrev_b32 v{B+1}, 16, v{B+1}')
    L(f'v_mul_u32_u24 v{B+2}, 9, v{B+1}'); L(f'v_sub_u32 v{B+2}, v{B}, v{B+2}')
    L(f'v_cmp_gt_u32 vcc, {9 * ND}, v{B}'); L(f'v_subrev_u32 v{B+3}, {7 * ND}, v{B}')
    L(f'v_lshrrev_b32 v{B+4}, 1, v{B+3}'); L(f'v_and_or_b32 v{B+3}, v{B+3}, 1, 6')
    L(f'v_cndmask_b32 v{B+1}, v{B+1}, v{B+4}, vcc'); L(f'v_cndmask_b32 v{B+2}, v{B+2}, v{B+3}, vcc')
    L(f'v_mul_u32_u24 v{B+4}, 9363, v{B}'); L(f'v_lshrrev_b32 v{B+4}, 16, v{B+4}')
    L(f'v_mul_u32_u24 v{B+3}, 7, v{B+4}'); L(f'v_sub_u32 v{B+3}, v{B}, v{B+3}')
    L(f'v_cmp_eq_u32 vcc, 6, v{B+3}'); L('s_nop 1'); L(f'v_cndmask_b32_e64 v{B+3}, v{B+3}, 8, vcc')
    L(f'v_cmp_gt_u32 vcc, {7 * ND}, v{B}'); L('s_nop 1')
    L(f'v_cndmask_b32 v{B+1}, v{B+1}, v{B+4}, vcc'); L(f'v_cndmask_b32 v{B}, v{B+2}, v{B+3}, vcc')
    L(f's_and_b32 s{sT2}, s{sS}, 1'); L(f'v_add_u32 v{B}, s{sT2}, v{B}')
    L(f'v_cmp_eq_u32 vcc, 9, v{B}'); L(f's_mul_i32 s{sT2}, s{sS}, 331776'); L(f'v_lshlrev_b32 v{B+1}, 7, v{B+1}')
    L(f'v_cndmask_b32_e64 v{B}, v{B}, 0, vcc')
    L(f'v_mul_u32_u24 v{B}, 36864, v{B}'); L(f'v_add3_u32 v{vDo}, v{B}, v{B+1}, s{sT2}')
    rw, gg, ch, z = B, B + 1, B + 2, B + 3
    L(f'v_lshrrev_b32 v{rw}, 3, v0'); L(f'v_and_b32 v{gg}, 4, v{rw}'); L(f'v_add_u32 v{rw}, v{rw}, v{gg}'); L(f'v_bfe_u32 v{gg}, v{vOffD}, 4, 3')
    L(f'v_mov_b32 v{vSt1}, 9216')
    L(f'v_cmp_gt_u32 vcc, 4, v{gg}')
    L(f'v_mov_b32 v{B+4}, s{P_WU}'); L(f'v_mov_b32 v{B+5}, s{P_WG}'); L(f'v_cndmask_b32 v{vB1}, v{B+4}, v{B+5}, vcc')
    L(f'v_mov_b32 v{B+4}, s{P_WU+1}'); L(f'v_mov_b32 v{B+5}, s{P_WG+1}'); L(f'v_cndmask_b32 v{vB1+1}, v{B+4}, v{B+5}, vcc')
    L(f'v_and_b32 v{ch}, 3, v{gg}'); L(f'v_lshlrev_b32 v{B+4}, 4, v{ch}'); L(f'v_add_u32 v{B+5}, s{sFs}, v{B+4}')
    L(f'v_mad_u32_u24 v{B+5}, v{rw}, v{vSt1}, v{B+5}')
    L(f'v_add_co_u32 v{vB1}, vcc, v{vB1}, v{B+5}')
    L(f'v_lshrrev_b32 v{z}, 2, v{gg}'); L(f's_lshl_b32 s{sT0}, s{sS}, 1')
    L(f'v_addc_co_u32 v{vB1+1}, vcc, 0, v{vB1+1}, vcc')
    L(f'v_add_u32 v{z}, s{sT0}, v{z}')
    L(f'v_min_u32 v{B+4}, 20, v{B+4}'); L(f'v_mad_u32_u24 v{B+4}, v{z}, 36, v{B+4}')
    L(f'v_cmp_gt_u32 vcc, 3, v{z}'); L(f'v_subrev_u32 v{B+5}, 3, v{z}')
    L(f'v_mov_b32 v{B+6}, s{P_WV}'); L(f'v_mov_b32 v{B+7}, s{P_WK}')
    L(f'v_cndmask_b32 v{B+5}, v{B+5}, v{z}, vcc'); L(f'v_cndmask_b32 v{vB2}, v{B+6}, v{B+7}, vcc')
    L(f'v_mov_b32 v{B+6}, s{P_WV+1}'); L(f'v_mov_b32 v{B+7}, s{P_WK+1}'); L(f'v_cndmask_b32 v{vB2+1}, v{B+6}, v{B+7}, vcc')
    L(f'v_lshlrev_b32 v{B+5}, 4, v{B+5}'); L(f'v_min_u32 v{B+5}, 20, v{B+5}')
    L(f'v_cmp_eq_u32 vcc, 6, v{z}'); L(f'v_mov_b32 v{B+6}, s{P_GW}'); L(f'v_mov_b32 v{B+7}, s{P_GW+1}')
    L(f'v_cndmask_b32 v{vB2}, v{vB2}, v{B+6}, vcc'); L(f'v_cndmask_b32 v{vB2+1}, v{vB2+1}, v{B+7}, vcc')
    L(f'v_cndmask_b32_e64 v{B+5}, v{B+5}, 0, vcc'); L(f'v_cndmask_b32_e64 v{B+9}, 36, 2, vcc')
    L(f'v_sub_u32 v{B+6}, 3, v{ch}'); L(f'v_lshl_add_u32 v{B+6}, v{B+6}, 6, v{z}')
    L(f'v_cmp_gt_u32 vcc, 7, v{B+6}')
    L(f'v_mov_b32 v{B+6}, s{P_WQ}'); L(f'v_mov_b32 v{B+7}, s{P_WQ+1}'); L(f'v_mov_b32 v{B+8}, 1152')
    L(f'v_cndmask_b32 v{vB2}, v{B+6}, v{vB2}, vcc'); L(f'v_cndmask_b32 v{vB2+1}, v{B+7}, v{vB2+1}, vcc')
    L(f'v_cndmask_b32 v{B+4}, v{B+4}, v{B+5}, vcc'); L(f'v_cndmask_b32 v{vSt2}, v{B+8}, v{B+9}, vcc')
    L(f'v_mad_u32_u24 v{B+4}, v{rw}, v{vSt2}, v{B+4}')
    L(f'v_add_co_u32 v{vB2}, vcc, v{vB2}, v{B+4}')
    L(f'v_cndmask_b32 v{vSel}, v{vB1}, v{vB2}, s[{sHF}:{sHF+1}]'); L(f'v_cndmask_b32 v{vSel+2}, v{vSt1}, v{vSt2}, s[{sHF}:{sHF+1}]')
    L(f'v_addc_co_u32 v{vB2+1}, vcc, 0, v{vB2+1}, vcc')
    L(f'v_cndmask_b32 v{vSel+1}, v{vB1+1}, v{vB2+1}, s[{sHF}:{sHF+1}]')
    L(f's_mov_b32 s{sDl}, {16 * 9216 - 1024}'); L(f's_mov_b32 s{sDl+1}, 0')
    for o_, st_ in ((0, vSt2), (2, vSel + 2)):
        L(f'v_lshlrev_b32 v{vDl+o_}, 4, v{st_}'); L(f'v_subrev_u32 v{vDl+o_}, 1024, v{vDl+o_}'); L(f'v_ashrrev_i32 v{vDl+o_+1}, 31, v{vDl+o_}')
    if PF:
        mpd = cfg.get('pfm', mper); npair = 4 * mpd
        L(f's_and_b32 s{sT1}, s{sM_}, {mpd - 1}'); L(f's_lshl_b32 s{sT1}, s{sT1}, 2'); L(f's_add_u32 s{sT1}, s{sT1}, s{sW}')
        L(f's_mul_i32 s{sT2}, s{sT1}, {331776 // npair}'); L(f's_mul_i32 s{sT0}, s{sS}, 331776'); L(f's_add_u32 s{sT2}, s{sT2}, s{sT0}')
        DL = cfg.get('pfdl', 21)
        L(f'v_min_u32 v{vPD}, {DL - 1}, v0'); L(f'v_lshlrev_b32 v{vPD}, 7, v{vPD}'); L(f'v_add_u32 v{vPD}, s{sT2}, v{vPD}')
    WT = cfg.get('wt', {})
    if WT:
        L(f's_lshl_b32 s{sT1}, s{sM_}, 1'); L(f's_and_b32 s{sT2}, s{sW}, 1'); L(f's_add_u32 s{sT1}, s{sT1}, s{sT2}'); L(f's_mul_i32 s{sT1}, s{sT1}, 18')
        L(f'v_min_u32 v{B}, 17, v0'); L(f'v_add_u32 v{B}, s{sT1}, v{B}'); L(f'v_mul_u32_u24 v{vPW}, 9216, v{B}')
        L(f's_lshl_b32 s{sT1}, s2, 2'); L(f's_add_u32 s{sT1}, s{sT1}, s{sW}'); L(f's_mul_i32 s{sT1}, s{sT1}, 648')
        L(f'v_min_u32 v{B}, 5, v0'); L(f'v_lshlrev_b32 v{B}, 7, v{B}'); L(f'v_add_u32 v{vPQ}, s{sT1}, v{B}')
    def wt_ins(k):
        if k == 'q': return [f'global_load_dword v{vDum}, v{vPQ}, s[{P_WQ}:{P_WQ+1}]']
        base_, col = (sFs, 0) if k == kS else (sFp, 128 * rho[k])
        return [f's_add_u32 s{sTc}, s{base_}, {col}', wtouch(f's{sTc}')[0]]
    if not LATE:
        for t in late: e(t)
    for k, g_ in WT.items():
        if g_ < 0:
            for t in wt_ins(k):
                i_ = e(t)
                if 'load' in t: i_.dst = set()
    e(f's_mul_i32 s{sT0}, s2, 3'); e(f's_add_u32 s{sT0}, s{sT0}, s{sW}')
    e(f's_mul_hi_u32 s{sT1}, s{sT0}, {(2**32 + 17) // 18}')
    e(f's_mul_i32 s{sT2}, s{sT1}, 18'); e(f's_sub_u32 s{sT2}, s{sT0}, s{sT2}')
    e(f's_lshl_b32 s{sWoD}, s{sT0}, 10'); e(f's_add_u32 s{sWoD}, s{sWoD}, {WS_WO}')
    e(f's_lshr_b32 s{sso2}, s{sT1}, 1'); e(f's_lshl_b32 s{sso2}, s{sso2}, 6')
    e(f's_and_b32 s{sT1}, s{sT1}, 1'); e(f's_lshl_b32 s{sT1}, s{sT1}, 4'); e(f's_add_u32 s{sso2}, s{sso2}, s{sT1}')
    e(f'v_bfe_u32 v{A}, v0, 3, 1'); e(f'v_and_b32 v{A+2}, 7, v0'); e(f'v_lshlrev_b32 v{A+2}, 1, v{A+2}')
    e(f'v_lshl_add_u32 v{A}, v{A}, 5, v{A+2}'); e(f'v_add_u32 v{A}, s{sso2}, v{A}')
    e(f'v_bfe_u32 v{A+2}, v0, 4, 1'); e(f'v_mul_u32_u24 v{A+2}, 18, v{A+2}')
    e(f'v_lshrrev_b32 v{A+1}, 5, v0'); e(f'v_lshl_add_u32 v{A+2}, v{A+1}, 2, v{A+2}')
    e(f'v_lshrrev_b32 v{A+4}, 4, v0'); e(f'v_mul_u32_u24 v{A+4}, 72, v{A+4}')
    e(f's_cmp_ge_u32 s{sT2}, 9'); e(f's_cselect_b32 s{sso2}, 1, 0')
    e(f's_sub_u32 s{sT1}, s{sT2}, s{sso2}'); e(f's_mul_i32 s{sT1}, s{sT1}, 36')
    e(f's_mul_i32 s{sWoJ}, s{sso2}, 9'); e(f's_sub_u32 s{sT2}, s{sT2}, s{sWoJ}')
    e(f's_mul_i32 s{sso2}, s{sso2}, 288'); e(f's_add_u32 s{sso2}, s{sso2}, 16')
    e(f's_cmp_eq_u32 s{sT2}, 8'); e(f's_cselect_b64 vcc, -1, 0'); e(f's_cselect_b32 s{sT1}, s{sso2}, s{sT1}')
    for j in range(8): e(f's_cselect_b32 s{sWoJ+j}, {18 * (j >> 1) + (j & 1)}, {8 * (j >> 2) + (j & 3)}')
    for j in range(8): e(f's_mul_i32 s{sWoJ+j}, s{sWoJ+j}, 1152')
    e(f'v_cndmask_b32 v{A+2}, v{A+2}, v{A+4}, vcc'); e(f'v_add_u32 v{A+2}, s{sT1}, v{A+2}')
    e(f'v_mul_u32_u24 v{A+2}, 1152, v{A+2}'); e(f'v_add_u32 v{vWo}, v{A}, v{A+2}')
    e(f's_cmp_lt_u32 s{sW}, 3'); e(f's_cselect_b32 s{sT1}, 648, 0'); e(f's_cmp_lt_u32 s{sT0}, s{sT1}')
    e(f's_cselect_b32 s{sT1}, 0, {OOB}')
    e(f'v_add_u32 v{vWo}, s{sT1}, v{vWo}'); e(f'v_add_u32 v{vWo+1}, s{sT1}, v{vL16}')

    wol = [f'buffer_load_ushort v{vWo+2+j}, v{vWo}, s[{SRD_WO}:{SRD_WO+3}], s{sWoJ+j} offen' for j in range(8)]
    DEF = cfg.get('defer', 0); dlist = []
    if not DEF:
        for t in wol: e(t)
    if cfg.get('fake'): e(f'v_mov_b32 v{vTa}, s{sK32}'); e(f'v_mov_b32 v{vDo}, 0')
    if cfg.get('setup_extra'):
        if DEF:
            class R2_:
                def e(self, t, tag=None): dlist.append((t, tag))
            cfg['setup_extra'](R2_())
        else: cfg['setup_extra'](p)
    e = e0
    if cfg.get('pstamp'): pf.stamp(87)
    if cfg.get('hop'):
        e('s_mov_b64 exec, 0')
        for w_ in range(3): e(f's_cmp_eq_u32 s{sW}, {w_}'); e(f's_cbranch_scc1 PAD{w_}')
        e('s_branch PAD3')
        p.label('HOPBACK'); e('s_mov_b64 exec, -1'); e('s_branch MAIN'); p.raw('.p2align 12'); p.label('MAIN')
    if cfg.get('pstamp'): pf.stamp(88)
    if cfg.get('wait2'): p.wait(vmtags=[[('X', 0), ('X', 1), ('W', 0)][cfg['wait2'] - 1]])
    for t2, tag in pro: e0(t2, tag=tag)
    S = Sched(NQ, 2)
    S.temps = list(range(GT, GT + NGT))
    S.nolds = lambda g: 11 <= g % 32 <= 15 and g // 32 + 1 in BAR
    qb = lambda b: 32 * (b - 1) + 15
    WSr = f's[{SRD_WS}:{SRD_WS+3}]'
    NF = NQ // 4
    def kinfo(K):
        if K < 180:
            ps, kk = divmod(K, 18); return (UU if ps & 1 else (G0, G1)[(ps // 2) % 2]), kk, ps
        j, kk = seqB[K - 180]; return accB[j], kk, 100 + j
    CH = cfg.get('chain', 4); SEQ = []; FM = {}
    for U in range(NU):
        Ks = [K for K in range(4 * U, 4 * U + 4) if K < 261]
        gs_ = [kinfo(K)[2] for K in Ks]
        if CH >= 4 and U >= 5 and len(Ks) == 4 and (len(set(gs_)) == 1 or (CH >= 5 and max(map(gs_.count, gs_)) == 3)):
            FM[U] = [(i % 4, i // 4) for i in range(8)]
            SEQ += [(4 * ft + k, Ks[k], ft, rt) for ft in range(2) for rt in range(4) for k in range(4)]
            continue
        FM[U] = [(i // 2, i % 2) for i in range(8)]
        for hh in range(0, len(Ks), 2):
            pr = Ks[hh:hh + 2]
            if CH >= 2 and len(pr) == 2 and kinfo(pr[0])[2] == kinfo(pr[1])[2]:
                SEQ += [(2 * (hh + k) + ft, pr[k], ft, rt) for ft in range(2) for rt in range(4) for k in range(2)]
            else:
                SEQ += [(2 * (hh + k) + ft, pr[k], ft, (3 - rt if ft else rt)) for k in range(len(pr)) for ft in range(2) for rt in range(4)]
    assert len(SEQ) == NQ
    firstq = lambda K: min(q for q in range(8 * K - 32 if K > 4 else 0, min(NQ, 8 * K + 32)) if SEQ[q][1] == K)
    lastq = lambda K: max(q for q in range(8 * K - 32 if K > 4 else 0, min(NQ, 8 * K + 32)) if SEQ[q][1] == K)
    def tread(n, h):
        U, i = divmod(n, 8); pl = place[('W', U)]; k, ft = FM[U][i]
        a = AB + 4 * i + 2 * h
        return f'ds_read_b64_tr_b16 v[{a}:{a+1}], v{vRd + 3 * ft + pl // 4} offset:{(pl % 4) * 16384 + k * 4096 + 2048 * h}'
    TP = cfg.get('tpos', [16, 17, 18, 20, 21, 23, 24, 26, 28, 29, 30, 32, 34, 36, 38, 40])
    def barrier(b):
        st_ = (b % cfg.get('stampevery', 1) == 0)
        if st_: pf.start()
        p.wait(vmtags=[(k, i) for k, i, need in items if need == b] + sum([v_ for k_, v_ in cfg.get('bar_tags', {}).items() if up(k_) == b], []), lg0=True)
        e('s_barrier')
        if st_: pf.save(b // cfg.get('stampevery', 1))
    WC = cfg.get('wcost', 0)
    def vstamp(b):
        if b % cfg.get('stampevery', 1) == 0: pf.stamp(b // cfg.get('stampevery', 1))
    for b in range(1, NU):
        if b in BAR: S.fix(qb(b), (lambda b=b: barrier(b)), cost=99)
        else: S.fix(qb(b), (lambda b=b: (p.wait_lg({('T', b - 1, 1)}), vstamp(b))), cost=WC)
        for i in range(16):
            n = 8 * b + i // 2
            if n < NF:
                assert TP[i] >= max(g for g in range(32) if SEQ[32 * (b - 1) + g][0] == i // 2)
                S.fix(32 * (b - 1) + TP[i], tread(n, i & 1), tag=('T', b, i // 8))
        S.fix(32 * b - 1, (lambda b=b: p.wait_lg({('T', b, 0)})), cost=WC)
    dq = []
    LPS = cfg.get('lps', 4); MINL = cfg.get('minlead', 3); dcost = cfg.get('dcost', 2)
    for b in range(0, NU + 1):
        for kind, idx, need in issue_at.get(b, []): dq += [(t, tag, need - (min(up(need + 1), NU) - 1 - idx if kind == 'W' else 0)) for t, tag in dma_instrs(kind, idx)]
        dq += [(t, tag, cfg.get('kv_need', 66)) for t, tag in cfg.get('extra_units', {}).get(b, [])]
        if cfg.get('nodma') or not dq: dq = []; continue
        must = max([i + 1 for i, (t, tag, need) in enumerate(dq) if need <= b + (MINL if b >= cfg.get('b0', 0) else cfg.get('minl0', 2))] + [0])
        lim_ = max([i + 1 for i, (t, tag, need) in enumerate(dq) if need <= b + MINL] + [0])
        l0_ = min(cfg.get('lps0', 6), max(LPS, sum(1 for x in dq[:lim_] if x[1])))
        nl = max(min((LPS if b >= cfg.get('b0', 0) else l0_) if b < 44 else cfg.get('lpsb', 5), sum(1 for x in dq if x[1])), sum(1 for x in dq[:must] if x[1]))
        lo, hi = (32, 46) if b == 0 else (16, 46)
        cand = [g for g in range(lo + 4 if nl <= 8 and b else lo + 1, hi) if g != 31 and (nl > 8 or (g in TP) == (dcost == 1))]
        if cfg.get('dcand') and b and nl <= len(cfg['dcand']): cand = cfg['dcand']
        prev = lo
        for i in range(nl):
            tg = cand[(i * len(cand)) // nl]
            k = next(j for j, x in enumerate(dq) if x[1])
            for j in range(k):
                prev = max(prev, tg - 3 - (k - 1 - j)); c_ = 1
                if dq[j][0].startswith('s_') and not WC:
                    fr_ = [g for g in range(prev, tg) if not S.fixed[32 * (b - 1) + g]]
                    if fr_: prev = fr_[0]; c_ = 0
                S.fix(32 * (b - 1) + prev, dq[j][0], cost=c_)
            prev = max(prev, tg); S.fix(32 * (b - 1) + prev, dq[k][0], tag=dq[k][1], cost=dcost)
            dq = dq[k + 1:]
    assert not dq
    def xreads(cx):
        pl = place[('X', cx)]
        return [f'ds_read_b128 {xf(2 * cx + kk, rt)}, v{XA + 2 * (pl // 4) + kk} offset:{(pl % 4) * 16384 + 2048 * rt}' for rt in range(4) for kk in range(2)]
    lc = S.chain([t for t in late if not t.startswith('s_nop')], LATE, 110 if DEF else 128) if LATE else []
    if DEF:
        wl_ = [S.add(Op(t, start=DEF + 3 * j, end=DEF + 3 * j + 8)) for j, t in enumerate(wol)]
        for o_, (t, tag) in zip(S.chain([t for t, tag in dlist], DEF + 24, max(146, DEF + 110), deps=wl_ + lc[-1:]), dlist): o_.tag = tag
    XP = cfg.get('xpos', [19, 19, 22, 22, 25, 25, 27, 27, 33, 33, 35, 35, 37, 37, 39, 39])
    for b in range(1, 5):
        xs = sum([xreads(i) for k_, i, need in items if k_ == 'X' and need == b], [])
        for n_, t in enumerate(xs): S.fix(32 * (b - 1) + XP[n_], t, tag=('T', b, n_ // 8))
    if PF:
        lead = cfg.get('pflead', 420)
        def touch(t, g, w_=30):
            def f(): p.e(t).dst = set()
            o_ = S.add(Op(f, 2, start=g, end=g + w_)); o_.call = True
        for k, g_ in WT.items():
            if g_ >= 0:
                w_ = wt_ins(k)
                if len(w_) > 1: S.add(Op(w_[0], start=g_ - 6, end=g_))
                touch(w_[-1], g_, 14)
        if PF & 4:
            nl = -(-2592 // npair); nb_ = -(-nl // DL); g0 = cfg.get('pfd0', 700); dg = cfg.get('pfdg', 100)
            for i in range(nb_):
                if i: S.add(Op(f'v_add_u32 v{vPD}, {128 * DL}, v{vPD}', start=g0 + dg * i - 9, end=g0 + dg * i))
                touch(f'buffer_load_dword v{vDum}, v{vPD}, s[{SRD_WD}:{SRD_WD+3}], 0 offen', g0 + dg * i)
    S.chain([f'v_lshl_or_b32 v{vWo+2+j}, v{vWo+2*j+3}, 16, v{vWo+2*j+2}' for j in range(4)] +
            [f'buffer_store_dwordx4 v[{vWo+2}:{vWo+5}], v{vWo+1}, {WSr}, s{sWoD} offen {stf}'], *((max(288 * kS + 150, DEF + 130), max(288 * kS + 170, DEF + 220)) if DEF else (130, 146)))[-1].tag = 'QKV'
    def gelu_h(g, u, n, s1, e1, s2, e2, wr, sw, deps=()):
        last = []
        for i in range(n):
            t = []
            d1 = e1 - (n - 1 - i) * (e1 - s1 - 24) // n
            a = S.add(Op(lambda i=i, t=t: f'v_mul_f32 v{t[0]}, v{g+i}, v{g+i}', 1, deps, s1, e1 - 12, res=t, prio=d1 - 12))
            a = S.add(Op(lambda t=t: f'v_fmaak_f32 v{t[0]}, v{t[0]}, v{vC1}, {f2u(GC0)}', 1, [a], s1, e1 - 10, prio=d1 - 12))
            a = S.add(Op(lambda i=i, t=t: f'v_mul_f32 v{t[0]}, v{t[0]}, v{g+i}', 1, [a], s1, e1 - 8, prio=d1 - 12))
            a = S.add(Op(lambda t=t: f'v_exp_f32 v{t[0]}, v{t[0]}', 2, [a], s1, e1 - 6, prio=d1 - 12))
            a = S.add(Op(lambda t=t: f'v_add_f32 v{t[0]}, 1.0, v{t[0]}', 1, [a], s1, e1 - 4, prio=d1 - 12))
            a = S.add(Op(lambda t=t: f'v_rcp_f32 v{t[0]}, v{t[0]}', 2, [a], s1, e1 - 2, prio=d1 - 12))
            a = S.add(Op(lambda i=i, t=t: f'v_mul_f32 v{g+i}, v{t[0]}, v{g+i}', 1, [a], s1, e1, rel=t, prio=d1 - 12))
            a = S.add(Op(f'v_mul_f32 v{g+i}, v{g+i}, v{u+i}', 1, [a], s2, e2 - 8, prio=d1))
            last.append(a)
        wrs = []
        for gi in range(n // 8):
            prev = []
            for c in range(4):
                o = S.add(Op(f'v_cvt_pk_bf16_f32 v{g+8*gi+c}, v{g+8*gi+2*c}, v{g+8*gi+2*c+1}', 1, last[8*gi+2*c:8*gi+2*c+2], s2, e2 - 4, same=prev, prio=0))
                prev = [o]
            HW = cfg.get('hw', 128); t_ = wr(gi)
            if HW == 'x':
                for x, mv in enumerate((f's_mov_b64 exec, s[{sHF}:{sHF+1}]', f's_not_b64 exec, s[{sHF}:{sHF+1}]')):
                    def f_(mv=mv, t_=t_): p.e(mv); p.e(t_); p.e('s_mov_b64 exec, -1')
                    o_ = S.add(Op(f_, 2, prev, sw + cfg.get('hwsp', 12) * gi, e2 - 4 * (1 - x), lds=True, prio=0)); o_.call = True
                    if x: o_.after = (prev[0], 3)
                    prev = [o_]
            elif HW == 128:
                o_ = S.add(Op(t_, 2, prev, sw + cfg.get('hwsp', 12) * gi, e2, lds=True, prio=0)); o_.okg = cfg.get('hwg')
            else:
                m_ = re.match(r'ds_write_b128 (v\d+), v\[(\d+):\d+\] offset:(\d+)', t_); r0_, of_ = int(m_.group(2)), int(m_.group(3)); n_ = 128 // HW; w_ = HW // 32
                for x in range(n_):
                    rg = f'v[{r0_+w_*x}:{r0_+w_*x+1}]' if w_ == 2 else f'v{r0_+x}'
                    prev = [S.add(Op(f'ds_write_b{HW} {m_.group(1)}, {rg} offset:{of_ + 4 * w_ * x}', 2, prev, sw + cfg.get('hwsp', 12) * gi, e2 - (n_ - 1 - x), lds=True, prio=0))]
        return wrs
    for k in rho:
        g = (G0, G1)[k % 2]; q0 = 288 * k
        e2_ = q0 + 288 + 139 if k < 4 else qb(bH) - 4
        gelu_h(g, UU, 32, q0 + 147, e2_ - 13, q0 + 291, e2_,
               lambda i, g=g, k=k: f'ds_write_b128 v{vHw}, v[{g+8*i}:{g+8*i+3}] offset:{16384 * rho[k] + 1024 * i}', qb(9 * (k + 1) + HWD) + 1)
    GS = (G0, G1)[kS % 2]; qS = 288 * kS; bS = 9 * kS
    def xch(write):
        Lb = 'F_xw' if write else 'F_xr'
        def arm(base, em):
            for q in range(4):
                r = f'v[{base+4*q}:{base+4*q+3}]'
                em(f'ds_write_b128 v{vXw}, {r} offset:{1024*q}' if write else f'ds_read_b128 {r}, v{vXr} offset:{1024*q}')
        e(f's_cmp_ge_u32 s{sW}, 2'); e(f's_cbranch_scc1 {Lb}1')
        arm(GS + 16, p.raw); e(f's_branch {Lb}2'); p.label(f'{Lb}1')
        def em(t):
            i = e(t)
            if not write: i.dst = i.dst | {('v', r[1] + 16) for r in i.dst}
        arm(GS, em); p.label(f'{Lb}2')
    S.fix(qS + 149, lambda: xch(True), cost=7)
    x1 = up(bS + 6)
    S.fix(qb(x1) + 4, lambda: xch(False), cost=7)
    gelu_h(GS, GS + 16, 16, qb(x1) + 10, qS + 288 + 120, qb(x1) + 10, qS + 288 + 139,
           lambda i: f'ds_write_b128 v{vHs}, v[{GS+8*i}:{GS+8*i+3}] offset:{1024 * i}', qb(up(x1 + 1)) + 1)
    for n_, t in enumerate((0, 1, 2, 3, 4, 5, 8)):
        for rt in range(4):
            ad = f'v{vH} offset:{8192 * t + 1024 * rt}' if t < 8 else f'v{vH2} offset:{1024 * rt}'
            S.add(Op(f'ds_read_b128 {xf(t, rt)}, {ad}', start=max(lastq(162 + t), qb(up(41)) + 1), end=min(firstq(180 + n_) - 8, qb(46) - 4), lds=True))
    for t in (6, 7):
        for rt in range(4): S.add(Op(f'ds_read_b128 {xf(t, rt)}, v{vH} offset:{8192 * t + 1024 * rt}', start=qb(bH) + 1, end=qb(bH) + 8 + 6 * (t - 6), lds=True))
    qa, qx, tq = vAd, vAd + 1, vAd + 2
    q = [f'v_and_b32 v{tq}, 31, v0', f'v_lshrrev_b32 v{tq+1}, 5, v0', f'v_lshlrev_b32 v{qa}, 4, v{tq+1}', f'v_lshl_add_u32 v{qa}, v{tq}, 5, v{qa}',
         f'v_lshlrev_b32 v{qx}, 2, v0']
    EX = vAd + 4
    for rt in range(4):
        u = UU + 8 * rt; d = UU + 16 * (rt >> 1) + 2 * (rt & 1)
        q += [f'v_mul_f32 v{u+i}, s{sQs}, v{u+i}' for i in range(4)]
        q += [f'v_mul_f32 v{tq}, s{sQs}, v{u+6}', f'v_mul_f32 v{tq+1}, s{sQs}, v{u+7}',
              f'v_cvt_pk_bf16_f32 v{d}, v{u}, v{u+1}', f'v_cvt_pk_bf16_f32 v{d+1}, v{u+2}, v{u+3}', f'v_cvt_pk_bf16_f32 v{EX+rt}, v{tq}, v{tq+1}']
    sw16 = lambda a, b: f'v_permlane16_swap_b32 v{a}, v{b}'
    sw32 = lambda a, b: f'v_permlane32_swap_b32 v{a}, v{b}'
    q += [sw16(UU, UU + 2), sw16(UU + 1, UU + 3), sw16(EX, EX + 1), sw16(UU + 16, UU + 18), sw16(UU + 17, UU + 19), sw16(EX + 2, EX + 3),
          f'buffer_store_dwordx4 v[{UU}:{UU+3}], v{qa}, {WSr}, s{sQm} offen {stf}',
          f'buffer_store_dwordx4 v[{UU+16}:{UU+19}], v{qa}, {WSr}, s{sQm} offen offset:1024 {stf}', sw32(EX + 1, EX + 3),
          f'buffer_store_dword v{EX+1}, v{qx}, {WSr}, s{sQx} offen {stf}']
    qc = S.chain(q, qS + 292, qS + 288 + cfg.get('qkv_end', 100))
    A_, W = UU + 4, UU + 20
    ka, kb, kc, kt = 204, 205, 206, 207
    L = 'F_kv'; ost = lambda t: p.e(t, optional=True, tag='QKV')
    def kv_gate():
        e(f's_cmp_eq_u32 s{sHd}, 6'); e(f's_cbranch_scc1 {L}_g'); p.label(f'{L}_g2')
    def kv_block():
        e(f's_cmp_ge_u32 s{sHd}, 6'); e(f's_cbranch_scc1 {L}_end')
        e(f's_cmp_ge_u32 s{sHd}, 3'); e(f's_cbranch_scc1 {L}_v')
        e(f's_cmp_eq_u32 s{sHd}, 2'); e(f's_cbranch_scc1 {L}_kx')
        e(f's_lshl_b32 s{sT0}, s{sHd}, 9'); e(f's_add_u32 s{sT0}, s{sT0}, s{sKV}')
        ost(f'buffer_store_dwordx4 v[{W}:{W+3}], v{ka}, {WSr}, s{sT0} offen {stf}')
        e(f's_branch {L}_end')
        p.label(f'{L}_kx')
        e(f'v_and_b32 v{ka}, 0x1f0, v{vL16}'); e(f'v_lshrrev_b32 v{kb}, 5, v0'); e(f'v_lshl_add_u32 v{ka}, v{kb}, 2, v{ka}')
        ost(f'buffer_store_dword v{W+3}, v{ka}, {WSr}, s{sKX} offen {stf}')
        e(f's_branch {L}_end')
        r = p.raw
        p.label(f'{L}_g')
        r(sw16(UU + 12, UU + 4)); r(sw16(UU + 28, UU + 20)); r(f'v_xor_b32 v{kt+1}, 64, v{qx}')
        r(f's_add_u32 s{sT0}, s{sQx}, {WS_G - WS_QX - 6 * 8192}'); r(sw32(UU + 12, UU + 28))
        r(f'buffer_store_dword v{UU+28}, v{kt+1}, {WSr}, s{sT0} offen {stf}'); r(f's_branch {L}_g2')
        p.label(f'{L}_r')
        r('s_waitcnt lgkmcnt(0)')
        r(f'ds_read_b64_tr_b16 v[{A_}:{A_+1}], v{kc}'); r(f'ds_read_b64_tr_b16 v[{A_+2}:{A_+3}], v{kc} offset:128'); r(f's_branch {L}_r2')
        p.label(f'{L}_s')
        r(f's_sub_u32 s{sT0}, s{sHd}, 3'); r(f's_lshl_b32 s{sT0}, s{sT0}, 7'); r(f's_min_u32 s{sT0}, s{sT0}, 160'); r(f's_add_u32 s{sT0}, s{sT0}, s{sKV}')
        r('s_waitcnt lgkmcnt(0)')
        r(f's_cmp_lg_u32 s{sHd}, 5'); r(f's_cbranch_scc1 {L}_vs')
        r(f'v_and_b32 v{ka}, 7, v0'); r(f'v_cmp_eq_u32 vcc, 5, v{ka}'); r(f'v_mov_b32 v{kb}, 0x3f803f80'); r(f'v_add_u32 v{kc}, 48, v{kt}')
        for i in range(4): r(f'v_cndmask_b32 v{A_+i}, v{A_+i}, v{kb}, vcc')
        r(f'v_cndmask_b32 v{kt}, v{kt}, v{kc}, vcc')
        r(f'v_cmp_gt_u32 vcc, 5, v{ka}'); r(f'v_mov_b32 v{kb}, {OOB}'); r('s_nop 0'); r(f'v_cndmask_b32 v{kt}, v{kt}, v{kb}, vcc')
        p.label(f'{L}_vs')
        r(f'buffer_store_dwordx4 v[{A_}:{A_+3}], v{kt}, {WSr}, s{sT0} offen offset:1024 {stf}'); r('s_nop 0'); r(f's_branch {L}_s2')
        p.label(f'{L}_v')
        r(f'ds_write_b128 v{kb}, v[{W}:{W+3}]')
        p.label(f'{L}_end')
    def kv_later(x):
        def f():
            e(f's_cmp_lt_u32 s{sVr}, 3'); e(f's_cbranch_scc1 {L}_{x}'); p.label(f'{L}_{x}2')
            if x == 's':
                i_ = Ins(f'buffer_store_dwordx4 v[{A_}:{A_+3}], v{kt}, {WSr}, s{sT0} offen', tag='QKV', optional=True); p.vm.append(i_)
        f.__name__ = 'kv_last' if x == 's' else 'kv_mid'
        return f
    def kv_last():
        L = 'F_kv'; o = lambda t: p.e(t, optional=True, tag='QKV')
        a, b2, c = tq, tq + 1, EX
        e(f's_cmp_ge_u32 s{sHd}, 7'); e(f's_cbranch_scc1 {L}_end')
        e(f's_cmp_lg_u32 s{sHd}, 6'); e(f's_cbranch_scc1 {L}_kv')
        e(sw16(UU + 12, UU + 4)); e(sw16(UU + 28, UU + 20)); e(f'v_xor_b32 v{a}, 64, v{qx}')
        e(f's_add_u32 s{sT0}, s{sQx}, {WS_G - WS_QX - 6 * 8192}'); e(sw32(UU + 12, UU + 28))
        o(f'buffer_store_dword v{UU+28}, v{a}, {WSr}, s{sT0} offen {stf}')
        e(f's_branch {L}_end')
        p.label(f'{L}_kv')
        for rt in range(4):
            u = UU + 8 * rt; d = UU + 4 + 16 * (rt >> 1) + 2 * (rt & 1)
            e(f'v_cvt_pk_bf16_f32 v{d}, v{u+4}, v{u+5}'); e(f'v_cvt_pk_bf16_f32 v{d+1}, v{u+6}, v{u+7}')
        e(f'v_lshrrev_b32 v{b2}, 5, v0')
        for x in (A_, W): e(sw16(x, x + 2)); e(sw16(x + 1, x + 3))
        e(f'v_and_b32 v{a}, 0x1f0, v{vL16}')
        for i in range(4): e(sw32(A_ + i, W + i))
        e(f's_cmp_ge_u32 s{sHd}, 3'); e(f's_cbranch_scc1 {L}_v')
        e(f's_cmp_eq_u32 s{sHd}, 2'); e(f's_cbranch_scc1 {L}_kx')
        e(f'v_mul_u32_u24 v{b2}, {KVB}, v{b2}'); e(f'v_add_u32 v{a}, v{a}, v{b2}')
        e(f's_lshl_b32 s{sT0}, s{sHd}, 9'); e(f's_add_u32 s{sT0}, s{sT0}, s{sKV}')
        o(f'buffer_store_dwordx4 v[{W}:{W+3}], v{a}, {WSr}, s{sT0} offen {stf}')
        e(f's_branch {L}_end')
        p.label(f'{L}_kx')
        e(f'v_lshl_add_u32 v{a}, v{b2}, 2, v{a}')
        o(f'buffer_store_dword v{W+3}, v{a}, {WSr}, s{sKX} offen {stf}')
        e(f's_branch {L}_end')
        p.label(f'{L}_v')
        e(f's_lshr_b32 s{sT0}, s{sMb}, 2'); e(f's_add_u32 s{sT0}, s{sT0}, 73728')
        e(f'v_add_u32 v{a}, s{sT0}, v{vL16}')
        p.raw(f'ds_write_b128 v{a}, v[{W}:{W+3}]')
        e(f'v_and_b32 v{a}, 48, v0'); e(f'v_lshlrev_b32 v{a}, 4, v{a}'); e(f'v_add_u32 v{a}, s{sT0}, v{a}')
        e(f'v_and_b32 v{c}, 12, v0'); e(f'v_lshl_add_u32 v{a}, v{c}, 2, v{a}')
        e(f'v_and_b32 v{c}, 2, v0'); e(f'v_lshl_add_u32 v{a}, v{c}, 5, v{a}')
        e(f'v_and_b32 v{c}, 1, v0'); e(f'v_lshl_add_u32 v{a}, v{c}, 3, v{a}')
        p.raw('s_waitcnt lgkmcnt(0)')
        p.raw(f'ds_read_b64_tr_b16 v[{A_}:{A_+1}], v{a}'); p.raw(f'ds_read_b64_tr_b16 v[{A_+2}:{A_+3}], v{a} offset:128')
        e(f'v_mul_u32_u24 v{b2}, {KVB}, v{b2}'); e(f'v_bfe_u32 v{c}, v0, 3, 2'); e(f'v_mul_u32_u24 v{c}, 304, v{c}')
        e(f'v_and_b32 v{a}, 0x70, v{vL16}'); e(f'v_add3_u32 v{b2}, v{b2}, v{c}, v{a}')
        e(f's_sub_u32 s{sT0}, s{sHd}, 3'); e(f's_lshl_b32 s{sT0}, s{sT0}, 7'); e(f's_min_u32 s{sT0}, s{sT0}, 160'); e(f's_add_u32 s{sT0}, s{sT0}, s{sKV}')
        p.raw('s_waitcnt lgkmcnt(0)')
        e(f's_cmp_lg_u32 s{sHd}, 5'); e(f's_cbranch_scc1 {L}_vs')
        e(f'v_cmp_eq_u32 vcc, 0x50, v{a}'); e(f'v_mov_b32 v{c}, 0x3f803f80'); e(f'v_add_u32 v{c+2}, 48, v{b2}')
        for i in range(4): e(f'v_cndmask_b32 v{A_+i}, v{A_+i}, v{c}, vcc')
        e(f'v_cndmask_b32 v{b2}, v{b2}, v{c+2}, vcc')
        e(f'v_cmp_gt_u32 vcc, 0x50, v{a}'); e(f'v_mov_b32 v{c}, {OOB}'); e('s_nop 0'); e(f'v_cndmask_b32 v{b2}, v{b2}, v{c}, vcc')
        p.label(f'{L}_vs')
        o(f'buffer_store_dwordx4 v[{A_}:{A_+3}], v{b2}, {WSr}, s{sT0} offen offset:1024 {stf}')
        p.label(f'{L}_end')
    ku = []
    for rt in range(4):
        u = UU + 8 * rt; d = UU + 4 + 16 * (rt >> 1) + 2 * (rt & 1)
        ku += [f'v_cvt_pk_bf16_f32 v{d}, v{u+4}, v{u+5}', f'v_cvt_pk_bf16_f32 v{d+1}, v{u+6}, v{u+7}']
    ku += [sw16(A_, A_ + 2), sw16(A_ + 1, A_ + 3), sw16(W, W + 2), sw16(W + 1, W + 3)] + [sw32(A_ + i, W + i) for i in range(4)]
    kad = [f's_sub_u32 s{sVr}, s{sHd}, 3', f'v_lshrrev_b32 v{kt}, 5, v0', f'v_mul_u32_u24 v{kt}, {KVB}, v{kt}', f'v_and_b32 v{ka}, 0x1f0, v{vL16}', f'v_add_u32 v{ka}, v{ka}, v{kt}',
           f'v_bfe_u32 v{kb}, v0, 3, 2', f'v_mul_u32_u24 v{kb}, 304, v{kb}', f'v_and_b32 v{kc}, 0x70, v{vL16}', f'v_add3_u32 v{kt}, v{kt}, v{kb}, v{kc}',
           f's_lshr_b32 s{sTc}, s{sMb}, 2', f's_add_u32 s{sTc}, s{sTc}, 73728',
           f'v_and_b32 v{kc}, 0x300, v{vL16}', f'v_add_u32 v{kc}, s{sTc}, v{kc}',
           f'v_and_b32 v{kb}, 12, v0', f'v_lshl_add_u32 v{kc}, v{kb}, 2, v{kc}', f'v_and_b32 v{kb}, 2, v0', f'v_lshl_add_u32 v{kc}, v{kb}, 5, v{kc}',
           f'v_and_b32 v{kb}, 1, v0', f'v_lshl_add_u32 v{kc}, v{kb}, 3, v{kc}', f'v_add_u32 v{kb}, s{sTc}, v{vL16}']
    for o_ in qc:
        if 'store' in o_.text: o_.tag = 'QKV'
    qe = qS + 288 + cfg.get('qkv_end', 100)
    if cfg.get('kvold', 1):
        kvop = S.add(Op(kv_last, 2, [qc[-1]], qS + 292, qe + 10)); kvop.call = True
    else:
        kac = S.chain(kad, qS + 230, qe)
        g_op = S.add(Op(kv_gate, 2, [qc[-1]], qS + 292, qe + 4, prio=0)); g_op.call = True
        kuc = S.chain(ku, qS + 292, qe + 22, deps=[g_op])
        for o_ in kuc: o_.prio = 0
        prev_ = [kuc[-1], kac[-1]]
        for n_, f_ in enumerate((kv_block, kv_later('r'), kv_later('s'))):
            o_ = S.add(Op(f_, 2, prev_, qS + 292, qe + 26 + 8 * n_, prio=0)); o_.call = True
            if n_: o_.after = (prev_[0], 7)
            prev_ = [o_]
    lastst = []; qs_ = 0; NST = cfg.get('nst', 5); deferred = []
    hold = [G1, XV, X3, XV + 16, X3 + 16, XV, X3, XV + 16, X3 + 16]; freed = {}
    for j in range(9):
        acc = accB[j]; q1 = 1 + max(lastq(180 + i) for i, (jj, c) in enumerate(seqB) if jj == j)
        nxt_ = sorted(firstq(180 + i) for i, (jj, c) in enumerate(seqB) if jj > j and accB[jj] == acc)
        dl = min(nxt_[0] - 2 if nxt_ else 10 ** 6, NQ - 4 if j < 8 else 10 ** 6); h = hold[j]
        cv = S.chain([f'v_cvt_pk_bf16_f32 v{h+i}, v{acc+2*i}, v{acc+2*i+1}' for i in range(16)], min(q1 + 3, NQ), min(dl, q1 + 60), deps=freed.get(h, []))
        sot = f's_add_u32 s{sPo}, s{sP}, {16384 * j}'
        sts = [f'buffer_store_dwordx4 v[{h+4*rt}:{h+4*rt+3}], v{vL16}, {WSr}, s{sPo} offen offset:{1024 * rt} {stf}' for rt in range(4)]
        if j >= NST:
            deferred.append([sot] + sts); continue
        so = S.add(Op(sot, start=q1, end=NQ, same=lastst, prio=0))
        for rt in range(4):
            qs_ = max(qs_ + cfg.get('stspace', 22), q1 + 8)
            for o_ in cv[4 * rt:4 * rt + 4]: o_.prio = min(o_.prio, qs_ - 2); o_.end = min(o_.end, qs_ + 8)
            lastst = [S.add(Op(sts[rt], 2, [cv[4 * rt + 3], so], qs_, min(qs_ + 12, dl if h == acc else NQ), tag='PART', same=lastst))]
        freed[h] = lastst
    cfg['deferred'] = deferred
    if cfg.get('sched_extra'): cfg['sched_extra'](S, p)
    if cfg.get('nofill'): S.ops = [o for o in S.ops if isinstance(o.text, str) and ('lds' in o.text or 'm0' in o.text or f's{sso},' in o.text)]
    placed = S.run()
    print('ffn schedule: overflow slots', S.over)

    def emit(item, tag):
        if callable(item): item()
        else: e(item, tag=tag)
    barrier(0)
    if cfg.get('pstamp'): pf.stamp(89)
    x0, x1_ = xreads(0), xreads(1)
    for i in (0, 1, 4, 5): e(tread(i // 2, i & 1))
    for t in x0: e(t)
    for i in (2, 3, 6, 7): e(tread(i // 2, i & 1))
    rest = [tread(i // 2, i & 1) for i in range(8, 16)] + x1_
    for n_, t in enumerate(rest): S.fixed[(n_ * 10) // 16].insert(0, (1, t, None))
    snake = cfg.get('snake', 1)
    for q in range(NQ + 1):
        if q < NQ:
            bi, K, ft, rt = SEQ[q]; D, kk, _ = kinfo(K)
            d = D + (rt * 2 + ft) * 4; a = AB + 4 * bi
            C = '0' if kk == 0 else f'v[{d}:{d+3}]'
            e(f'v_mfma_f32_16x16x32_bf16 v[{d}:{d+3}], v[{a}:{a+3}], {xf(kk, rt)}, {C}')
        if q == NQ and cfg.get('pre_tail'): cfg['pre_tail'](p)
        fx = S.fixed[q]
        lastw = [f for f in fx if callable(f[1]) and q % 16 == 15 and WC]
        for c, item, tag in fx:
            if (c, item, tag) not in lastw: emit(item, tag)
        mid = cfg.get('mid_tail') if q == NQ else None
        for n_, o in enumerate(placed[q]):
            if mid and n_ == 5: mid(p)
            if getattr(o, 'call', False): o.text()
            else: e(o.text() if callable(o.text) else o.text, tag=o.tag)
        for c, item, tag in lastw: emit(item, tag)
```

```python
import sys
from common import *
import ffn, att, k23
from ffn import sW, sT0, sT1, sT2, SRD_WS, SRD_X, vL16, KVG, KVB, sMb, sso, NQ

att.sRG, att.sHH = 6, 7
att.PP, att.KM, att.VV, att.KX = 24, 32, 40, 56
att.SA, att.SB, att.OA, att.OB = 64, 80, 96, 112
att.QM, att.QX = 128, 136
SEL, SELX = 152, 160
att.vAK, att.vAV = 164, 165
vG, vPoll, vTch = 166, 252, 240
att.vT = 236
BACC = 172
PBUF, NPB = 192, 11
vFP, vFO = 244, 245
vL2, vLX, vLO, vPa = 246, 247, 248, 249
vR0, vR1, vR2, vGt = 245, 250, 167, 251
sH0, sH1 = 8, 15
sRG, sHH = att.sRG, att.sHH
SRD_OUT, SRD_DBG = 52, 68
vAt = 238
sPb, sWo, sWx, sOo, sOp, sSpin = 74, 75, 76, 77, 78, 79
sPb = 80; sWo = 81; sWx = 82; sOo = 83; sOp = 84; sSpin = 85; sKVs = 86; sLd = 87
LDS_O, LDS_G = 154560, 163776
FLO = 4096
WSr = f's[{SRD_WS}:{SRD_WS+3}]'
mf16 = att.mf16

class Rec:
    def __init__(self): self.l = []
    def e(self, t, **kw): self.l.append(t)

def poll(p, L, srdr, want, mask, first_issued):
    e = p.e
    cmpop = 'le'
    ld = f'buffer_load_dword v{vPoll}, v{vPa}, {srdr}, 0 offen sc1'
    if not first_issued: e(ld)
    e(f'v_cmp_{cmpop}_u32 vcc, {want}, v{vPoll}')
    e(f's_cmp_eq_u32 vcc_lo, {mask}')
    e(f's_cbranch_scc0 {L}_spin')
    p.label(f'{L}_go')
    def out(q):
        r = q.raw
        q.label(f'{L}_spin'); r(f's_mov_b32 s{sSpin}, 0')
        q.label(f'{L}_sp2'); r('s_sleep 8'); r(ld); r(f's_add_u32 s{sSpin}, s{sSpin}, 1'); r('s_waitcnt vmcnt(0)')
        r(f'v_cmp_{cmpop}_u32 vcc, {want}, v{vPoll}')
        r(f's_cmp_gt_u32 s{sSpin}, 0x80000'); r(f's_cbranch_scc1 {L}_go')
        r(f's_cmp_eq_u32 vcc_lo, {mask}'); r(f's_cbranch_scc0 {L}_sp2'); r(f's_branch {L}_go')
    return out

def gen(p, cfg, pf):
    cfg = dict(cfg); cfg.setdefault('stflags', 'sc1'); cfg.setdefault('perm', 1); cfg.setdefault('bars', [(6, 1), (66, 2)]); cfg.setdefault('pfd0', 1000); cfg.setdefault('pfdg', 60); cfg.setdefault('pfm', 16); cfg.setdefault('xcd_m', 4); cfg.setdefault('pfdl', 11); cfg.setdefault('rot', 8); cfg.setdefault('dcost', 1); cfg.setdefault('defer', 728); cfg.setdefault('b0', 12); cfg.setdefault('lps0', 6); cfg.setdefault('late', 16); cfg.setdefault('hwsp', 32); cfg.setdefault('hwd', 0); cfg.setdefault('chain', 5); cfg.setdefault('tpos', [16,17,18,19,21,22,24,25,28,29,30,32,33,35,36,38])
    cfg.setdefault('apat', 'E0 E1 PB rK x0 E2 E3 C0 C1 E4 QX w x1 E5 E6 E7 y0 C2 C3 E8 QM rA x2 E9 E10 E11 y1 C4 C5 E12 PA rB x3 E13 E14 E15 C6 C7')
    BS, BP, BQ = cfg.get('bsig', 36), cfg.get('bpoll', 48), cfg.get('bq', 54)
    assert BP <= 49 and BQ >= BP
    cfg['kvb0'] = BQ; cfg['bar_tags'] = {BS: ['QKV']}
    e = p.e; ool = []; O2 = cfg.get('o2', 1); sOo2, sOp2 = 42, 43; poison = []; sPz, sFn, vPz = 96, 97, 243
    qb = lambda b: 32 * (b - 1) + 15
    vT = att.vT

    def setup_extra(p):
        e = p.e
        e(f'v_cmp_eq_u32 vcc, 0, v0'); e(f'v_mov_b32 v{vFO}, {OOB}'); e(f'v_mov_b32 v{vTch+1}, 0')
        e(f'v_cndmask_b32_e64 v{vFO}, v{vFO}, 0, vcc')
        e(f's_lshl_b32 s{sT0}, s{ffn.sM_}, 6'); e(f's_lshl_b32 s{sT1}, s{ffn.sS}, 2'); e(f's_add_u32 s{sT0}, s{sT0}, s{sT1}')
        e(f's_add_u32 s{sT0}, s{sT0}, {WS_FL}'); e(f's_lshl_b32 s{sT1}, s{sW}, 28'); e(f's_add_u32 s{sT0}, s{sT0}, s{sT1}')
        e(f'v_add_u32 v{vFP}, s{sT0}, v{vFO}')
        e(f's_and_b32 s{sT0}, s2, 3'); e(f's_lshl_b32 s{sT0}, s{sT0}, 6'); e(f's_lshl_b32 s{sT1}, s{sW}, 12'); e(f's_add_u32 s{sT0}, s{sT0}, s{sT1}')
        e(f'v_lshlrev_b32 v{vPa}, 6, v0'); e(f'v_lshlrev_b32 v{vAt}, 8, v0'); e(f'v_add_u32 v{vAt}, s{sT0}, v{vAt}'); e(f'v_mov_b32 v{vAt+1}, 1')
        e(f'buffer_store_dword v{vTch+1}, v{vFP}, {WSr}, 0 offen sc1', tag='QKV')
        r0 = Rec(); att.att_ids(r0); PZ = 168
        r0.e(f's_lshl_b32 s{sOp}, s{sRG}, 1'); r0.e(f's_add_u32 s{sOp}, s{sOp}, s{sHH}'); r0.e(f's_mul_i32 s{sOo}, s{sOp}, 9216'); r0.e(f's_add_u32 s{sOo}, s{sOo}, {WS_O}')
        r0.e(f's_xor_b32 s{sOp}, s{sOp}, 1'); r0.e(f's_mul_i32 s{sOp}, s{sOp}, 9216'); r0.e(f's_add_u32 s{sOp}, s{sOp}, {WS_O}')
        r0.e(f's_mul_i32 s{sSpin}, s{sW}, 2304'); r0.e(f's_add_u32 s{sSpin}, s{sSpin}, s{sOo}')
        for i in range(4): r0.e(f'v_mov_b32 v{PZ+i}, -1')
        r0.e(f'v_lshlrev_b32 v{PZ+4}, 2, v0')
        for cp in range(2 if O2 == 1 else 1):
            if cp: r0.e(f's_add_u32 s{sSpin}, s{sSpin}, {OD}')
            r0.e(f'buffer_store_dwordx4 v[{PZ}:{PZ+3}], v{vL16}, {WSr}, s{sSpin} offen sc1')
            r0.e(f'buffer_store_dwordx4 v[{PZ}:{PZ+3}], v{vL16}, {WSr}, s{sSpin} offen offset:1024 sc1')
            r0.e(f'buffer_store_dword v{PZ}, v{PZ+4}, {WSr}, s{sSpin} offen offset:2048 sc1')
        if O2 == 1: r0.e(f's_add_u32 s{sOo2}, s{sOo}, {OD}'); r0.e(f's_mov_b32 s{sOp2}, s{sOp}'); r0.e(f's_add_u32 s{sOp}, s{sOp}, {OD}')
        i0 = next(i for i, t in enumerate(r0.l) if t.startswith('v_mov')); i1 = 1 + max(i for i, t in enumerate(r0.l) if 'store' in t)
        for t in r0.l[:i0] + r0.l[i1:]: e(t.replace(f's{sSpin}', f's{sPz}'))
        poison.extend(t.replace(f's{sSpin}', f's{sPz}').replace(f'v{PZ+4}', f'v{vPz}') for t in r0.l[i0:i1])
        e(f'v_readfirstlane_b32 s{sFn}, v{vFP}')
    cfg['setup_extra'] = setup_extra

    def kv_unit(i, n=4):
        if n == 4:
            return [(f's_add_u32 m0, s{sMb}, {16384 * i}', None), (f's_add_u32 s{sso}, s{sKVs}, {16384 * i}', None)] + \
               [(f'buffer_load_dwordx4 v{vL16}, {WSr}, s{sso} offen' + (f' offset:{1024 * q}' if q else '') + ' lds', 'KV') for q in range(4)]
        return [(f's_lshr_b32 s{sso}, s{sMb}, 2', None), (f's_add_u32 m0, s{sso}, {16384 * i}', None), (f's_add_u32 s{sso}, s{sso}, {WS_KV + 16384 * i}', None),
                (f'buffer_load_dwordx4 v{vL16}, {WSr}, s{sso} offen lds', 'KV')]

    cfg.setdefault('kv_at', [4, 5, 6, 7, 8])
    cfg['extra_units'] = {}
    for i in range(5): cfg['extra_units'].setdefault(BQ + cfg['kv_at'][i], []).extend(kv_unit(i))
    quads = [f'a[{4*i}:{4*i+3}]' for i in list(range(36, 64)) + list(range(36))] + [f'v[{r}:{r+3}]' for r in (4, 8, 12, 16, 168)]
    nearly = len(quads)
    quads += [f'v[{PBUF+4*i}:{PBUF+4*i+3}]' for i in range(NPB)] + [f'v[{r}:{r+3}]' for r in (SEL, SEL + 4, SELX)]
    nmid = len(quads)
    quads += [f'v[{r}:{r+3}]' for r in (76, 80, 84, 88, 92, 104, 108, 120, 124)]
    NWO = 82; vR = (vR0, vR1, vR2)
    def wo_load(f):
        half, r = divmod(f, 41); g, i = divmod(r, 9); out = []
        hreg = (sH0, sH1)[half]
        if i == 0:
            if g == 0: out.append(f's_add_u32 s{sLd}, s{sWo}, s{hreg}')
            elif g < 4: out.append(f's_add_u32 s{sLd}, s{sLd}, 18432')
            else: out.append(f's_add_u32 s{sLd}, s{sWx}, s{hreg}')
        vo = vLO if (g == 4 and i == 4) else vR[i // 4]
        out.append(f'buffer_load_dwordx4 {quads[f]}, v{vo}, {WSr}, s{sLd} offen' + (f' offset:{1024 * (i % 4)}' if i % 4 else ''))
        return out
    NWB = cfg.get('nwb', 0)
    def sched_extra(S, p):
        r = Rec(); e = r.e
        r0 = Rec(); srd(r0, SRD_DBG, P_DBG, 256)
        q0_ = max(288 * cfg.get('kS', 2) + 146, cfg.get('defer', 0) + 40)
        for o in S.chain(r0.l, q0_, q0_ + 70, tight=False):
            if 'store' in o.text: o.tag = 'QKV'; o.cost = 2
        kS = cfg.get('kS', 2)
        e(f's_add_u32 s{sKVs}, s{sMb}, {WS_KV}')
        e(f's_mul_i32 s{sT0}, s{sHH}, 9'); e(f's_lshl_b32 s{sT1}, s{sW}, 1'); e(f's_add_u32 s{sT1}, s{sT1}, s{sT0}')
        e(f's_lshr_b32 s{sPb}, s{sRG}, 3'); e(f's_mul_i32 s{sPb}, s{sPb}, {16 * 147456}')
        e(f's_lshl_b32 s{sT2}, s{sT1}, 13'); e(f's_add_u32 s{sPb}, s{sPb}, s{sT2}')
        e(f's_and_b32 s{sT2}, s{sRG}, 7'); e(f's_lshl_b32 s{sT2}, s{sT2}, 10'); e(f's_add_u32 s{sPb}, s{sPb}, s{sT2}')
        e(f's_lshl_b32 s{sT0}, s{sHH}, 4'); e(f's_lshl_b32 s{sT1}, s{sW}, 2'); e(f's_add_u32 s{sT0}, s{sT0}, s{sT1}')
        e(f's_lshl_b32 s{sT0}, s{sT0}, 11'); e(f's_lshl_b32 s{sT1}, s{sRG}, 4'); e(f's_add_u32 s{sT0}, s{sT0}, s{sT1}')
        e(f'v_bfe_u32 v{vT+4}, v0, 4, 1'); e(f'v_and_b32 v{vGt}, 15, v0'); e(f'v_lshl_add_u32 v{vT+4}, v{vT+4}, 11, v{vGt}')
        e(f'v_lshrrev_b32 v{vT+6}, 5, v0'); e(f'v_lshlrev_b32 v{vT+5}, 5, v{vT+4}'); e(f'v_lshl_add_u32 v{vT+5}, v{vT+6}, 4, v{vT+5}')
        e(f'v_lshlrev_b32 v{vT+4}, 2, v{vT+4}'); e(f'v_lshlrev_b32 v{vGt}, 2, v{vGt}')
        e(f's_lshl_b32 s16, s{sT0}, 5'); e(f's_add_u32 s16, s16, {WS_QM}'); e(f's_add_u32 s17, s16, {2 * 65536}')
        e(f's_lshl_b32 s18, s{sT0}, 2'); e(f's_add_u32 s18, s18, {WS_QX}'); e(f's_add_u32 s19, s18, {2 * 8192}')
        e(f's_lshl_b32 s20, s{sRG}, 6'); e(f's_add_u32 s20, s20, {WS_G}')
        kv = [o for o in S.ops if getattr(o, 'call', False) and o.text.__name__ == 'kv_last']
        S.chain(r.l, 288 * kS + 300, 288 * kS + 288 + cfg.get('rend', 146), deps=kv)
        r = Rec(); e = r.e
        srd(r, SRD_OUT, P_OUT, 2048 * 1152)
        k23.sel_frags(r, SEL, vT, True)
        e(f's_bitcmp1_b32 s{sW}, 0 | s_cselect_b64 vcc, -1, 0')
        for i in range(4): e(f'v_cndmask_b32 v{SELX+i}, v{SEL+i}, v{SEL+4+i}, vcc')
        e(f's_mul_i32 s{sT0}, s{sHH}, 9'); e(f's_lshl_b32 s{sT1}, s{sW}, 1'); e(f's_add_u32 s{sT1}, s{sT1}, s{sT0}')
        e(f's_mul_i32 s{sWo}, s{sT1}, 36864'); e(f's_add_u32 s{sWo}, s{sWo}, {WS_WO}')
        e(f's_add_u32 s{sT0}, s{sT0}, 8'); e(f's_mul_i32 s{sWx}, s{sT0}, 36864'); e(f's_and_b32 s{sT2}, s{sW}, 1'); e(f's_mul_i32 s{sT2}, s{sT2}, 18432')
        e(f's_add_u32 s{sWx}, s{sWx}, s{sT2}'); e(f's_add_u32 s{sWx}, s{sWx}, {WS_WO}')
        e(f's_sub_u32 s{sT0}, s{sT0}, s{sT1}'); e(f's_lshl_b32 s{sT0}, s{sT0}, 13'); e(f's_and_b32 s{sT2}, s{ffn.sHF}, 147456'); e(f's_add_u32 s{sT0}, s{sT0}, s{sT2}')
        e(f'v_add_u32 v{vLX}, s{sT0}, v{vL16}'); e(f'v_add_u32 v{vL2}, 8192, v{vL16}')
        e(f's_and_b32 s{sT2}, s{ffn.sHF}, 5120'); e(f'v_add_u32 v{vR0}, s{sT2}, v{vL16}')
        e(f's_andn2_b32 s{sT2}, 4096, s{ffn.sHF}'); e(f'v_add_u32 v{vR1}, s{sT2}, v{vL16}'); e(f'v_add_u32 v{vR2}, 4096, v{vR1}')
        e(f's_and_b32 s{sT2}, s{ffn.sHF}, {OOB}'); e(f'v_add_u32 v{vLO}, s{sT2}, v{vR1}')

        if O2 == 3: e(f's_getreg_b32 s{sOo2}, hwreg(HW_REG_XCC_ID, 0, 4)'); e(f's_add_u32 s{sOo2}, s{sOo2}, 1'); e(f'v_mov_b32 v{vG}, s{sOo2}')
        else: e(f'v_mov_b32 v{vG}, 1')
        e(f's_mov_b32 s{att.sPerm}, 0x07060302'); e(f's_mul_i32 s{sH0}, s{sHH}, 9216'); e(f's_sub_u32 s{sH1}, 9216, s{sH0}')
        att.att_addrs(r, cfg)
        e(f's_lshr_b32 s{sT0}, s{sRG}, 3'); e(f's_lshl_b32 s{sT0}, s{sT0}, 6'); e(f's_add_u32 s{sT0}, s{sT0}, {WS_FL}')
        e(f'v_and_b32 v{vPa}, 48, v0'); e(f'v_lshlrev_b32 v{vPa}, 22, v{vPa}'); e(f'v_lshl_add_u32 v{vPa}, v0, 2, v{vPa}'); e(f'v_add_u32 v{vPa}, s{sT0}, v{vPa}')
        e(f's_and_b32 s{sFn}, s{sFn}, 0xfffffff'); e(f's_xor_b32 s{sFn}, s{sFn}, 64'); e(f'v_writelane_b32 v{vPa}, s{sFn}, 16')
        def mk(t):
            if ' | ' not in t: return t
            def f():
                for x in t.split(' | '): p.e(x)
            return f
        ch = S.chain([mk(t) for t in r.l], cfg.get('rq', 1700), NQ - 60, tight=False)
        for o in ch:
            if callable(o.text): o.call = True; o.cost = 2
        S.fix(qb(cfg['up'](BS)) + 4, f'buffer_atomic_add v{vAt+1}, v{vAt}, s[{SRD_DBG}:{SRD_DBG+3}], 0 offen sc1')
        DB = f's[{SRD_DBG}:{SRD_DBG+3}]'
        S.fix(qb(BP) - cfg.get('poll_lead', 110), f'buffer_load_dword v{vPoll}, v{vPa}, {DB}, 0 offen sc1')
        S.fix(qb(BP) - 2, lambda: ool.append(poll(p, 'PK', DB, 64, 15, True)), cost=4)
        QM = att.QM
        ql = [f'buffer_load_dword v{vT+6}, v{vT+4}, {WSr}, s18 offen sc1', f'buffer_load_dword v{vT+7}, v{vT+4}, {WSr}, s19 offen sc1',
              f'buffer_load_dword v{vGt}, v{vGt}, {WSr}, s20 offen sc1',
              f'buffer_load_dwordx4 v[{QM}:{QM+3}], v{vT+5}, {WSr}, s16 offen sc1', f'buffer_load_dwordx4 v[{QM+4}:{QM+7}], v{vT+5}, {WSr}, s17 offen sc1']
        q_l = cfg.get('ql', 1580); assert q_l > qb(BP) and q_l + 3 * cfg.get('qd', 4) >= 1580
        for i, t in enumerate(ql): S.add(Op(t, 2, start=q_l + cfg.get('qd', 4) * i, end=q_l + 10 + cfg.get('qd', 4) * i))
        prev = []; g0 = qb(BQ) + 4; dg = (NQ - 12 - g0) // max(NWB, 1)
        for f in range(NWB):
            for t in wo_load(f):
                ld_ = 'load' in t
                prev = [S.add(Op(t, 2 if ld_ else 1, prev, g0 + dg * f - (0 if ld_ else 3), g0 + dg * f + dg))]
        r3 = Rec(); att.q_variants(r3)
        r3.e(f'v_mul_f32 v{vGt}, {f2u(-math.log2(math.e))}, v{vGt}'); r3.e(f'v_exp_f32 v{vGt}, v{vGt}'); r3.e(f'v_add_f32 v{vGt}, 1.0, v{vGt}'); r3.e(f'v_rcp_f32 v{vGt}, v{vGt}')
        r3.l += [t for t in poison if t.startswith('v_')]
        S.chain(r3.l, NQ - 36, NQ - 2, tight=False)
    cfg['sched_extra'] = sched_extra

    def pre_tail(p):
        pf.start()
        p.wait(vmtags=['KV'], lg0=True); p.e('s_barrier')
        pf.save(70)
        p.e(att.rdKX(0)); p.e(att.rdKM(0)); p.e(att.rdV(0, 0)); p.e(att.rdV(0, 1))
    cfg['pre_tail'] = pre_tail
    SA, SB, OA, OB = att.SA, att.SB, att.OA, att.OB
    def mid_tail(p):
        p.c('ATT'); e(att.qkx(0, 0, SA)); e(att.mf32(SA, att.KM, att.QM, att.vr(SA)))
    cfg['mid_tail'] = mid_tail
    ffn.gen_ffn(p, cfg, pf)

    X = {}
    def at(hs, tk, item, tag=None): X.setdefault((hs, tk), []).append((item, tag))
    SL = [(2 * (i // 4) + (1 if i % 4 else 0), ('x1', 'x0', 'x2', 'x3')[i % 4]) for i in range(256)]
    used = [0] * 256
    def put(item, lo, vm, tag=None, hi=None):
        i = lo
        while i < 256 and (used[i] or (vm and i % 4 == 0)):
            if hi is not None and i >= hi: break
            i += 1
        if i >= 256: return None
        used[i] += 1; at(*SL[i], item, tag); return i
    def stream(groups, lo, pace, tagf=None, gate=None):
        pos = []; prev = lo - 1
        for n, grp in enumerate(groups):
            s0 = max(prev + 1, lo + int(n * pace), gate(n) if gate else 0)
            i = s0
            while i < 256 and (used[i] or i % 4 == 0): i += 1
            if i >= 256: break
            for t in grp[:-1]:
                c = [k for k in range(max(prev + 1, 0), i) if not used[k] and k % 4 == 0]
                k = c[-1] if c else (prev if prev >= 0 and n else i)
                used[k] += 1; at(*SL[k], t); prev = k
            used[i] += 1; at(*SL[i], grp[-1], tagf(n) if tagf else None); prev = i; pos.append(i)
        return pos
    def groups_of(lst):
        out = []; cur = []
        for t in lst:
            cur.append(t)
            if t.startswith('buffer_'): out.append(cur); cur = []
        return out
    BBA, BPL, BPC, LAG = cfg.get('bba', 17), cfg.get('bpl', 27), cfg.get('bpc', 30), cfg.get('lag', 4)
    def skew(L):
        if cfg.get('skew'):
            for w_ in range(3):
                e(f's_cmp_le_u32 s{sW}, {w_}'); e(f's_cbranch_scc1 {L}'); e(f's_nop {cfg["skew"]}')
            p.label(L)
    skew('SK0')
    def bar_a():
        p.wait(vmtags=['KV', 'PART']); e('s_barrier'); skew('SK1')
        e(f'buffer_store_dword v{vG}, v{vFP}, {WSr}, 0 offen sc1')
    put(bar_a, 4 * BBA + 1, True)
    put(f'buffer_load_dword v{vPoll}, v{vPa}, {WSr}, 0 offen sc1', 4 * BPL + 1, True)
    def pp_():
        ool.append(poll(p, 'PP', WSr, 1, 0x1ffff, True))
        if O2 == 3: e(f'v_readlane_b32 s{sOp2}, v{vPoll}, 16')
    put(pp_, 4 * BPC + 3, True)
    if cfg.get('otouch', 1) and O2:
        def otouch():
            e(f'v_min_u32 v{vPz}, 17, v0'); e(f'v_lshlrev_b32 v{vPz}, 7, v{vPz}')
            e(f'buffer_load_dword v{ffn.vDum}, v{vPz}, {WSr}, s{sPz} offen sc1').dst = set()
        put(otouch, 4 * cfg.get('bot', 56) + 1, True)
    ps = stream(groups_of(sum(cfg['deferred'], [])), 0, cfg.get('dpace', 3), lambda n: 'PART')
    pk = stream(groups_of([t for i in range(5, 10) for t, tag in kv_unit(i, 4 if i < 9 else 1)]), 0, 1, lambda n: 'KV')
    pz = stream(groups_of([t for t in poison if not t.startswith('v_')]), 0, 1, lambda n: 'PART')
    assert max(ps + pk + pz) < 4 * BBA
    PL = [(sl, j) for sl in range(16) for j in range(3) if j < 2 or sl % 2 == 0]; NP_ = len(PL)
    pg = []
    for i, (sl, j) in enumerate(PL):
        buf = PBUF + 4 * (i % NPB)
        pg.append(([f's_add_u32 s{sPb}, s{sPb}, 147456'] if j == 0 and sl else []) +
                  [f'buffer_load_dwordx4 v[{buf}:{buf+3}], v{(vL16, vL2, vLX)[j]}, {WSr}, s{sPb} offen sc1'])
    pp_ = stream(pg, 4 * BPC + 4, cfg.get('ppace', 2.4), lambda n: ('PL', n))
    cons = [0] * NP_; yq = {}
    for i, (sl, j) in enumerate(PL):
        buf = PBUF + 4 * (i % NPB); b_ = pp_[i] // 4 + LAG; cons[i] = b_
        for ti in range(2 if j < 2 else 1):
            d = BACC + 8 * j + 4 * ti; A = SELX if j == 2 else SEL + 4 * ti
            yq.setdefault(b_, []).append(mf16(d, f'v[{A}:{A+3}]', f'v[{buf}:{buf+3}]', '0' if sl == 0 else f'v[{d}:{d+3}]'))
    for b_, lst in yq.items():
        assert len(lst) <= 4 and b_ < 63
        tags = [('PL', i) for i in range(NP_) if cons[i] == b_]
        used[4 * b_] += 1; at(*SL[4 * b_], lambda tags=tags: p.wait(vmtags=tags))
        for n, t in enumerate(lst): at(2 * b_ + n // 2, f'y{n & 1}', t)
    for i in range(NPB, NP_): assert pp_[i] >= 4 * cons[i - NPB] + 3, (i, pp_[i], cons[i - NPB])
    lastuse = [max(cons[i] for i in range(NP_) if i % NPB == k) for k in range(NPB)] + [max(cons)] * 3
    order = sorted(range(NPB + 3), key=lambda k: lastuse[k])
    quads[nearly:nmid] = [quads[nearly + k] for k in order]
    pw = stream([wo_load(f) for f in range(NWB, min(nmid, NWO))], 0, cfg.get('wpace', 1), None,
                gate=lambda n: 0 if NWB + n < nearly else 4 * lastuse[order[NWB + n - nearly]] + 3)
    f = NWB + len(pw)
    print('wo loads in loop', f, 'slots used', sum(1 for u in used if u), 'shared', sum(1 for u in used if u > 1))
    def extra(hs, tk):
        for item, tag in X.pop((hs, tk), []):
            if callable(item): item()
            else: e(item, tag=tag)
    base = 0
    for b in range(64):
        if b and b % 16 == 0:
            for a in (att.vAK, att.vAV): e(f'v_add_u32 v{a}, {2 * KVG}, v{a}')
            base += 2 * KVG
        for t in range(2): att.half_step(p, b, t, base, cfg, extra, line=True)
        if b % 16 == 15: pf.stamp(71 + b // 16)
        if cfg.get('astamp') and b % 4 == 3 and b % 16 != 15: pf.stamp(105 + b // 4)
    assert not X, X.keys()
    e(att.mf32(OB, att.VV + 12, att.PP + 4, att.vr(OB)))
    vO1, vO2, vO3, vOut = 1, 2, 3, 20
    e(f's_lshl_b32 s{sT0}, s{sW}, 11'); e(f'v_add_u32 v{vO1}, s{sT0}, v{vL16}')
    e(f'v_and_b32 v{vO2}, 15, v0'); e(f'v_lshlrev_b32 v{vO2}, 4, v{vO2}'); e(f'v_bfe_u32 v{vO3}, v0, 4, 1'); e(f'v_lshl_add_u32 v{vO2}, v{vO3}, 2, v{vO2}')
    e(f's_lshl_b32 s{sT0}, s{sW}, 8'); e(f's_add_u32 s{sT0}, s{sT0}, 8192'); e(f'v_add_u32 v{vO2}, s{sT0}, v{vO2}')
    e(f'v_lshrrev_b32 v{vO3}, 5, v0'); e(f'v_lshl_add_u32 v{vOut}, v{vO3}, 20, v{vO2}'); e(f'v_lshl_add_u32 v{vO2}, v{vO3}, 29, v{vO2}'); e(f'v_add_u32 v{vOut}, {LDS_O}, v{vOut}')
    att.att_check(p, 'A', cfg, 'test')
    quads[f:NWO] = quads[nmid:nmid + NWO - f]
    OUTr = f's[{SRD_OUT}:{SRD_OUT+3}]'; of_ = cfg.get('outf', '')
    e(f'v_rcp_f32 v{vT}, v{vT}'); e(f'v_rcp_f32 v{vT+2}, v{vT+2}')
    e(f'v_add_u32 v{vO3}, {LDS_O}, v{vO1}')
    e(f'v_mul_f32 v{vT}, v{vT}, v{vGt}'); e(f'v_mul_f32 v{vT+2}, v{vT+2}, v{vGt}')
    for t, O in ((0, OA), (1, OB)):
        for i in range(10): e(f'v_mul_f32 v{O+i}, v{O+i}, v{vT+2*t}')
        for i in range(5): e(f'v_cvt_pk_bf16_f32 v{O+i}, v{O+2*i}, v{O+2*i+1}')
        so_, fl_ = (sOo2 if O2 == 1 else sOo, '') if O2 else (sOo, 'sc1')
        st_ = lambda f_: (f'buffer_store_dwordx4 v[{O}:{O+3}], v{vO1}, {WSr}, s{so_} offen offset:{1024 * t} {f_}', f'buffer_store_dword v{O+4}, v{vO2}, {WSr}, s{so_} offen offset:{8 * t} {f_}')
        if O2 == 3:
            e(f's_cmp_lg_u32 s{sOo2}, s{sOp2}'); e(f's_cbranch_scc1 OS{t}')
            def far(q, t=t, sts=st_('sc1')):
                q.label(f'OS{t}')
                for x in sts: q.raw(x)
                q.raw(f's_branch OS{t}b')
            ool.append(far)
        for x in st_(fl_): e(x)
        if O2 == 3: p.label(f'OS{t}b')
        e(f'ds_write_b128 v{vO3}, v[{O}:{O+3}] offset:{1024 * t}'); e(f'ds_write_b32 v{vOut}, v{O+4} offset:{8 * t}')
    e(f'v_sub_f32 v{vGt}, 1.0, v{vGt}')
    for i in range(3): e(f'v_add_u32 v{vT+4+i}, {LDS_O}, v{vR[i]}')
    e('s_waitcnt lgkmcnt(0)'); e('s_barrier')
    pf.stamp(75)
    OF, XR_ = 24, 60; OGq = [128, 132, 136, 140, 144, 148, 64, 68, 72]; OFq = [OF + 4 * i for i in range(9)]
    for i in range(9): e(f'ds_read_b128 v[{OF+4*i}:{OF+4*i+3}], v{vT+4+i//4} offset:{1024 * (i % 4)}')
    for i in range(20): e(f'v_mul_f32 v{BACC+i}, v{BACC+i}, v{vGt}')
    def og_load(i): return f'buffer_load_dwordx4 v[{OGq[i]}:{OGq[i]+3}], v{vR[i // 4]}, {WSr}, s{sOp} offen' + (f' offset:{1024 * (i % 4)}' if i % 4 else '') + ' sc1'
    g_st = [x for t, O in ((0, OA), (1, OB)) for x in (f'buffer_store_dwordx4 v[{O}:{O+3}], v{vO1}, {WSr}, s{sOo} offen offset:{1024 * t} sc1',
                                                    f'buffer_store_dword v{O+4}, v{vO2}, {WSr}, s{sOo} offen offset:{8 * t} sc1')] if O2 in (1, 2) else []
    misc = [t for f_ in range(f, NWO) for t in wo_load(f_)] + [
            f'v_and_b32 v{vOut}, 15, v0', f'v_mul_u32_u24 v{vOut}, 1152, v{vOut}', f'v_and_b32 v{vO3}, 48, v0', f'v_add_u32 v{vOut}, v{vOut}, v{vO3}',
            f's_mul_i32 s{sT0}, s{sRG}, 18432', f's_mul_i32 s{sT1}, s{sHH}, 576', f's_add_u32 s{sT0}, s{sT0}, s{sT1}',
            f's_lshl_b32 s{sT1}, s{sW}, 7', f's_add_u32 s{sT1}, s{sT1}, s{sT0}', f's_and_b32 s{sT2}, s{sW}, 1', f's_lshl_b32 s{sT2}, s{sT2}, 3',
            f's_add_u32 s{sT0}, s{sT0}, s{sT2}', f's_and_b32 s{sT2}, s{ffn.sHF}, {OOB}', f'v_add_u32 v{vO3}, s{sT2}, v{vOut}', f's_mov_b32 s{sSpin}, 0']
    LDAT = cfg.get('ldat', 12); n = 0; nl = 0; assert LDAT > 6
    grp = lambda half, g: [mf16(BACC + 4 * g, quads[41 * half + 9 * g + i], f'v[{(OFq, OGq)[half][i]}:{(OFq, OGq)[half][i]+3}]', f'v[{BACC+4*g}:{BACC+4*g+3}]') for i in range(9 if g < 4 else 5)]
    chk = [f'v_max3_u32 v{vT}, v{OGq[i//2]+2*(i&1)}, v{OGq[i//2]+2*(i&1)+1}, ' + (f'v{vT}' if i else '0') for i in range(18)]
    ck_ = list(chk); CKAT = cfg.get('ckat', 50)
    for g in range(5):
        for t in grp(0, g):
            e(t); n += 1
            if n >= LDAT and (n - LDAT) % 2 == 0 and nl < 9: e(og_load(nl), tag='OG'); nl += 1
            elif misc: e(misc.pop(0))
            elif nl == 9 and n >= CKAT and ck_:
                if len(ck_) == 18: p.wait(vmtags=['OG'])
                e(ck_.pop(0)); e(ck_.pop(0))
    for t in misc: e(t)
    while nl < 9: e(og_load(nl)); nl += 1
    pf.stamp(76)
    for t in ck_: e(t)
    e(f'v_cmp_eq_u32 vcc, -1, v{vT}'); e('s_cmp_lg_u64 vcc, 0'); e('s_cbranch_scc1 PO_spin')
    p.label('PO_done')
    pf.stamp(77)
    def po_out(q):
        r = q.raw
        NL = cfg.get('nl', 6)
        q.label('PO_spin'); q.label('PO_sp2'); r(f's_add_u32 s{sSpin}, s{sSpin}, 1'); r(f's_cmp_gt_u32 s{sSpin}, 0x8000'); r('s_cbranch_scc1 PO_done')
        if O2 in (1, 2):
            r(f's_cmp_lg_u32 s{sSpin}, {NL}'); r('s_cbranch_scc1 PO_sp3')
            for t in g_st: r(t)
            q.label('PO_sp3')
            if O2 == 1: r(f's_cmp_lt_u32 s{sSpin}, {NL}'); r(f's_cselect_b32 s{sT2}, s{sOp}, s{sOp2}'); r(f's_cselect_b32 s{sOp2}, s{sOp2}, s{sOp}'); r(f's_mov_b32 s{sOp}, s{sT2}')
        for i in range(9): r(og_load(i))
        r('s_waitcnt vmcnt(0)')
        for t in chk: r(t)
        r(f'v_cmp_eq_u32 vcc, -1, v{vT}'); r('s_cmp_lg_u64 vcc, 0'); r('s_cbranch_scc1 PO_sp2'); r('s_branch PO_done')
    ool.insert(0, po_out)
    BX = BACC + 16
    cv = lambda d, s_: f'v_cvt_pk_bf16_f32 v{d}, v{s_}, v{s_+1}'
    fl = {13: [f'ds_write_b128 v{vO1}, v[{BX}:{BX+3}]'],
          20: ['s_waitcnt lgkmcnt(0)', 's_barrier'], 21: [f'ds_read_b128 v[{XR_}:{XR_+3}], v{vO2}'],
          22: [cv(BACC, BACC), cv(BACC + 1, BACC + 2)],
          28: [f'v_add_f32 v{BX}, v{BX}, v{XR_}', f'v_add_f32 v{BX+1}, v{BX+1}, v{XR_+1}'], 29: [f'v_add_f32 v{BX+2}, v{BX+2}, v{XR_+2}', f'v_add_f32 v{BX+3}, v{BX+3}, v{XR_+3}'],
          30: [cv(BACC + 2, BACC + 4), cv(BACC + 3, BACC + 6)],
          31: [f'buffer_store_dwordx4 v[{BACC}:{BACC+3}], v{vOut}, {OUTr}, s{sT1} offen {of_}'],
          33: [cv(BX, BX), cv(BX + 1, BX + 2)], 34: [f'buffer_store_dwordx2 v[{BX}:{BX+1}], v{vO3}, {OUTr}, s{sT0} offen offset:512 {of_}'],
          40: [cv(BACC + 8, BACC + 8), cv(BACC + 9, BACC + 10)]}
    for i_, t in enumerate(g_st): fl[cfg.get('gat', 1) + 3 * i_] = [t]
    fl[15] = [f'v_xor_b32 v{vO2}, 4096, v{vO1}']
    n = 0
    for g in (4, 0, 1, 2, 3):
        for t in grp(1, g):
            e(t); n += 1
            for x in fl.get(n, []): e(x)
    e(cv(BACC + 10, BACC + 12)); e(cv(BACC + 11, BACC + 14))
    e(f'buffer_store_dwordx4 v[{BACC+8}:{BACC+11}], v{vOut}, {OUTr}, s{sT1} offen offset:64 {of_}')
    return ool

def build(cfg, path):
    name = NAME + '_kernel'
    p = Prog()
    kernel_header(p, name)
    p.e('s_cmp_ge_u32 s2, 256'); p.e('s_cbranch_scc1 K_exit')
    cfg = dict(cfg); cfg.setdefault('codepf', 'A_fb-PCL'); cfg.setdefault('hop', 1)
    pf = Prof(p, 'real' if cfg.get('real') else bool(cfg.get('prof')))
    pf.stamp(100, real=True); pf.stamp(101)
    ool = gen(p, cfg, pf)
    pf.stamp(102)
    if pf.on: p.e('s_waitcnt vmcnt(0)')
    pf.stamp(103); pf.stamp(104, real=True)
    pf.dump(SRD_WS, sW)
    p.label('K_exit'); p.e('s_endpgm')
    for f in ool: f(p)
    p.reset_tracking(); p.auto = False
    att.att_check(p, 'A', cfg, 'fallback')
    if cfg['hop']:
        n0 = len(p.ins)
        for w_ in range(4): p.label(f'PAD{w_}')
        p.e('s_endpgm')
    p.fix_hazards(verbose=cfg.get('verbose', False))
    if cfg['hop']:
        tail = p.ins[-5:]
        sv = p.ins; npad = insert_pads(p, 'MAIN', 'A_fb', 4, 'HOPBACK'); p.ins = p.ins[:-5]; print('pads', npad)
    if cfg.get('align', 0): print('align8 (promoted, still misaligned):', align8(p, cfg.get('maxspan', 3)))
    print('instrs', len(p.ins), 'nops added', p.nops_added)
    hdr = '''; One persistent launch, 256 workgroups (one per CU) x 4 waves x 512 registers. Generated by the author's own scripts.
;  phase D : output projection with the partner workgroup's heads (tagged hand-off), gate mix, store.
; Hand-offs: write-through stores, counters in d_debug, flags/tags in d_ws initialised inside the launch; all spins are bounded.'''
    txt = ['; @launch grid=(256,1,1) block=(256,1,1) lds=163840', hdr, '.amdgcn_target "amdgcn-amd-amdhsa--gfx950"', '.text', p.text(),
           '.section .rodata,"a"', descriptor(name, 512, acc=256)]
    open(path, 'w').write('\n'.join(txt))
if __name__ == '__main__':
    build(eval(sys.argv[2]) if len(sys.argv) > 2 else {}, sys.argv[1])
```

```python
import sys
from common import *
import ffn, att, k23
from ffn import sW, sT0, sT1, sT2, SRD_WS, SRD_X, vL16, KVG, KVB, sMb, sso, NQ

att.sRG, att.sHH = 6, 7
att.PP, att.KM, att.VV, att.KX = 24, 32, 40, 56
att.SA, att.SB, att.OA, att.OB = 64, 80, 96, 112
att.QM, att.QX = 128, 136
SEL, vPl = 152, 163
att.vAK, att.vAV = 164, 165
vG, vPoll, vTch = 166, 252, 240
att.vT = 236
BACC = 172
PBUF, NPB = 192, 11
vFP, vFO = 244, 245
vL2, vLX, vLO, vPa = 246, 247, 248, 249
vR0, vR1, vR2, vGt = 245, 250, 167, 251
sH0, sH1 = 8, 15
sRG, sHH = att.sRG, att.sHH
SRD_OUT, SRD_DBG = 52, 68
vAt = 238
sPb, sWo, sWx, sOo, sOp, sSpin = 74, 75, 76, 77, 78, 79
sPb = 80; sWo = 81; sWx = 82; sOo = 83; sOp = 84; sSpin = 85; sKVs = 86; sLd = 87
LDS_O, LDS_G = 154560, 163776
FLO = 4096
WSr = f's[{SRD_WS}:{SRD_WS+3}]'
mf16 = att.mf16

class Rec:
    def __init__(self): self.l = []
    def e(self, t, **kw): self.l.append(t)

def poll(p, L, srdr, want, mask, first_issued):
    e = p.e
    cmpop = 'le'
    ld = f'buffer_load_dword v{vPoll}, v{vPa}, {srdr}, 0 offen sc1'
    if not first_issued: e(ld)
    e(f'v_cmp_{cmpop}_u32 vcc, {want}, v{vPoll}')
    e(f's_cmp_eq_u32 vcc_lo, {mask}')
    e(f's_cbranch_scc0 {L}_spin')
    p.label(f'{L}_go')
    def out(q):
        r = q.raw
        q.label(f'{L}_spin'); r(f's_mov_b32 s{sSpin}, 0')
        q.label(f'{L}_sp2'); r('s_sleep 8'); r(ld); r(f's_add_u32 s{sSpin}, s{sSpin}, 1'); r('s_waitcnt vmcnt(0)')
        r(f'v_cmp_{cmpop}_u32 vcc, {want}, v{vPoll}')
        r(f's_cmp_gt_u32 s{sSpin}, 0x80000'); r(f's_cbranch_scc1 {L}_go')
        r(f's_cmp_eq_u32 vcc_lo, {mask}'); r(f's_cbranch_scc0 {L}_sp2'); r(f's_branch {L}_go')
    return out

def gen(p, cfg, pf):
    cfg = dict(cfg); cfg.setdefault('stflags', 'sc1'); cfg.setdefault('perm', 1); cfg.setdefault('bars', [(6, 1), (66, 2)]); cfg.setdefault('pfd0', 1000); cfg.setdefault('pfdg', 60); cfg.setdefault('pfm', 16); cfg.setdefault('xcd_m', 4); cfg.setdefault('pfdl', 11); cfg.setdefault('rot', 8); cfg.setdefault('dcost', 1); cfg.setdefault('defer', 728); cfg.setdefault('b0', 12); cfg.setdefault('lps0', 6); cfg.setdefault('late', 16); cfg.setdefault('hwsp', 32); cfg.setdefault('hwd', 0); cfg.setdefault('chain', 5); cfg.setdefault('tpos', [16,17,18,19,21,22,24,25,28,29,30,32,33,35,36,38])
    cfg.setdefault('apat', 'E0 E1 PB rK x0 E2 E3 C0 C1 E4 QX w x1 E5 E6 E7 y0 C2 C3 E8 QM rA x2 E9 E10 E11 y1 C4 C5 E12 PA rB x3 E13 E14 E15 C6 C7')
    BS, BP, BQ = cfg.get('bsig', 36), cfg.get('bpoll', 48), cfg.get('bq', 54)
    assert BP <= 49 and BQ >= BP
    cfg['kvb0'] = BQ; cfg['bar_tags'] = {BS: ['QKV']}
    e = p.e; ool = []; O2 = cfg.get('o2', 3); sOo2, sOp2 = 42, 43; poison = []; sPz, sFn, vPz = 96, 97, 243
    qb = lambda b: 32 * (b - 1) + 15
    vT = att.vT

    def setup_extra(p):
        e = p.e
        e(f'v_cmp_eq_u32 vcc, 0, v0'); e(f'v_mov_b32 v{vFO}, {OOB}'); e(f'v_mov_b32 v{vTch+1}, 0')
        e(f'v_cndmask_b32_e64 v{vFO}, v{vFO}, 0, vcc')
        e(f's_lshl_b32 s{sT0}, s{ffn.sM_}, 6'); e(f's_lshl_b32 s{sT1}, s{ffn.sS}, 2'); e(f's_add_u32 s{sT0}, s{sT0}, s{sT1}')
        e(f's_add_u32 s{sT0}, s{sT0}, {WS_FL}'); e(f's_lshl_b32 s{sT1}, s{sW}, 28'); e(f's_add_u32 s{sT0}, s{sT0}, s{sT1}')
        e(f'v_add_u32 v{vFP}, s{sT0}, v{vFO}')
        e(f's_and_b32 s{sT0}, s2, 3'); e(f's_lshl_b32 s{sT0}, s{sT0}, 6'); e(f's_lshl_b32 s{sT1}, s{sW}, 12'); e(f's_add_u32 s{sT0}, s{sT0}, s{sT1}')
        e(f'v_lshlrev_b32 v{vPa}, 6, v0'); e(f'v_lshlrev_b32 v{vAt}, 8, v0'); e(f'v_add_u32 v{vAt}, s{sT0}, v{vAt}'); e(f'v_mov_b32 v{vAt+1}, 1')
        e(f'buffer_store_dword v{vTch+1}, v{vFP}, {WSr}, 0 offen sc1', tag='QKV')
        r0 = Rec(); att.att_ids(r0); PZ = 168
        r0.e(f's_lshl_b32 s{sOp}, s{sRG}, 1'); r0.e(f's_add_u32 s{sOp}, s{sOp}, s{sHH}'); r0.e(f's_mul_i32 s{sOo}, s{sOp}, 9216'); r0.e(f's_add_u32 s{sOo}, s{sOo}, {WS_O}')
        r0.e(f's_xor_b32 s{sOp}, s{sOp}, 1'); r0.e(f's_mul_i32 s{sOp}, s{sOp}, 9216'); r0.e(f's_add_u32 s{sOp}, s{sOp}, {WS_O}')
        r0.e(f's_mul_i32 s{sSpin}, s{sW}, 2304'); r0.e(f's_add_u32 s{sSpin}, s{sSpin}, s{sOo}')
        for i in range(4): r0.e(f'v_mov_b32 v{PZ+i}, -1')
        r0.e(f'v_lshlrev_b32 v{PZ+4}, 2, v0')
        for cp in range(2 if O2 == 1 else 1):
            if cp: r0.e(f's_add_u32 s{sSpin}, s{sSpin}, {OD}')
            r0.e(f'buffer_store_dwordx4 v[{PZ}:{PZ+3}], v{vL16}, {WSr}, s{sSpin} offen sc1')
            r0.e(f'buffer_store_dwordx4 v[{PZ}:{PZ+3}], v{vL16}, {WSr}, s{sSpin} offen offset:1024 sc1')
            r0.e(f'buffer_store_dword v{PZ}, v{PZ+4}, {WSr}, s{sSpin} offen offset:2048 sc1')
        if O2 == 1: r0.e(f's_add_u32 s{sOo2}, s{sOo}, {OD}'); r0.e(f's_mov_b32 s{sOp2}, s{sOp}'); r0.e(f's_add_u32 s{sOp}, s{sOp}, {OD}')
        i0 = next(i for i, t in enumerate(r0.l) if t.startswith('v_mov')); i1 = 1 + max(i for i, t in enumerate(r0.l) if 'store' in t)
        for t in r0.l[:i0] + r0.l[i1:]: e(t.replace(f's{sSpin}', f's{sPz}'))
        poison.extend(t.replace(f's{sSpin}', f's{sPz}').replace(f'v{PZ+4}', f'v{vPz}') for t in r0.l[i0:i1])
        e(f'v_readfirstlane_b32 s{sFn}, v{vFP}')
    cfg['setup_extra'] = setup_extra

    def kv_unit(i, n=4):
        if n == 4:
            return [(f's_add_u32 m0, s{sMb}, {16384 * i}', None), (f's_add_u32 s{sso}, s{sKVs}, {16384 * i}', None)] + \
               [(f'buffer_load_dwordx4 v{vL16}, {WSr}, s{sso} offen' + (f' offset:{1024 * q}' if q else '') + ' lds', 'KV') for q in range(4)]
        return [(f's_lshr_b32 s{sso}, s{sMb}, 2', None), (f's_add_u32 m0, s{sso}, {16384 * i}', None), (f's_add_u32 s{sso}, s{sso}, {WS_KV + 16384 * i}', None),
                (f'buffer_load_dwordx4 v{vL16}, {WSr}, s{sso} offen lds', 'KV')]

    cfg.setdefault('kv_at', [4, 5, 6, 7, 8])
    cfg['extra_units'] = {}
    for i in range(5): cfg['extra_units'].setdefault(BQ + cfg['kv_at'][i], []).extend(kv_unit(i))
    quads = [f'a[{4*i}:{4*i+3}]' for i in list(range(36, 64)) + list(range(36))] + [f'v[{r}:{r+3}]' for r in (4, 8, 12, 16, 156, 168)]
    nearly = len(quads)
    quads += [f'v[{PBUF+4*i}:{PBUF+4*i+3}]' for i in range(NPB)] + [f'v[{SEL}:{SEL+3}]']
    nmid = len(quads)
    quads += [f'v[{r}:{r+3}]' for r in (76, 80, 84, 88, 92, 104, 108, 120, 124)]
    NWO = 82; vR = (vR0, vR1, vR2)
    def wo_load(f):
        half, r = divmod(f, 41); g, i = divmod(r, 9); out = []
        hreg = (sH0, sH1)[half]
        if i == 0:
            if g == 0: out.append(f's_add_u32 s{sLd}, s{sWo}, s{hreg}')
            elif g < 4: out.append(f's_add_u32 s{sLd}, s{sLd}, 18432')
            else: out.append(f's_add_u32 s{sLd}, s{sWx}, s{hreg}')
        vo = vLO if (g == 4 and i == 4) else vR[i // 4]
        out.append(f'buffer_load_dwordx4 {quads[f]}, v{vo}, {WSr}, s{sLd} offen' + (f' offset:{1024 * (i % 4)}' if i % 4 else ''))
        return out
    NWB = cfg.get('nwb', 0)
    def sched_extra(S, p):
        r = Rec(); e = r.e
        r0 = Rec(); srd(r0, SRD_DBG, P_DBG, 256)
        q0_ = max(288 * cfg.get('kS', 2) + 146, cfg.get('defer', 0) + 40)
        for o in S.chain(r0.l, q0_, q0_ + 70, tight=False):
            if 'store' in o.text: o.tag = 'QKV'; o.cost = 2
        kS = cfg.get('kS', 2)
        e(f's_add_u32 s{sKVs}, s{sMb}, {WS_KV}')
        e(f's_mul_i32 s{sT0}, s{sHH}, 9'); e(f's_lshl_b32 s{sT1}, s{sW}, 1'); e(f's_add_u32 s{sT1}, s{sT1}, s{sT0}')
        e(f's_lshr_b32 s{sPb}, s{sRG}, 3'); e(f's_mul_i32 s{sPb}, s{sPb}, {16 * 147456}')
        e(f's_lshl_b32 s{sT2}, s{sT1}, 13'); e(f's_add_u32 s{sPb}, s{sPb}, s{sT2}')
        e(f's_and_b32 s{sT2}, s{sRG}, 7'); e(f's_lshl_b32 s{sT2}, s{sT2}, 10'); e(f's_add_u32 s{sPb}, s{sPb}, s{sT2}')
        e(f's_lshl_b32 s{sT0}, s{sHH}, 4'); e(f's_lshl_b32 s{sT1}, s{sW}, 2'); e(f's_add_u32 s{sT0}, s{sT0}, s{sT1}')
        e(f's_lshl_b32 s{sT0}, s{sT0}, 11'); e(f's_lshl_b32 s{sT1}, s{sRG}, 4'); e(f's_add_u32 s{sT0}, s{sT0}, s{sT1}')
        e(f'v_bfe_u32 v{vT+4}, v0, 4, 1'); e(f'v_and_b32 v{vGt}, 15, v0'); e(f'v_lshl_add_u32 v{vT+4}, v{vT+4}, 11, v{vGt}')
        e(f'v_lshrrev_b32 v{vT+6}, 5, v0'); e(f'v_lshlrev_b32 v{vT+5}, 5, v{vT+4}'); e(f'v_lshl_add_u32 v{vT+5}, v{vT+6}, 4, v{vT+5}')
        e(f'v_lshlrev_b32 v{vT+4}, 2, v{vT+4}'); e(f'v_lshlrev_b32 v{vGt}, 2, v{vGt}')
        e(f's_lshl_b32 s16, s{sT0}, 5'); e(f's_add_u32 s16, s16, {WS_QM}'); e(f's_add_u32 s17, s16, {2 * 65536}')
        e(f's_lshl_b32 s18, s{sT0}, 2'); e(f's_add_u32 s18, s18, {WS_QX}'); e(f's_add_u32 s19, s18, {2 * 8192}')
        e(f's_lshl_b32 s20, s{sRG}, 6'); e(f's_add_u32 s20, s20, {WS_G}')
        kv = [o for o in S.ops if getattr(o, 'call', False) and o.text.__name__ == 'kv_last']
        S.chain(r.l, 288 * kS + 300, 288 * kS + 288 + cfg.get('rend', 146), deps=kv)
        r = Rec(); e = r.e
        srd(r, SRD_OUT, P_OUT, 2048 * 1152)
        e(f'v_and_b32 v{vT}, 1, v0'); e(f'v_lshlrev_b32 v{vT}, 4, v{vT}'); e(f'v_mov_b32 v{vT+1}, 0x3f80'); e(f'v_lshlrev_b32 v{vT}, v{vT}, v{vT+1}')
        e(f'v_bfe_u32 v{vT+1}, v0, 2, 1'); e(f'v_bfe_u32 v{vT+2}, v0, 4, 1'); e(f'v_cmp_eq_u32 vcc, v{vT+1}, v{vT+2}')
        e(f'v_bfe_u32 v{vT+1}, v0, 1, 1'); e(f'v_cndmask_b32 v{vT}, 0, v{vT}, vcc')
        e(f'v_bfe_u32 v{vT+2}, v0, 3, 1'); e(f'v_lshl_add_u32 v{vT+1}, v{vT+2}, 1, v{vT+1}')
        for i in range(4): e(f'v_cmp_eq_u32 vcc, {i}, v{vT+1}'); e(f'v_cndmask_b32 v{SEL+i}, 0, v{vT}, vcc')
        e(f'v_lshrrev_b32 v{vPl}, 5, v0'); e(f'v_mul_u32_u24 v{vPl}, {147456 - 512}, v{vPl}'); e(f'v_add_u32 v{vPl}, v{vPl}, v{vL16}')
        e(f's_mul_i32 s{sT0}, s{sHH}, 9'); e(f's_lshl_b32 s{sT1}, s{sW}, 1'); e(f's_add_u32 s{sT1}, s{sT1}, s{sT0}')
        e(f's_mul_i32 s{sWo}, s{sT1}, 36864'); e(f's_add_u32 s{sWo}, s{sWo}, {WS_WO}')
        e(f's_add_u32 s{sT0}, s{sT0}, 8'); e(f's_mul_i32 s{sWx}, s{sT0}, 36864'); e(f's_and_b32 s{sT2}, s{sW}, 1'); e(f's_mul_i32 s{sT2}, s{sT2}, 18432')
        e(f's_add_u32 s{sWx}, s{sWx}, s{sT2}'); e(f's_add_u32 s{sWx}, s{sWx}, {WS_WO}')
        e(f's_sub_u32 s{sT0}, s{sT0}, s{sT1}'); e(f's_lshl_b32 s{sT0}, s{sT0}, 13'); e(f's_and_b32 s{sT2}, s{ffn.sHF}, 294912'); e(f's_add_u32 s{sT0}, s{sT0}, s{sT2}')
        e(f's_and_b32 s{sT2}, s{sW}, 1'); e(f's_lshl_b32 s{sT2}, s{sT2}, 9'); e(f's_add_u32 s{sT0}, s{sT0}, s{sT2}')
        e(f'v_add_u32 v{vLX}, s{sT0}, v{vPl}'); e(f'v_add_u32 v{vL2}, 8192, v{vPl}')
        e(f's_and_b32 s{sT2}, s{ffn.sHF}, 5120'); e(f'v_add_u32 v{vR0}, s{sT2}, v{vL16}')
        e(f's_andn2_b32 s{sT2}, 4096, s{ffn.sHF}'); e(f'v_add_u32 v{vR1}, s{sT2}, v{vL16}'); e(f'v_add_u32 v{vR2}, 4096, v{vR1}')
        e(f's_and_b32 s{sT2}, s{ffn.sHF}, {OOB}'); e(f'v_add_u32 v{vLO}, s{sT2}, v{vR1}')

        if O2 == 3: e(f's_getreg_b32 s{sOo2}, hwreg(HW_REG_XCC_ID, 0, 4)'); e(f's_add_u32 s{sOo2}, s{sOo2}, 1'); e(f'v_mov_b32 v{vG}, s{sOo2}')
        else: e(f'v_mov_b32 v{vG}, 1')
        e(f's_mov_b32 s{att.sPerm}, 0x07060302'); e(f's_mul_i32 s{sH0}, s{sHH}, 9216'); e(f's_sub_u32 s{sH1}, 9216, s{sH0}')
        att.att_addrs(r, cfg)
        e(f's_lshr_b32 s{sT0}, s{sRG}, 3'); e(f's_lshl_b32 s{sT0}, s{sT0}, 6'); e(f's_add_u32 s{sT0}, s{sT0}, {WS_FL}')
        e(f'v_and_b32 v{vPa}, 48, v0'); e(f'v_lshlrev_b32 v{vPa}, 22, v{vPa}'); e(f'v_lshl_add_u32 v{vPa}, v0, 2, v{vPa}'); e(f'v_add_u32 v{vPa}, s{sT0}, v{vPa}')
        e(f's_and_b32 s{sFn}, s{sFn}, 0xfffffff'); e(f's_xor_b32 s{sFn}, s{sFn}, 64'); e(f'v_writelane_b32 v{vPa}, s{sFn}, 16')
        def mk(t):
            if ' | ' not in t: return t
            def f():
                for x in t.split(' | '): p.e(x)
            return f
        ch = S.chain([mk(t) for t in r.l], cfg.get('rq', 1700), NQ - 60, tight=False)
        for o in ch:
            if callable(o.text): o.call = True; o.cost = 2
        S.fix(qb(cfg['up'](BS)) + 4, f'buffer_atomic_add v{vAt+1}, v{vAt}, s[{SRD_DBG}:{SRD_DBG+3}], 0 offen sc1')
        DB = f's[{SRD_DBG}:{SRD_DBG+3}]'
        S.fix(qb(BP) - cfg.get('poll_lead', 110), f'buffer_load_dword v{vPoll}, v{vPa}, {DB}, 0 offen sc1')
        S.fix(qb(BP) - 2, lambda: ool.append(poll(p, 'PK', DB, 64, 15, True)), cost=4)
        QM = att.QM
        ql = [f'buffer_load_dword v{vT+6}, v{vT+4}, {WSr}, s18 offen sc1', f'buffer_load_dword v{vT+7}, v{vT+4}, {WSr}, s19 offen sc1',
              f'buffer_load_dword v{vGt}, v{vGt}, {WSr}, s20 offen sc1',
              f'buffer_load_dwordx4 v[{QM}:{QM+3}], v{vT+5}, {WSr}, s16 offen sc1', f'buffer_load_dwordx4 v[{QM+4}:{QM+7}], v{vT+5}, {WSr}, s17 offen sc1']
        q_l = cfg.get('ql', 1580); assert q_l > qb(BP) and q_l + 3 * cfg.get('qd', 4) >= 1580
        for i, t in enumerate(ql): S.add(Op(t, 2, start=q_l + cfg.get('qd', 4) * i, end=q_l + 10 + cfg.get('qd', 4) * i))
        prev = []; g0 = qb(BQ) + 4; dg = (NQ - 12 - g0) // max(NWB, 1)
        for f in range(NWB):
            for t in wo_load(f):
                ld_ = 'load' in t
                prev = [S.add(Op(t, 2 if ld_ else 1, prev, g0 + dg * f - (0 if ld_ else 3), g0 + dg * f + dg))]
        r3 = Rec(); att.q_variants(r3)
        r3.e(f'v_mul_f32 v{vGt}, {f2u(-math.log2(math.e))}, v{vGt}'); r3.e(f'v_exp_f32 v{vGt}, v{vGt}'); r3.e(f'v_add_f32 v{vGt}, 1.0, v{vGt}'); r3.e(f'v_rcp_f32 v{vGt}, v{vGt}')
        r3.l += [t for t in poison if t.startswith('v_')]
        S.chain(r3.l, NQ - 36, NQ - 2, tight=False)
    cfg['sched_extra'] = sched_extra

    def pre_tail(p):
        pf.start()
        p.wait(vmtags=['KV'], lg0=True); p.e('s_barrier')
        pf.save(70)
        p.e(att.rdKX(0)); p.e(att.rdKM(0)); p.e(att.rdV(0, 0)); p.e(att.rdV(0, 1))
    cfg['pre_tail'] = pre_tail
    SA, SB, OA, OB = att.SA, att.SB, att.OA, att.OB
    def mid_tail(p):
        p.c('ATT'); e(att.qkx(0, 0, SA)); e(att.mf32(SA, att.KM, att.QM, att.vr(SA)))
    cfg['mid_tail'] = mid_tail
    ffn.gen_ffn(p, cfg, pf)

    X = {}
    def at(hs, tk, item, tag=None): X.setdefault((hs, tk), []).append((item, tag))
    SL = [(2 * (i // 4) + (1 if i % 4 else 0), ('x1', 'x0', 'x2', 'x3')[i % 4]) for i in range(256)]
    used = [0] * 256
    def put(item, lo, vm, tag=None, hi=None):
        i = lo
        while i < 256 and (used[i] or (vm and i % 4 == 0)):
            if hi is not None and i >= hi: break
            i += 1
        if i >= 256: return None
        used[i] += 1; at(*SL[i], item, tag); return i
    def stream(groups, lo, pace, tagf=None, gate=None):
        pos = []; prev = lo - 1
        for n, grp in enumerate(groups):
            s0 = max(prev + 1, lo + int(n * pace), gate(n) if gate else 0)
            i = s0
            while i < 256 and (used[i] or i % 4 == 0): i += 1
            if i >= 256: break
            for t in grp[:-1]:
                c = [k for k in range(max(prev + 1, 0), i) if not used[k] and k % 4 == 0]
                k = c[-1] if c else (prev if prev >= 0 and n else i)
                used[k] += 1; at(*SL[k], t); prev = k
            used[i] += 1; at(*SL[i], grp[-1], tagf(n) if tagf else None); prev = i; pos.append(i)
        return pos
    def groups_of(lst):
        out = []; cur = []
        for t in lst:
            cur.append(t)
            if t.startswith('buffer_'): out.append(cur); cur = []
        return out
    BBA, BPL, BPC, LAG = cfg.get('bba', 17), cfg.get('bpl', 27), cfg.get('bpc', 30), cfg.get('lag', 4)
    def skew(L):
        if cfg.get('skew'):
            for w_ in range(3):
                e(f's_cmp_le_u32 s{sW}, {w_}'); e(f's_cbranch_scc1 {L}'); e(f's_nop {cfg["skew"]}')
            p.label(L)
    skew('SK0')
    def bar_a():
        p.wait(vmtags=['KV', 'PART']); e('s_barrier'); skew('SK1')
        e(f'buffer_store_dword v{vG}, v{vFP}, {WSr}, 0 offen sc1')
    put(bar_a, 4 * BBA + 1, True)
    put(f'buffer_load_dword v{vPoll}, v{vPa}, {WSr}, 0 offen sc1', 4 * BPL + 1, True)
    def pp_():
        ool.append(poll(p, 'PP', WSr, 1, 0x1ffff, True))
        if O2 == 3: e(f'v_readlane_b32 s{sOp2}, v{vPoll}, 16')
    put(pp_, 4 * BPC + 3, True)
    if cfg.get('otouch', 1) and O2:
        def otouch():
            e(f'v_min_u32 v{vPz}, 17, v0'); e(f'v_lshlrev_b32 v{vPz}, 7, v{vPz}')
            e(f'buffer_load_dword v{ffn.vDum}, v{vPz}, {WSr}, s{sPz} offen sc1').dst = set()
        put(otouch, 4 * cfg.get('bot', 56) + 1, True)
    ps = stream(groups_of(sum(cfg['deferred'], [])), 0, cfg.get('dpace', 3), lambda n: 'PART')
    pk = stream(groups_of([t for i in range(5, 10) for t, tag in kv_unit(i, 4 if i < 9 else 1)]), 0, 1, lambda n: 'KV')
    pz = stream(groups_of([t for t in poison if not t.startswith('v_')]), 0, 1, lambda n: 'PART')
    assert max(ps + pk + pz) < 4 * BBA
    PL = [(sp, g) for sp in range(8) for g in range(5) if g < 4 or sp % 2 == 0]; NP_ = len(PL)
    pg = []
    for i, (sp, g) in enumerate(PL):
        buf = PBUF + 4 * (i % NPB)
        pg.append(([f's_add_u32 s{sPb}, s{sPb}, 294912'] if g == 0 and sp else []) +
                  [f'buffer_load_dwordx4 v[{buf}:{buf+3}], v{(vPl, vL2, vLX)[g // 2]}, {WSr}, s{sPb} offen' + (' offset:512' if g & 1 else '') + ' sc1'])
    pp_ = stream(pg, 4 * BPC + 4, cfg.get('ppace', 2.6), lambda n: ('PL', n))
    cons = [0] * NP_; yq = {}; CG = cfg.get('cgrp', 2)
    for i, (sp, g) in enumerate(PL):
        buf = PBUF + 4 * (i % NPB); b_ = -(-(pp_[i] // 4 + LAG) // CG) * CG; cons[i] = b_; d = BACC + 4 * g
        yq.setdefault(b_, []).append(mf16(d, f'v[{SEL}:{SEL+3}]', f'v[{buf}:{buf+3}]', '0' if sp == 0 else f'v[{d}:{d+3}]'))
    for b_, lst in yq.items():
        assert len(lst) <= 4 and b_ < 63
        tags = [('PL', i) for i in range(NP_) if cons[i] == b_]
        used[4 * b_] += 1; at(*SL[4 * b_], lambda tags=tags: p.wait(vmtags=tags))
        for n, t in enumerate(lst): at(2 * b_ + n // 2, f'y{n & 1}', t)
    for i in range(NPB, NP_): assert pp_[i] >= 4 * cons[i - NPB] + 3, (i, pp_[i], cons[i - NPB])
    lastuse = [max(cons[i] for i in range(NP_) if i % NPB == k) for k in range(NPB)] + [max(cons)]
    order = sorted(range(NPB + 1), key=lambda k: lastuse[k])
    quads[nearly:nmid] = [quads[nearly + k] for k in order]
    pw = stream([wo_load(f) for f in range(NWB, min(nmid, NWO))], 0, cfg.get('wpace', 1), None,
                gate=lambda n: 0 if NWB + n < nearly else 4 * lastuse[order[NWB + n - nearly]] + 3)
    f = NWB + len(pw)
    print('wo loads in loop', f, 'slots used', sum(1 for u in used if u), 'shared', sum(1 for u in used if u > 1))
    def extra(hs, tk):
        for item, tag in X.pop((hs, tk), []):
            if callable(item): item()
            else: e(item, tag=tag)
    base = 0
    for b in range(64):
        if b and b % 16 == 0:
            for a in (att.vAK, att.vAV): e(f'v_add_u32 v{a}, {2 * KVG}, v{a}')
            base += 2 * KVG
        for t in range(2): att.half_step(p, b, t, base, cfg, extra, line=True)
        if b % 16 == 15: pf.stamp(71 + b // 16)
        if cfg.get('astamp') and b % 4 == 3 and b % 16 != 15: pf.stamp(105 + b // 4)
    assert not X, X.keys()
    e(att.mf32(OB, att.VV + 12, att.PP + 4, att.vr(OB)))
    vO1, vO2, vO3, vOut = 1, 2, 3, 20
    e(f's_lshl_b32 s{sT0}, s{sW}, 11'); e(f'v_add_u32 v{vO1}, s{sT0}, v{vL16}')
    e(f'v_and_b32 v{vO2}, 15, v0'); e(f'v_lshlrev_b32 v{vO2}, 4, v{vO2}'); e(f'v_bfe_u32 v{vO3}, v0, 4, 1'); e(f'v_lshl_add_u32 v{vO2}, v{vO3}, 2, v{vO2}')
    e(f's_lshl_b32 s{sT0}, s{sW}, 8'); e(f's_add_u32 s{sT0}, s{sT0}, 8192'); e(f'v_add_u32 v{vO2}, s{sT0}, v{vO2}')
    e(f'v_lshrrev_b32 v{vO3}, 5, v0'); e(f'v_lshl_add_u32 v{vOut}, v{vO3}, 20, v{vO2}'); e(f'v_lshl_add_u32 v{vO2}, v{vO3}, 29, v{vO2}'); e(f'v_add_u32 v{vOut}, {LDS_O}, v{vOut}')
    att.att_check(p, 'A', cfg, 'test')
    quads[f:NWO] = quads[nmid:nmid + NWO - f]
    OUTr = f's[{SRD_OUT}:{SRD_OUT+3}]'; of_ = cfg.get('outf', '')
    e(f'v_rcp_f32 v{vT}, v{vT}'); e(f'v_rcp_f32 v{vT+2}, v{vT+2}')
    e(f'v_add_u32 v{vO3}, {LDS_O}, v{vO1}')
    e(f'v_mul_f32 v{vT}, v{vT}, v{vGt}'); e(f'v_mul_f32 v{vT+2}, v{vT+2}, v{vGt}')
    for t, O in ((0, OA), (1, OB)):
        for i in range(10): e(f'v_mul_f32 v{O+i}, v{O+i}, v{vT+2*t}')
        for i in range(5): e(f'v_cvt_pk_bf16_f32 v{O+i}, v{O+2*i}, v{O+2*i+1}')
        so_, fl_ = (sOo2 if O2 == 1 else sOo, '') if O2 else (sOo, 'sc1')
        st_ = lambda f_: (f'buffer_store_dwordx4 v[{O}:{O+3}], v{vO1}, {WSr}, s{so_} offen offset:{1024 * t} {f_}', f'buffer_store_dword v{O+4}, v{vO2}, {WSr}, s{so_} offen offset:{8 * t} {f_}')
        if O2 == 3:
            e(f's_cmp_lg_u32 s{sOo2}, s{sOp2}'); e(f's_cbranch_scc1 OS{t}')
            def far(q, t=t, sts=st_('sc1')):
                q.label(f'OS{t}')
                for x in sts: q.raw(x)
                q.raw(f's_branch OS{t}b')
            ool.append(far)
        for x in st_(fl_): e(x)
        if O2 == 3: p.label(f'OS{t}b')
        e(f'ds_write_b128 v{vO3}, v[{O}:{O+3}] offset:{1024 * t}'); e(f'ds_write_b32 v{vOut}, v{O+4} offset:{8 * t}')
    e(f'v_sub_f32 v{vGt}, 1.0, v{vGt}')
    for i in range(3): e(f'v_add_u32 v{vT+4+i}, {LDS_O}, v{vR[i]}')
    e('s_waitcnt lgkmcnt(0)'); e('s_barrier')
    pf.stamp(75)
    OF, XR_ = 24, 60; OGq = [128, 132, 136, 140, 144, 148, 64, 68, 72]; OFq = [OF + 4 * i for i in range(9)]
    for i in range(9): e(f'ds_read_b128 v[{OF+4*i}:{OF+4*i+3}], v{vT+4+i//4} offset:{1024 * (i % 4)}')
    for i in range(20): e(f'v_mul_f32 v{BACC+i}, v{BACC+i}, v{vGt}')
    def og_load(i): return f'buffer_load_dwordx4 v[{OGq[i]}:{OGq[i]+3}], v{vR[i // 4]}, {WSr}, s{sOp} offen' + (f' offset:{1024 * (i % 4)}' if i % 4 else '') + ' sc1'
    g_st = [x for t, O in ((0, OA), (1, OB)) for x in (f'buffer_store_dwordx4 v[{O}:{O+3}], v{vO1}, {WSr}, s{sOo} offen offset:{1024 * t} sc1',
                                                    f'buffer_store_dword v{O+4}, v{vO2}, {WSr}, s{sOo} offen offset:{8 * t} sc1')] if O2 in (1, 2) else []
    misc = [t for f_ in range(f, NWO) for t in wo_load(f_)] + [
            f'v_and_b32 v{vOut}, 15, v0', f'v_mul_u32_u24 v{vOut}, 1152, v{vOut}', f'v_and_b32 v{vO3}, 48, v0', f'v_add_u32 v{vOut}, v{vOut}, v{vO3}',
            f's_mul_i32 s{sT0}, s{sRG}, 18432', f's_mul_i32 s{sT1}, s{sHH}, 576', f's_add_u32 s{sT0}, s{sT0}, s{sT1}',
            f's_lshl_b32 s{sT1}, s{sW}, 7', f's_add_u32 s{sT1}, s{sT1}, s{sT0}', f's_and_b32 s{sT2}, s{sW}, 1', f's_lshl_b32 s{sT2}, s{sT2}, 4',
            f's_add_u32 s{sT0}, s{sT0}, s{sT2}', f's_and_b32 s{sT2}, s{ffn.sHF}, {OOB}', f'v_and_b32 v{vO3}, 16, v0', f'v_lshrrev_b32 v{vO3}, 1, v{vO3}', f'v_sub_u32 v{vO3}, v{vOut}, v{vO3}', f'v_add_u32 v{vO3}, s{sT2}, v{vO3}', f's_mov_b32 s{sSpin}, 0']
    LDAT = cfg.get('ldat', 12); n = 0; nl = 0; assert LDAT > 6
    grp = lambda half, g: [mf16(BACC + 4 * g, quads[41 * half + 9 * g + i], f'v[{(OFq, OGq)[half][i]}:{(OFq, OGq)[half][i]+3}]', f'v[{BACC+4*g}:{BACC+4*g+3}]') for i in range(9 if g < 4 else 5)]
    chk = [f'v_max3_u32 v{vT}, v{OGq[i//2]+2*(i&1)}, v{OGq[i//2]+2*(i&1)+1}, ' + (f'v{vT}' if i else '0') for i in range(18)]
    ck_ = list(chk); CKAT = cfg.get('ckat', 50)
    for g in range(5):
        for t in grp(0, g):
            e(t); n += 1
            if n >= LDAT and (n - LDAT) % 2 == 0 and nl < 9: e(og_load(nl), tag='OG'); nl += 1
            elif misc: e(misc.pop(0))
            elif nl == 9 and n >= CKAT and ck_:
                if len(ck_) == 18: p.wait(vmtags=['OG'])
                e(ck_.pop(0)); e(ck_.pop(0))
    for t in misc: e(t)
    while nl < 9: e(og_load(nl)); nl += 1
    pf.stamp(76)
    for t in ck_: e(t)
    e(f'v_cmp_eq_u32 vcc, -1, v{vT}'); e('s_cmp_lg_u64 vcc, 0'); e('s_cbranch_scc1 PO_spin')
    p.label('PO_done')
    pf.stamp(77)
    def po_out(q):
        r = q.raw
        NL = cfg.get('nl', 6)
        q.label('PO_spin'); q.label('PO_sp2'); r(f's_add_u32 s{sSpin}, s{sSpin}, 1'); r(f's_cmp_gt_u32 s{sSpin}, 0x8000'); r('s_cbranch_scc1 PO_done')
        if O2 in (1, 2):
            r(f's_cmp_lg_u32 s{sSpin}, {NL}'); r('s_cbranch_scc1 PO_sp3')
            for t in g_st: r(t)
            q.label('PO_sp3')
            if O2 == 1: r(f's_cmp_lt_u32 s{sSpin}, {NL}'); r(f's_cselect_b32 s{sT2}, s{sOp}, s{sOp2}'); r(f's_cselect_b32 s{sOp2}, s{sOp2}, s{sOp}'); r(f's_mov_b32 s{sOp}, s{sT2}')
        for i in range(9): r(og_load(i))
        r('s_waitcnt vmcnt(0)')
        for t in chk: r(t)
        r(f'v_cmp_eq_u32 vcc, -1, v{vT}'); r('s_cmp_lg_u64 vcc, 0'); r('s_cbranch_scc1 PO_sp2'); r('s_branch PO_done')
    ool.insert(0, po_out)
    BX = BACC + 16
    cv = lambda d, s_: f'v_cvt_pk_bf16_f32 v{d}, v{s_}, v{s_+1}'
    sw = lambda a, b: f'v_permlane16_swap_b32 v{a}, v{b}'
    fl = {13: [f'ds_write_b128 v{vO1}, v[{BX}:{BX+3}]'],
          20: ['s_waitcnt lgkmcnt(0)', 's_barrier'], 21: [f'ds_read_b128 v[{XR_}:{XR_+3}], v{vO2}'],
          22: [cv(BACC, BACC), cv(BACC + 1, BACC + 2)],
          28: [f'v_add_f32 v{BX}, v{BX}, v{XR_}', f'v_add_f32 v{BX+1}, v{BX+1}, v{XR_+1}'], 29: [f'v_add_f32 v{BX+2}, v{BX+2}, v{XR_+2}', f'v_add_f32 v{BX+3}, v{BX+3}, v{XR_+3}'],
          30: [cv(BACC + 2, BACC + 4), cv(BACC + 3, BACC + 6)],
          32: [sw(BACC, BACC + 2), sw(BACC + 1, BACC + 3)],
          36: [f'buffer_store_dwordx4 v[{BACC}:{BACC+3}], v{vOut}, {OUTr}, s{sT1} offen {of_}'],
          33: [cv(BX, BX), cv(BX + 1, BX + 2)], 34: [f'buffer_store_dwordx2 v[{BX}:{BX+1}], v{vO3}, {OUTr}, s{sT0} offen offset:512 {of_}'],
          40: [cv(BACC + 8, BACC + 8), cv(BACC + 9, BACC + 10)]}
    for i_, t in enumerate(g_st): fl[cfg.get('gat', 1) + 3 * i_] = [t]
    fl[15] = [f'v_xor_b32 v{vO2}, 4096, v{vO1}']
    n = 0
    for g in (4, 0, 1, 2, 3):
        for t in grp(1, g):
            e(t); n += 1
            for x in fl.get(n, []): e(x)
    e(cv(BACC + 10, BACC + 12)); e(cv(BACC + 11, BACC + 14)); e(sw(BACC + 8, BACC + 10)); e(sw(BACC + 9, BACC + 11))
    e(f'buffer_store_dwordx4 v[{BACC+8}:{BACC+11}], v{vOut}, {OUTr}, s{sT1} offen offset:64 {of_}')
    return ool

def build(cfg, path):
    name = NAME + '_kernel'
    p = Prog()
    kernel_header(p, name)
    p.e('s_cmp_ge_u32 s2, 256'); p.e('s_cbranch_scc1 K_exit')
    cfg = dict(cfg); cfg.setdefault('codepf', 'A_fb-PCL'); cfg.setdefault('hop', 1)
    pf = Prof(p, 'real' if cfg.get('real') else bool(cfg.get('prof')))
    pf.stamp(100, real=True); pf.stamp(101)
    ool = gen(p, cfg, pf)
    pf.stamp(102)
    if pf.on: p.e('s_waitcnt vmcnt(0)')
    pf.stamp(103); pf.stamp(104, real=True)
    pf.dump(SRD_WS, sW)
    p.label('K_exit'); p.e('s_endpgm')
    for f in ool: f(p)
    p.reset_tracking(); p.auto = False
    att.att_check(p, 'A', cfg, 'fallback')
    if cfg['hop']:
        n0 = len(p.ins)
        for w_ in range(4): p.label(f'PAD{w_}')
        p.e('s_endpgm')
    p.fix_hazards(verbose=cfg.get('verbose', False))
    if cfg['hop']:
        tail = p.ins[-5:]
        sv = p.ins; npad = insert_pads(p, 'MAIN', 'A_fb', 4, 'HOPBACK'); p.ins = p.ins[:-5]; print('pads', npad)
    if cfg.get('align', 0): print('align8 (promoted, still misaligned):', align8(p, cfg.get('maxspan', 3)))
    print('instrs', len(p.ins), 'nops added', p.nops_added)
    hdr = '''; One persistent launch, 256 workgroups (one per CU) x 4 waves x 512 registers. Generated by the author's own scripts.
;  phase D : output projection with the partner workgroup's heads (data-tagged hand-off; plain stores only when the
;            published XCC ids say both sit behind one L2, write-through otherwise), gate mix, store.
; Hand-offs: write-through stores, counters in d_debug, flags/tags in d_ws initialised inside the launch; all spins are bounded.'''
    txt = ['; @launch grid=(256,1,1) block=(256,1,1) lds=163840', hdr, '.amdgcn_target "amdgcn-amd-amdhsa--gfx950"', '.text', p.text(),
           '.section .rodata,"a"', descriptor(name, 512, acc=256)]
    open(path, 'w').write('\n'.join(txt))
if __name__ == '__main__':
    build(eval(sys.argv[2]) if len(sys.argv) > 2 else {}, sys.argv[1])
```

```python
import sys
from common import *
import ffn, att, k23
from ffn import sW, sT0, sT1, sT2, SRD_WS, SRD_X, vL16, KVG, KVB, sMb, sso, NQ

att.sRG, att.sHH = 6, 7
att.PP, att.KM, att.VV, att.KX = 24, 32, 40, 56
att.SA, att.SB, att.OA, att.OB = 64, 80, 96, 112
att.QM, att.QX = 128, 136
SEL, vPl = 152, 163
att.vAK, att.vAV = 164, 165
vG, vPoll, vTch = 166, 252, 240
att.vT = 236
BACC = 172
PBUF, NPB = 192, 11
vFP, vFO = 244, 245
vL2, vLX, vLO, vPa = 246, 247, 248, 249
vR0, vR1, vR2, vGt = 245, 250, 167, 251
sH0, sH1 = 8, 15
sRG, sHH = att.sRG, att.sHH
SRD_OUT, SRD_DBG = 52, 68
vAt = 238
sPb, sWo, sWx, sOo, sOp, sSpin = 74, 75, 76, 77, 78, 79
sPb = 80; sWo = 81; sWx = 82; sOo = 83; sOp = 84; sSpin = 85; sKVs = 86; sLd = 87
LDS_O, LDS_G = 154560, 163776
FLO = 4096
WSr = f's[{SRD_WS}:{SRD_WS+3}]'
mf16 = att.mf16

class Rec:
    def __init__(self): self.l = []
    def e(self, t, **kw): self.l.append(t)

def poll(p, L, srdr, want, mask, first_issued):
    e = p.e
    cmpop = 'le'
    ld = f'buffer_load_dword v{vPoll}, v{vPa}, {srdr}, 0 offen sc1'
    if not first_issued: e(ld)
    e(f'v_cmp_{cmpop}_u32 vcc, {want}, v{vPoll}')
    e(f's_cmp_eq_u32 vcc_lo, {mask}')
    e(f's_cbranch_scc0 {L}_spin')
    p.label(f'{L}_go')
    def out(q):
        r = q.raw
        q.label(f'{L}_spin'); r(f's_mov_b32 s{sSpin}, 0')
        q.label(f'{L}_sp2'); r('s_sleep ' + ('24' if want == 64 else '12')); r(ld); r(f's_add_u32 s{sSpin}, s{sSpin}, 1'); r('s_waitcnt vmcnt(0)')
        r(f'v_cmp_{cmpop}_u32 vcc, {want}, v{vPoll}')
        r(f's_cmp_gt_u32 s{sSpin}, 0x80000'); r(f's_cbranch_scc1 {L}_go')
        r(f's_cmp_eq_u32 vcc_lo, {mask}'); r(f's_cbranch_scc0 {L}_sp2'); r(f's_branch {L}_go')
    return out

def gen(p, cfg, pf):
    cfg = dict(cfg); cfg.setdefault('stflags', 'sc1'); cfg.setdefault('perm', 1); cfg.setdefault('bars', [(6, 1), (66, 2)]); cfg.setdefault('pfd0', 1000); cfg.setdefault('pfdg', 60); cfg.setdefault('pfm', 16); cfg.setdefault('xcd_m', 4); cfg.setdefault('pfdl', 11); cfg.setdefault('rot', 8); cfg.setdefault('dcost', 1); cfg.setdefault('defer', 728); cfg.setdefault('b0', 12); cfg.setdefault('lps0', 6); cfg.setdefault('late', 16); cfg.setdefault('hwsp', 32); cfg.setdefault('hwd', 0); cfg.setdefault('chain', 5); cfg.setdefault('tpos', [16,17,18,19,21,22,24,25,28,29,30,32,33,35,36,38])
    cfg.setdefault('apat', 'E0 E1 PB rK x0 E2 E3 C0 C1 E4 QX w x1 E5 E6 E7 y0 C2 C3 E8 QM rA x2 E9 E10 E11 y1 C4 C5 E12 PA rB x3 E13 E14 E15 C6 C7')
    BS, BP, BQ = cfg.get('bsig', 34), cfg.get('bpoll', 49), cfg.get('bq', 54)
    assert BP <= 52 and BQ >= BP
    cfg['kvb0'] = BQ; cfg['bar_tags'] = {BS: ['QKV']}
    e = p.e; ool = []; O2 = cfg.get('o2', 3); sOo2, sOp2 = 42, 43; poison = []; sPz, sFn, vPz = 96, 97, 243
    qb = lambda b: 32 * (b - 1) + 15
    vT = att.vT

    def setup_extra(p):
        e = p.e
        e(f'v_cmp_eq_u32 vcc, 0, v0'); e(f'v_mov_b32 v{vFO}, {OOB}'); e(f'v_mov_b32 v{vTch+1}, 0')
        e(f'v_cndmask_b32_e64 v{vFO}, v{vFO}, 0, vcc')
        e(f's_lshl_b32 s{sT0}, s{ffn.sM_}, 6'); e(f's_lshl_b32 s{sT1}, s{ffn.sS}, 2'); e(f's_add_u32 s{sT0}, s{sT0}, s{sT1}')
        e(f's_add_u32 s{sT0}, s{sT0}, {WS_FL}'); e(f's_lshl_b32 s{sT1}, s{sW}, 28'); e(f's_add_u32 s{sT0}, s{sT0}, s{sT1}')
        e(f'v_add_u32 v{vFP}, s{sT0}, v{vFO}')
        e(f's_and_b32 s{sT0}, s2, 3'); e(f's_lshl_b32 s{sT0}, s{sT0}, 6'); e(f's_lshl_b32 s{sT1}, s{sW}, 12'); e(f's_add_u32 s{sT0}, s{sT0}, s{sT1}')
        e(f'v_lshlrev_b32 v{vPa}, 6, v0'); e(f'v_lshlrev_b32 v{vAt}, 8, v0'); e(f'v_add_u32 v{vAt}, s{sT0}, v{vAt}'); e(f'v_mov_b32 v{vAt+1}, 1')
        e(f'buffer_store_dword v{vTch+1}, v{vFP}, {WSr}, 0 offen sc1', tag='QKV')
        r0 = Rec(); att.att_ids(r0); PZ = 168
        r0.e(f's_lshl_b32 s{sOp}, s{sRG}, 1'); r0.e(f's_add_u32 s{sOp}, s{sOp}, s{sHH}'); r0.e(f's_mul_i32 s{sOo}, s{sOp}, 9216'); r0.e(f's_add_u32 s{sOo}, s{sOo}, {WS_O}')
        r0.e(f's_xor_b32 s{sOp}, s{sOp}, 1'); r0.e(f's_mul_i32 s{sOp}, s{sOp}, 9216'); r0.e(f's_add_u32 s{sOp}, s{sOp}, {WS_O}')
        r0.e(f's_mul_i32 s{sSpin}, s{sW}, 2304'); r0.e(f's_add_u32 s{sSpin}, s{sSpin}, s{sOo}')
        for i in range(4): r0.e(f'v_mov_b32 v{PZ+i}, -1')
        r0.e(f'v_lshlrev_b32 v{PZ+4}, 2, v0')
        for cp in range(2 if O2 == 1 else 1):
            if cp: r0.e(f's_add_u32 s{sSpin}, s{sSpin}, {OD}')
            r0.e(f'buffer_store_dwordx4 v[{PZ}:{PZ+3}], v{vL16}, {WSr}, s{sSpin} offen sc1')
            r0.e(f'buffer_store_dwordx4 v[{PZ}:{PZ+3}], v{vL16}, {WSr}, s{sSpin} offen offset:1024 sc1')
            r0.e(f'buffer_store_dword v{PZ}, v{PZ+4}, {WSr}, s{sSpin} offen offset:2048 sc1')
        if O2 == 1: r0.e(f's_add_u32 s{sOo2}, s{sOo}, {OD}'); r0.e(f's_mov_b32 s{sOp2}, s{sOp}'); r0.e(f's_add_u32 s{sOp}, s{sOp}, {OD}')
        i0 = next(i for i, t in enumerate(r0.l) if t.startswith('v_mov')); i1 = 1 + max(i for i, t in enumerate(r0.l) if 'store' in t)
        for t in r0.l[:i0] + r0.l[i1:]: e(t.replace(f's{sSpin}', f's{sPz}'))
        poison.extend(t.replace(f's{sSpin}', f's{sPz}').replace(f'v{PZ+4}', f'v{vPz}') for t in r0.l[i0:i1])
        e(f'v_readfirstlane_b32 s{sFn}, v{vFP}')
    cfg['setup_extra'] = setup_extra

    def kv_unit(i, n=4):
        if n == 4:
            return [(f's_add_u32 m0, s{sMb}, {16384 * i}', None), (f's_add_u32 s{sso}, s{sKVs}, {16384 * i}', None)] + \
               [(f'buffer_load_dwordx4 v{vL16}, {WSr}, s{sso} offen' + (f' offset:{1024 * q}' if q else '') + ' lds', 'KV') for q in range(4)]
        return [(f's_lshr_b32 s{sso}, s{sMb}, 2', None), (f's_add_u32 m0, s{sso}, {16384 * i}', None), (f's_add_u32 s{sso}, s{sso}, {WS_KV + 16384 * i}', None),
                (f'buffer_load_dwordx4 v{vL16}, {WSr}, s{sso} offen lds', 'KV')]

    cfg.setdefault('kv_at', [4, 5, 6, 7, 8])
    cfg['extra_units'] = {}
    for i in range(5): cfg['extra_units'].setdefault(BQ + cfg['kv_at'][i], []).extend(kv_unit(i))
    quads = [f'a[{4*i}:{4*i+3}]' for i in list(range(36, 64)) + list(range(36))] + [f'v[{r}:{r+3}]' for r in (4, 8, 12, 16, 156, 168)]
    nearly = len(quads)
    quads += [f'v[{PBUF+4*i}:{PBUF+4*i+3}]' for i in range(NPB)] + [f'v[{SEL}:{SEL+3}]']
    nmid = len(quads)
    quads += [f'v[{r}:{r+3}]' for r in (76, 80, 84, 88, 92, 104, 108, 120, 124)]
    NWO = 82; vR = (vR0, vR1, vR2)
    def wo_load(f):
        half, r = divmod(f, 41); g, i = divmod(r, 9); out = []
        hreg = (sH0, sH1)[half]
        if i == 0:
            if g == 0: out.append(f's_add_u32 s{sLd}, s{sWo}, s{hreg}')
            elif g < 4: out.append(f's_add_u32 s{sLd}, s{sLd}, 18432')
            else: out.append(f's_add_u32 s{sLd}, s{sWx}, s{hreg}')
        vo = vLO if (g == 4 and i == 4) else vR[i // 4]
        out.append(f'buffer_load_dwordx4 {quads[f]}, v{vo}, {WSr}, s{sLd} offen' + (f' offset:{1024 * (i % 4)}' if i % 4 else ''))
        return out
    NWB = cfg.get('nwb', 0)
    def sched_extra(S, p):
        r = Rec(); e = r.e
        r0 = Rec(); srd(r0, SRD_DBG, P_DBG, 256)
        q0_ = max(288 * cfg.get('kS', 2) + 146, cfg.get('defer', 0) + 40)
        for o in S.chain(r0.l, q0_, q0_ + 70, tight=False):
            if 'store' in o.text: o.tag = 'QKV'; o.cost = 2
        kS = cfg.get('kS', 2)
        e(f's_add_u32 s{sKVs}, s{sMb}, {WS_KV}')
        e(f's_mul_i32 s{sT0}, s{sHH}, 9'); e(f's_lshl_b32 s{sT1}, s{sW}, 1'); e(f's_add_u32 s{sT1}, s{sT1}, s{sT0}')
        e(f's_lshr_b32 s{sPb}, s{sRG}, 3'); e(f's_mul_i32 s{sPb}, s{sPb}, {16 * 147456}')
        e(f's_lshl_b32 s{sT2}, s{sT1}, 13'); e(f's_add_u32 s{sPb}, s{sPb}, s{sT2}')
        e(f's_and_b32 s{sT2}, s{sRG}, 7'); e(f's_lshl_b32 s{sT2}, s{sT2}, 10'); e(f's_add_u32 s{sPb}, s{sPb}, s{sT2}')
        e(f's_lshl_b32 s{sT0}, s{sHH}, 4'); e(f's_lshl_b32 s{sT1}, s{sW}, 2'); e(f's_add_u32 s{sT0}, s{sT0}, s{sT1}')
        e(f's_lshl_b32 s{sT0}, s{sT0}, 11'); e(f's_lshl_b32 s{sT1}, s{sRG}, 4'); e(f's_add_u32 s{sT0}, s{sT0}, s{sT1}')
        e(f'v_bfe_u32 v{vT+4}, v0, 4, 1'); e(f'v_and_b32 v{vGt}, 15, v0'); e(f'v_lshl_add_u32 v{vT+4}, v{vT+4}, 11, v{vGt}')
        e(f'v_lshrrev_b32 v{vT+6}, 5, v0'); e(f'v_lshlrev_b32 v{vT+5}, 5, v{vT+4}'); e(f'v_lshl_add_u32 v{vT+5}, v{vT+6}, 4, v{vT+5}')
        e(f'v_lshlrev_b32 v{vT+4}, 2, v{vT+4}'); e(f'v_lshlrev_b32 v{vGt}, 2, v{vGt}')
        e(f's_lshl_b32 s16, s{sT0}, 5'); e(f's_add_u32 s16, s16, {WS_QM}'); e(f's_add_u32 s17, s16, {2 * 65536}')
        e(f's_lshl_b32 s18, s{sT0}, 2'); e(f's_add_u32 s18, s18, {WS_QX}'); e(f's_add_u32 s19, s18, {2 * 8192}')
        e(f's_lshl_b32 s20, s{sRG}, 6'); e(f's_add_u32 s20, s20, {WS_G}')
        kv = [o for o in S.ops if getattr(o, 'call', False) and o.text.__name__ == 'kv_last']
        S.chain(r.l, 288 * kS + 300, 288 * kS + 288 + cfg.get('rend', 146), deps=kv)
        r = Rec(); e = r.e
        srd(r, SRD_OUT, P_OUT, 2048 * 1152)
        e(f'v_and_b32 v{vT}, 1, v0'); e(f'v_lshlrev_b32 v{vT}, 4, v{vT}'); e(f'v_mov_b32 v{vT+1}, 0x3f80'); e(f'v_lshlrev_b32 v{vT}, v{vT}, v{vT+1}')
        e(f'v_bfe_u32 v{vT+1}, v0, 2, 1'); e(f'v_bfe_u32 v{vT+2}, v0, 4, 1'); e(f'v_cmp_eq_u32 vcc, v{vT+1}, v{vT+2}')
        e(f'v_bfe_u32 v{vT+1}, v0, 1, 1'); e(f'v_cndmask_b32 v{vT}, 0, v{vT}, vcc')
        e(f'v_bfe_u32 v{vT+2}, v0, 3, 1'); e(f'v_lshl_add_u32 v{vT+1}, v{vT+2}, 1, v{vT+1}')
        for i in range(4): e(f'v_cmp_eq_u32 vcc, {i}, v{vT+1}'); e(f'v_cndmask_b32 v{SEL+i}, 0, v{vT}, vcc')
        e(f'v_lshrrev_b32 v{vPl}, 5, v0'); e(f'v_mul_u32_u24 v{vPl}, {147456 - 512}, v{vPl}'); e(f'v_add_u32 v{vPl}, v{vPl}, v{vL16}')
        e(f's_mul_i32 s{sT0}, s{sHH}, 9'); e(f's_lshl_b32 s{sT1}, s{sW}, 1'); e(f's_add_u32 s{sT1}, s{sT1}, s{sT0}')
        e(f's_mul_i32 s{sWo}, s{sT1}, 36864'); e(f's_add_u32 s{sWo}, s{sWo}, {WS_WO}')
        e(f's_add_u32 s{sT0}, s{sT0}, 8'); e(f's_mul_i32 s{sWx}, s{sT0}, 36864'); e(f's_and_b32 s{sT2}, s{sW}, 1'); e(f's_mul_i32 s{sT2}, s{sT2}, 18432')
        e(f's_add_u32 s{sWx}, s{sWx}, s{sT2}'); e(f's_add_u32 s{sWx}, s{sWx}, {WS_WO}')
        e(f's_sub_u32 s{sT0}, s{sT0}, s{sT1}'); e(f's_lshl_b32 s{sT0}, s{sT0}, 13'); e(f's_and_b32 s{sT2}, s{ffn.sHF}, 294912'); e(f's_add_u32 s{sT0}, s{sT0}, s{sT2}')
        e(f's_and_b32 s{sT2}, s{sW}, 1'); e(f's_lshl_b32 s{sT2}, s{sT2}, 9'); e(f's_add_u32 s{sT0}, s{sT0}, s{sT2}')
        e(f'v_add_u32 v{vLX}, s{sT0}, v{vPl}'); e(f'v_add_u32 v{vL2}, 8192, v{vPl}')
        e(f's_and_b32 s{sT2}, s{ffn.sHF}, 5120'); e(f'v_add_u32 v{vR0}, s{sT2}, v{vL16}')
        e(f's_andn2_b32 s{sT2}, 4096, s{ffn.sHF}'); e(f'v_add_u32 v{vR1}, s{sT2}, v{vL16}'); e(f'v_add_u32 v{vR2}, 4096, v{vR1}')
        e(f's_and_b32 s{sT2}, s{ffn.sHF}, {OOB}'); e(f'v_add_u32 v{vLO}, s{sT2}, v{vR1}')

        if O2 == 3: e(f's_getreg_b32 s{sOo2}, hwreg(HW_REG_XCC_ID, 0, 4)'); e(f's_add_u32 s{sOo2}, s{sOo2}, 1'); e(f'v_mov_b32 v{vG}, s{sOo2}')
        else: e(f'v_mov_b32 v{vG}, 1')
        e(f's_mov_b32 s{att.sPerm}, 0x07060302'); e(f's_mul_i32 s{sH0}, s{sHH}, 9216'); e(f's_sub_u32 s{sH1}, 9216, s{sH0}')
        att.att_addrs(r, cfg)
        e(f's_lshr_b32 s{sT0}, s{sRG}, 3'); e(f's_lshl_b32 s{sT0}, s{sT0}, 6'); e(f's_add_u32 s{sT0}, s{sT0}, {WS_FL}')
        e(f'v_and_b32 v{vPa}, 48, v0'); e(f'v_lshlrev_b32 v{vPa}, 22, v{vPa}'); e(f'v_lshl_add_u32 v{vPa}, v0, 2, v{vPa}'); e(f'v_add_u32 v{vPa}, s{sT0}, v{vPa}')
        e(f's_and_b32 s{sFn}, s{sFn}, 0xfffffff'); e(f's_xor_b32 s{sFn}, s{sFn}, 64'); e(f'v_writelane_b32 v{vPa}, s{sFn}, 16')
        def mk(t):
            if ' | ' not in t: return t
            def f():
                for x in t.split(' | '): p.e(x)
            return f
        ch = S.chain([mk(t) for t in r.l], cfg.get('rq', 1700), NQ - 60, tight=False)
        for o in ch:
            if callable(o.text): o.call = True; o.cost = 2
        S.fix(qb(cfg['up'](BS)) + 4, f'buffer_atomic_add v{vAt+1}, v{vAt}, s[{SRD_DBG}:{SRD_DBG+3}], 0 offen sc1')
        DB = f's[{SRD_DBG}:{SRD_DBG+3}]'
        S.fix(qb(BP) - cfg.get('poll_lead', 100), f'buffer_load_dword v{vPoll}, v{vPa}, {DB}, 0 offen sc1')
        S.fix(qb(BP) - 2, lambda: ool.append(poll(p, 'PK', DB, 64, 15, True)), cost=4)
        QM = att.QM
        ql = [f'buffer_load_dword v{vT+6}, v{vT+4}, {WSr}, s18 offen sc1', f'buffer_load_dword v{vT+7}, v{vT+4}, {WSr}, s19 offen sc1',
              f'buffer_load_dword v{vGt}, v{vGt}, {WSr}, s20 offen sc1',
              f'buffer_load_dwordx4 v[{QM}:{QM+3}], v{vT+5}, {WSr}, s16 offen sc1', f'buffer_load_dwordx4 v[{QM+4}:{QM+7}], v{vT+5}, {WSr}, s17 offen sc1']
        q_l = cfg.get('ql', 1580); assert q_l > qb(BP) and q_l + 3 * cfg.get('qd', 4) >= 1580
        for i, t in enumerate(ql): S.add(Op(t, 2, start=q_l + cfg.get('qd', 4) * i, end=q_l + 10 + cfg.get('qd', 4) * i))
        prev = []; g0 = qb(BQ) + 4; dg = (NQ - 12 - g0) // max(NWB, 1)
        for f in range(NWB):
            for t in wo_load(f):
                ld_ = 'load' in t
                prev = [S.add(Op(t, 2 if ld_ else 1, prev, g0 + dg * f - (0 if ld_ else 3), g0 + dg * f + dg))]
        r3 = Rec(); att.q_variants(r3)
        r3.e(f'v_mul_f32 v{vGt}, {f2u(-math.log2(math.e))}, v{vGt}'); r3.e(f'v_exp_f32 v{vGt}, v{vGt}'); r3.e(f'v_add_f32 v{vGt}, 1.0, v{vGt}'); r3.e(f'v_rcp_f32 v{vGt}, v{vGt}')
        r3.l += [t for t in poison if t.startswith('v_')]
        S.chain(r3.l, NQ - 36, NQ - 2, tight=False)
    cfg['sched_extra'] = sched_extra

    def pre_tail(p):
        pf.start()
        p.wait(vmtags=['KV'], lg0=True); p.e('s_barrier')
        pf.save(70)
        p.e(att.rdKX(0)); p.e(att.rdKM(0)); p.e(att.rdV(0, 0)); p.e(att.rdV(0, 1))
    cfg['pre_tail'] = pre_tail
    SA, SB, OA, OB = att.SA, att.SB, att.OA, att.OB
    def mid_tail(p):
        p.c('ATT'); e(att.qkx(0, 0, SA)); e(att.mf32(SA, att.KM, att.QM, att.vr(SA)))
    cfg['mid_tail'] = mid_tail
    ffn.gen_ffn(p, cfg, pf)

    X = {}
    def at(hs, tk, item, tag=None): X.setdefault((hs, tk), []).append((item, tag))
    SL = [(2 * (i // 4) + (1 if i % 4 else 0), ('x1', 'x0', 'x2', 'x3')[i % 4]) for i in range(256)]
    used = [0] * 256
    def put(item, lo, vm, tag=None, hi=None):
        i = lo
        while i < 256 and (used[i] or (vm and i % 4 == 0)):
            if hi is not None and i >= hi: break
            i += 1
        if i >= 256: return None
        used[i] += 1; at(*SL[i], item, tag); return i
    def stream(groups, lo, pace, tagf=None, gate=None):
        pos = []; prev = lo - 1
        for n, grp in enumerate(groups):
            s0 = max(prev + 1, lo + int(n * pace), gate(n) if gate else 0)
            i = s0
            while i < 256 and (used[i] or i % 4 == 0): i += 1
            if i >= 256: break
            for t in grp[:-1]:
                c = [k for k in range(max(prev + 1, 0), i) if not used[k] and k % 4 == 0]
                k = c[-1] if c else (prev if prev >= 0 and n else i)
                used[k] += 1; at(*SL[k], t); prev = k
            used[i] += 1; at(*SL[i], grp[-1], tagf(n) if tagf else None); prev = i; pos.append(i)
        return pos
    def groups_of(lst):
        out = []; cur = []
        for t in lst:
            cur.append(t)
            if t.startswith('buffer_'): out.append(cur); cur = []
        return out
    BBA, BPL, BPC, LAG = cfg.get('bba', 17), cfg.get('bpl', 27), cfg.get('bpc', 30), cfg.get('lag', 4)
    def skew(L):
        if cfg.get('skew'):
            for w_ in range(3):
                e(f's_cmp_le_u32 s{sW}, {w_}'); e(f's_cbranch_scc1 {L}'); e(f's_nop {cfg["skew"]}')
            p.label(L)
    skew('SK0')
    def bar_a():
        p.wait(vmtags=['KV', 'PART']); e('s_barrier'); skew('SK1')
        e(f'buffer_store_dword v{vG}, v{vFP}, {WSr}, 0 offen sc1')
    put(bar_a, 4 * BBA + 1, True)
    put(f'buffer_load_dword v{vPoll}, v{vPa}, {WSr}, 0 offen sc1', 4 * BPL + 1, True)
    def pp_():
        ool.append(poll(p, 'PP', WSr, 1, 0x1ffff, True))
        if O2 == 3: e(f'v_readlane_b32 s{sOp2}, v{vPoll}, 16')
    put(pp_, 4 * BPC + 3, True)
    if cfg.get('otouch', 1) and O2:
        def otouch():
            e(f'v_min_u32 v{vPz}, 17, v0'); e(f'v_lshlrev_b32 v{vPz}, 7, v{vPz}')
            e(f'buffer_load_dword v{ffn.vDum}, v{vPz}, {WSr}, s{sPz} offen sc1').dst = set()
        put(otouch, 4 * cfg.get('bot', 56) + 1, True)
    ps = stream(groups_of(sum(cfg['deferred'], [])), 0, cfg.get('dpace', 3), lambda n: 'PART')
    pk = stream(groups_of([t for i in range(5, 10) for t, tag in kv_unit(i, 4 if i < 9 else 1)]), 0, 1, lambda n: 'KV')
    pz = stream(groups_of([t for t in poison if not t.startswith('v_')]), 0, 1, lambda n: 'PART')
    assert max(ps + pk + pz) < 4 * BBA
    PL = [(sp, g) for sp in range(8) for g in range(5) if g < 4 or sp % 2 == 0]; NP_ = len(PL)
    pg = []
    for i, (sp, g) in enumerate(PL):
        buf = PBUF + 4 * (i % NPB)
        pg.append(([f's_add_u32 s{sPb}, s{sPb}, 294912'] if g == 0 and sp else []) +
                  [f'buffer_load_dwordx4 v[{buf}:{buf+3}], v{(vPl, vL2, vLX)[g // 2]}, {WSr}, s{sPb} offen' + (' offset:512' if g & 1 else '') + ' sc1'])
    pp_ = stream(pg, 4 * BPC + 4, cfg.get('ppace', 2.6), lambda n: ('PL', n))
    cons = [0] * NP_; yq = {}; CG = cfg.get('cgrp', 2)
    for i, (sp, g) in enumerate(PL):
        buf = PBUF + 4 * (i % NPB); b_ = -(-(pp_[i] // 4 + LAG) // CG) * CG; cons[i] = b_; d = BACC + 4 * g
        yq.setdefault(b_, []).append(mf16(d, f'v[{SEL}:{SEL+3}]', f'v[{buf}:{buf+3}]', '0' if sp == 0 else f'v[{d}:{d+3}]'))
    for b_, lst in yq.items():
        assert len(lst) <= 4 and b_ < 63
        tags = [('PL', i) for i in range(NP_) if cons[i] == b_]
        used[4 * b_] += 1; at(*SL[4 * b_], lambda tags=tags: p.wait(vmtags=tags))
        for n, t in enumerate(lst): at(2 * b_ + n // 2, f'y{n & 1}', t)
    for i in range(NPB, NP_): assert pp_[i] >= 4 * cons[i - NPB] + 3, (i, pp_[i], cons[i - NPB])
    lastuse = [max(cons[i] for i in range(NP_) if i % NPB == k) for k in range(NPB)] + [max(cons)]
    order = sorted(range(NPB + 1), key=lambda k: lastuse[k])
    quads[nearly:nmid] = [quads[nearly + k] for k in order]
    pw = stream([wo_load(f) for f in range(NWB, min(nmid, NWO))], 0, cfg.get('wpace', 1), None,
                gate=lambda n: 0 if NWB + n < nearly else 4 * lastuse[order[NWB + n - nearly]] + 3)
    f = NWB + len(pw)
    print('wo loads in loop', f, 'slots used', sum(1 for u in used if u), 'shared', sum(1 for u in used if u > 1))
    def extra(hs, tk):
        for item, tag in X.pop((hs, tk), []):
            if callable(item): item()
            else: e(item, tag=tag)
    base = 0
    for b in range(64):
        if b and b % 16 == 0:
            for a in (att.vAK, att.vAV): e(f'v_add_u32 v{a}, {2 * KVG}, v{a}')
            base += 2 * KVG
        for t in range(2): att.half_step(p, b, t, base, cfg, extra, line=True)
        if b % 16 == 15: pf.stamp(71 + b // 16)
        if cfg.get('astamp') and b % 4 == 3 and b % 16 != 15: pf.stamp(105 + b // 4)
    assert not X, X.keys()
    e(att.mf32(OB, att.VV + 12, att.PP + 4, att.vr(OB)))
    vO1, vO2, vO3, vOut = 1, 2, 3, 20
    e(f's_lshl_b32 s{sT0}, s{sW}, 11'); e(f'v_add_u32 v{vO1}, s{sT0}, v{vL16}')
    e(f'v_and_b32 v{vO2}, 15, v0'); e(f'v_lshlrev_b32 v{vO2}, 4, v{vO2}'); e(f'v_bfe_u32 v{vO3}, v0, 4, 1'); e(f'v_lshl_add_u32 v{vO2}, v{vO3}, 2, v{vO2}')
    e(f's_lshl_b32 s{sT0}, s{sW}, 8'); e(f's_add_u32 s{sT0}, s{sT0}, 8192'); e(f'v_add_u32 v{vO2}, s{sT0}, v{vO2}')
    e(f'v_lshrrev_b32 v{vO3}, 5, v0'); e(f'v_lshl_add_u32 v{vOut}, v{vO3}, 20, v{vO2}'); e(f'v_lshl_add_u32 v{vO2}, v{vO3}, 29, v{vO2}'); e(f'v_add_u32 v{vOut}, {LDS_O}, v{vOut}')
    att.att_check(p, 'A', cfg, 'test')
    quads[f:NWO] = quads[nmid:nmid + NWO - f]
    OUTr = f's[{SRD_OUT}:{SRD_OUT+3}]'; of_ = cfg.get('outf', '')
    e(f'v_rcp_f32 v{vT}, v{vT}'); e(f'v_rcp_f32 v{vT+2}, v{vT+2}')
    e(f'v_add_u32 v{vO3}, {LDS_O}, v{vO1}')
    e(f'v_mul_f32 v{vT}, v{vT}, v{vGt}'); e(f'v_mul_f32 v{vT+2}, v{vT+2}, v{vGt}')
    for t, O in ((0, OA), (1, OB)):
        for i in range(10): e(f'v_mul_f32 v{O+i}, v{O+i}, v{vT+2*t}')
        for i in range(5): e(f'v_cvt_pk_bf16_f32 v{O+i}, v{O+2*i}, v{O+2*i+1}')
        so_, fl_ = (sOo2 if O2 == 1 else sOo, '') if O2 else (sOo, 'sc1')
        st_ = lambda f_: (f'buffer_store_dwordx4 v[{O}:{O+3}], v{vO1}, {WSr}, s{so_} offen offset:{1024 * t} {f_}', f'buffer_store_dword v{O+4}, v{vO2}, {WSr}, s{so_} offen offset:{8 * t} {f_}')
        if O2 == 3:
            e(f's_cmp_lg_u32 s{sOo2}, s{sOp2}'); e(f's_cbranch_scc1 OS{t}')
            def far(q, t=t, sts=st_('sc1')):
                q.label(f'OS{t}')
                for x in sts: q.raw(x)
                q.raw(f's_branch OS{t}b')
            ool.append(far)
        for x in st_(fl_): e(x)
        if O2 == 3: p.label(f'OS{t}b')
        e(f'ds_write_b128 v{vO3}, v[{O}:{O+3}] offset:{1024 * t}'); e(f'ds_write_b32 v{vOut}, v{O+4} offset:{8 * t}')
    e(f'v_sub_f32 v{vGt}, 1.0, v{vGt}')
    for i in range(3): e(f'v_add_u32 v{vT+4+i}, {LDS_O}, v{vR[i]}')
    e('s_waitcnt lgkmcnt(0)'); e('s_barrier')
    pf.stamp(75)
    OF, XR_ = 24, 60; OGq = [128, 132, 136, 140, 144, 148, 64, 68, 72]; OFq = [OF + 4 * i for i in range(9)]
    for i in range(9): e(f'ds_read_b128 v[{OF+4*i}:{OF+4*i+3}], v{vT+4+i//4} offset:{1024 * (i % 4)}')
    for i in range(20): e(f'v_mul_f32 v{BACC+i}, v{BACC+i}, v{vGt}')
    def og_load(i): return f'buffer_load_dwordx4 v[{OGq[i]}:{OGq[i]+3}], v{vR[i // 4]}, {WSr}, s{sOp} offen' + (f' offset:{1024 * (i % 4)}' if i % 4 else '') + ' sc1'
    g_st = [x for t, O in ((0, OA), (1, OB)) for x in (f'buffer_store_dwordx4 v[{O}:{O+3}], v{vO1}, {WSr}, s{sOo} offen offset:{1024 * t} sc1',
                                                    f'buffer_store_dword v{O+4}, v{vO2}, {WSr}, s{sOo} offen offset:{8 * t} sc1')] if O2 in (1, 2) else []
    misc = [t for f_ in range(f, NWO) for t in wo_load(f_)] + [
            f'v_and_b32 v{vOut}, 15, v0', f'v_mul_u32_u24 v{vOut}, 1152, v{vOut}', f'v_and_b32 v{vO3}, 48, v0', f'v_add_u32 v{vOut}, v{vOut}, v{vO3}',
            f's_mul_i32 s{sT0}, s{sRG}, 18432', f's_mul_i32 s{sT1}, s{sHH}, 576', f's_add_u32 s{sT0}, s{sT0}, s{sT1}',
            f's_lshl_b32 s{sT1}, s{sW}, 7', f's_add_u32 s{sT1}, s{sT1}, s{sT0}', f's_and_b32 s{sT2}, s{sW}, 1', f's_lshl_b32 s{sT2}, s{sT2}, 4',
            f's_add_u32 s{sT0}, s{sT0}, s{sT2}', f's_and_b32 s{sT2}, s{ffn.sHF}, {OOB}', f'v_and_b32 v{vO3}, 16, v0', f'v_lshrrev_b32 v{vO3}, 1, v{vO3}', f'v_sub_u32 v{vO3}, v{vOut}, v{vO3}', f'v_add_u32 v{vO3}, s{sT2}, v{vO3}', f's_mov_b32 s{sSpin}, 0']
    LDAT = cfg.get('ldat', 12); n = 0; nl = 0; assert LDAT > 6
    grp = lambda half, g: [mf16(BACC + 4 * g, quads[41 * half + 9 * g + i], f'v[{(OFq, OGq)[half][i]}:{(OFq, OGq)[half][i]+3}]', f'v[{BACC+4*g}:{BACC+4*g+3}]') for i in range(9 if g < 4 else 5)]
    chk = [f'v_max3_u32 v{vT}, v{OGq[i//2]+2*(i&1)}, v{OGq[i//2]+2*(i&1)+1}, ' + (f'v{vT}' if i else '0') for i in range(18)]
    ck_ = list(chk); CKAT = cfg.get('ckat', 50)
    for g in range(5):
        for t in grp(0, g):
            e(t); n += 1
            if n >= LDAT and (n - LDAT) % 2 == 0 and nl < 9: e(og_load(nl), tag='OG'); nl += 1
            elif misc: e(misc.pop(0))
            elif nl == 9 and n >= CKAT and ck_:
                if len(ck_) == 18: p.wait(vmtags=['OG'])
                e(ck_.pop(0)); e(ck_.pop(0))
    for t in misc: e(t)
    while nl < 9: e(og_load(nl)); nl += 1
    pf.stamp(76)
    for t in ck_: e(t)
    e(f'v_cmp_eq_u32 vcc, -1, v{vT}'); e('s_cmp_lg_u64 vcc, 0'); e('s_cbranch_scc1 PO_spin')
    p.label('PO_done')
    pf.stamp(77)
    def po_out(q):
        r = q.raw
        NL = cfg.get('nl', 6)
        q.label('PO_spin'); q.label('PO_sp2'); r(f's_add_u32 s{sSpin}, s{sSpin}, 1'); r(f's_cmp_gt_u32 s{sSpin}, 0x8000'); r('s_cbranch_scc1 PO_done')
        if O2 in (1, 2):
            r(f's_cmp_lg_u32 s{sSpin}, {NL}'); r('s_cbranch_scc1 PO_sp3')
            for t in g_st: r(t)
            q.label('PO_sp3')
            if O2 == 1: r(f's_cmp_lt_u32 s{sSpin}, {NL}'); r(f's_cselect_b32 s{sT2}, s{sOp}, s{sOp2}'); r(f's_cselect_b32 s{sOp2}, s{sOp2}, s{sOp}'); r(f's_mov_b32 s{sOp}, s{sT2}')
        for i in range(9): r(og_load(i))
        r('s_waitcnt vmcnt(0)')
        for t in chk: r(t)
        r(f'v_cmp_eq_u32 vcc, -1, v{vT}'); r('s_cmp_lg_u64 vcc, 0'); r('s_cbranch_scc1 PO_sp2'); r('s_branch PO_done')
    ool.insert(0, po_out)
    BX = BACC + 16
    cv = lambda d, s_: f'v_cvt_pk_bf16_f32 v{d}, v{s_}, v{s_+1}'
    sw = lambda a, b: f'v_permlane16_swap_b32 v{a}, v{b}'
    fl = {13: [f'ds_write_b128 v{vO1}, v[{BX}:{BX+3}]'],
          20: ['s_waitcnt lgkmcnt(0)', 's_barrier'], 21: [f'ds_read_b128 v[{XR_}:{XR_+3}], v{vO2}'],
          22: [cv(BACC, BACC), cv(BACC + 1, BACC + 2)],
          28: [f'v_add_f32 v{BX}, v{BX}, v{XR_}', f'v_add_f32 v{BX+1}, v{BX+1}, v{XR_+1}'], 29: [f'v_add_f32 v{BX+2}, v{BX+2}, v{XR_+2}', f'v_add_f32 v{BX+3}, v{BX+3}, v{XR_+3}'],
          30: [cv(BACC + 2, BACC + 4), cv(BACC + 3, BACC + 6)],
          32: [sw(BACC, BACC + 2), sw(BACC + 1, BACC + 3)],
          36: [f'buffer_store_dwordx4 v[{BACC}:{BACC+3}], v{vOut}, {OUTr}, s{sT1} offen {of_}'],
          33: [cv(BX, BX), cv(BX + 1, BX + 2)], 34: [f'buffer_store_dwordx2 v[{BX}:{BX+1}], v{vO3}, {OUTr}, s{sT0} offen offset:512 {of_}'],
          40: [cv(BACC + 8, BACC + 8), cv(BACC + 9, BACC + 10)]}
    for i_, t in enumerate(g_st): fl[cfg.get('gat', 1) + 3 * i_] = [t]
    fl[15] = [f'v_xor_b32 v{vO2}, 4096, v{vO1}']
    n = 0
    for g in (4, 0, 1, 2, 3):
        for t in grp(1, g):
            e(t); n += 1
            for x in fl.get(n, []): e(x)
    e(cv(BACC + 10, BACC + 12)); e(cv(BACC + 11, BACC + 14)); e(sw(BACC + 8, BACC + 10)); e(sw(BACC + 9, BACC + 11))
    e(f'buffer_store_dwordx4 v[{BACC+8}:{BACC+11}], v{vOut}, {OUTr}, s{sT1} offen offset:64 {of_}')
    return ool

def build(cfg, path):
    name = NAME + '_kernel'
    p = Prog()
    kernel_header(p, name)
    p.e('s_cmp_ge_u32 s2, 256'); p.e('s_cbranch_scc1 K_exit')
    cfg = dict(cfg); cfg.setdefault('codepf', 'A_fb-PCL'); cfg.setdefault('hop', 1)
    pf = Prof(p, 'real' if cfg.get('real') else bool(cfg.get('prof')))
    pf.stamp(100, real=True); pf.stamp(101)
    ool = gen(p, cfg, pf)
    pf.stamp(102)
    if pf.on: p.e('s_waitcnt vmcnt(0)')
    pf.stamp(103); pf.stamp(104, real=True)
    pf.dump(SRD_WS, sW)
    p.label('K_exit'); p.e('s_endpgm')
    for f in ool: f(p)
    p.reset_tracking(); p.auto = False
    att.att_check(p, 'A', cfg, 'fallback')
    if cfg['hop']:
        n0 = len(p.ins)
        for w_ in range(4): p.label(f'PAD{w_}')
        p.e('s_endpgm')
    p.fix_hazards(verbose=cfg.get('verbose', False))
    if cfg['hop']:
        tail = p.ins[-5:]
        sv = p.ins; npad = insert_pads(p, 'MAIN', 'A_fb', 4, 'HOPBACK'); p.ins = p.ins[:-5]; print('pads', npad)
    if cfg.get('align', 0): print('align8 (promoted, still misaligned):', align8(p, cfg.get('maxspan', 3)))
    print('instrs', len(p.ins), 'nops added', p.nops_added)
    hdr = '''; One persistent launch, 256 workgroups (one per CU) x 4 waves x 512 registers. Generated by the author's own scripts.
;  phase D : output projection with the partner workgroup's heads (data-tagged hand-off; plain stores only when the
;            published XCC ids say both sit behind one L2, write-through otherwise), gate mix, store.
; Hand-offs: write-through stores, counters in d_debug, flags/tags in d_ws initialised inside the launch; all spins are bounded.'''
    txt = ['; @launch grid=(256,1,1) block=(256,1,1) lds=163840', hdr, '.amdgcn_target "amdgcn-amd-amdhsa--gfx950"', '.text', p.text(),
           '.section .rodata,"a"', descriptor(name, 512, acc=256)]
    open(path, 'w').write('\n'.join(txt))
if __name__ == '__main__':
    build(eval(sys.argv[2]) if len(sys.argv) > 2 else {}, sys.argv[1])
```

```python
from common import *

KVG, KVB = 18944, 2240
sW, sM_, sS = 3, 4, 5
sA, sA4, sX, sMb = 6, 7, 8, 9
sT0, sT1, sT2 = 10, 11, 12
sFs, sHd, sK32 = 13, 14, 15
SRD_X, SRD_WG, SRD_WU, SRD_W4, SRD_WD, SRD_WS, SRD_WO = 44, 48, 52, 56, 60, 64, 68
sHF = 72
sP, sQm, sQx, sKV, sKX = 74, 75, 76, 77, 78
sWoD = 79
sWoJ = 80
sso, sso2, sK4, sPo, sQs = 88, 89, 90, 91, 92
vOffW, vOffD, vOffX = 1, 5, 9
vRd = 13
vH, vC1, vL16, vT = 19, 20, 21, 22
XA, XAT = 24, 28
AB = 32
G0, G1, UU = 64, 96, 128
GT = 160; NGT = 12
XV = 172
vB1, vB2, vSel, vSt1, vSt2, vAd = 204, 206, 208, 211, 212, 214
vDo, vTa, vTx, vHs, vXw, vXr, vHw, vH2 = 22, 23, 222, 223, 224, 225, 236, 237
X3 = 204
vDl, sDl = 218, 100
vPW, vPQ, vPD, vDum = 250, 251, 252, 253
sFp, sPC, sTc, sVr = 93, 98, 90, 89
vWo = 226
NPL = 10
NQ = 2088

def xf(k, rt, n=4, o=0):
    i = (k * 4 + rt) * 4 + o
    if k < 16: return f'a[{i}:{i+n-1}]'
    i = XV + i - 256
    return f'v[{i}:{i+n-1}]'

def gen_ffn(p, cfg, pf):
    DMAX = cfg.get('dmax', 7)
    stf = cfg.get('stflags', '')
    kS = cfg.get('kS', 2); ND = cfg.get('nd', 3)
    rho = {k: k - (k > kS) for k in range(5) if k != kS}
    seqB = [(j, c) for j in range(ND) for c in (0, 1, 2, 3, 4, 5, 8)] + [(j, c) for j in range(ND) for c in (6, 7)] + [(j, c) for j in range(ND, 9) for c in range(9)]
    accB = ([G1, XV, X3][:ND] + [G0, G1] * 5)[:9]
    accB = [accB[j] if j < ND else (G1, G0)[j % 2] for j in range(9)]
    P0 = cfg.get('p0', list(range(9))); assert P0[0] == 0 and sorted(P0) == list(range(9))
    cu = lambda U: P0[U] if U < 9 else U
    LX = P0.index(4)
    BAR = set(range(6)); b_ = 5
    for lim, step in cfg.get('bars', [(66, 1)]):
        while b_ + step <= min(lim, 65): b_ += step; BAR.add(b_)
    up = lambda b: min([x for x in BAR if x >= b] + [999]); dn = lambda b: max(x for x in BAR if x <= b)
    cfg['up'] = up
    bH = dn((1440 + 56 * ND - 10 - 15) // 32 + 1)
    e = p.e
    A = GT
    load_ptrs(p)
    e('v_lshrrev_b32 v1, 6, v0')
    e('v_and_b32 v0, 63, v0')
    e(f'v_readfirstlane_b32 s{sW}, v1')
    if cfg.get('codepf'):
        e(f's_getpc_b64 s[{sPC}:{sPC+1}]'); p.label('PCL')
        e(f's_lshr_b32 s{sT1}, s2, 3'); e(f's_lshl_b32 s{sT1}, s{sT1}, 2'); e(f's_add_u32 s{sT1}, s{sT1}, s{sW}')
        e(f'v_lshlrev_b32 v{A+6}, 7, v0'); e(f'v_add_u32 v{A+6}, s{sT1}, v{A+6}')
        e(f'v_lshlrev_b32 v{A+6}, 7, v{A+6}'); e(f'v_min_u32 v{A+6}, {cfg["codepf"]}, v{A+6}')
        e(f'global_load_dword v{vDum}, v{A+6}, s[{sPC}:{sPC+1}]').dst = set()
    e(f's_and_b32 s{sT0}, s2, 7')
    e(f's_lshr_b32 s{sT1}, s2, 3')
    mx = cfg.get('xcd_m', 2)
    lm = int(math.log2(mx)); mper = 16 // mx; lmp = int(math.log2(mper)); sper = 32 // mper
    e(f's_and_b32 s{sM_}, s{sT0}, {mx - 1}')
    e(f's_mul_i32 s{sM_}, s{sM_}, {mper}')
    e(f's_and_b32 s{sT2}, s{sT1}, {mper - 1}')
    e(f's_add_u32 s{sM_}, s{sM_}, s{sT2}')
    e(f's_lshr_b32 s{sS}, s{sT0}, {lm}')
    e(f's_mul_i32 s{sS}, s{sS}, {sper}')
    e(f's_lshr_b32 s{sT2}, s{sT1}, {lmp}')
    e(f's_add_u32 s{sS}, s{sS}, s{sT2}')
    row, l4, g16 = A, A + 1, A + 2
    e(f'v_lshrrev_b32 v{row}, 3, v0')
    e(f'v_lshrrev_b32 v{l4}, 4, v0')
    e(f'v_and_b32 v{A+3}, 7, v0')
    e(f'v_xor_b32 v{A+4}, v{A+3}, v{l4}')
    e(f'v_lshlrev_b32 v{A+4}, 4, v{A+4}')
    e(f'v_mul_u32_u24 v{A+5}, 1152, v{row}')
    e(f'v_add_u32 v{vOffX}, v{A+4}, v{A+5}')
    e(f'v_xor_b32 v{vOffX+1}, 64, v{vOffX}')
    e(f'v_add_u32 v{vOffX+1}, {8192}, v{vOffX+1}')
    e(f'v_add_u32 v{vOffX+2}, {2 * 8192}, v{vOffX}')
    e(f'v_add_u32 v{vOffX+3}, {2 * 8192}, v{vOffX+1}')
    e(f's_lshl_b32 s{sMb}, s{sW}, 12')
    e(f's_lshl_b32 s{sK32}, s{sW}, 5')
    e(f's_lshl_b32 s{sX}, s{sM_}, 7')
    e(f's_add_u32 s{sX}, s{sX}, s{sK32}')
    e(f's_mul_i32 s{sX}, s{sX}, 1152')
    rot = cfg.get('rot', 8)
    if rot == 8:
        xs_ = 8 // sper if sper <= 8 else 1; ms_ = 8 // mper if mper <= 8 else 1
        e(f's_mul_i32 s{sA}, s{sS}, {xs_}'); e(f's_mul_i32 s{sT2}, s{sM_}, {ms_}'); e(f's_add_u32 s{sA}, s{sA}, s{sT2}'); e(f's_and_b32 s{sA}, s{sA}, 7')
    elif rot == 'x':
        e(f's_lshl_b32 s{sA}, s{sS}, 1'); e(f's_and_b32 s{sA}, s{sA}, 7')
    elif rot == 4:
        e(f's_add_u32 s{sA}, s{sS}, s{sM_}'); e(f's_and_b32 s{sA}, s{sA}, 3'); e(f's_mul_i32 s{sA}, s{sA}, 9'); e(f's_lshr_b32 s{sA}, s{sA}, 2')
    else: e(f's_mov_b32 s{sA}, 0')
    def wprep(e):
        e(f'v_lshlrev_b32 v{g16}, 1, v{l4}')
        e(f'v_xor_b32 v{g16}, v{A+3}, v{g16}')
        e(f'v_lshlrev_b32 v{A+4}, 4, v{g16}')
        e(f'v_and_b32 v{A+6}, 4, v{row}'); e(f'v_add_u32 v{A+6}, v{A+6}, v{row}')
        e(f'v_mul_u32_u24 v{vOffW}, 9216, v{A+6}')
        e(f'v_add_u32 v{vOffW}, v{vOffW}, v{A+4}')
        for q in (1, 2, 3): e(f'v_add_u32 v{vOffW+q}, {(0, 16, 4, 20)[q] * 9216 - 1024 * q}, v{vOffW}')
        e(f's_mul_i32 s{sT2}, s{sS}, 576')
        e(f's_bitcmp1_b32 s{sS}, 0')
        e(f's_cselect_b32 s{sT0}, 64, 0')
        e(f's_cselect_b32 s{sFs}, 0, 512')
        e(f's_add_u32 s{sFp}, s{sT0}, s{sT2}')
        e(f's_add_u32 s{sFs}, s{sFs}, s{sT2}')
    def tables(e):
        e(f'v_add_u32 v{A+6}, s{sA}, v0'); e(f'v_subrev_u32 v{A+7}, 9, v{A+6}'); e(f'v_min_u32 v{A+6}, v{A+6}, v{A+7}')
        e(f'v_lshlrev_b32 v{A+6}, 7, v{A+6}'); e(f'v_add_u32 v{vTx}, s{sX}, v{A+6}')
        e(f'v_mul_u32_u24 v{A+6}, 7282, v0'); e(f'v_lshrrev_b32 v{A+6}, 16, v{A+6}')
        e(f'v_mul_u32_u24 v{A+7}, 9, v{A+6}'); e(f'v_sub_u32 v{A+7}, v0, v{A+7}')
        e(f'v_lshlrev_b32 v{A+7}, 2, v{A+7}'); e(f'v_add_u32 v{A+7}, s{sW}, v{A+7}')
        e(f'v_subrev_u32 v{A+8}, 18, v{A+7}'); e(f'v_min_u32 v{A+7}, v{A+7}, v{A+8}')
        e(f's_lshl_b32 s{sT2}, s{sA}, 1'); e(f'v_add_u32 v{A+7}, s{sT2}, v{A+7}')
        e(f'v_subrev_u32 v{A+8}, 18, v{A+7}'); e(f'v_min_u32 v{A+7}, v{A+7}, v{A+8}')
        e(f'v_cmp_lt_u32 vcc, {kS}, v{A+6}'); e(f'v_mul_u32_u24 v{A+8}, 294912, v{A+7}'); e(f'v_add_u32 v{A+8}, s{sFp}, v{A+8}')
        e(f'v_subbrev_co_u32 v{A+9}, vcc, 0, v{A+6}, vcc')
        e(f'v_cmp_ne_u32 vcc, {kS}, v{A+6}'); e(f'v_lshl_add_u32 v{A+8}, v{A+9}, 7, v{A+8}'); e(f'v_lshlrev_b32 v{A+7}, 5, v{A+7}')
        e(f'v_cndmask_b32 v{vTa}, v{A+7}, v{A+8}, vcc')
    e(f's_lshl_b32 s{sso}, s{sA}, 7'); e(f's_add_u32 s{sso}, s{sso}, s{sX}')
    if cfg.get('pstamp'): e(f's_memrealtime s[96:97]')
    e('s_waitcnt lgkmcnt(0)')
    if cfg.get('pstamp'): e(f'v_writelane_b32 v255, s96, 20'); pf.stamp(85)
    srd(p, SRD_X, P_X, 2048 * 1152)

    NU = 66
    HWD = cfg.get('hwd', 2)
    items = []
    for U in range(NU):
        if cu(U) < 5:
            assert U in BAR
            for cx in ([2 * cu(U), 2 * cu(U) + 1] if cu(U) < 4 else [8]): items.append(('X', cx, U))
        items.append(('W', U, dn(U)))
    resv = {pl: [] for pl in range(NPL)}
    for k in rho: resv[rho[k]].append((9 * (k + 1) + HWD, up(46) if k < 4 else up(bH + 1)))
    resv[4].append((9 * kS + 5, up(46)))
    if cfg.get('kvb0'):
        for k in range(5): resv[k].append((cfg['kvb0'] + cfg['kv_at'][k], 999))
    busy = {pl: -1 for pl in range(NPL)}
    place = {}; issue_at = {}; nxt = 0
    for b in range(-1, NU):
        lst = []
        while nxt < len(items):
            kind, idx, need = items[nxt]; fb = up(need + 1)
            r0, r1, r2_ = cfg.get('ramp', (7, 0, 1))
            if b >= 0 and (need - b > max(r0, min(DMAX, r0 + (b - r1) // r2_)) or len(lst) >= cfg.get('maxissue', 3)): break
            if b < 0 and len(lst) >= cfg.get('pro_units', 6): break
            cand = [pl for pl in range(NPL) if busy[pl] <= b and all(fb <= rs or b >= re for rs, re in resv[pl])]
            if not cand: break
            cand.sort(key=lambda pl: min([rs for rs, re in resv[pl] if rs >= fb] + [999]))
            pl = cand[0]; assert need > b
            place[(kind, idx)] = pl; busy[pl] = fb
            lst.append(items[nxt]); nxt += 1
        issue_at[b] = lst
    assert nxt == len(items)
    if cfg.get('verbose'):
        for b in range(-1, NU): print(b, [(k, i, place[(k, i)]) for k, i, n in issue_at[b]])

    def dma_instrs(kind, idx):
        pl = place[(kind, idx)]; tag = (kind, idx)
        m0 = (f's_add_u32 m0, s{sMb}, {pl * 16384}', None)
        def four(vo, sr): return [(f'buffer_load_dwordx4 v{vo+q}, s[{sr}:{sr+3}], s{sso} offen' + (f' offset:{1024*q}' if q else '') + ' lds', tag) for q in range(4)]
        if kind == 'X':
            return [(f'v_readlane_b32 s{sso}, v{vTx}, {idx}', None), m0] + four(vOffX, SRD_X)
        U = idx
        if U < 45 and U // 9 != kS:
            U = cu(U); u = U % 9
            sr = SRD_WG if u < 4 else (SRD_W4 if u == 4 else SRD_WU)
            return [(f'v_readlane_b32 s{sso}, v{vTa}, {U}', None), m0] + four(vOffW, sr)
        if U < 45:
            u = U % 9
            b_, st = (vB1, vSt1) if u < 4 else ((vB2, vSt2) if u > 4 else (vSel, vSel + 2))
            dl = f's[{sDl}:{sDl+1}]' if u < 4 else (f'v[{vDl}:{vDl+1}]' if u > 4 else f'v[{vDl+2}:{vDl+3}]')
            ad = lambda q: f'v[{vAd+2*(q&1)}:{vAd+2*(q&1)+1}]'
            out = [(f'v_readlane_b32 s{sso}, v{vTa}, {U}', None), m0, (f'v_mad_u64_u32 {ad(0)}, s[{sPC}:{sPC+1}], v{st}, s{sso}, v[{b_}:{b_+1}]', None)]
            for hq in range(2):
                if hq: out += [(f's_add_u32 s{sso}, s{sso}, 4', None), (f's_add_u32 m0, s{sMb}, {pl * 16384 + 2048}', None),
                               (f'v_mad_u64_u32 {ad(0)}, s[{sPC}:{sPC+1}], v{st}, s{sso}, v[{b_}:{b_+1}]', None)]
                out += [(f'global_load_lds_dwordx4 {ad(0)}, off', tag), (f'v_lshl_add_u64 {ad(1)}, {ad(0)}, 0, {dl}', None),
                        (f'global_load_lds_dwordx4 {ad(1)}, off offset:1024', tag)]
            return out
        return [(f'v_readlane_b32 s{sso}, v{vDo}, {U - 45}', None), m0] + four(vOffD, SRD_WD)

    PF = cfg.get('prefetch', 4)
    if PF & 1:
        nrow = 128 // (4 * sper)
        e(f's_and_b32 s{sT1}, s{sS}, {sper - 1}'); e(f's_lshl_b32 s{sT1}, s{sT1}, 2'); e(f's_add_u32 s{sT1}, s{sT1}, s{sW}')
        e(f's_mul_i32 s{sT1}, s{sT1}, {nrow * 1152}'); e(f's_mul_i32 s{sT2}, s{sM_}, {128 * 1152}'); e(f's_add_u32 s{sT1}, s{sT1}, s{sT2}')
        e(f'v_lshl_add_u32 v{A+6}, v{A+3}, 7, v{A+5}')
        if nrow < 8:
            e(f'v_cmp_gt_u32 vcc, {8 * nrow}, v0'); e(f'v_mov_b32 v{A+7}, {OOB}'); e(f'v_cndmask_b32 v{A+6}, v{A+7}, v{A+6}, vcc')
        for i in range(max(1, nrow // 8)):
            e(f'buffer_load_dword v{vDum}, v{A+6}, s[{SRD_X}:{SRD_X+3}], s{sT1} offen offset:128').dst = set()
            if i + 1 < nrow // 8: e(f's_add_u32 s{sT1}, s{sT1}, 9216')
    pro = []
    for kind, idx, need in issue_at[-1]:
        pro += dma_instrs(kind, idx)
    wrows = 576 // (2 * mper)
    def wtouch(col):
        return [f'buffer_load_dword v{vDum}, v{vPW}, s[{SRD_W4}:{SRD_W4+3}], {col} offen' + (f' offset:0' if 0 else '')]
    assert not PF & 1
    class R_:
        l = []
        def e(self, t): self.l.append(t)
    r_ = R_(); wprep(r_.e); srd(r_, SRD_WG, P_WG, 576 * 9216)
    r_.l += [f's_lshl_b32 s{sso2}, s{sA}, 1', f's_add_u32 s{sso2}, s{sso2}, s{sW}', f's_mul_i32 s{sso2}, s{sso2}, 294912', f's_add_u32 s{sso2}, s{sso2}, s{sFp}']
    fb_ = pro[1:6] + [(f's_add_u32 s{sso}, s{sso}, 128', None)] + pro[7:12]
    for t, tag in fb_:
        e(t, tag=tag)
        if tag:
            for _ in range(4):
                if r_.l: t_ = r_.l.pop(0); e(t_)
            while r_.l and r_.l[0].startswith('s_cselect'): e(r_.l.pop(0))
    for t_ in r_.l: e(t_)
    for t, tag in pro[13:18]: e(t.replace(f's{sso} offen', f's{sso2} offen'), tag=tag)
    pro = pro[18:]
    tables(e)
    srd(p, SRD_WU, P_WU, 576 * 9216)
    e(f's_cmp_ge_u32 s{sW}, 2')
    e(f's_cselect_b32 s{SRD_W4}, s{SRD_WU}, s{SRD_WG}')
    e(f's_cselect_b32 s{SRD_W4+1}, s{SRD_WU+1}, s{SRD_WG+1}')
    e(f's_mov_b32 s{SRD_W4+2}, {576 * 9216}')
    e(f's_mov_b32 s{SRD_W4+3}, 0x20000')
    if cfg.get('pstamp'): pf.stamp(86)
    e0 = e; cnt_ = [0]
    def e(t, **kw):
        r = e0(t, **kw); cnt_[0] += 1
        if pro and cnt_[0] % cfg.get('pro_every', 1000) == 0 and not t.startswith(('s_cmp', 's_cselect', 's_bitcmp')):
            while pro:
                t2, tag = pro.pop(0); e0(t2, tag=tag)
                if tag and not cfg.get('burst'): break
        return r

    e(f'v_add_u32 v{vOffD}, v{A+4}, v{A+5}')
    for q in (1, 2, 3): e(f'v_add_u32 v{vOffD+q}, {q * 8192}, v{vOffD}')
    srd(p, SRD_WD, P_WD, 4608 * 1152)
    srd(p, SRD_WS, P_WS, WS_END)
    srd(p, SRD_WO, P_WO, 576 * 1152)
    e(f's_cmp_ge_u32 s{sW}, 2')
    e(f's_cselect_b64 s[{sHF}:{sHF+1}], -1, 0')
    e(f's_cselect_b32 s{sHd}, 1, 0')
    e(f'v_lshrrev_b32 v{A+3}, 2, v0')
    e(f'v_bfe_u32 v{A+6}, v0, 3, 2')
    e(f's_and_b32 s{sT0}, s{sHF}, 2')
    e(f'v_xor_b32 v{A+6}, s{sT0}, v{A+6}')
    e(f'v_lshlrev_b32 v{A+6}, 5, v{A+6}')
    e(f'v_lshl_add_u32 v{A+6}, v{A+3}, 7, v{A+6}')
    e(f'v_and_b32 v{A+3}, 3, v0')
    e(f'v_lshl_add_u32 v{vRd}, v{A+3}, 3, v{A+6}')
    e(f'v_xor_b32 v{vRd+3}, 32, v{vRd}')
    for wd in (1, 2):
        e(f'v_add_u32 v{vRd+wd}, {65536 * wd}, v{vRd}')
        e(f'v_add_u32 v{vRd+3+wd}, {65536 * wd}, v{vRd+3}')
    e(f's_and_b32 s{sT0}, s{sW}, 1')
    e(f'v_lshrrev_b32 v{A+3}, 4, v0')
    e(f'v_bfe_u32 v{A+6}, v0, 1, 3')
    e(f'v_xor_b32 v{A+6}, v{A+6}, v{A+3}')
    e(f'v_lshlrev_b32 v{A+6}, 4, v{A+6}')
    e(f'v_and_b32 v{A+3}, 15, v0')
    e(f'v_lshl_add_u32 v{A+6}, v{A+3}, 7, v{A+6}')
    e(f's_lshl_b32 s{sT1}, s{sT0}, 13')
    e(f'v_add_u32 v{XA}, s{sT1}, v{A+6}')
    e(f'v_xor_b32 v{XA+1}, 64, v{XA}')
    for wd in (1, 2):
        for q in range(2): e(f'v_add_u32 v{XA+2*wd+q}, {65536 * wd}, v{XA+q}')
    e(f'v_lshlrev_b32 v{vL16}, 4, v0')
    e(f's_lshl_b32 s{sT1}, s{sT0}, 12')
    e(f'v_add_u32 v{vH}, s{sT1}, v{vL16}')
    e(f'v_mov_b32 v{vC1}, {f2u(GC1)}')
    late = []
    L = late.append
    B = vWo
    LATE = cfg.get('late', 0)
    B = GT if LATE else 238
    L(f's_and_b32 s{sT2}, s{sHF}, 8192'); L(f'v_add_u32 v{vHw}, s{sT2}, v{vH}')
    L(f'v_add_u32 v{vH2}, 65536, v{vH}'); L(f's_and_b32 s{sT2}, s{sHF}, 2048'); L(f'v_add_u32 v{vHs}, s{sT2}, v{vH2}')
    L(f's_add_u32 s{sT2}, s{sMb}, 65536'); L(f'v_add_u32 v{vXw}, s{sT2}, v{vL16}')
    L(f'v_xor_b32 v{vXr}, 8192, v{vXw}')
    L(f's_and_b32 s{sT0}, s{sW}, 1')
    L(f's_lshl_b32 s{sP}, s{sM_}, 4'); L(f's_add_u32 s{sP}, s{sP}, s{sS}'); L(f's_mul_i32 s{sP}, s{sP}, 147456')
    L(f's_lshl_b32 s{sT1}, s{sT0}, 12'); L(f's_add_u32 s{sP}, s{sP}, s{sT1}')
    L(f's_and_b32 s{sT1}, s{sHF}, 8192'); L(f's_add_u32 s{sP}, s{sP}, s{sT1}')
    assert WS_P == 0
    L(f's_lshl_b32 s{sT1}, s{sS}, 1'); L(f's_add_u32 s{sHd}, s{sHd}, s{sT1}')
    L(f's_lshl_b32 s{sT1}, s{sM_}, 1'); L(f's_add_u32 s{sT1}, s{sT1}, s{sT0}')
    L(f's_lshr_b32 s{sT2}, s{sT1}, 2'); L(f's_mul_i32 s{sKX}, s{sT2}, {KVG}'); L(f's_add_u32 s{sKX}, s{sKX}, {WS_KV}')
    L(f's_and_b32 s{sT2}, s{sT1}, 3'); L(f's_mul_i32 s{sKV}, s{sT2}, {2 * KVB}'); L(f's_add_u32 s{sKV}, s{sKV}, s{sKX}')
    L(f's_add_u32 s{sKV}, s{sKV}, 1024')
    L(f's_and_b32 s{sT2}, s{sM_}, 1'); L(f's_lshl_b32 s{sT2}, s{sT2}, 9'); L(f's_add_u32 s{sKX}, s{sKX}, s{sT2}')
    L(f's_lshl_b32 s{sT2}, s{sT0}, 3'); L(f's_add_u32 s{sKX}, s{sKX}, s{sT2}')
    L(f's_lshl_b32 s{sT2}, s{sHd}, 5'); L(f's_add_u32 s{sT1}, s{sT1}, s{sT2}')
    L(f's_lshl_b32 s{sQm}, s{sT1}, 11'); L(f's_add_u32 s{sQm}, s{sQm}, {WS_QM}')
    L(f's_lshl_b32 s{sQx}, s{sT1}, 8'); L(f's_add_u32 s{sQx}, s{sQx}, {WS_QX}')
    L(f's_mov_b32 s{sQs}, {f2u(QSCALE)}')
    L(f'v_lshlrev_b32 v{B}, 2, v0'); L(f'v_add_u32 v{B}, s{sW}, v{B}')
    L(f'v_mul_u32_u24 v{B+1}, 7282, v{B}'); L(f'v_lshrrev_b32 v{B+1}, 16, v{B+1}')
    L(f'v_mul_u32_u24 v{B+2}, 9, v{B+1}'); L(f'v_sub_u32 v{B+2}, v{B}, v{B+2}')
    L(f'v_cmp_gt_u32 vcc, {9 * ND}, v{B}'); L(f'v_subrev_u32 v{B+3}, {7 * ND}, v{B}')
    L(f'v_lshrrev_b32 v{B+4}, 1, v{B+3}'); L(f'v_and_or_b32 v{B+3}, v{B+3}, 1, 6')
    L(f'v_cndmask_b32 v{B+1}, v{B+1}, v{B+4}, vcc'); L(f'v_cndmask_b32 v{B+2}, v{B+2}, v{B+3}, vcc')
    L(f'v_mul_u32_u24 v{B+4}, 9363, v{B}'); L(f'v_lshrrev_b32 v{B+4}, 16, v{B+4}')
    L(f'v_mul_u32_u24 v{B+3}, 7, v{B+4}'); L(f'v_sub_u32 v{B+3}, v{B}, v{B+3}')
    L(f'v_cmp_eq_u32 vcc, 6, v{B+3}'); L('s_nop 1'); L(f'v_cndmask_b32_e64 v{B+3}, v{B+3}, 8, vcc')
    L(f'v_cmp_gt_u32 vcc, {7 * ND}, v{B}'); L('s_nop 1')
    L(f'v_cndmask_b32 v{B+1}, v{B+1}, v{B+4}, vcc'); L(f'v_cndmask_b32 v{B}, v{B+2}, v{B+3}, vcc')
    L(f's_and_b32 s{sT2}, s{sS}, 1'); L(f'v_add_u32 v{B}, s{sT2}, v{B}')
    L(f'v_cmp_eq_u32 vcc, 9, v{B}'); L(f's_mul_i32 s{sT2}, s{sS}, 331776'); L(f'v_lshlrev_b32 v{B+1}, 7, v{B+1}')
    L(f'v_cndmask_b32_e64 v{B}, v{B}, 0, vcc')
    L(f'v_mul_u32_u24 v{B}, 36864, v{B}'); L(f'v_add3_u32 v{vDo}, v{B}, v{B+1}, s{sT2}')
    rw, gg, ch, z = B, B + 1, B + 2, B + 3
    L(f'v_lshrrev_b32 v{rw}, 3, v0'); L(f'v_and_b32 v{gg}, 4, v{rw}'); L(f'v_add_u32 v{rw}, v{rw}, v{gg}'); L(f'v_bfe_u32 v{gg}, v{vOffD}, 4, 3')
    L(f'v_mov_b32 v{vSt1}, 9216')
    L(f'v_cmp_gt_u32 vcc, 4, v{gg}')
    L(f'v_mov_b32 v{B+4}, s{P_WU}'); L(f'v_mov_b32 v{B+5}, s{P_WG}'); L(f'v_cndmask_b32 v{vB1}, v{B+4}, v{B+5}, vcc')
    L(f'v_mov_b32 v{B+4}, s{P_WU+1}'); L(f'v_mov_b32 v{B+5}, s{P_WG+1}'); L(f'v_cndmask_b32 v{vB1+1}, v{B+4}, v{B+5}, vcc')
    L(f'v_and_b32 v{ch}, 3, v{gg}'); L(f'v_lshlrev_b32 v{B+4}, 4, v{ch}'); L(f'v_add_u32 v{B+5}, s{sFs}, v{B+4}')
    L(f'v_mad_u32_u24 v{B+5}, v{rw}, v{vSt1}, v{B+5}')
    L(f'v_add_co_u32 v{vB1}, vcc, v{vB1}, v{B+5}')
    L(f'v_lshrrev_b32 v{z}, 2, v{gg}'); L(f's_lshl_b32 s{sT0}, s{sS}, 1')
    L(f'v_addc_co_u32 v{vB1+1}, vcc, 0, v{vB1+1}, vcc')
    L(f'v_add_u32 v{z}, s{sT0}, v{z}')
    L(f'v_min_u32 v{B+4}, 20, v{B+4}'); L(f'v_mad_u32_u24 v{B+4}, v{z}, 36, v{B+4}')
    L(f'v_cmp_gt_u32 vcc, 3, v{z}'); L(f'v_subrev_u32 v{B+5}, 3, v{z}')
    L(f'v_mov_b32 v{B+6}, s{P_WV}'); L(f'v_mov_b32 v{B+7}, s{P_WK}')
    L(f'v_cndmask_b32 v{B+5}, v{B+5}, v{z}, vcc'); L(f'v_cndmask_b32 v{vB2}, v{B+6}, v{B+7}, vcc')
    L(f'v_mov_b32 v{B+6}, s{P_WV+1}'); L(f'v_mov_b32 v{B+7}, s{P_WK+1}'); L(f'v_cndmask_b32 v{vB2+1}, v{B+6}, v{B+7}, vcc')
    L(f'v_lshlrev_b32 v{B+5}, 4, v{B+5}'); L(f'v_min_u32 v{B+5}, 20, v{B+5}')
    L(f'v_cmp_eq_u32 vcc, 6, v{z}'); L(f'v_mov_b32 v{B+6}, s{P_GW}'); L(f'v_mov_b32 v{B+7}, s{P_GW+1}')
    L(f'v_cndmask_b32 v{vB2}, v{vB2}, v{B+6}, vcc'); L(f'v_cndmask_b32 v{vB2+1}, v{vB2+1}, v{B+7}, vcc')
    L(f'v_cndmask_b32_e64 v{B+5}, v{B+5}, 0, vcc'); L(f'v_cndmask_b32_e64 v{B+9}, 36, 2, vcc')
    L(f'v_sub_u32 v{B+6}, 3, v{ch}'); L(f'v_lshl_add_u32 v{B+6}, v{B+6}, 6, v{z}')
    L(f'v_cmp_gt_u32 vcc, 7, v{B+6}')
    L(f'v_mov_b32 v{B+6}, s{P_WQ}'); L(f'v_mov_b32 v{B+7}, s{P_WQ+1}'); L(f'v_mov_b32 v{B+8}, 1152')
    L(f'v_cndmask_b32 v{vB2}, v{B+6}, v{vB2}, vcc'); L(f'v_cndmask_b32 v{vB2+1}, v{B+7}, v{vB2+1}, vcc')
    L(f'v_cndmask_b32 v{B+4}, v{B+4}, v{B+5}, vcc'); L(f'v_cndmask_b32 v{vSt2}, v{B+8}, v{B+9}, vcc')
    L(f'v_mad_u32_u24 v{B+4}, v{rw}, v{vSt2}, v{B+4}')
    L(f'v_add_co_u32 v{vB2}, vcc, v{vB2}, v{B+4}')
    L(f'v_cndmask_b32 v{vSel}, v{vB1}, v{vB2}, s[{sHF}:{sHF+1}]'); L(f'v_cndmask_b32 v{vSel+2}, v{vSt1}, v{vSt2}, s[{sHF}:{sHF+1}]')
    L(f'v_addc_co_u32 v{vB2+1}, vcc, 0, v{vB2+1}, vcc')
    L(f'v_cndmask_b32 v{vSel+1}, v{vB1+1}, v{vB2+1}, s[{sHF}:{sHF+1}]')
    L(f's_mov_b32 s{sDl}, {16 * 9216 - 1024}'); L(f's_mov_b32 s{sDl+1}, 0')
    for o_, st_ in ((0, vSt2), (2, vSel + 2)):
        L(f'v_lshlrev_b32 v{vDl+o_}, 4, v{st_}'); L(f'v_subrev_u32 v{vDl+o_}, 1024, v{vDl+o_}'); L(f'v_ashrrev_i32 v{vDl+o_+1}, 31, v{vDl+o_}')
    if PF:
        mpd = cfg.get('pfm', mper); npair = 4 * mpd
        L(f's_and_b32 s{sT1}, s{sM_}, {mpd - 1}'); L(f's_lshl_b32 s{sT1}, s{sT1}, 2'); L(f's_add_u32 s{sT1}, s{sT1}, s{sW}')
        L(f's_mul_i32 s{sT2}, s{sT1}, {331776 // npair}'); L(f's_mul_i32 s{sT0}, s{sS}, 331776'); L(f's_add_u32 s{sT2}, s{sT2}, s{sT0}')
        DL = cfg.get('pfdl', 21)
        L(f'v_min_u32 v{vPD}, {DL - 1}, v0'); L(f'v_lshlrev_b32 v{vPD}, 7, v{vPD}'); L(f'v_add_u32 v{vPD}, s{sT2}, v{vPD}')
    WT = cfg.get('wt', {})
    if WT:
        L(f's_lshl_b32 s{sT1}, s{sM_}, 1'); L(f's_and_b32 s{sT2}, s{sW}, 1'); L(f's_add_u32 s{sT1}, s{sT1}, s{sT2}'); L(f's_mul_i32 s{sT1}, s{sT1}, 18')
        L(f'v_min_u32 v{B}, 17, v0'); L(f'v_add_u32 v{B}, s{sT1}, v{B}'); L(f'v_mul_u32_u24 v{vPW}, 9216, v{B}')
        L(f's_lshl_b32 s{sT1}, s2, 2'); L(f's_add_u32 s{sT1}, s{sT1}, s{sW}'); L(f's_mul_i32 s{sT1}, s{sT1}, 648')
        L(f'v_min_u32 v{B}, 5, v0'); L(f'v_lshlrev_b32 v{B}, 7, v{B}'); L(f'v_add_u32 v{vPQ}, s{sT1}, v{B}')
    def wt_ins(k):
        if k == 'q': return [f'global_load_dword v{vDum}, v{vPQ}, s[{P_WQ}:{P_WQ+1}]']
        base_, col = (sFs, 0) if k == kS else (sFp, 128 * rho[k])
        return [f's_add_u32 s{sTc}, s{base_}, {col}', wtouch(f's{sTc}')[0]]
    if not LATE:
        for t in late: e(t)
    for k, g_ in WT.items():
        if g_ < 0:
            for t in wt_ins(k):
                i_ = e(t)
                if 'load' in t: i_.dst = set()
    e(f's_mul_i32 s{sT0}, s2, 3'); e(f's_add_u32 s{sT0}, s{sT0}, s{sW}')
    e(f's_mul_hi_u32 s{sT1}, s{sT0}, {(2**32 + 17) // 18}')
    e(f's_mul_i32 s{sT2}, s{sT1}, 18'); e(f's_sub_u32 s{sT2}, s{sT0}, s{sT2}')
    e(f's_lshl_b32 s{sWoD}, s{sT0}, 10'); e(f's_add_u32 s{sWoD}, s{sWoD}, {WS_WO}')
    e(f's_lshr_b32 s{sso2}, s{sT1}, 1'); e(f's_lshl_b32 s{sso2}, s{sso2}, 6')
    e(f's_and_b32 s{sT1}, s{sT1}, 1'); e(f's_lshl_b32 s{sT1}, s{sT1}, 4'); e(f's_add_u32 s{sso2}, s{sso2}, s{sT1}')
    e(f'v_bfe_u32 v{A}, v0, 3, 1'); e(f'v_and_b32 v{A+2}, 7, v0'); e(f'v_lshlrev_b32 v{A+2}, 1, v{A+2}')
    e(f'v_lshl_add_u32 v{A}, v{A}, 5, v{A+2}'); e(f'v_add_u32 v{A}, s{sso2}, v{A}')
    e(f'v_bfe_u32 v{A+2}, v0, 4, 1'); e(f'v_mul_u32_u24 v{A+2}, 18, v{A+2}')
    e(f'v_lshrrev_b32 v{A+1}, 5, v0'); e(f'v_lshl_add_u32 v{A+2}, v{A+1}, 2, v{A+2}')
    e(f'v_lshrrev_b32 v{A+4}, 4, v0'); e(f'v_mul_u32_u24 v{A+4}, 72, v{A+4}')
    e(f's_cmp_ge_u32 s{sT2}, 9'); e(f's_cselect_b32 s{sso2}, 1, 0')
    e(f's_sub_u32 s{sT1}, s{sT2}, s{sso2}'); e(f's_mul_i32 s{sT1}, s{sT1}, 36')
    e(f's_mul_i32 s{sWoJ}, s{sso2}, 9'); e(f's_sub_u32 s{sT2}, s{sT2}, s{sWoJ}')
    e(f's_mul_i32 s{sso2}, s{sso2}, 288'); e(f's_add_u32 s{sso2}, s{sso2}, 16')
    e(f's_cmp_eq_u32 s{sT2}, 8'); e(f's_cselect_b64 vcc, -1, 0'); e(f's_cselect_b32 s{sT1}, s{sso2}, s{sT1}')
    for j in range(8): e(f's_cselect_b32 s{sWoJ+j}, {18 * (j >> 1) + (j & 1)}, {8 * (j >> 2) + (j & 3)}')
    for j in range(8): e(f's_mul_i32 s{sWoJ+j}, s{sWoJ+j}, 1152')
    e(f'v_cndmask_b32 v{A+2}, v{A+2}, v{A+4}, vcc'); e(f'v_add_u32 v{A+2}, s{sT1}, v{A+2}')
    e(f'v_mul_u32_u24 v{A+2}, 1152, v{A+2}'); e(f'v_add_u32 v{vWo}, v{A}, v{A+2}')
    e(f's_cmp_lt_u32 s{sW}, 3'); e(f's_cselect_b32 s{sT1}, 648, 0'); e(f's_cmp_lt_u32 s{sT0}, s{sT1}')
    e(f's_cselect_b32 s{sT1}, 0, {OOB}')
    e(f'v_add_u32 v{vWo}, s{sT1}, v{vWo}'); e(f'v_add_u32 v{vWo+1}, s{sT1}, v{vL16}')

    wol = [f'buffer_load_ushort v{vWo+2+j}, v{vWo}, s[{SRD_WO}:{SRD_WO+3}], s{sWoJ+j} offen' for j in range(8)]
    DEF = cfg.get('defer', 0); dlist = []
    if not DEF:
        for t in wol: e(t)
    if cfg.get('fake'): e(f'v_mov_b32 v{vTa}, s{sK32}'); e(f'v_mov_b32 v{vDo}, 0')
    if cfg.get('setup_extra'):
        if DEF:
            class R2_:
                def e(self, t, tag=None): dlist.append((t, tag))
            cfg['setup_extra'](R2_())
        else: cfg['setup_extra'](p)
    e = e0
    if cfg.get('pstamp'): pf.stamp(87)
    if cfg.get('hop'):
        e('s_mov_b64 exec, 0')
        for w_ in range(3): e(f's_cmp_eq_u32 s{sW}, {w_}'); e(f's_cbranch_scc1 PAD{w_}')
        e('s_branch PAD3')
        p.label('HOPBACK'); e('s_mov_b64 exec, -1'); e('s_branch MAIN'); p.raw('.p2align 12'); p.label('MAIN')
    if cfg.get('pstamp'): pf.stamp(88)
    if cfg.get('wait2'): p.wait(vmtags=[[('X', 0), ('X', 1), ('W', 0)][cfg['wait2'] - 1]])
    for t2, tag in pro: e0(t2, tag=tag)
    S = Sched(NQ, 2)
    S.temps = list(range(GT, GT + NGT))
    S.nolds = lambda g: 11 <= g % 32 <= 15 and g // 32 + 1 in BAR
    qb = lambda b: 32 * (b - 1) + 15
    WSr = f's[{SRD_WS}:{SRD_WS+3}]'
    NF = NQ // 4
    def kinfo(K):
        if K < 180:
            ps, kk = divmod(4 * cu(K // 4) + K % 4, 18); return (UU if ps & 1 else (G0, G1)[(ps // 2) % 2]), kk, ps
        j, kk = seqB[K - 180]; return accB[j], kk, 100 + j
    CH = cfg.get('chain', 4); SEQ = []; FM = {}
    for U in range(NU):
        Ks = [K for K in range(4 * U, 4 * U + 4) if K < 261]
        gs_ = [kinfo(K)[2] for K in Ks]
        if CH >= 4 and cu(U) >= 5 and len(Ks) == 4 and (len(set(gs_)) == 1 or (CH >= 5 and max(map(gs_.count, gs_)) == 3)):
            FM[U] = [(i % 4, i // 4) for i in range(8)]
            SEQ += [(4 * ft + k, Ks[k], ft, rt) for ft in range(2) for rt in range(4) for k in range(4)]
            continue
        FM[U] = [(i // 2, i % 2) for i in range(8)]
        for hh in range(0, len(Ks), 2):
            pr = Ks[hh:hh + 2]
            if CH >= 2 and len(pr) == 2 and kinfo(pr[0])[2] == kinfo(pr[1])[2]:
                SEQ += [(2 * (hh + k) + ft, pr[k], ft, rt) for ft in range(2) for rt in range(4) for k in range(2)]
            else:
                SEQ += [(2 * (hh + k) + ft, pr[k], ft, (3 - rt if ft else rt)) for k in range(len(pr)) for ft in range(2) for rt in range(4)]
    assert len(SEQ) == NQ
    firstq = lambda K: min(q for q in range(8 * K - 32 if K > 4 else 0, min(NQ, 8 * K + 32)) if SEQ[q][1] == K)
    lastq = lambda K: max(q for q in range(8 * K - 32 if K > 4 else 0, min(NQ, 8 * K + 32)) if SEQ[q][1] == K)
    def tread(n, h):
        U, i = divmod(n, 8); pl = place[('W', U)]; k, ft = FM[U][i]
        a = AB + 4 * i + 2 * h
        return f'ds_read_b64_tr_b16 v[{a}:{a+1}], v{vRd + 3 * ft + pl // 4} offset:{(pl % 4) * 16384 + k * 4096 + 2048 * h}'
    TP = cfg.get('tpos', [16, 17, 18, 20, 21, 23, 24, 26, 28, 29, 30, 32, 34, 36, 38, 40])
    def barrier(b):
        st_ = (b % cfg.get('stampevery', 1) == 0)
        if st_: pf.start()
        p.wait(vmtags=[(k, i) for k, i, need in items if need == b] + sum([v_ for k_, v_ in cfg.get('bar_tags', {}).items() if up(k_) == b], []), lg0=True)
        e('s_barrier')
        if st_: pf.save(b // cfg.get('stampevery', 1))
    WC = cfg.get('wcost', 0)
    def vstamp(b):
        if b % cfg.get('stampevery', 1) == 0: pf.stamp(b // cfg.get('stampevery', 1))
    for b in range(1, NU):
        if b in BAR: S.fix(qb(b), (lambda b=b: barrier(b)), cost=99)
        else: S.fix(qb(b), (lambda b=b: (p.wait_lg({('T', b - 1, 1)}), vstamp(b))), cost=WC)
        for i in range(16):
            n = 8 * b + i // 2
            if n < NF:
                assert TP[i] >= max(g for g in range(32) if SEQ[32 * (b - 1) + g][0] == i // 2)
                S.fix(32 * (b - 1) + TP[i], tread(n, i & 1), tag=('T', b, i // 8))
        S.fix(32 * b - 1, (lambda b=b: p.wait_lg({('T', b, 0)})), cost=WC)
    dq = []
    LPS = cfg.get('lps', 4); MINL = cfg.get('minlead', 3); dcost = cfg.get('dcost', 2)
    for b in range(0, NU + 1):
        for kind, idx, need in issue_at.get(b, []): dq += [(t, tag, need - (min(up(need + 1), NU) - 1 - idx if kind == 'W' else 0)) for t, tag in dma_instrs(kind, idx)]
        dq += [(t, tag, cfg.get('kv_need', 66)) for t, tag in cfg.get('extra_units', {}).get(b, [])]
        if cfg.get('nodma') or not dq: dq = []; continue
        must = max([i + 1 for i, (t, tag, need) in enumerate(dq) if need <= b + (MINL if b >= cfg.get('b0', 0) else cfg.get('minl0', 2))] + [0])
        lim_ = max([i + 1 for i, (t, tag, need) in enumerate(dq) if need <= b + MINL] + [0])
        l0_ = min(cfg.get('lps0', 6), max(LPS, sum(1 for x in dq[:lim_] if x[1])))
        nl = max(min((LPS if b >= cfg.get('b0', 0) else l0_) if b < 44 else cfg.get('lpsb', 5), sum(1 for x in dq if x[1])), sum(1 for x in dq[:must] if x[1]))
        lo, hi = (32, 46) if b == 0 else (16, 46)
        cand = [g for g in range(lo + 4 if nl <= 8 and b else lo + 1, hi) if g != 31 and (nl > 8 or (g in TP) == (dcost == 1))]
        if cfg.get('dcand') and b and nl <= len(cfg['dcand']): cand = cfg['dcand']
        prev = lo
        for i in range(nl):
            tg = cand[(i * len(cand)) // nl]
            k = next(j for j, x in enumerate(dq) if x[1])
            for j in range(k):
                prev = max(prev, tg - 3 - (k - 1 - j)); c_ = 1
                if dq[j][0].startswith('s_') and not WC:
                    fr_ = [g for g in range(prev, tg) if not S.fixed[32 * (b - 1) + g]]
                    if fr_: prev = fr_[0]; c_ = 0
                S.fix(32 * (b - 1) + prev, dq[j][0], cost=c_)
            prev = max(prev, tg); S.fix(32 * (b - 1) + prev, dq[k][0], tag=dq[k][1], cost=dcost)
            dq = dq[k + 1:]
    assert not dq
    def xreads(cx):
        pl = place[('X', cx)]
        return [f'ds_read_b128 {xf(2 * cx + kk, rt)}, v{XA + 2 * (pl // 4) + kk} offset:{(pl % 4) * 16384 + 2048 * rt}' for rt in range(4) for kk in range(2)]
    lc = S.chain([t for t in late if not t.startswith('s_nop')], LATE, 32 * LX - 18 if DEF else 128) if LATE else []
    if DEF:
        wl_ = [S.add(Op(t, start=DEF + 3 * j, end=DEF + 3 * j + 8)) for j, t in enumerate(wol)]
        for o_, (t, tag) in zip(S.chain([t for t, tag in dlist], DEF + 24, max(146, DEF + 110), deps=wl_ + lc[-1:]), dlist): o_.tag = tag
    XP = cfg.get('xpos', [19, 19, 22, 22, 25, 25, 27, 27, 33, 33, 35, 35, 37, 37, 39, 39])
    for b in range(1, LX + 1):
        xs = sum([xreads(i) for k_, i, need in items if k_ == 'X' and need == b], [])
        for n_, t in enumerate(xs): S.fix(32 * (b - 1) + XP[n_], t, tag=('T', b, n_ // 8))
    if PF:
        lead = cfg.get('pflead', 420)
        def touch(t, g, w_=30):
            def f(): p.e(t).dst = set()
            o_ = S.add(Op(f, 2, start=g, end=g + w_)); o_.call = True
        for k, g_ in WT.items():
            if g_ >= 0:
                w_ = wt_ins(k)
                if len(w_) > 1: S.add(Op(w_[0], start=g_ - 6, end=g_))
                touch(w_[-1], g_, 14)
        if PF & 4:
            nl = -(-2592 // npair); nb_ = -(-nl // DL); g0 = cfg.get('pfd0', 700); dg = cfg.get('pfdg', 100)
            for i in range(nb_):
                if i: S.add(Op(f'v_add_u32 v{vPD}, {128 * DL}, v{vPD}', start=g0 + dg * i - 9, end=g0 + dg * i))
                touch(f'buffer_load_dword v{vDum}, v{vPD}, s[{SRD_WD}:{SRD_WD+3}], 0 offen', g0 + dg * i)
    S.chain([f'v_lshl_or_b32 v{vWo+2+j}, v{vWo+2*j+3}, 16, v{vWo+2*j+2}' for j in range(4)] +
            [f'buffer_store_dwordx4 v[{vWo+2}:{vWo+5}], v{vWo+1}, {WSr}, s{sWoD} offen {stf}'], *((max(288 * kS + 150, DEF + 130), max(288 * kS + 170, DEF + 220)) if DEF else (130, 146)))[-1].tag = 'QKV'
    def gelu_h(g, u, n, s1, e1, s2, e2, wr, sw, deps=()):
        last = []
        for i in range(n):
            t = []
            d1 = e1 - (n - 1 - i) * (e1 - s1 - 24) // n
            a = S.add(Op(lambda i=i, t=t: f'v_mul_f32 v{t[0]}, v{g+i}, v{g+i}', 1, deps, s1, e1 - 12, res=t, prio=d1 - 12))
            a = S.add(Op(lambda t=t: f'v_fmaak_f32 v{t[0]}, v{t[0]}, v{vC1}, {f2u(GC0)}', 1, [a], s1, e1 - 10, prio=d1 - 12))
            a = S.add(Op(lambda i=i, t=t: f'v_mul_f32 v{t[0]}, v{t[0]}, v{g+i}', 1, [a], s1, e1 - 8, prio=d1 - 12))
            a = S.add(Op(lambda t=t: f'v_exp_f32 v{t[0]}, v{t[0]}', 2, [a], s1, e1 - 6, prio=d1 - 12))
            a = S.add(Op(lambda t=t: f'v_add_f32 v{t[0]}, 1.0, v{t[0]}', 1, [a], s1, e1 - 4, prio=d1 - 12))
            a = S.add(Op(lambda t=t: f'v_rcp_f32 v{t[0]}, v{t[0]}', 2, [a], s1, e1 - 2, prio=d1 - 12))
            a = S.add(Op(lambda i=i, t=t: f'v_mul_f32 v{g+i}, v{t[0]}, v{g+i}', 1, [a], s1, e1, rel=t, prio=d1 - 12))
            a = S.add(Op(f'v_mul_f32 v{g+i}, v{g+i}, v{u+i}', 1, [a], s2, e2 - 8, prio=d1))
            last.append(a)
        wrs = []
        for gi in range(n // 8):
            prev = []
            for c in range(4):
                o = S.add(Op(f'v_cvt_pk_bf16_f32 v{g+8*gi+c}, v{g+8*gi+2*c}, v{g+8*gi+2*c+1}', 1, last[8*gi+2*c:8*gi+2*c+2], s2, e2 - 4, same=prev, prio=0))
                prev = [o]
            HW = cfg.get('hw', 128); t_ = wr(gi)
            if HW == 'x':
                for x, mv in enumerate((f's_mov_b64 exec, s[{sHF}:{sHF+1}]', f's_not_b64 exec, s[{sHF}:{sHF+1}]')):
                    def f_(mv=mv, t_=t_): p.e(mv); p.e(t_); p.e('s_mov_b64 exec, -1')
                    o_ = S.add(Op(f_, 2, prev, sw + cfg.get('hwsp', 12) * gi, e2 - 4 * (1 - x), lds=True, prio=0)); o_.call = True
                    if x: o_.after = (prev[0], 3)
                    prev = [o_]
            elif HW == 128:
                o_ = S.add(Op(t_, 2, prev, sw + cfg.get('hwsp', 12) * gi, e2, lds=True, prio=0)); o_.okg = cfg.get('hwg')
            else:
                m_ = re.match(r'ds_write_b128 (v\d+), v\[(\d+):\d+\] offset:(\d+)', t_); r0_, of_ = int(m_.group(2)), int(m_.group(3)); n_ = 128 // HW; w_ = HW // 32
                for x in range(n_):
                    rg = f'v[{r0_+w_*x}:{r0_+w_*x+1}]' if w_ == 2 else f'v{r0_+x}'
                    prev = [S.add(Op(f'ds_write_b{HW} {m_.group(1)}, {rg} offset:{of_ + 4 * w_ * x}', 2, prev, sw + cfg.get('hwsp', 12) * gi, e2 - (n_ - 1 - x), lds=True, prio=0))]
        return wrs
    for k in rho:
        g = (G0, G1)[k % 2]; q0 = 288 * k
        e2_ = q0 + 288 + 139 if k < 4 else qb(bH) - 4
        gelu_h(g, UU, 32, q0 + 147 if k else 32 * LX + 19, e2_ - 13, q0 + 291, e2_,
               lambda i, g=g, k=k: f'ds_write_b128 v{vHw}, v[{g+8*i}:{g+8*i+3}] offset:{16384 * rho[k] + 1024 * i}', qb(9 * (k + 1) + HWD) + 1)
    GS = (G0, G1)[kS % 2]; qS = 288 * kS; bS = 9 * kS
    def xch(write):
        Lb = 'F_xw' if write else 'F_xr'
        def arm(base, em):
            for q in range(4):
                r = f'v[{base+4*q}:{base+4*q+3}]'
                em(f'ds_write_b128 v{vXw}, {r} offset:{1024*q}' if write else f'ds_read_b128 {r}, v{vXr} offset:{1024*q}')
        e(f's_cmp_ge_u32 s{sW}, 2'); e(f's_cbranch_scc1 {Lb}1')
        arm(GS + 16, p.raw); e(f's_branch {Lb}2'); p.label(f'{Lb}1')
        def em(t):
            i = e(t)
            if not write: i.dst = i.dst | {('v', r[1] + 16) for r in i.dst}
        arm(GS, em); p.label(f'{Lb}2')
    S.fix(qS + 149, lambda: xch(True), cost=7)
    x1 = up(bS + 6)
    S.fix(qb(x1) + 4, lambda: xch(False), cost=7)
    gelu_h(GS, GS + 16, 16, qb(x1) + 10, qS + 288 + 120, qb(x1) + 10, qS + 288 + 139,
           lambda i: f'ds_write_b128 v{vHs}, v[{GS+8*i}:{GS+8*i+3}] offset:{1024 * i}', qb(up(x1 + 1)) + 1)
    for n_, t in enumerate((0, 1, 2, 3, 4, 5, 8)):
        for rt in range(4):
            ad = f'v{vH} offset:{8192 * t + 1024 * rt}' if t < 8 else f'v{vH2} offset:{1024 * rt}'
            S.add(Op(f'ds_read_b128 {xf(t, rt)}, {ad}', start=max(lastq(162 + t), qb(up(41)) + 1), end=min(firstq(180 + n_) - 8, qb(46) - 4), lds=True))
    for t in (6, 7):
        for rt in range(4): S.add(Op(f'ds_read_b128 {xf(t, rt)}, v{vH} offset:{8192 * t + 1024 * rt}', start=qb(bH) + 1, end=qb(bH) + 8 + 6 * (t - 6), lds=True))
    qa, qx, tq = vAd, vAd + 1, vAd + 2
    q = [f'v_and_b32 v{tq}, 31, v0', f'v_lshrrev_b32 v{tq+1}, 5, v0', f'v_lshlrev_b32 v{qa}, 4, v{tq+1}', f'v_lshl_add_u32 v{qa}, v{tq}, 5, v{qa}',
         f'v_lshlrev_b32 v{qx}, 2, v0']
    EX = vAd + 4
    for rt in range(4):
        u = UU + 8 * rt; d = UU + 16 * (rt >> 1) + 2 * (rt & 1)
        q += [f'v_mul_f32 v{u+i}, s{sQs}, v{u+i}' for i in range(4)]
        q += [f'v_mul_f32 v{tq}, s{sQs}, v{u+6}', f'v_mul_f32 v{tq+1}, s{sQs}, v{u+7}',
              f'v_cvt_pk_bf16_f32 v{d}, v{u}, v{u+1}', f'v_cvt_pk_bf16_f32 v{d+1}, v{u+2}, v{u+3}', f'v_cvt_pk_bf16_f32 v{EX+rt}, v{tq}, v{tq+1}']
    sw16 = lambda a, b: f'v_permlane16_swap_b32 v{a}, v{b}'
    sw32 = lambda a, b: f'v_permlane32_swap_b32 v{a}, v{b}'
    q += [sw16(UU, UU + 2), sw16(UU + 1, UU + 3), sw16(EX, EX + 1), sw16(UU + 16, UU + 18), sw16(UU + 17, UU + 19), sw16(EX + 2, EX + 3),
          f'buffer_store_dwordx4 v[{UU}:{UU+3}], v{qa}, {WSr}, s{sQm} offen {stf}',
          f'buffer_store_dwordx4 v[{UU+16}:{UU+19}], v{qa}, {WSr}, s{sQm} offen offset:1024 {stf}', sw32(EX + 1, EX + 3),
          f'buffer_store_dword v{EX+1}, v{qx}, {WSr}, s{sQx} offen {stf}']
    qc = S.chain(q, qS + 292, qS + 288 + cfg.get('qkv_end', 100))
    A_, W = UU + 4, UU + 20
    ka, kb, kc, kt = 204, 205, 206, 207
    L = 'F_kv'; ost = lambda t: p.e(t, optional=True, tag='QKV')
    def kv_gate():
        e(f's_cmp_eq_u32 s{sHd}, 6'); e(f's_cbranch_scc1 {L}_g'); p.label(f'{L}_g2')
    def kv_block():
        e(f's_cmp_ge_u32 s{sHd}, 6'); e(f's_cbranch_scc1 {L}_end')
        e(f's_cmp_ge_u32 s{sHd}, 3'); e(f's_cbranch_scc1 {L}_v')
        e(f's_cmp_eq_u32 s{sHd}, 2'); e(f's_cbranch_scc1 {L}_kx')
        e(f's_lshl_b32 s{sT0}, s{sHd}, 9'); e(f's_add_u32 s{sT0}, s{sT0}, s{sKV}')
        ost(f'buffer_store_dwordx4 v[{W}:{W+3}], v{ka}, {WSr}, s{sT0} offen {stf}')
        e(f's_branch {L}_end')
        p.label(f'{L}_kx')
        e(f'v_and_b32 v{ka}, 0x1f0, v{vL16}'); e(f'v_lshrrev_b32 v{kb}, 5, v0'); e(f'v_lshl_add_u32 v{ka}, v{kb}, 2, v{ka}')
        ost(f'buffer_store_dword v{W+3}, v{ka}, {WSr}, s{sKX} offen {stf}')
        e(f's_branch {L}_end')
        r = p.raw
        p.label(f'{L}_g')
        r(sw16(UU + 12, UU + 4)); r(sw16(UU + 28, UU + 20)); r(f'v_xor_b32 v{kt+1}, 64, v{qx}')
        r(f's_add_u32 s{sT0}, s{sQx}, {WS_G - WS_QX - 6 * 8192}'); r(sw32(UU + 12, UU + 28))
        r(f'buffer_store_dword v{UU+28}, v{kt+1}, {WSr}, s{sT0} offen {stf}'); r(f's_branch {L}_g2')
        p.label(f'{L}_r')
        r('s_waitcnt lgkmcnt(0)')
        r(f'ds_read_b64_tr_b16 v[{A_}:{A_+1}], v{kc}'); r(f'ds_read_b64_tr_b16 v[{A_+2}:{A_+3}], v{kc} offset:128'); r(f's_branch {L}_r2')
        p.label(f'{L}_s')
        r(f's_sub_u32 s{sT0}, s{sHd}, 3'); r(f's_lshl_b32 s{sT0}, s{sT0}, 7'); r(f's_min_u32 s{sT0}, s{sT0}, 160'); r(f's_add_u32 s{sT0}, s{sT0}, s{sKV}')
        r('s_waitcnt lgkmcnt(0)')
        r(f's_cmp_lg_u32 s{sHd}, 5'); r(f's_cbranch_scc1 {L}_vs')
        r(f'v_and_b32 v{ka}, 7, v0'); r(f'v_cmp_eq_u32 vcc, 5, v{ka}'); r(f'v_mov_b32 v{kb}, 0x3f803f80'); r(f'v_add_u32 v{kc}, 48, v{kt}')
        for i in range(4): r(f'v_cndmask_b32 v{A_+i}, v{A_+i}, v{kb}, vcc')
        r(f'v_cndmask_b32 v{kt}, v{kt}, v{kc}, vcc')
        r(f'v_cmp_gt_u32 vcc, 5, v{ka}'); r(f'v_mov_b32 v{kb}, {OOB}'); r('s_nop 0'); r(f'v_cndmask_b32 v{kt}, v{kt}, v{kb}, vcc')
        p.label(f'{L}_vs')
        r(f'buffer_store_dwordx4 v[{A_}:{A_+3}], v{kt}, {WSr}, s{sT0} offen offset:1024 {stf}'); r('s_nop 0'); r(f's_branch {L}_s2')
        p.label(f'{L}_v')
        r(f'ds_write_b128 v{kb}, v[{W}:{W+3}]')
        p.label(f'{L}_end')
    def kv_later(x):
        def f():
            e(f's_cmp_lt_u32 s{sVr}, 3'); e(f's_cbranch_scc1 {L}_{x}'); p.label(f'{L}_{x}2')
            if x == 's':
                i_ = Ins(f'buffer_store_dwordx4 v[{A_}:{A_+3}], v{kt}, {WSr}, s{sT0} offen', tag='QKV', optional=True); p.vm.append(i_)
        f.__name__ = 'kv_last' if x == 's' else 'kv_mid'
        return f
    def kv_last():
        L = 'F_kv'; o = lambda t: p.e(t, optional=True, tag='QKV')
        a, b2, c = tq, tq + 1, EX
        e(f's_cmp_ge_u32 s{sHd}, 7'); e(f's_cbranch_scc1 {L}_end')
        e(f's_cmp_lg_u32 s{sHd}, 6'); e(f's_cbranch_scc1 {L}_kv')
        e(sw16(UU + 12, UU + 4)); e(sw16(UU + 28, UU + 20)); e(f'v_xor_b32 v{a}, 64, v{qx}')
        e(f's_add_u32 s{sT0}, s{sQx}, {WS_G - WS_QX - 6 * 8192}'); e(sw32(UU + 12, UU + 28))
        o(f'buffer_store_dword v{UU+28}, v{a}, {WSr}, s{sT0} offen {stf}')
        e(f's_branch {L}_end')
        p.label(f'{L}_kv')
        for rt in range(4):
            u = UU + 8 * rt; d = UU + 4 + 16 * (rt >> 1) + 2 * (rt & 1)
            e(f'v_cvt_pk_bf16_f32 v{d}, v{u+4}, v{u+5}'); e(f'v_cvt_pk_bf16_f32 v{d+1}, v{u+6}, v{u+7}')
        e(f'v_lshrrev_b32 v{b2}, 5, v0')
        for x in (A_, W): e(sw16(x, x + 2)); e(sw16(x + 1, x + 3))
        e(f'v_and_b32 v{a}, 0x1f0, v{vL16}')
        for i in range(4): e(sw32(A_ + i, W + i))
        e(f's_cmp_ge_u32 s{sHd}, 3'); e(f's_cbranch_scc1 {L}_v')
        e(f's_cmp_eq_u32 s{sHd}, 2'); e(f's_cbranch_scc1 {L}_kx')
        e(f'v_mul_u32_u24 v{b2}, {KVB}, v{b2}'); e(f'v_add_u32 v{a}, v{a}, v{b2}')
        e(f's_lshl_b32 s{sT0}, s{sHd}, 9'); e(f's_add_u32 s{sT0}, s{sT0}, s{sKV}')
        o(f'buffer_store_dwordx4 v[{W}:{W+3}], v{a}, {WSr}, s{sT0} offen {stf}')
        e(f's_branch {L}_end')
        p.label(f'{L}_kx')
        e(f'v_lshl_add_u32 v{a}, v{b2}, 2, v{a}')
        o(f'buffer_store_dword v{W+3}, v{a}, {WSr}, s{sKX} offen {stf}')
        e(f's_branch {L}_end')
        p.label(f'{L}_v')
        e(f's_lshr_b32 s{sT0}, s{sMb}, 2'); e(f's_add_u32 s{sT0}, s{sT0}, 73728')
        e(f'v_add_u32 v{a}, s{sT0}, v{vL16}')
        p.raw(f'ds_write_b128 v{a}, v[{W}:{W+3}]')
        e(f'v_and_b32 v{a}, 48, v0'); e(f'v_lshlrev_b32 v{a}, 4, v{a}'); e(f'v_add_u32 v{a}, s{sT0}, v{a}')
        e(f'v_and_b32 v{c}, 12, v0'); e(f'v_lshl_add_u32 v{a}, v{c}, 2, v{a}')
        e(f'v_and_b32 v{c}, 2, v0'); e(f'v_lshl_add_u32 v{a}, v{c}, 5, v{a}')
        e(f'v_and_b32 v{c}, 1, v0'); e(f'v_lshl_add_u32 v{a}, v{c}, 3, v{a}')
        p.raw('s_waitcnt lgkmcnt(0)')
        p.raw(f'ds_read_b64_tr_b16 v[{A_}:{A_+1}], v{a}'); p.raw(f'ds_read_b64_tr_b16 v[{A_+2}:{A_+3}], v{a} offset:128')
        e(f'v_mul_u32_u24 v{b2}, {KVB}, v{b2}'); e(f'v_bfe_u32 v{c}, v0, 3, 2'); e(f'v_mul_u32_u24 v{c}, 304, v{c}')
        e(f'v_and_b32 v{a}, 0x70, v{vL16}'); e(f'v_add3_u32 v{b2}, v{b2}, v{c}, v{a}')
        e(f's_sub_u32 s{sT0}, s{sHd}, 3'); e(f's_lshl_b32 s{sT0}, s{sT0}, 7'); e(f's_min_u32 s{sT0}, s{sT0}, 160'); e(f's_add_u32 s{sT0}, s{sT0}, s{sKV}')
        p.raw('s_waitcnt lgkmcnt(0)')
        e(f's_cmp_lg_u32 s{sHd}, 5'); e(f's_cbranch_scc1 {L}_vs')
        e(f'v_cmp_eq_u32 vcc, 0x50, v{a}'); e(f'v_mov_b32 v{c}, 0x3f803f80'); e(f'v_add_u32 v{c+2}, 48, v{b2}')
        for i in range(4): e(f'v_cndmask_b32 v{A_+i}, v{A_+i}, v{c}, vcc')
        e(f'v_cndmask_b32 v{b2}, v{b2}, v{c+2}, vcc')
        e(f'v_cmp_gt_u32 vcc, 0x50, v{a}'); e(f'v_mov_b32 v{c}, {OOB}'); e('s_nop 0'); e(f'v_cndmask_b32 v{b2}, v{b2}, v{c}, vcc')
        p.label(f'{L}_vs')
        o(f'buffer_store_dwordx4 v[{A_}:{A_+3}], v{b2}, {WSr}, s{sT0} offen offset:1024 {stf}')
        p.label(f'{L}_end')
    ku = []
    for rt in range(4):
        u = UU + 8 * rt; d = UU + 4 + 16 * (rt >> 1) + 2 * (rt & 1)
        ku += [f'v_cvt_pk_bf16_f32 v{d}, v{u+4}, v{u+5}', f'v_cvt_pk_bf16_f32 v{d+1}, v{u+6}, v{u+7}']
    ku += [sw16(A_, A_ + 2), sw16(A_ + 1, A_ + 3), sw16(W, W + 2), sw16(W + 1, W + 3)] + [sw32(A_ + i, W + i) for i in range(4)]
    kad = [f's_sub_u32 s{sVr}, s{sHd}, 3', f'v_lshrrev_b32 v{kt}, 5, v0', f'v_mul_u32_u24 v{kt}, {KVB}, v{kt}', f'v_and_b32 v{ka}, 0x1f0, v{vL16}', f'v_add_u32 v{ka}, v{ka}, v{kt}',
           f'v_bfe_u32 v{kb}, v0, 3, 2', f'v_mul_u32_u24 v{kb}, 304, v{kb}', f'v_and_b32 v{kc}, 0x70, v{vL16}', f'v_add3_u32 v{kt}, v{kt}, v{kb}, v{kc}',
           f's_lshr_b32 s{sTc}, s{sMb}, 2', f's_add_u32 s{sTc}, s{sTc}, 73728',
           f'v_and_b32 v{kc}, 0x300, v{vL16}', f'v_add_u32 v{kc}, s{sTc}, v{kc}',
           f'v_and_b32 v{kb}, 12, v0', f'v_lshl_add_u32 v{kc}, v{kb}, 2, v{kc}', f'v_and_b32 v{kb}, 2, v0', f'v_lshl_add_u32 v{kc}, v{kb}, 5, v{kc}',
           f'v_and_b32 v{kb}, 1, v0', f'v_lshl_add_u32 v{kc}, v{kb}, 3, v{kc}', f'v_add_u32 v{kb}, s{sTc}, v{vL16}']
    for o_ in qc:
        if 'store' in o_.text: o_.tag = 'QKV'
    qe = qS + 288 + cfg.get('qkv_end', 100)
    if cfg.get('kvold', 1):
        kvop = S.add(Op(kv_last, 2, [qc[-1]], qS + 292, qe + 10)); kvop.call = True
    else:
        kac = S.chain(kad, qS + 230, qe)
        g_op = S.add(Op(kv_gate, 2, [qc[-1]], qS + 292, qe + 4, prio=0)); g_op.call = True
        kuc = S.chain(ku, qS + 292, qe + 22, deps=[g_op])
        for o_ in kuc: o_.prio = 0
        prev_ = [kuc[-1], kac[-1]]
        for n_, f_ in enumerate((kv_block, kv_later('r'), kv_later('s'))):
            o_ = S.add(Op(f_, 2, prev_, qS + 292, qe + 26 + 8 * n_, prio=0)); o_.call = True
            if n_: o_.after = (prev_[0], 7)
            prev_ = [o_]
    lastst = []; qs_ = 0; NST = cfg.get('nst', 5); deferred = []
    hold = [G1, XV, X3, XV + 16, X3 + 16, XV, X3, XV + 16, X3 + 16]; freed = {}
    for j in range(9):
        acc = accB[j]; q1 = 1 + max(lastq(180 + i) for i, (jj, c) in enumerate(seqB) if jj == j)
        nxt_ = sorted(firstq(180 + i) for i, (jj, c) in enumerate(seqB) if jj > j and accB[jj] == acc)
        dl = min(nxt_[0] - 2 if nxt_ else 10 ** 6, NQ - 4 if j < 8 else 10 ** 6); h = hold[j]
        cv = S.chain([f'v_cvt_pk_bf16_f32 v{h+i}, v{acc+2*i}, v{acc+2*i+1}' for i in range(16)], min(q1 + 3, NQ), min(dl, q1 + 60), deps=freed.get(h, []))
        sot = f's_add_u32 s{sPo}, s{sP}, {16384 * j}'
        sts = [f'buffer_store_dwordx4 v[{h+4*rt}:{h+4*rt+3}], v{vL16}, {WSr}, s{sPo} offen offset:{1024 * rt} {stf}' for rt in range(4)]
        if j >= NST:
            deferred.append([sot] + sts); continue
        so = S.add(Op(sot, start=q1, end=NQ, same=lastst, prio=0))
        for rt in range(4):
            qs_ = max(qs_ + cfg.get('stspace', 22), q1 + 8)
            for o_ in cv[4 * rt:4 * rt + 4]: o_.prio = min(o_.prio, qs_ - 2); o_.end = min(o_.end, qs_ + 8)
            lastst = [S.add(Op(sts[rt], 2, [cv[4 * rt + 3], so], qs_, min(qs_ + 12, dl if h == acc else NQ), tag='PART', same=lastst))]
        freed[h] = lastst
    cfg['deferred'] = deferred
    if cfg.get('sched_extra'): cfg['sched_extra'](S, p)
    if cfg.get('nofill'): S.ops = [o for o in S.ops if isinstance(o.text, str) and ('lds' in o.text or 'm0' in o.text or f's{sso},' in o.text)]
    placed = S.run()
    print('ffn schedule: overflow slots', S.over)

    def emit(item, tag):
        if callable(item): item()
        else: e(item, tag=tag)
    barrier(0)
    if cfg.get('pstamp'): pf.stamp(89)
    x0, x1_ = xreads(0), xreads(1)
    for i in (0, 1, 4, 5): e(tread(i // 2, i & 1))
    for t in x0: e(t)
    for i in (2, 3, 6, 7): e(tread(i // 2, i & 1))
    rest = [tread(i // 2, i & 1) for i in range(8, 16)] + x1_
    for n_, t in enumerate(rest): S.fixed[(n_ * 10) // 16].insert(0, (1, t, None))
    seen_ = set()
    for U in range(9):
        assert all(kinfo(K)[1] // 4 in P0[:U + 1] for K in range(4 * U, 4 * U + 4))
    for q in range(NQ + 1):
        if q < NQ:
            bi, K, ft, rt = SEQ[q]; D, kk, _ = kinfo(K)
            d = D + (rt * 2 + ft) * 4; a = AB + 4 * bi
            key_ = (kinfo(K)[2], d); C = f'v[{d}:{d+3}]' if key_ in seen_ else '0'; seen_.add(key_)
            e(f'v_mfma_f32_16x16x32_bf16 v[{d}:{d+3}], v[{a}:{a+3}], {xf(kk, rt)}, {C}')
        if q == NQ and cfg.get('pre_tail'): cfg['pre_tail'](p)
        fx = S.fixed[q]
        lastw = [f for f in fx if callable(f[1]) and q % 16 == 15 and WC]
        for c, item, tag in fx:
            if (c, item, tag) not in lastw: emit(item, tag)
        mid = cfg.get('mid_tail') if q == NQ else None
        for n_, o in enumerate(placed[q]):
            if mid and n_ == 5: mid(p)
            if getattr(o, 'call', False): o.text()
            else: e(o.text() if callable(o.text) else o.text, tag=o.tag)
        for c, item, tag in lastw: emit(item, tag)
```
